```python
import torch

def _softmax(x, axis=-1):
    return torch.softmax(x, dim=axis)
def _gelu(x):
    return torch.nn.functional.gelu(x, approximate="tanh")
def _silu(x):
    return torch.nn.functional.silu(x)
def _sigmoid(x):
    return torch.sigmoid(x)
def _layernorm(x, axis=-1, eps=1e-5):
    m = x.mean(dim=axis, keepdim=True)
    v = x.var(dim=axis, keepdim=True, unbiased=False)
    return (x - m) / torch.sqrt(v + eps)
def _scatter_add(tgt, idx, src, axis=0):
    return tgt.clone().index_add_(axis, idx, src)
def _segment_sum(src, seg, n):
    out = torch.zeros((n,) + src.shape[1:], dtype=src.dtype)
    return out.index_add_(0, seg, src)
def _pad(x, pw):
    flat = tuple(v for pair in reversed(pw) for v in pair)
    return torch.nn.functional.pad(x, flat)

kernel_name = 'gather_scatter__spectral_conv_sgc__graph'

def setup_inputs():

    _w = (lambda a: (lambda t: t.to(torch.bfloat16) if t.is_floating_point() else t)(torch.as_tensor(a)))
    N, deg, D = 50000, 16, 64
    E = N * deg
    rs = (lambda lo, hi, *s: torch.randint(lo, hi, s))(0, N, E).to(torch.int64)
    rd = (lambda lo, hi, *s: torch.randint(lo, hi, s))(0, N, E).to(torch.int64)
    loop = torch.arange(N).to(torch.int64)
    src = torch.cat([rs, loop])
    dst = torch.cat([rd, loop])
    deg_cnt = torch.bincount(dst, minlength=N).to(float)
    dis = 1.0 / (lambda _x: torch.sqrt(torch.as_tensor(_x)))(deg_cnt)
    return {
        "x": _w((lambda *s: torch.randn(*s, dtype=torch.bfloat16) * 0.05)(N, D)),
        "src": _w(src),
        "dst": _w(dst),
        "norm": _w((dis[src] * dis[dst]).to(float)),
        "w": _w((lambda *s: torch.randn(*s, dtype=torch.bfloat16) * 0.05)(D, D)),
    }

def reference(x, src, dst, norm, w):
    N = x.shape[0]
    h = x
    for _ in range(2):
        msg = h[src] * norm[:, None]
        h = _segment_sum(msg, dst, N)
    return h @ w
```

```python
import sys

N = 50000
E = 850000
CH = 3328
NCH = 256
RECB = CH * 8
WS_SEG = 0
WS_REC = 0x40000
WS_IMG = 0x6C0000
WS_H1 = 0xB00000
TBL_BYTES = N * 128
SAFE = 0x0000FFFF

class Opt:
    D = 8
    pf1 = 0
    pf2a = 0
    pf2b = 0
    pf3 = 0
    stamps = False

opt = Opt()
out = []
def emit(s=""):
    out.append(s)
def I(s):
    out.append("    " + s)
def L(s):
    out.append(s + ":")

_uid = [0]
def uid(p):
    _uid[0] += 1
    return f"{p}_{_uid[0]}"

def srd(s, lo, hi, size, add=0):
    if add:
        I(f"s_add_u32 s{s}, s{lo}, {add}")
        I(f"s_addc_u32 s{s+1}, s{hi}, 0")
        I(f"s_and_b32 s{s+1}, s{s+1}, 0xffff")
    else:
        I(f"s_mov_b32 s{s}, s{lo}")
        I(f"s_and_b32 s{s+1}, s{hi}, 0xffff")
    I(f"s_mov_b32 s{s+2}, {size}")
    I(f"s_mov_b32 s{s+3}, 0x20000")

def wave_scan(v):
    for sh in (1, 2, 4, 8):
        I("s_nop 1")
        I(f"v_add_u32_dpp v{v}, v{v}, v{v} row_shr:{sh} row_mask:0xf bank_mask:0xf")
    I("s_nop 1")
    I(f"v_add_u32_dpp v{v}, v{v}, v{v} row_bcast:15 row_mask:0xa bank_mask:0xf")
    I("s_nop 1")
    I(f"v_add_u32_dpp v{v}, v{v}, v{v} row_bcast:31 row_mask:0xc bank_mask:0xf")

def kernel_begin(name):
    emit(f".globl {name}")
    emit(".p2align 8")
    emit(f".type {name},@function")
    L(name)

def kernel_desc(name, vgpr, sgpr):
    acc = (vgpr + 3) // 4 * 4
    emit(f".amdhsa_kernel {name}")
    emit(f"  .amdhsa_next_free_vgpr {vgpr}")
    emit(f"  .amdhsa_next_free_sgpr {sgpr}")
    emit(f"  .amdhsa_accum_offset {acc}")
    emit("  .amdhsa_group_segment_fixed_size 0")
    emit("  .amdhsa_kernarg_size 64")
    emit("  .amdhsa_user_sgpr_count 2")
    emit("  .amdhsa_user_sgpr_kernarg_segment_ptr 1")
    emit("  .amdhsa_system_sgpr_workgroup_id_x 1")
    emit(".end_amdhsa_kernel")

K1_HIST = 0
K1_PRE = 1024
K1_STAGE = 2048
K1_LDS = K1_STAGE + RECB

def gen_k1():
    name = "sgc_part_kernel"
    kernel_begin(name)
    I("s_cmp_ge_u32 s2, 256")
    I("s_cbranch_scc1 K1_END")
    I("s_load_dwordx4 s[4:7], s[0:1], 8")
    I("s_load_dwordx2 s[8:9], s[0:1], 24")
    I("s_load_dwordx2 s[10:11], s[0:1], 56")
    if opt.pf1:
        I("s_load_dwordx2 s[40:41], s[0:1], 0")
    I(f"s_mul_i32 s3, s2, {CH}")
    I("v_lshl_add_u32 v1, v0, 2, s3")
    I("v_lshlrev_b32 v2, 2, v1")
    I("v_lshlrev_b32 v3, 1, v1")
    I("v_mov_b32 v4, 0")
    I("v_lshlrev_b32 v5, 2, v0")
    I("v_cmp_gt_u32 vcc, 0x100, v0")
    I("s_and_saveexec_b64 s[12:13], vcc")
    I(f"ds_write_b32 v5, v4 offset:{K1_HIST}")
    I("s_mov_b64 exec, s[12:13]")
    I("v_readfirstlane_b32 s15, v0")
    I("s_waitcnt lgkmcnt(0)")
    srd(16, 6, 7, E * 4)
    srd(20, 4, 5, E * 4)
    srd(24, 8, 9, E * 2)
    I("buffer_load_dwordx4 v[8:11], v2, s[16:19], 0 offen")
    I("buffer_load_dwordx4 v[12:15], v2, s[20:23], 0 offen")
    I("buffer_load_dwordx2 v[16:17], v3, s[24:27], 0 offen")
    npf = opt.pf1
    if npf:
        srd(44, 40, 41, TBL_BYTES)
        I("s_lshr_b32 s42, s2, 3")
        I(f"s_mul_i32 s42, s42, {npf*832*16}")
        I("v_lshlrev_b32 v40, 4, v0")
        I("v_add_u32 v40, s42, v40")
        for i in range(npf):
            I(f"s_mov_b32 s43, {i*832*16}")
            I("buffer_load_dwordx4 v[44:47], v40, s[44:47], s43 offen")
    srd(28, 10, 11, NCH * 1024, WS_SEG)
    srd(32, 10, 11, NCH * RECB, WS_REC)
    I("s_lshr_b32 s15, s15, 6")
    I(f"s_mov_b32 s14, {E}")
    I("s_mov_b32 s36, 0xffff0000")
    I("s_barrier")
    I("v_cmp_gt_u32 vcc, s14, v1")
    I("s_and_saveexec_b64 s[12:13], vcc")
    I("s_mov_b64 s[38:39], exec")
    I("v_mov_b32 v22, 1")
    I(f"s_waitcnt vmcnt({2+npf})")
    for i in range(4):
        I(f"v_and_b32 v{18+i}, 0xff, v{8+i}")
        I(f"v_lshlrev_b32 v{18+i}, 2, v{18+i}")
    for i in range(4):
        I(f"ds_add_rtn_u32 v{24+i}, v{18+i}, v22 offset:{K1_HIST}")
    I(f"s_waitcnt vmcnt({npf})")
    I("v_lshl_or_b32 v48, v16, 16, v12")
    I("v_and_or_b32 v50, v16, s36, v13")
    I("v_lshl_or_b32 v52, v17, 16, v14")
    I("v_and_or_b32 v54, v17, s36, v15")
    for i in range(4):
        I(f"v_lshrrev_b32 v{49+2*i}, 8, v{8+i}")
    I("s_waitcnt lgkmcnt(0)")
    I("s_mov_b64 exec, s[12:13]")
    I("s_barrier")
    I("s_cmp_lg_u32 s15, 0")
    I("s_cbranch_scc1 K1_NOSCAN")
    I("v_lshlrev_b32 v5, 4, v0")
    I(f"ds_read_b128 v[28:31], v5 offset:{K1_HIST}")
    I("s_waitcnt lgkmcnt(0)")
    I("v_add_u32 v32, v28, v29")
    I("v_add_u32 v33, v32, v30")
    I("v_add_u32 v34, v33, v31")
    I("v_mov_b32 v35, v34")
    wave_scan(35)
    I("v_sub_u32 v36, v35, v34")
    I("v_add_u32 v37, v36, v28")
    I("v_add_u32 v38, v36, v32")
    I("v_add_u32 v39, v36, v33")
    I(f"ds_write_b128 v5, v[36:39] offset:{K1_PRE}")
    I("v_lshl_or_b32 v28, v37, 16, v36")
    I("v_lshl_or_b32 v29, v38, 16, v37")
    I("v_lshl_or_b32 v30, v39, 16, v38")
    I("v_lshl_or_b32 v31, v35, 16, v39")
    I("s_lshl_b32 s37, s2, 10")
    I("buffer_store_dwordx4 v[28:31], v5, s[28:31], s37 offen")
    I("s_waitcnt lgkmcnt(0)")
    L("K1_NOSCAN")
    I("s_barrier")
    I("s_mov_b64 exec, s[38:39]")
    for i in range(4):
        I(f"ds_read_b32 v{28+i}, v{18+i} offset:{K1_PRE}")
    I("s_waitcnt lgkmcnt(0)")
    for i in range(4):
        I(f"v_add_u32 v{28+i}, v{28+i}, v{24+i}")
        I(f"v_lshlrev_b32 v{28+i}, 3, v{28+i}")
    for i in range(4):
        I(f"ds_write_b64 v{28+i}, v[{48+2*i}:{49+2*i}] offset:{K1_STAGE}")
    I("s_waitcnt lgkmcnt(0)")
    I("s_mov_b64 exec, s[12:13]")
    I("s_barrier")
    I("v_lshlrev_b32 v5, 4, v0")
    I(f"ds_read_b128 v[8:11], v5 offset:{K1_STAGE}")
    I(f"ds_read_b128 v[12:15], v5 offset:{K1_STAGE + RECB//2}")
    I(f"s_mul_i32 s37, s2, {RECB}")
    I(f"s_add_u32 s42, s37, {RECB//2}")
    I("s_waitcnt lgkmcnt(1)")
    I("buffer_store_dwordx4 v[8:11], v5, s[32:35], s37 offen")
    I("s_waitcnt lgkmcnt(0)")
    I("buffer_store_dwordx4 v[12:15], v5, s[32:35], s42 offen")
    L("K1_END")
    I("s_endpgm")
    return name, 56, 48

L_SB = 0x000
L_SU = 0x080
L_ORD = 0x100
L_HEAVY = 0x1F0
L_LIST = 0x200
IMG_BYTES = 0x4000
LIST_CAP = IMG_BYTES - L_LIST
L_CNT = 0x4000
L_NB = 0x4400
L_H2 = 0x4800
L_SC2 = 0x4900
L_WM = 0x4A00
K2_ZERO_END = 0x4B00
K2_ACC = 0x5000
ACC_BYTES = 208 * 256
K2_LDS = K2_ACC + ACC_BYTES
L_WL = 0x4000
L_SCR = 0x6000
K3_ACC = 0xD000
K3_LDS = K3_ACC + ACC_BYTES

V_TID = 0
V_LANE = 1
V_G4 = 2
V_F16 = 3
V_SELA = 4
V_SELB = 5
V_PTRC = 6
V_PTRI = 7
V_N = 8
V_A0 = 9
V_A1 = 10
V_TMP = 11
V_ACC = 12
V_T = 20
V_RC = 24
V_RI = 28
V_DATA = 32

def hop_consts(s128):
    I(f"v_lshrrev_b32 v{V_G4}, 3, v{V_LANE}")
    I(f"v_lshlrev_b32 v{V_G4}, 2, v{V_G4}")
    I(f"v_and_b32 v{V_F16}, 7, v{V_LANE}")
    I(f"v_lshlrev_b32 v{V_F16}, 4, v{V_F16}")
    I(f"v_and_b32 v{V_TMP}, 3, v{V_LANE}")
    I(f"v_mov_b32 v{V_SELA}, 0x0c0c0c0c")
    I(f"v_mov_b32 v{V_SELB}, 0x0c0c0c0c")
    I(f"v_mov_b32 v{V_A0}, 0x0c0c0302")
    I(f"v_mov_b32 v{V_A1}, 0x03020c0c")
    for val, sel, lit in ((0, V_SELA, V_A0), (1, V_SELA, V_A1), (2, V_SELB, V_A0), (3, V_SELB, V_A1)):
        I(f"v_cmp_eq_u32 vcc, {val}, v{V_TMP}")
        I("s_nop 1")
        I(f"v_cndmask_b32 v{sel}, v{sel}, v{lit}, vcc")
    I(f"s_mov_b32 s{s128}, 128")

def rd2(dst, ptr, unit):
    o = unit * 16
    assert o + 8 <= 255
    I(f"ds_read2_b32 v[{dst}:{dst+1}], v{ptr} offset0:{o} offset1:{o+8}")

def consume(r, p, tbl_unused, filler=None):
    rc = V_RC + 2 * p
    I(f"v_perm_b32 v{V_T+0}, v{rc}, v{rc}, v{V_SELA}")
    I(f"v_perm_b32 v{V_T+1}, v{rc}, v{rc}, v{V_SELB}")
    I(f"v_perm_b32 v{V_T+2}, v{rc+1}, v{rc+1}, v{V_SELA}")
    I(f"v_perm_b32 v{V_T+3}, v{rc+1}, v{rc+1}, v{V_SELB}")

def mfmas(r):
    d = V_DATA + 8 * r
    a = V_ACC
    I(f"v_mfma_f32_4x4x4_16b_bf16 v[{a}:{a+3}], v[{V_T}:{V_T+1}], v[{d}:{d+1}], v[{a}:{a+3}]")
    I(f"v_mfma_f32_4x4x4_16b_bf16 v[{a+4}:{a+7}], v[{V_T}:{V_T+1}], v[{d+2}:{d+3}], v[{a+4}:{a+7}]")
    I("s_nop 0")
    I(f"v_mfma_f32_4x4x4_16b_bf16 v[{a}:{a+3}], v[{V_T+2}:{V_T+3}], v[{d+4}:{d+5}], v[{a}:{a+3}]")
    I(f"v_mfma_f32_4x4x4_16b_bf16 v[{a+4}:{a+7}], v[{V_T+2}:{V_T+3}], v[{d+6}:{d+7}], v[{a+4}:{a+7}]")

def hop_slice(pfx, tbl, s128, sU, sRem):
    D = opt.D
    assert D % 2 == 0
    for i in range(8):
        I(f"v_mov_b32 v{V_ACC+i}, 0")
    I(f"s_cmp_eq_u32 s{sU}, 0")
    I(f"s_cbranch_scc1 {pfx}_EPI")
    for r in range(D):
        rd2(V_DATA + 8 * r, V_PTRC, r)
    rd2(V_RC, V_PTRC, 0)
    I(f"v_add_u32 v{V_PTRI}, {D*64}, v{V_PTRC}")
    I(f"s_mov_b32 s{sRem}, s{sU}")
    I("s_waitcnt lgkmcnt(0)")
    rd2(V_RI, V_PTRI, 0)
    for r in range(D):
        d = V_DATA + 8 * r
        if r > 0:
            I(f"s_cmp_le_u32 s{sU}, {r}")
            I(f"s_cbranch_scc1 {pfx}_DR0")
        I(f"v_mad_u32_u16 v{V_A0}, v{d}, s{s128}, v{V_F16}")
        I(f"v_mad_u32_u16 v{V_A1}, v{d+1}, s{s128}, v{V_F16}")
        I(f"buffer_load_dwordx4 v[{d}:{d+3}], v{V_A0}, s[{tbl}:{tbl+3}], 0 offen")
        I(f"buffer_load_dwordx4 v[{d+4}:{d+7}], v{V_A1}, s[{tbl}:{tbl+3}], 0 offen")
    I(f"s_sub_u32 s{sRem}, s{sU}, {D}")
    I(f"s_mov_b32 s{sU}, {D}")
    I(f"s_cmp_eq_u32 s{sRem}, 0")
    I(f"s_cbranch_scc1 {pfx}_DR0")
    L(f"{pfx}_MAIN")
    for r in range(D):
        p = r & 1
        d = V_DATA + 8 * r
        I("s_waitcnt lgkmcnt(0)")
        rd2(V_RC + 2 * (p ^ 1), V_PTRC, r + 1)
        rd2(V_RI + 2 * (p ^ 1), V_PTRI, r + 1)
        consume(r, p, tbl)
        ri = V_RI + 2 * p
        I(f"v_mad_u32_u16 v{V_A0}, v{ri}, s{s128}, v{V_F16}")
        I(f"v_mad_u32_u16 v{V_A1}, v{ri+1}, s{s128}, v{V_F16}")
        I(f"s_waitcnt vmcnt({2*(D-1)})")
        mfmas(r)
        I(f"buffer_load_dwordx4 v[{d}:{d+3}], v{V_A0}, s[{tbl}:{tbl+3}], 0 offen")
        I(f"buffer_load_dwordx4 v[{d+4}:{d+7}], v{V_A1}, s[{tbl}:{tbl+3}], 0 offen")
        if r == D - 1:
            I(f"v_add_u32 v{V_PTRC}, {D*64}, v{V_PTRC}")
            I(f"v_add_u32 v{V_PTRI}, {D*64}, v{V_PTRI}")
        I(f"s_sub_u32 s{sRem}, s{sRem}, 1")
        I(f"s_cmp_eq_u32 s{sRem}, 0")
        if r == D - 1:
            I(f"s_cbranch_scc0 {pfx}_MAIN")
        else:
            I(f"s_cbranch_scc1 {pfx}_DR{r+1}")
    for q in range(2 * D - 1):
        r = q % D
        p = q & 1
        if q < D:
            L(f"{pfx}_DR{q}")
            I("s_waitcnt vmcnt(0)") if True else None
        I("s_waitcnt lgkmcnt(0)")
        if q + 1 <= 2 * D - 2:
            rd2(V_RC + 2 * (p ^ 1), V_PTRC, q + 1)
        consume(r, p, tbl)
        I(f"s_sub_u32 s{sU}, s{sU}, 1")
        I("s_nop 0")
        mfmas(r)
        if q < 2 * D - 2:
            I(f"s_cmp_eq_u32 s{sU}, 0")
            I(f"s_cbranch_scc1 {pfx}_EPI")
    L(f"{pfx}_EPI")

def heavy_path(pfx, tbl, seg_lo_hi, rec_srd, sB, sW, acc_base, nwaves):
    I(f"v_mov_b32 v32, 0")
    I(f"v_mov_b32 v33, 0")
    I(f"v_mov_b32 v34, 0")
    I(f"v_mov_b32 v35, 0")
    I(f"v_lshlrev_b32 v36, 4, v{V_TID}")
    I(f"v_add_u32 v36, {acc_base}, v36")
    n16 = ACC_BYTES // 16
    for i in range(3):
        I(f"ds_write_b128 v36, v[32:35] offset:{i*16384}")
    I(f"v_cmp_gt_u32 vcc, {n16 - 3072}, v{V_TID}")
    I("s_and_saveexec_b64 s[60:61], vcc")
    I(f"ds_write_b128 v36, v[32:35] offset:{3*16384}")
    I("s_mov_b64 exec, s[60:61]")
    I("s_waitcnt lgkmcnt(0)")
    I("s_barrier")
    I(f"s_mov_b32 s62, s{sW}")
    I(f"v_lshrrev_b32 v37, 3, v{V_LANE}")
    I(f"s_lshl_b32 s63, s{sB}, 2")
    L(f"{pfx}_HC")
    I("s_lshl_b32 s64, s62, 10")
    I("s_add_u32 s64, s64, s63")
    I(f"s_add_u32 s66, s{seg_lo_hi}, s64")
    I(f"s_addc_u32 s67, s{seg_lo_hi+1}, 0")
    I("s_load_dword s68, s[66:67], 0")
    I(f"s_mul_i32 s69, s62, {RECB}")
    I("s_waitcnt lgkmcnt(0)")
    I("s_and_b32 s70, s68, 0xffff")
    I("s_lshr_b32 s71, s68, 16")
    L(f"{pfx}_HI")
    I("s_cmp_ge_u32 s70, s71")
    I(f"s_cbranch_scc1 {pfx}_HN")
    I("v_add_u32 v38, s70, v37")
    I("v_cmp_gt_u32 vcc, s71, v38")
    I("s_and_saveexec_b64 s[60:61], vcc")
    I("v_lshlrev_b32 v39, 3, v38")
    I(f"buffer_load_dwordx2 v[40:41], v39, s[{rec_srd}:{rec_srd+3}], s69 offen")
    I("s_waitcnt vmcnt(0)")
    I("v_and_b32 v42, 0xffff, v40")
    I("v_lshlrev_b32 v42, 7, v42")
    I(f"v_add_u32 v42, v42, v{V_F16}")
    I(f"buffer_load_dwordx4 v[44:47], v42, s[{tbl}:{tbl+3}], 0 offen")
    I("v_and_b32 v43, 0xffff0000, v40")
    I("v_lshlrev_b32 v48, 8, v41")
    I(f"v_lshlrev_b32 v49, 1, v{V_F16}")
    I("v_add_u32 v48, v48, v49")
    I(f"v_add_u32 v48, {acc_base}, v48")
    I("s_waitcnt vmcnt(0)")
    for i in range(4):
        I(f"v_lshlrev_b32 v50, 16, v{44+i}")
        I(f"v_and_b32 v51, 0xffff0000, v{44+i}")
        I("v_mul_f32 v50, v50, v43")
        I("v_mul_f32 v51, v51, v43")
        I(f"ds_add_f32 v48, v50 offset:{8*i}")
        I(f"ds_add_f32 v48, v51 offset:{8*i + 4}")
    I("s_mov_b64 exec, s[60:61]")
    I("s_add_u32 s70, s70, 8")
    I(f"s_branch {pfx}_HI")
    L(f"{pfx}_HN")
    I(f"s_add_u32 s62, s62, {nwaves}")
    I("s_cmp_lt_u32 s62, 256")
    I(f"s_cbranch_scc1 {pfx}_HC")
    I("s_waitcnt lgkmcnt(0)")
    I("s_barrier")

def heavy_read_acc(acc_base):
    I(f"v_lshlrev_b32 v{V_A0}, 8, v{V_N}")
    I(f"v_lshlrev_b32 v{V_A1}, 1, v{V_F16}")
    I(f"v_add_u32 v{V_A0}, v{V_A0}, v{V_A1}")
    I(f"v_add_u32 v{V_A0}, {acc_base}, v{V_A0}")
    I(f"ds_read_b128 v[{V_ACC}:{V_ACC+3}], v{V_A0}")
    I(f"ds_read_b128 v[{V_ACC+4}:{V_ACC+7}], v{V_A0} offset:16")
    I("s_waitcnt lgkmcnt(0)")

def common_prolog(end_label):
    I("s_cmp_ge_u32 s2, 256")
    I(f"s_cbranch_scc1 {end_label}")

def gen_k2():
    name = "sgc_sort_hop1_kernel"
    kernel_begin(name)
    common_prolog("K2_END")
    I("s_load_dwordx2 s[4:5], s[0:1], 0")
    I("s_load_dwordx2 s[6:7], s[0:1], 56")
    I("s_and_b32 s8, s2, 7")
    I("s_lshl_b32 s8, s8, 5")
    I("s_lshr_b32 s9, s2, 3")
    I("s_add_u32 s8, s8, s9")
    I(f"v_readfirstlane_b32 s10, v0")
    I(f"v_and_b32 v{V_LANE}, 63, v0")
    I("v_lshlrev_b32 v32, 4, v0")
    I(f"v_mov_b32 v33, {SAFE}")
    I("v_cmp_gt_u32 vcc, 32, v0")
    I("s_lshr_b32 s10, s10, 6")
    I("s_nop 0")
    I("v_cndmask_b32 v36, v33, 0, vcc" if False else "v_cndmask_b32_e64 v36, v33, 0, vcc")
    I("v_mov_b32 v37, v36")
    I("v_mov_b32 v38, v36")
    I("v_mov_b32 v39, v36")
    I("ds_write_b128 v32, v[36:39]")
    I("v_mov_b32 v40, 0")
    I("v_mov_b32 v41, 0")
    I("v_mov_b32 v42, 0")
    I("v_mov_b32 v43, 0")
    I(f"v_cmp_gt_u32 vcc, {(K2_ZERO_END-L_CNT)//16}, v0")
    I("s_and_saveexec_b64 s[12:13], vcc")
    I(f"ds_write_b128 v32, v[40:43] offset:{L_CNT}")
    I("s_mov_b64 exec, s[12:13]")
    I(f"v_lshrrev_b32 v44, 4, v{V_LANE}")
    I("s_lshl_b32 s11, s10, 2")
    I("v_add_u32 v44, s11, v44")
    I("s_lshl_b32 s11, s8, 2")
    I("v_lshl_add_u32 v45, v44, 10, s11")
    I(f"s_mov_b32 s14, {RECB}")
    I("v_mul_u32_u24 v46, s14, v44")
    I(f"v_and_b32 v47, 15, v{V_LANE}")
    I("s_waitcnt lgkmcnt(0)")
    srd(16, 6, 7, NCH * 1024, WS_SEG)
    srd(20, 6, 7, NCH * RECB, WS_REC)
    srd(24, 4, 5, TBL_BYTES)
    srd(28, 6, 7, TBL_BYTES, WS_H1)
    srd(32, 6, 7, 256 * IMG_BYTES, WS_IMG)
    for r in range(4):
        I(f"s_mov_b32 s{36+r}, {r*65536}")
        I(f"s_mov_b32 s{40+r}, {r*64*RECB}")
    for r in range(4):
        I(f"buffer_load_dword v{48+r}, v45, s[16:19], s{36+r} offen")
    na = opt.pf2a
    if na or opt.pf2b:
        I("s_lshr_b32 s15, s2, 3")
        I(f"s_mul_i32 s15, s15, {(na+opt.pf2b)*16384}")
        I(f"s_add_u32 s15, s15, {opt.pf1*32*832*16}")
        I("v_lshlrev_b32 v124, 4, v0")
        I("v_add_u32 v124, s15, v124")
    for i in range(na):
        I(f"s_mov_b32 s15, {i*16384}")
        I("buffer_load_dwordx4 v[120:123], v124, s[24:27], s15 offen")
    hop_consts(44)
    SM = lambda t, r: 46 + (t * 4 + r) * 2
    VOFF = lambda r: 52 + r
    VR = lambda t, r: 56 + (t * 4 + r) * 2
    VK = lambda t, r: 80 + t * 4 + r
    I(f"s_waitcnt vmcnt({na})")
    I("s_mov_b64 s[70:71], 0")
    for r in range(4):
        I(f"v_and_b32 v92, 0xffff, v{48+r}")
        I(f"v_lshrrev_b32 v93, 16, v{48+r}")
        I("v_add_u32 v92, v92, v47")
        I(f"v_lshl_add_u32 v{VOFF(r)}, v92, 3, v46")
        I(f"v_cmp_lt_u32 s[{SM(0,r)}:{SM(0,r)+1}], v92, v93")
        I("v_add_u32 v92, 16, v92")
        I(f"v_cmp_lt_u32 s[{SM(1,r)}:{SM(1,r)+1}], v92, v93")
        I("v_add_u32 v92, 16, v92")
        I(f"v_cmp_lt_u32 s[{SM(2,r)}:{SM(2,r)+1}], v92, v93")
        I("v_add_u32 v92, 16, v92")
        I("v_cmp_lt_u32 vcc, v92, v93")
        I("s_or_b64 s[70:71], s[70:71], vcc")
    I("s_mov_b64 s[72:73], exec")
    for t in range(3):
        for r in range(4):
            lab = uid("K2_SK")
            I(f"s_mov_b64 exec, s[{SM(t,r)}:{SM(t,r)+1}]")
            I(f"s_cbranch_execz {lab}")
            off = f" offset:{128*t}" if t else ""
            I(f"buffer_load_dwordx2 v[{VR(t,r)}:{VR(t,r)+1}], v{VOFF(r)}, s[20:23], s{40+r} offen{off}")
            L(lab)
    I("s_mov_b64 exec, s[72:73]")
    nb = opt.pf2b
    for i in range(nb):
        I(f"s_mov_b32 s15, {(na+i)*16384}")
        I("buffer_load_dwordx4 v[120:123], v124, s[24:27], s15 offen")
    I("v_mov_b32 v94, 1")
    I("s_waitcnt lgkmcnt(0)")
    I("s_barrier")
    I(f"s_waitcnt vmcnt({nb})")
    for t in range(3):
        for r in range(4):
            lab = uid("K2_SC")
            I(f"s_mov_b64 exec, s[{SM(t,r)}:{SM(t,r)+1}]")
            I(f"s_cbranch_execz {lab}")
            hi = VR(t, r) + 1
            I(f"v_lshlrev_b32 v{hi}, 2, v{hi}")
            I(f"ds_add_rtn_u32 v{VK(t,r)}, v{hi}, v94 offset:{L_CNT}")
            L(lab)
    I("s_mov_b64 exec, s[72:73]")
    I("s_cmp_eq_u64 s[70:71], 0")
    I("s_cbranch_scc1 K2_NOH")
    I(f"v_mov_b32 v95, {L_HEAVY}")
    I("ds_write_b32 v95, v94")
    L("K2_NOH")
    I("s_waitcnt lgkmcnt(0)")
    I("s_barrier")
    I("s_cmp_lg_u32 s10, 0")
    I("s_cbranch_scc1 K2_NOSORT")
    C = lambda i: 96 + i
    Dg = lambda i: 100 + i
    R2 = lambda i: 104 + i
    I(f"v_lshlrev_b32 v108, 2, v{V_LANE}")
    for i in range(4):
        I(f"ds_read_b32 v{C(i)}, v108 offset:{L_CNT + 256*i}")
    I("s_mov_b32 s74, 0xffff")
    I("s_mov_b32 s75, 0")
    I("s_waitcnt lgkmcnt(0)")
    for i in range(4):
        I(f"v_min_u32 v{Dg(i)}, 63, v{C(i)}")
        I(f"v_lshlrev_b32 v{Dg(i)}, 2, v{Dg(i)}")
    for i in range(4):
        if i == 3:
            I("s_mov_b64 exec, s[74:75]")
        I(f"ds_add_rtn_u32 v{R2(i)}, v{Dg(i)}, v94 offset:{L_H2}")
    I("s_mov_b64 exec, s[72:73]")
    I(f"ds_read_b32 v109, v108 offset:{L_H2}")
    I("s_waitcnt lgkmcnt(0)")
    I("v_mov_b32 v110, v109")
    wave_scan(110)
    I("v_sub_u32 v110, v110, v109")
    I(f"ds_write_b32 v108, v110 offset:{L_SC2}")
    for i in range(4):
        I(f"ds_read_b32 v{112+i}, v{Dg(i)} offset:{L_SC2}")
    I("s_waitcnt lgkmcnt(0)")
    for i in range(4):
        I(f"v_add_u32 v{R2(i)}, v{R2(i)}, v{112+i}")
        I(f"v_lshrrev_b32 v{112+i}, 3, v{R2(i)}")
        I(f"v_lshlrev_b32 v{112+i}, 2, v{112+i}")
        I(f"v_add_u32 v{Dg(i)}, {64*i}, v{V_LANE}")
    for i in range(4):
        if i == 3:
            I("s_mov_b64 exec, s[74:75]")
        I(f"ds_write_b8 v{R2(i)}, v{Dg(i)} offset:{L_ORD}")
        I(f"ds_max_u32 v{112+i}, v{C(i)} offset:{L_WM}")
    I("s_mov_b64 exec, s[72:73]")
    I(f"v_lshrrev_b32 v116, 1, v{V_LANE}")
    I("v_sub_u32 v117, 25, v116")
    I(f"v_and_b32 v118, 1, v{V_LANE}")
    I("v_cmp_eq_u32 vcc, 1, v118")
    I("s_nop 1")
    I("v_cndmask_b32 v116, v117, v116, vcc")
    I(f"v_cmp_gt_u32 vcc, 26, v{V_LANE}")
    I("v_mov_b32 v117, 40")
    I("s_nop 0")
    I("v_cndmask_b32 v116, v117, v116, vcc")
    I("v_lshlrev_b32 v116, 2, v116")
    I(f"ds_read_b32 v117, v116 offset:{L_WM}")
    I("s_waitcnt lgkmcnt(0)")
    I("v_add_u32 v117, 1, v117")
    I("v_lshrrev_b32 v117, 1, v117")
    I("v_lshlrev_b32 v118, 6, v117")
    I("v_mov_b32 v119, v118")
    wave_scan(119)
    I("s_nop 1")
    I("v_readlane_b32 s76, v119, 63")
    I("v_sub_u32 v119, v119, v118")
    I(f"v_add_u32 v119, {L_LIST}, v119")
    I(f"v_cmp_gt_u32 vcc, 26, v{V_LANE}")
    I("s_and_saveexec_b64 s[12:13], vcc")
    I(f"ds_write_b32 v116, v119 offset:{L_SB}")
    I(f"ds_write_b32 v116, v117 offset:{L_SU}")
    I("s_mov_b64 exec, s[12:13]")
    I(f"s_cmp_le_u32 s76, {LIST_CAP}")
    I("s_cbranch_scc1 K2_CAPOK")
    I(f"v_mov_b32 v95, {L_HEAVY}")
    I("ds_write_b32 v95, v94")
    L("K2_CAPOK")
    for i in range(4):
        I(f"ds_read_b32 v{96+i}, v{112+i} offset:{L_SB}")
    I("s_waitcnt lgkmcnt(0)")
    for i in range(4):
        I(f"v_and_b32 v{R2(i)}, 7, v{R2(i)}")
        I(f"v_lshl_add_u32 v{96+i}, v{R2(i)}, 2, v{96+i}")
        I(f"v_lshlrev_b32 v{Dg(i)}, 2, v{Dg(i)}")
    for i in range(4):
        if i == 3:
            I("s_mov_b64 exec, s[74:75]")
        I(f"ds_write_b32 v{Dg(i)}, v{96+i} offset:{L_NB}")
    I("s_mov_b64 exec, s[72:73]")
    I("s_waitcnt lgkmcnt(0)")
    L("K2_NOSORT")
    I("s_barrier")
    I(f"v_mov_b32 v95, {L_HEAVY}")
    I("ds_read_b32 v95, v95")
    for t in range(3):
        for r in range(4):
            lab = uid("K2_SP")
            I(f"s_mov_b64 exec, s[{SM(t,r)}:{SM(t,r)+1}]")
            I(f"s_cbranch_execz {lab}")
            hi = VR(t, r) + 1
            I(f"ds_read_b32 v{hi}, v{hi} offset:{L_NB}")
            L(lab)
    I("s_mov_b64 exec, s[72:73]")
    I("s_waitcnt lgkmcnt(0)")
    I("v_readfirstlane_b32 s77, v95")
    I("s_cmp_lg_u32 s77, 0")
    I("s_cbranch_scc1 K2_NOPLACE")
    for t in range(3):
        for r in range(4):
            lab = uid("K2_SW")
            I(f"s_mov_b64 exec, s[{SM(t,r)}:{SM(t,r)+1}]")
            I(f"s_cbranch_execz {lab}")
            hi = VR(t, r) + 1
            I(f"v_lshl_add_u32 v{hi}, v{VK(t,r)}, 5, v{hi}")
            I(f"ds_write_b32 v{hi}, v{VR(t,r)}")
            L(lab)
    I("s_mov_b64 exec, s[72:73]")
    L("K2_NOPLACE")
    I("s_waitcnt lgkmcnt(0)")
    I("s_barrier")
    I("s_cmp_lt_u32 s10, 13")
    I("s_cbranch_scc1 K2_WORK")
    I("s_sub_u32 s11, s10, 13")
    I("s_lshl_b32 s11, s11, 6")
    I(f"v_add_u32 v32, s11, v{V_LANE}")
    I("v_lshlrev_b32 v32, 4, v32")
    I(f"s_mul_i32 s11, s8, {IMG_BYTES}")
    for i in range(6):
        d = 36 + 4 * i
        if i < 5:
            I(f"ds_read_b128 v[{d}:{d+3}], v32 offset:{i*3072}")
        else:
            I("v_cmp_gt_u32 vcc, 1024, v32")
            I("s_and_saveexec_b64 s[12:13], vcc")
            I(f"ds_read_b128 v[{d}:{d+3}], v32 offset:{i*3072}")
            I("s_mov_b64 exec, s[12:13]")
    I("s_waitcnt lgkmcnt(0)")
    for i in range(6):
        d = 36 + 4 * i
        I(f"s_add_u32 s12, s11, {i*3072}")
        if i == 5:
            I("s_and_b64 exec, exec, vcc")
            lab = uid("K2_WO")
            I(f"s_cbranch_execz {lab}")
        I(f"buffer_store_dwordx4 v[{d}:{d+3}], v32, s[32:35], s12 offen")
        if i == 5:
            L(lab)
            I("s_mov_b64 exec, s[72:73]")
    I("s_cmp_eq_u32 s77, 0")
    I("s_cbranch_scc1 K2_END")
    L("K2_WORK")
    I("s_cmp_eq_u32 s77, 0")
    I("s_cbranch_scc1 K2_FAST")
    heavy_path("K2H", 24, 6, 20, 8, 10, K2_ACC, 16)
    I("s_cmp_ge_u32 s10, 13")
    I("s_cbranch_scc1 K2_END")
    L("K2_FAST")
    I("s_sub_u32 s78, 25, s10")
    I("s_mov_b32 s79, 0")
    L("K2_SLICE")
    I("s_lshl_b32 s80, s78, 3")
    I(f"v_lshrrev_b32 v{V_N}, 2, v{V_G4}")
    I(f"v_add_u32 v{V_N}, s80, v{V_N}")
    I("s_cmp_lg_u32 s77, 0")
    I("s_cbranch_scc1 K2_HRD")
    I("s_lshl_b32 s80, s78, 2")
    I(f"v_mov_b32 v{V_A0}, s80")
    I(f"ds_read_b32 v{V_A1}, v{V_A0} offset:{L_SU}")
    I(f"ds_read_b32 v{V_PTRC}, v{V_A0} offset:{L_SB}")
    I(f"ds_read_u8 v{V_N}, v{V_N} offset:{L_ORD}")
    I("s_waitcnt lgkmcnt(0)")
    I(f"v_readfirstlane_b32 s81, v{V_A1}")
    I(f"v_add_u32 v{V_PTRC}, v{V_PTRC}, v{V_G4}")
    I("s_nop 0")
    I("s_min_u32 s81, s81, 0x100")
    hop_slice("K2S", 24, 44, 81, 82)
    I("s_nop 4")
    I("s_branch K2_STORE")
    L("K2_HRD")
    heavy_read_acc(K2_ACC)
    L("K2_STORE")
    for i in range(4):
        I(f"v_cvt_pk_bf16_f32 v{V_T+i}, v{V_ACC+2*i}, v{V_ACC+2*i+1}")
    I(f"v_lshlrev_b32 v{V_A0}, 15, v{V_N}")
    I("s_lshl_b32 s80, s8, 7")
    I(f"v_add3_u32 v{V_A0}, v{V_A0}, s80, v{V_F16}")
    I(f"buffer_store_dwordx4 v[{V_T}:{V_T+3}], v{V_A0}, s[28:31], 0 offen")
    I("s_cmp_lg_u32 s79, 0")
    I("s_cbranch_scc1 K2_END")
    I("s_mov_b32 s79, 1")
    I("s_mov_b32 s78, s10")
    I("s_nop 1")
    I("s_branch K2_SLICE")
    L("K2_END")
    I("s_endpgm")
    return name, 128, 96

def gen_k3():
    name = "sgc_hop2_kernel"
    kernel_begin(name)
    common_prolog("K3_END")
    I("s_load_dwordx4 s[4:7], s[0:1], 32")
    I("s_load_dwordx2 s[12:13], s[0:1], 56")
    I("s_and_b32 s8, s2, 7")
    I("s_lshl_b32 s8, s8, 5")
    I("s_lshr_b32 s9, s2, 3")
    I("s_add_u32 s8, s8, s9")
    I("v_readfirstlane_b32 s10, v0")
    I(f"v_and_b32 v{V_LANE}, 63, v0")
    I("v_lshlrev_b32 v32, 4, v0")
    I(f"s_mul_i32 s11, s8, {IMG_BYTES}")
    I("s_lshr_b32 s10, s10, 6")
    I("s_waitcnt lgkmcnt(0)")
    srd(32, 12, 13, 256 * IMG_BYTES, WS_IMG)
    srd(16, 4, 5, 8192)
    srd(24, 12, 13, TBL_BYTES, WS_H1)
    srd(28, 6, 7, TBL_BYTES)
    srd(20, 12, 13, NCH * RECB, WS_REC)
    I("buffer_load_dwordx4 v[36:39], v32, s[32:35], s11 offen")
    I("buffer_load_dwordx4 v[40:43], v32, s[16:19], 0 offen")
    n3 = opt.pf3
    if n3:
        I("s_lshr_b32 s15, s2, 3")
        I(f"s_mul_i32 s15, s15, {n3*16384}")
        I("v_add_u32 v124, s15, v32")
        for i in range(n3):
            I(f"s_mov_b32 s15, {i*16384}")
            I("buffer_load_dwordx4 v[120:123], v124, s[24:27], s15 offen")
    hop_consts(44)
    I(f"s_waitcnt vmcnt({1+n3})")
    I("ds_write_b128 v32, v[36:39]")
    I(f"s_waitcnt vmcnt({n3})")
    I("v_cmp_gt_u32 vcc, 0x200, v0")
    I("s_and_saveexec_b64 s[72:73], vcc")
    I(f"ds_write_b128 v32, v[40:43] offset:{L_WL}")
    I("s_mov_b64 exec, s[72:73]")
    I("s_waitcnt lgkmcnt(0)")
    I("s_barrier")
    I(f"v_mov_b32 v33, {L_HEAVY}")
    I("ds_read_b32 v33, v33")
    I("s_waitcnt lgkmcnt(0)")
    I("v_readfirstlane_b32 s77, v33")
    I("s_cmp_eq_u32 s77, 0")
    I("s_cbranch_scc1 K3_LIGHT")
    heavy_path("K3H", 24, 12, 20, 8, 10, K3_ACC, 16)
    L("K3_LIGHT")
    I("s_cmp_ge_u32 s10, 13")
    I("s_cbranch_scc1 K3_END")
    I(f"s_lshl_b32 s83, s10, 11")
    I(f"s_add_u32 s83, s83, {L_SCR}")
    I("s_sub_u32 s78, 25, s10")
    I("s_mov_b32 s79, 0")
    L("K3_SLICE")
    I("s_lshl_b32 s80, s78, 3")
    I(f"v_lshrrev_b32 v{V_N}, 2, v{V_G4}")
    I(f"v_add_u32 v{V_N}, s80, v{V_N}")
    I("s_cmp_lg_u32 s77, 0")
    I("s_cbranch_scc1 K3_HRD")
    I("s_lshl_b32 s80, s78, 2")
    I(f"v_mov_b32 v{V_A0}, s80")
    I(f"ds_read_b32 v{V_A1}, v{V_A0} offset:{L_SU}")
    I(f"ds_read_b32 v{V_PTRC}, v{V_A0} offset:{L_SB}")
    I("s_waitcnt lgkmcnt(0)")
    I(f"v_readfirstlane_b32 s81, v{V_A1}")
    I(f"v_add_u32 v{V_PTRC}, v{V_PTRC}, v{V_G4}")
    I("s_nop 0")
    I("s_min_u32 s81, s81, 0x100")
    hop_slice("K3S", 24, 44, 81, 82)
    I("s_nop 4")
    I("s_branch K3_ST")
    L("K3_HRD")
    heavy_read_acc(K3_ACC)
    L("K3_ST")
    for i in range(4):
        I(f"v_cvt_pk_bf16_f32 v{V_T+i}, v{V_ACC+2*i}, v{V_ACC+2*i+1}")
    I(f"v_lshlrev_b32 v{V_A0}, 2, v{V_G4}")
    I(f"v_xor_b32 v{V_A1}, v{V_A0}, v{V_F16}")
    I(f"v_lshlrev_b32 v{V_A0}, 3, v{V_A0}")
    I("s_lshl_b32 s80, s79, 10")
    I("s_add_u32 s80, s80, s83")
    I(f"v_add3_u32 v{V_A0}, v{V_A0}, v{V_A1}, s80")
    I(f"ds_write_b128 v{V_A0}, v[{V_T}:{V_T+3}]")
    I("s_cmp_lg_u32 s79, 0")
    I("s_cbranch_scc1 K3_GEMM")
    I("s_mov_b32 s79, 1")
    I("s_mov_b32 s78, s10")
    I("s_branch K3_SLICE")
    L("K3_GEMM")
    J, KB, AW, AB, NV = 24, 25, 26, 27, 28
    I(f"v_and_b32 v{J}, 15, v{V_LANE}")
    I(f"v_lshrrev_b32 v{KB}, 4, v{V_LANE}")
    I("s_sub_u32 s80, 25, s10")
    I("s_lshl_b32 s80, s80, 3")
    I("s_lshl_b32 s81, s10, 3")
    I(f"v_mov_b32 v{NV}, s81")
    I(f"v_mov_b32 v29, s80")
    I(f"v_cmp_gt_u32 vcc, 8, v{J}")
    I(f"v_and_b32 v30, 7, v{J}")
    I("s_nop 0")
    I(f"v_cndmask_b32 v{NV}, v{NV}, v29, vcc")
    I(f"v_add_u32 v{NV}, v{NV}, v30")
    I("s_cmp_lg_u32 s77, 0")
    I("s_cbranch_scc1 K3_NOORD")
    I(f"ds_read_u8 v{NV}, v{NV} offset:{L_ORD}")
    L("K3_NOORD")
    I(f"v_xor_b32 v31, v{KB}, v30")
    I(f"v_lshlrev_b32 v31, 4, v31")
    I(f"v_lshlrev_b32 v{AB}, 7, v{J}")
    I(f"v_add3_u32 v{AB}, v{AB}, s83, v31")
    I(f"v_xor_b32 v31, 64, v31")
    I(f"v_lshlrev_b32 v29, 7, v{J}")
    I(f"v_add3_u32 v29, v29, s83, v31")
    I(f"v_lshrrev_b32 v30, 2, v{J}")
    I(f"v_lshl_add_u32 v30, v{KB}, 3, v30")
    I(f"v_lshlrev_b32 v30, 7, v30")
    I(f"v_and_b32 v31, 3, v{V_LANE}")
    I(f"v_lshl_add_u32 v{AW}, v31, 4, v30")
    I("s_waitcnt lgkmcnt(0)")
    B0, B1 = 32, 36
    I(f"ds_read_b128 v[{B0}:{B0+3}], v{AB}")
    I(f"ds_read_b128 v[{B1}:{B1+3}], v29")
    WF = 40
    for t in range(4):
        for s in range(2):
            for hh in range(2):
                off = L_WL + s * 4096 + hh * 512 + (t >> 1) * 64 + (t & 1) * 8
                d = WF + (t * 2 + s) * 4 + 2 * hh
                I(f"ds_read_b64_tr_b16 v[{d}:{d+1}], v{AW} offset:{off}")
    DD = 72
    for i in range(16):
        I(f"v_mov_b32 v{DD+i}, 0")
    I("s_waitcnt lgkmcnt(0)")
    for s in range(2):
        for t in range(4):
            a = WF + (t * 2 + s) * 4
            b = B0 if s == 0 else B1
            I(f"v_mfma_f32_16x16x32_bf16 v[{DD+4*t}:{DD+4*t+3}], v[{a}:{a+3}], v[{b}:{b+3}], v[{DD+4*t}:{DD+4*t+3}]")
    I(f"v_lshlrev_b32 v{NV}, 15, v{NV}")
    I("s_lshl_b32 s80, s8, 7")
    I(f"v_lshlrev_b32 v31, 4, v{KB}")
    I(f"v_add3_u32 v{NV}, v{NV}, s80, v31")
    I("s_nop 7")
    O = 88
    for half in range(2):
        for k in range(2):
            t = half * 2 + k
            I(f"v_cvt_pk_bf16_f32 v{O+half*4+2*k}, v{DD+4*t}, v{DD+4*t+1}")
            I(f"v_cvt_pk_bf16_f32 v{O+half*4+2*k+1}, v{DD+4*t+2}, v{DD+4*t+3}")
    I(f"buffer_store_dwordx4 v[{O}:{O+3}], v{NV}, s[28:31], 0 offen")
    I(f"buffer_store_dwordx4 v[{O+4}:{O+7}], v{NV}, s[28:31], 0 offen offset:64")
    L("K3_END")
    I("s_endpgm")
    return name, 128, 96

HEADER = f"""; Kernarg layout for this problem (64 bytes, ptrs only, base s[0:1]):
; @launch kernel=sgc_part_kernel grid=(256,1,1) block=(832,1,1) lds={K1_LDS}
; @launch kernel=sgc_sort_hop1_kernel grid=(256,1,1) block=(1024,1,1) lds={K2_LDS}
; @launch kernel=sgc_hop2_kernel grid=(256,1,1) block=(1024,1,1) lds={K3_LDS}
.amdgcn_target "amdgcn-amd-amdhsa--gfx950"
.text"""

def main():
    for a in sys.argv[2:]:
        k, v = a.split("=")
        cur = getattr(opt, k)
        setattr(opt, k, type(cur)(int(v)))
    emit(HEADER)
    ks = [gen_k1(), gen_k2(), gen_k3()]
    emit('.section .rodata,"a"')
    emit(".p2align 6")
    for (n, v, s) in ks:
        kernel_desc(n, v, s)
        emit(".p2align 6")
    open(sys.argv[1], "w").write("\n".join(out) + "\n")

main()
```

```python
import sys

N = 50000
E = 850000
CH = 3328
NCH = 256
RECB = CH * 8
WS_SEG = 0
WS_REC = 0x40000
WS_IMG = 0x6C0000
WS_H1 = 0xC00000
TBL_BYTES = N * 128
SAFE = 0x0000FFFF
SPLIT = 25000

class Opt:
    D = 8
    pf1 = 0
    pf2a = 0
    pf2b = 0
    pf3 = 0
    stamps = 0
    R = 8
    prio = 0
    st1 = 0
    st2 = 0
    st2i = 0
    st3 = 0
    dbg = 0

opt = Opt()
out = []
def emit(s=""): out.append(s)
def I(s): out.append("    " + s)
def L(s): out.append(s + ":")
_uid = [0]
def uid(p):
    _uid[0] += 1
    return f"{p}_{_uid[0]}"

FL = ['', ' sc1', ' sc0 sc1', ' nt', ' sc0']
def srd(s, lo, hi, size, add=0):
    if add:
        I(f"s_add_u32 s{s}, s{lo}, {add}")
        I(f"s_addc_u32 s{s+1}, s{hi}, 0")
        I(f"s_and_b32 s{s+1}, s{s+1}, 0xffff")
    else:
        I(f"s_mov_b32 s{s}, s{lo}")
        I(f"s_and_b32 s{s+1}, s{hi}, 0xffff")
    I(f"s_mov_b32 s{s+2}, {size}")
    I(f"s_mov_b32 s{s+3}, 0x20000")

def wave_scan(v):
    for sh in (1, 2, 4, 8):
        I("s_nop 1")
        I(f"v_add_u32_dpp v{v}, v{v}, v{v} row_shr:{sh} row_mask:0xf bank_mask:0xf")
    I("s_nop 1")
    I(f"v_add_u32_dpp v{v}, v{v}, v{v} row_bcast:15 row_mask:0xa bank_mask:0xf")
    I("s_nop 1")
    I(f"v_add_u32_dpp v{v}, v{v}, v{v} row_bcast:31 row_mask:0xc bank_mask:0xf")

STAMP_OFF = 0x2000000
def stamp_init(kidx, ws_lo, vbase):
    if not opt.stamps: return
    I(f"v_lshrrev_b32 v{vbase}, 6, v0")
    I(f"s_lshl_b32 s92, s2, 4")
    I(f"s_add_u32 s92, s92, {kidx*256*16}")
    I(f"v_add_u32 v{vbase}, s92, v{vbase}")
    I(f"v_lshlrev_b32 v{vbase}, 7, v{vbase}")
    I(f"v_add_u32 v{vbase}, {STAMP_OFF}, v{vbase}")
    I(f"s_mov_b32 s94, s{ws_lo}")
    I(f"s_mov_b32 s95, s{ws_lo+1}")
def stamp(j, vbase, pre=None):
    if not opt.stamps: return
    if pre is None:
        I("s_memrealtime s[90:91]")
        I("s_waitcnt lgkmcnt(0)")
    else:
        I(f"s_mov_b32 s90, s{pre}")
        I(f"s_mov_b32 s91, s{pre+1}")
    I("s_mov_b64 s[88:89], exec")
    I("s_mov_b64 exec, 1")
    I(f"v_mov_b32 v{vbase+2}, s90")
    I(f"v_mov_b32 v{vbase+3}, s91")
    I(f"global_store_dwordx2 v{vbase}, v[{vbase+2}:{vbase+3}], s[94:95] offset:{8*j}")
    I("s_mov_b64 exec, s[88:89]")

def dbg_stamp(kidx, slot, sW, vt, first=False):
    if not opt.dbg: return
    lab = uid("DBG")
    if first:
        I("s_load_dwordx2 s[96:97], s[0:1], 48")
        I("s_waitcnt lgkmcnt(0)")
        I(f"s_sub_u32 s96, s96, {512*kidx}")
        I("s_subb_u32 s97, s97, 0")
    I("s_memrealtime s[98:99]")
    I("s_waitcnt lgkmcnt(0)")
    I("s_cmp_eq_u32 s2, 0")
    I("s_cselect_b32 s100, 0, 8")
    I("s_cmp_eq_u32 s2, 255")
    I("s_cselect_b32 s101, 1, 0")
    I("s_cmp_eq_u32 s2, 0")
    I("s_cselect_b32 s101, 1, s101")
    I("s_cmp_eq_u32 s101, 0")
    I(f"s_cbranch_scc1 {lab}")
    I(f"v_cmp_eq_u32 vcc, 0, v0")
    I("s_and_saveexec_b64 s[90:91], vcc")
    I(f"s_cbranch_execz {lab}_x")
    I(f"s_add_u32 s100, s100, {kidx*16 + slot*4}")
    I(f"v_mov_b32 v{vt}, s100")
    I(f"v_mov_b32 v{vt+1}, s98")
    I(f"global_store_dword v{vt}, v{vt+1}, s[96:97]")
    L(lab + "_x")
    I("s_mov_b64 exec, s[90:91]")
    L(lab)

def kernel_begin(name):
    emit(f".globl {name}")
    emit(".p2align 8")
    emit(f".type {name},@function")
    L(name)

def kernel_desc(name, vgpr, sgpr):
    acc = (vgpr + 3) // 4 * 4
    emit(f".amdhsa_kernel {name}")
    emit(f"  .amdhsa_next_free_vgpr {vgpr}")
    emit(f"  .amdhsa_next_free_sgpr {sgpr}")
    emit(f"  .amdhsa_accum_offset {acc}")
    emit("  .amdhsa_group_segment_fixed_size 0")
    emit("  .amdhsa_kernarg_size 64")
    emit("  .amdhsa_user_sgpr_count 2")
    emit("  .amdhsa_user_sgpr_kernarg_segment_ptr 1")
    emit("  .amdhsa_system_sgpr_workgroup_id_x 1")
    emit(".end_amdhsa_kernel")

K1_HIST = 0
K1_PRE = 1024
K1_STAGE = 2048
K1_LDS = K1_STAGE + RECB

def gen_k1():
    name = "sgc_part_kernel"
    kernel_begin(name)
    I("s_cmp_ge_u32 s2, 256")
    I("s_cbranch_scc1 K1_END")
    dbg_stamp(0, 0, 0, 56, True)
    if opt.stamps: I("s_memrealtime s[86:87]")
    I("s_load_dwordx4 s[4:7], s[0:1], 8")
    I("s_load_dwordx2 s[8:9], s[0:1], 24")
    I("s_load_dwordx2 s[10:11], s[0:1], 56")
    if opt.pf1:
        I("s_load_dwordx2 s[40:41], s[0:1], 0")
    I(f"s_mul_i32 s3, s2, {CH}")
    I("v_lshl_add_u32 v1, v0, 2, s3")
    I("v_lshlrev_b32 v2, 2, v1")
    I("v_lshlrev_b32 v3, 1, v1")
    I("v_mov_b32 v4, 0")
    I("v_lshlrev_b32 v5, 2, v0")
    I("v_cmp_gt_u32 vcc, 0x100, v0")
    I("s_and_saveexec_b64 s[12:13], vcc")
    I(f"ds_write_b32 v5, v4 offset:{K1_HIST}")
    I("s_mov_b64 exec, s[12:13]")
    I("v_readfirstlane_b32 s15, v0")
    I("s_waitcnt lgkmcnt(0)")
    stamp_init(0, 10, 60); stamp(0, 60, 86)
    srd(16, 6, 7, E * 4)
    srd(20, 4, 5, E * 4)
    srd(24, 8, 9, E * 2)
    I("buffer_load_dwordx4 v[8:11], v2, s[16:19], 0 offen")
    I("buffer_load_dwordx4 v[12:15], v2, s[20:23], 0 offen")
    I("buffer_load_dwordx2 v[16:17], v3, s[24:27], 0 offen")
    npf = opt.pf1
    if npf:
        srd(44, 40, 41, TBL_BYTES)
        I("s_lshr_b32 s42, s2, 3")
        I(f"s_mul_i32 s42, s42, {npf*832*16}")
        I("v_lshlrev_b32 v40, 4, v0")
        I("v_add_u32 v40, s42, v40")
        for i in range(npf):
            I(f"s_mov_b32 s43, {i*832*16}")
            I("buffer_load_dwordx4 v[44:47], v40, s[44:47], s43 offen")
    srd(28, 10, 11, NCH * 1024, WS_SEG)
    srd(32, 10, 11, NCH * RECB, WS_REC)
    I("s_lshr_b32 s15, s15, 6")
    I(f"s_mov_b32 s14, {E}")
    I("s_mov_b32 s36, 0xffff0000")
    I("s_mov_b32 s37, 21474")
    I("s_barrier")
    I("v_cmp_gt_u32 vcc, s14, v1")
    I("s_and_saveexec_b64 s[12:13], vcc")
    I("s_mov_b64 s[38:39], exec")
    I("v_mov_b32 v22, 1")
    I(f"s_waitcnt vmcnt({2+npf})")
    stamp(1, 60)
    for i in range(4):
        I(f"v_and_b32 v{18+i}, 0xff, v{8+i}")
        I(f"v_lshlrev_b32 v{18+i}, 2, v{18+i}")
    for i in range(4):
        I(f"ds_add_rtn_u32 v{24+i}, v{18+i}, v22 offset:{K1_HIST}")
    I(f"s_waitcnt vmcnt({npf})")
    I("v_lshl_or_b32 v48, v16, 16, v12")
    I("v_and_or_b32 v50, v16, s36, v13")
    I("v_lshl_or_b32 v52, v17, 16, v14")
    I("v_and_or_b32 v54, v17, s36, v15")
    for i in range(4):
        I(f"v_mul_u32_u24 v23, s37, v{12+i}")
        I("v_lshrrev_b32 v23, 25, v23")
        I("v_and_b32 v23, 24, v23")
        I(f"v_lshrrev_b32 v{49+2*i}, 8, v{8+i}")
        I(f"v_lshl_or_b32 v{49+2*i}, v{49+2*i}, 5, v23")
    I("s_waitcnt lgkmcnt(0)")
    I("s_mov_b64 exec, s[12:13]")
    I("s_barrier")
    I("s_cmp_lg_u32 s15, 0")
    I("s_cbranch_scc1 K1_NOSCAN")
    I("v_lshlrev_b32 v5, 4, v0")
    I(f"ds_read_b128 v[28:31], v5 offset:{K1_HIST}")
    I("s_waitcnt lgkmcnt(0)")
    I("v_add_u32 v32, v28, v29")
    I("v_add_u32 v33, v32, v30")
    I("v_add_u32 v34, v33, v31")
    I("v_mov_b32 v35, v34")
    wave_scan(35)
    I("v_sub_u32 v36, v35, v34")
    I("v_add_u32 v37, v36, v28")
    I("v_add_u32 v38, v36, v32")
    I("v_add_u32 v39, v36, v33")
    I(f"ds_write_b128 v5, v[36:39] offset:{K1_PRE}")
    I("v_lshl_or_b32 v28, v37, 16, v36")
    I("v_lshl_or_b32 v29, v38, 16, v37")
    I("v_lshl_or_b32 v30, v39, 16, v38")
    I("v_lshl_or_b32 v31, v35, 16, v39")
    I("s_lshl_b32 s37, s2, 10")
    I("buffer_store_dwordx4 v[28:31], v5, s[28:31], s37 offen")
    I("s_waitcnt lgkmcnt(0)")
    L("K1_NOSCAN")
    I("s_barrier")
    I("s_mov_b64 exec, s[38:39]")
    for i in range(4):
        I(f"ds_read_b32 v{28+i}, v{18+i} offset:{K1_PRE}")
    I("s_waitcnt lgkmcnt(0)")
    for i in range(4):
        I(f"v_add_u32 v{28+i}, v{28+i}, v{24+i}")
        I(f"v_lshlrev_b32 v{28+i}, 3, v{28+i}")
    for i in range(4):
        I(f"ds_write_b64 v{28+i}, v[{48+2*i}:{49+2*i}] offset:{K1_STAGE}")
    I("s_waitcnt lgkmcnt(0)")
    I("s_mov_b64 exec, s[12:13]")
    I("s_barrier")
    I("v_lshlrev_b32 v5, 4, v0")
    I(f"ds_read_b128 v[8:11], v5 offset:{K1_STAGE}")
    I(f"ds_read_b128 v[12:15], v5 offset:{K1_STAGE + RECB//2}")
    I(f"s_mul_i32 s37, s2, {RECB}")
    I(f"s_add_u32 s42, s37, {RECB//2}")
    I("s_waitcnt lgkmcnt(1)")
    I("buffer_store_dwordx4 v[8:11], v5, s[32:35], s37 offen" + FL[opt.st1])
    I("s_waitcnt lgkmcnt(0)")
    I("buffer_store_dwordx4 v[12:15], v5, s[32:35], s42 offen" + FL[opt.st1])
    stamp(2, 60)
    if opt.stamps:
        I("s_waitcnt vmcnt(0)")
        stamp(3, 60)
    if opt.dbg: I("s_waitcnt vmcnt(0)")
    dbg_stamp(0, 1, 0, 56)
    L("K1_END")
    I("s_endpgm")
    return name, (64 if (opt.stamps or opt.dbg) else 56), (102 if (opt.stamps or opt.dbg) else 48)

L_SU = 0x000
L_WB = 0x040
L_ORD = 0x120
L_HEAVY = 0x1F0
L_LIST = 0x200
IMG_BYTES = 0x4000
LIST_CAP = IMG_BYTES - L_LIST
L_CNT = 0x4000
L_H2 = 0x6000
L_SC2 = 0x6100
L_WM = 0x6200
K2_ZERO_END = 0x6400
L_NBQ = 0x6400
K2_ACC = 0x9000
ACC_BYTES = 208 * 256
K2_LDS = K2_ACC + ACC_BYTES
L_WL = 0x4000
L_SCR = 0x6000
K3_ACC = 0xD000
K3_LDS = K3_ACC + ACC_BYTES
NWORK = 14

V_LANE = 1
V_G4 = 2
V_F16 = 3
V_SELA = 4
V_SELB = 5
V_PTRC = 6
V_PTRI = 7
V_NA = 8
V_NB = 9
V_A0 = 10
V_A1 = 11
V_ACC = 12
V_ACC2 = 20
V_T = 28
V_RC = 32
V_RI = 36
V_DATA = 40
S_T, S_NB, S_PACE, S_DR, S_REM = 78, 79, 80, 81, 82
S_RET = 84
S_128 = 44

def pf_setup(vaddr, n, base_bytes):
    I("s_lshr_b32 s15, s2, 3")
    I(f"s_mul_i32 s15, s15, {n*4096}")
    if base_bytes: I(f"s_add_u32 s15, s15, {base_bytes}")
    I(f"v_lshlrev_b32 v{vaddr}, 6, v0")
    I(f"v_add_u32 v{vaddr}, s15, v{vaddr}")
def pf_issue(vaddr, vdst, tbl, n, sW):
    rounds = (n + 15) // 16
    for i in range(rounds):
        cnt = min(16, n - 16 * i)
        lab = uid("PF")
        if cnt < 16:
            I(f"s_cmp_ge_u32 s{sW}, {cnt}")
            I(f"s_cbranch_scc1 {lab}")
        I(f"s_mov_b32 s15, {i*16*4096}")
        I(f"buffer_load_dword v{vdst}, v{vaddr}, s[{tbl}:{tbl+3}], s15 offen")
        L(lab)
    return rounds

def hop_consts():
    I(f"v_lshrrev_b32 v{V_G4}, 3, v{V_LANE}")
    I(f"v_lshlrev_b32 v{V_G4}, 2, v{V_G4}")
    I(f"v_and_b32 v{V_F16}, 7, v{V_LANE}")
    I(f"v_lshlrev_b32 v{V_F16}, 4, v{V_F16}")
    I(f"v_and_b32 v{V_PTRC}, 3, v{V_LANE}")
    I(f"v_mov_b32 v{V_SELA}, 0x0c0c0c0c")
    I(f"v_mov_b32 v{V_SELB}, 0x0c0c0c0c")
    I(f"v_mov_b32 v{V_A0}, 0x0c0c0302")
    I(f"v_mov_b32 v{V_A1}, 0x03020c0c")
    for val, sel, lit in ((0, V_SELA, V_A0), (1, V_SELA, V_A1), (2, V_SELB, V_A0), (3, V_SELB, V_A1)):
        I(f"v_cmp_eq_u32 vcc, {val}, v{V_PTRC}")
        I("s_nop 1")
        I(f"v_cndmask_b32 v{sel}, v{sel}, v{lit}, vcc")
    I(f"s_mov_b32 s{S_128}, 128")

def rd2(dst, ptr, unit):
    o = unit * 16
    assert o + 8 <= 255
    I(f"ds_read2_b32 v[{dst}:{dst+1}], v{ptr} offset0:{o} offset1:{o+8}")

def perms(p):
    rc = V_RC + 2 * p
    I(f"v_perm_b32 v{V_T+0}, v{rc}, v{rc}, v{V_SELA}")
    I(f"v_perm_b32 v{V_T+1}, v{rc}, v{rc}, v{V_SELB}")
    I(f"v_perm_b32 v{V_T+2}, v{rc+1}, v{rc+1}, v{V_SELA}")
    I(f"v_perm_b32 v{V_T+3}, v{rc+1}, v{rc+1}, v{V_SELB}")

def mfmas(r):
    d = V_DATA + 8 * r
    a, b = V_ACC, V_ACC2
    I(f"v_mfma_f32_4x4x4_16b_bf16 v[{a}:{a+3}], v[{V_T}:{V_T+1}], v[{d}:{d+1}], v[{a}:{a+3}]")
    I(f"v_mfma_f32_4x4x4_16b_bf16 v[{a+4}:{a+7}], v[{V_T}:{V_T+1}], v[{d+2}:{d+3}], v[{a+4}:{a+7}]")
    I(f"v_mfma_f32_4x4x4_16b_bf16 v[{b}:{b+3}], v[{V_T+2}:{V_T+3}], v[{d+4}:{d+5}], v[{b}:{b+3}]")
    I(f"v_mfma_f32_4x4x4_16b_bf16 v[{b+4}:{b+7}], v[{V_T+2}:{V_T+3}], v[{d+6}:{d+7}], v[{b+4}:{b+7}]")

def pace_check(pfx):
    if opt.R <= 1: return
    lab = uid(pfx + "_PC")
    I(f"s_add_u32 s{S_PACE}, s{S_PACE}, {opt.R}")
    I(f"s_cmp_lt_u32 s{S_PACE}, s{S_T}")
    I(f"s_cbranch_scc1 {lab}")
    I(f"s_call_b64 s[{S_RET}:{S_RET+1}], {pfx}_BS")
    L(lab)

def pace_final(pfx):
    if opt.R <= 1: return
    l1, l2 = uid(pfx + "_PF"), uid(pfx + "_PG")
    L(l1)
    I(f"s_cmp_eq_u32 s{S_NB}, 0")
    I(f"s_cbranch_scc1 {l2}")
    I("s_barrier")
    I(f"s_sub_u32 s{S_NB}, s{S_NB}, 1")
    I(f"s_branch {l1}")
    L(l2)

def pace_sub(pfx):
    if opt.R <= 1: return
    L(f"{pfx}_BS")
    I(f"s_cmp_eq_u32 s{S_NB}, 0")
    I(f"s_cbranch_scc1 {pfx}_BR")
    I("s_barrier")
    I(f"s_sub_u32 s{S_NB}, s{S_NB}, 1")
    I(f"s_sub_u32 s{S_PACE}, s{S_PACE}, s{S_T}")
    I(f"s_cmp_ge_u32 s{S_PACE}, s{S_T}")
    I(f"s_cbranch_scc1 {pfx}_BS")
    L(f"{pfx}_BR")
    I(f"s_setpc_b64 s[{S_RET}:{S_RET+1}]")

def hop_wave(pfx, tbl):
    D = opt.D
    for i in range(8):
        I(f"v_mov_b32 v{V_ACC+i}, 0")
        I(f"v_mov_b32 v{V_ACC2+i}, 0")
    I(f"s_min_u32 s{S_T}, s{S_T}, 0x100")
    I(f"s_mov_b32 s{S_DR}, s{S_T}")
    I(f"s_mov_b32 s{S_NB}, {opt.R - 1}")
    I(f"s_mov_b32 s{S_PACE}, 0")
    I(f"s_cmp_eq_u32 s{S_T}, 0")
    I(f"s_cbranch_scc1 {pfx}_FIN")
    for r in range(D):
        rd2(V_DATA + 8 * r, V_PTRC, r)
    rd2(V_RC, V_PTRC, 0)
    I(f"v_add_u32 v{V_PTRI}, {D*64}, v{V_PTRC}")
    I("s_waitcnt lgkmcnt(0)")
    rd2(V_RI, V_PTRI, 0)
    for r in range(D):
        d = V_DATA + 8 * r
        if r > 0:
            I(f"s_cmp_le_u32 s{S_T}, {r}")
            I(f"s_cbranch_scc1 {pfx}_DR0")
            pace_check(pfx)
        I(f"v_mad_u32_u16 v{V_A0}, v{d}, s{S_128}, v{V_F16}")
        I(f"v_mad_u32_u16 v{V_A1}, v{d+1}, s{S_128}, v{V_F16}")
        I(f"buffer_load_dwordx4 v[{d}:{d+3}], v{V_A0}, s[{tbl}:{tbl+3}], 0 offen")
        I(f"buffer_load_dwordx4 v[{d+4}:{d+7}], v{V_A1}, s[{tbl}:{tbl+3}], 0 offen")
    I(f"s_sub_u32 s{S_REM}, s{S_T}, {D}")
    I(f"s_mov_b32 s{S_DR}, {D}")
    I(f"s_cmp_eq_u32 s{S_REM}, 0")
    I(f"s_cbranch_scc1 {pfx}_DR0")
    L(f"{pfx}_MAIN")
    for r in range(D):
        p = r & 1
        d = V_DATA + 8 * r
        I("s_waitcnt lgkmcnt(0)")
        rd2(V_RC + 2 * (p ^ 1), V_PTRC, r + 1)
        rd2(V_RI + 2 * (p ^ 1), V_PTRI, r + 1)
        perms(p)
        ri = V_RI + 2 * p
        I(f"v_mad_u32_u16 v{V_A0}, v{ri}, s{S_128}, v{V_F16}")
        I(f"v_mad_u32_u16 v{V_A1}, v{ri+1}, s{S_128}, v{V_F16}")
        I(f"s_waitcnt vmcnt({2*(D-1)})")
        mfmas(r)
        pace_check(pfx)
        I(f"buffer_load_dwordx4 v[{d}:{d+3}], v{V_A0}, s[{tbl}:{tbl+3}], 0 offen")
        I(f"buffer_load_dwordx4 v[{d+4}:{d+7}], v{V_A1}, s[{tbl}:{tbl+3}], 0 offen")
        if r == D - 1:
            I(f"v_add_u32 v{V_PTRC}, {D*64}, v{V_PTRC}")
            I(f"v_add_u32 v{V_PTRI}, {D*64}, v{V_PTRI}")
        I(f"s_sub_u32 s{S_REM}, s{S_REM}, 1")
        I(f"s_cmp_eq_u32 s{S_REM}, 0")
        if r == D - 1:
            I(f"s_cbranch_scc0 {pfx}_MAIN")
        else:
            I(f"s_cbranch_scc1 {pfx}_DR{r+1}")
    for q in range(2 * D - 1):
        r = q % D
        p = q & 1
        if q < D:
            L(f"{pfx}_DR{q}")
            if q == 0 or True:
                lab = uid(pfx + "_DX")
                if opt.R > 1:
                    I(f"s_cmp_eq_u32 s{S_NB}, 0")
                    I(f"s_cbranch_scc1 {lab}")
                    I(f"s_call_b64 s[{S_RET}:{S_RET+1}], {pfx}_BF")
                    L(lab)
            I("s_waitcnt vmcnt(0)")
        I("s_waitcnt lgkmcnt(0)")
        if q + 1 <= 2 * D - 2:
            rd2(V_RC + 2 * (p ^ 1), V_PTRC, q + 1)
        perms(p)
        I(f"s_sub_u32 s{S_DR}, s{S_DR}, 1")
        I("s_nop 0")
        mfmas(r)
        if q < 2 * D - 2:
            I(f"s_cmp_eq_u32 s{S_DR}, 0")
            I(f"s_cbranch_scc1 {pfx}_FIN")
    L(f"{pfx}_FIN")
    pace_final(pfx)
    I("s_nop 4")

def hop_subs(pfx):
    pace_sub(pfx)
    if opt.R > 1:
        L(f"{pfx}_BF")
        pace_final(pfx)
        I(f"s_setpc_b64 s[{S_RET}:{S_RET+1}]")

def node_pos(sW, heavy):
    I(f"v_lshrrev_b32 v{V_NB}, 2, v{V_G4}")
    I(f"s_lshl_b32 s45, s{sW}, 4")
    if not heavy:
        I(f"s_lshl_b32 s46, s{sW}, 3")
        I(f"s_add_u32 s46, s46, 96")
        I(f"s_cmp_lt_u32 s{sW}, 12")
        I(f"s_cselect_b32 s45, s45, s46")
    I(f"v_add_u32 v{V_NA}, s45, v{V_NB}")
    I(f"v_add_u32 v{V_NB}, 8, v{V_NA}")

def hop_header(sW):
    I(f"s_lshl_b32 s45, s{sW}, 2")
    I(f"v_mov_b32 v{V_A0}, s45")
    I(f"ds_read_b32 v{V_A1}, v{V_A0} offset:{L_SU}")
    I(f"ds_read_b32 v{V_PTRC}, v{V_A0} offset:{L_WB}")
    node_pos(sW, False)
    I(f"ds_read_u8 v{V_NA}, v{V_NA} offset:{L_ORD}")
    I(f"ds_read_u8 v{V_NB}, v{V_NB} offset:{L_ORD}")
    I("s_waitcnt lgkmcnt(0)")
    I(f"v_readfirstlane_b32 s{S_T}, v{V_A1}")
    I(f"v_add_u32 v{V_PTRC}, v{V_PTRC}, v{V_G4}")

def split_fix(pfx, sW):
    lab = uid(pfx + "_SF")
    I(f"s_cmp_lt_u32 s{sW}, 12")
    I(f"s_cbranch_scc1 {lab}")
    for i in range(8):
        I(f"v_add_f32 v{V_ACC+i}, v{V_ACC+i}, v{V_ACC2+i}")
    I(f"v_mov_b32 v{V_NB}, 0xff")
    L(lab)

def heavy_path(pfx, tbl, seg_lo_hi, rec_srd, sB, sW, acc_base, nwaves):
    I("v_mov_b32 v40, 0")
    I("v_mov_b32 v41, 0")
    I("v_mov_b32 v42, 0")
    I("v_mov_b32 v43, 0")
    I("v_lshlrev_b32 v44, 4, v0")
    I(f"v_add_u32 v44, {acc_base}, v44")
    n16 = ACC_BYTES // 16
    for i in range(3):
        I(f"ds_write_b128 v44, v[40:43] offset:{i*16384}")
    I(f"v_cmp_gt_u32 vcc, {n16 - 3072}, v0")
    I("s_and_saveexec_b64 s[60:61], vcc")
    I(f"ds_write_b128 v44, v[40:43] offset:{3*16384}")
    I("s_mov_b64 exec, s[60:61]")
    I("s_waitcnt lgkmcnt(0)")
    I("s_barrier")
    I(f"s_mov_b32 s62, s{sW}")
    I(f"v_lshrrev_b32 v45, 3, v{V_LANE}")
    I(f"s_lshl_b32 s63, s{sB}, 2")
    L(f"{pfx}_HC")
    I("s_lshl_b32 s64, s62, 10")
    I("s_add_u32 s64, s64, s63")
    I(f"s_add_u32 s66, s{seg_lo_hi}, s64")
    I(f"s_addc_u32 s67, s{seg_lo_hi+1}, 0")
    I("s_load_dword s68, s[66:67], 0")
    I(f"s_mul_i32 s69, s62, {RECB}")
    I("s_waitcnt lgkmcnt(0)")
    I("s_and_b32 s70, s68, 0xffff")
    I("s_lshr_b32 s71, s68, 16")
    L(f"{pfx}_HI")
    I("s_cmp_ge_u32 s70, s71")
    I(f"s_cbranch_scc1 {pfx}_HN")
    I("v_add_u32 v46, s70, v45")
    I("v_cmp_gt_u32 vcc, s71, v46")
    I("s_and_saveexec_b64 s[60:61], vcc")
    I("v_lshlrev_b32 v47, 3, v46")
    I(f"buffer_load_dwordx2 v[48:49], v47, s[{rec_srd}:{rec_srd+3}], s69 offen")
    I("s_waitcnt vmcnt(0)")
    I("v_and_b32 v50, 0xffff, v48")
    I("v_lshlrev_b32 v50, 7, v50")
    I(f"v_add_u32 v50, v50, v{V_F16}")
    I(f"buffer_load_dwordx4 v[52:55], v50, s[{tbl}:{tbl+3}], 0 offen")
    I("v_and_b32 v51, 0xffff0000, v48")
    I("v_lshrrev_b32 v56, 5, v49")
    I("v_lshlrev_b32 v56, 8, v56")
    I(f"v_lshlrev_b32 v57, 1, v{V_F16}")
    I("v_add_u32 v56, v56, v57")
    I(f"v_add_u32 v56, {acc_base}, v56")
    I("s_waitcnt vmcnt(0)")
    for i in range(4):
        I(f"v_lshlrev_b32 v58, 16, v{52+i}")
        I(f"v_and_b32 v59, 0xffff0000, v{52+i}")
        I("v_mul_f32 v58, v58, v51")
        I("v_mul_f32 v59, v59, v51")
        I(f"ds_add_f32 v56, v58 offset:{8*i}")
        I(f"ds_add_f32 v56, v59 offset:{8*i + 4}")
    I("s_mov_b64 exec, s[60:61]")
    I("s_add_u32 s70, s70, 8")
    I(f"s_branch {pfx}_HI")
    L(f"{pfx}_HN")
    I(f"s_add_u32 s62, s62, {nwaves}")
    I("s_cmp_lt_u32 s62, 256")
    I(f"s_cbranch_scc1 {pfx}_HC")
    I("s_waitcnt lgkmcnt(0)")
    I("s_barrier")

def heavy_read_acc(acc_base, sW):
    node_pos(sW, True)
    for vn, va in ((V_NA, V_ACC), (V_NB, V_ACC2)):
        I(f"v_lshlrev_b32 v{V_A0}, 8, v{vn}")
        I(f"v_lshlrev_b32 v{V_A1}, 1, v{V_F16}")
        I(f"v_add_u32 v{V_A0}, v{V_A0}, v{V_A1}")
        I(f"v_add_u32 v{V_A0}, {acc_base}, v{V_A0}")
        I(f"ds_read_b128 v[{va}:{va+3}], v{V_A0}")
        I(f"ds_read_b128 v[{va+4}:{va+7}], v{V_A0} offset:16")
    I("s_waitcnt lgkmcnt(0)")

def gen_k2():
    name = "sgc_sort_hop1_kernel"
    kernel_begin(name)
    I("s_cmp_ge_u32 s2, 256")
    I("s_cbranch_scc1 K2_END")
    dbg_stamp(1, 0, 0, 124, True)
    if opt.stamps: I("s_memrealtime s[86:87]")
    I("s_load_dwordx2 s[4:5], s[0:1], 0")
    I("s_load_dwordx2 s[6:7], s[0:1], 56")
    I("s_and_b32 s8, s2, 7")
    I("s_lshl_b32 s8, s8, 5")
    I("s_lshr_b32 s9, s2, 3")
    I("s_add_u32 s8, s8, s9")
    I("v_readfirstlane_b32 s10, v0")
    I(f"v_and_b32 v{V_LANE}, 63, v0")
    I("v_lshlrev_b32 v40, 4, v0")
    I(f"v_mov_b32 v41, {SAFE}")
    I("v_cmp_gt_u32 vcc, 32, v0")
    I("s_lshr_b32 s10, s10, 6")
    I("v_mov_b32 v48, 0")
    I("v_cndmask_b32_e64 v44, v41, 0, vcc")
    I("v_mov_b32 v45, v44")
    I("v_mov_b32 v46, v44")
    I("v_mov_b32 v47, v44")
    I("ds_write_b128 v40, v[44:47]")
    I("v_mov_b32 v49, 0")
    I("v_mov_b32 v50, 0")
    I("v_mov_b32 v51, 0")
    I(f"v_cmp_gt_u32 vcc, {(K2_ZERO_END-L_CNT)//16}, v0")
    I("s_and_saveexec_b64 s[12:13], vcc")
    I(f"ds_write_b128 v40, v[48:51] offset:{L_CNT}")
    I("s_mov_b64 exec, s[12:13]")
    I(f"v_lshrrev_b32 v52, 4, v{V_LANE}")
    I("s_lshl_b32 s11, s10, 2")
    I("v_add_u32 v52, s11, v52")
    I("s_lshl_b32 s11, s8, 2")
    I("v_lshl_add_u32 v53, v52, 10, s11")
    I(f"s_mov_b32 s14, {RECB}")
    I("v_mul_u32_u24 v54, s14, v52")
    I(f"v_and_b32 v55, 15, v{V_LANE}")
    I("s_waitcnt lgkmcnt(0)")
    stamp_init(1, 6, 124); stamp(0, 124, 86)
    srd(16, 6, 7, NCH * 1024, WS_SEG)
    srd(20, 6, 7, NCH * RECB, WS_REC)
    srd(24, 4, 5, TBL_BYTES)
    srd(28, 6, 7, TBL_BYTES, WS_H1)
    srd(32, 6, 7, 256 * IMG_BYTES, WS_IMG)
    for r in range(4):
        I(f"s_mov_b32 s{36+r}, {r*65536}")
        I(f"s_mov_b32 s{40+r}, {r*64*RECB}")
    SG = lambda r: 56 + r
    for r in range(4):
        I(f"buffer_load_dword v{SG(r)}, v53, s[16:19], s{36+r} offen")
    na, nb = 0, opt.pf2b
    if nb: pf_setup(48, nb, 0)
    hop_consts()
    SM = lambda t, r: 46 + (t * 4 + r) * 2
    VOFF = lambda r: 60 + r
    VR = lambda t, r: 64 + (t * 4 + r) * 2
    VK = lambda t, r: 88 + t * 4 + r
    VP = lambda t, r: 100 + (t * 4 + r) * 2
    ONE = 40
    I(f"s_waitcnt vmcnt({na})")
    stamp(1, 124)
    I("s_mov_b64 s[70:71], 0")
    for r in range(4):
        I(f"v_and_b32 v42, 0xffff, v{SG(r)}")
        I(f"v_lshrrev_b32 v43, 16, v{SG(r)}")
        I("v_add_u32 v42, v42, v55")
        I(f"v_lshl_add_u32 v{VOFF(r)}, v42, 3, v54")
        I(f"v_cmp_lt_u32 s[{SM(0,r)}:{SM(0,r)+1}], v42, v43")
        I("v_add_u32 v42, 16, v42")
        I(f"v_cmp_lt_u32 s[{SM(1,r)}:{SM(1,r)+1}], v42, v43")
        I("v_add_u32 v42, 16, v42")
        I(f"v_cmp_lt_u32 s[{SM(2,r)}:{SM(2,r)+1}], v42, v43")
        I("v_add_u32 v42, 16, v42")
        I("v_cmp_lt_u32 vcc, v42, v43")
        I("s_or_b64 s[70:71], s[70:71], vcc")
    I("s_mov_b64 s[72:73], exec")
    for t in range(3):
        for r in range(4):
            lab = uid("K2_SK")
            I(f"s_mov_b64 exec, s[{SM(t,r)}:{SM(t,r)+1}]")
            I(f"s_cbranch_execz {lab}")
            off = f" offset:{128*t}" if t else ""
            I(f"buffer_load_dwordx2 v[{VR(t,r)}:{VR(t,r)+1}], v{VOFF(r)}, s[20:23], s{40+r} offen{off}")
            L(lab)
    I("s_mov_b64 exec, s[72:73]")
    I(f"v_mov_b32 v{ONE}, 1")
    I("s_waitcnt lgkmcnt(0)")
    I("s_barrier")
    I("s_waitcnt vmcnt(0)")
    pf_issue(48, 125, 24, nb, 10)
    stamp(2, 124)
    for t in range(3):
        for r in range(4):
            lab = uid("K2_SC")
            I(f"s_mov_b64 exec, s[{SM(t,r)}:{SM(t,r)+1}]")
            I(f"s_cbranch_execz {lab}")
            I(f"ds_add_rtn_u32 v{VK(t,r)}, v{VR(t,r)+1}, v{ONE} offset:{L_CNT}")
            L(lab)
    I("s_mov_b64 exec, s[72:73]")
    I("s_cmp_eq_u64 s[70:71], 0")
    I("s_cbranch_scc1 K2_NOH")
    I(f"v_mov_b32 v41, {L_HEAVY}")
    I(f"ds_write_b32 v41, v{ONE}")
    L("K2_NOH")
    I("s_waitcnt lgkmcnt(0)")
    I("s_barrier")
    stamp(3, 124)
    I("s_cmp_lg_u32 s10, 0")
    I("s_cbranch_scc1 K2_NOSORT")
    C = lambda i, q: 100 + 4 * i + q
    KY = lambda i: 12 + i
    R2 = lambda i: 16 + i
    SL = lambda i: 20 + i
    TT = lambda i: 24 + i
    I(f"v_lshlrev_b32 v28, 5, v{V_LANE}")
    I(f"v_add_u32 v28, {L_CNT}, v28")
    for i in range(4):
        if i: I(f"v_add_u32 v28, 2048, v28")
        I(f"ds_read2_b32 v[{C(i,0)}:{C(i,1)}], v28 offset0:0 offset1:2")
        I(f"ds_read2_b32 v[{C(i,2)}:{C(i,3)}], v28 offset0:4 offset1:6")
    I("s_mov_b32 s74, 0xffff")
    I("s_mov_b32 s75, 0")
    I(f"v_lshlrev_b32 v29, 2, v{V_LANE}")
    I("s_waitcnt lgkmcnt(0)")
    for i in range(4):
        I(f"v_add_u32 v{TT(i)}, v{C(i,0)}, v{C(i,1)}")
        I(f"v_add3_u32 v{TT(i)}, v{TT(i)}, v{C(i,2)}, v{C(i,3)}")
        I(f"v_min_u32 v{KY(i)}, 63, v{TT(i)}")
        I(f"v_lshlrev_b32 v{KY(i)}, 2, v{KY(i)}")
    for i in range(4):
        if i == 3:
            I("s_mov_b64 exec, s[74:75]")
        I(f"ds_add_rtn_u32 v{R2(i)}, v{KY(i)}, v{ONE} offset:{L_H2}")
    I("s_mov_b64 exec, s[72:73]")
    I(f"ds_read_b32 v30, v29 offset:{L_H2}")
    I("s_waitcnt lgkmcnt(0)")
    I("v_mov_b32 v31, v30")
    wave_scan(31)
    I("v_sub_u32 v31, v31, v30")
    I(f"ds_write_b32 v29, v31 offset:{L_SC2}")
    for i in range(4):
        I(f"ds_read_b32 v{32+i}, v{KY(i)} offset:{L_SC2}")
    I("s_movk_i32 s76, 0xc0")
    I("s_waitcnt lgkmcnt(0)")
    for i in range(4):
        I(f"v_add_u32 v{R2(i)}, v{R2(i)}, v{32+i}")
        I(f"v_cmp_le_u32 s[{12+2*(i&1)}:{13+2*(i&1)}], s76, v{R2(i)}")
        I(f"v_lshrrev_b32 v{SL(i)}, 4, v{R2(i)}")
        I(f"v_lshrrev_b32 v36, 3, v{R2(i)}")
        I(f"v_subrev_u32 v36, 12, v36")
        I(f"v_cndmask_b32_e64 v{SL(i)}, v{SL(i)}, v36, s[{12+2*(i&1)}:{13+2*(i&1)}]")
        I(f"v_lshlrev_b32 v{SL(i)}, 2, v{SL(i)}")
        I(f"v_mov_b32 v{32+i}, 64")
        I(f"v_mov_b32 v37, 32")
        I(f"v_cndmask_b32_e64 v{32+i}, v{32+i}, v37, s[{12+2*(i&1)}:{13+2*(i&1)}]")
        I(f"v_add_u32 v{KY(i)}, {64*i}, v{V_LANE}")
    for i in range(4):
        if i == 3:
            I("s_mov_b64 exec, s[74:75]")
        I(f"ds_write_b8 v{R2(i)}, v{KY(i)} offset:{L_ORD}")
        I(f"ds_max_u32 v{SL(i)}, v{TT(i)} offset:{L_WM}")
    I("s_mov_b64 exec, s[72:73]")
    I(f"ds_read_b32 v30, v29 offset:{L_WM}")
    I(f"v_cmp_gt_u32 vcc, 12, v{V_LANE}")
    I("s_waitcnt lgkmcnt(0)")
    I("v_add_u32 v31, 1, v30")
    I("v_lshrrev_b32 v31, 1, v31")
    I("v_cndmask_b32 v30, v31, v30, vcc")
    I("v_lshlrev_b32 v31, 6, v30")
    I("v_mov_b32 v36, v31")
    wave_scan(36)
    I("s_nop 1")
    I("v_readlane_b32 s76, v36, 63")
    I("v_sub_u32 v36, v36, v31")
    I(f"v_add_u32 v36, {L_LIST}, v36")
    I(f"v_cmp_gt_u32 vcc, 16, v{V_LANE}")
    I("s_and_saveexec_b64 s[12:13], vcc")
    I(f"ds_write_b32 v29, v36 offset:{L_WB}")
    I(f"ds_write_b32 v29, v30 offset:{L_SU}")
    I("s_mov_b64 exec, s[12:13]")
    I(f"s_cmp_le_u32 s76, {LIST_CAP}")
    I("s_cbranch_scc1 K2_CAPOK")
    I(f"v_mov_b32 v41, {L_HEAVY}")
    I(f"ds_write_b32 v41, v{ONE}")
    L("K2_CAPOK")
    for i in range(4):
        I(f"ds_read_b32 v{SL(i)}, v{SL(i)} offset:{L_WB}")
    I("s_waitcnt lgkmcnt(0)")
    for i in range(4):
        I(f"v_lshrrev_b32 v36, 2, v{32+i}")
        I(f"v_subrev_u32 v36, 1, v36")
        I(f"v_and_b32 v36, v36, v{R2(i)}")
        I(f"v_lshl_add_u32 v{SL(i)}, v36, 2, v{SL(i)}")
        I(f"v_add_u32 v36, v{C(i,0)}, v{C(i,1)}")
        I(f"v_add_u32 v37, v36, v{C(i,2)}")
        I(f"v_mad_u32_u24 v{C(i,2)}, v{C(i,0)}, v{32+i}, v{SL(i)}")
        I(f"v_mov_b32 v{C(i,0)}, v{SL(i)}")
        I(f"v_mov_b32 v{C(i,1)}, v{32+i}")
        I(f"v_mov_b32 v{C(i,3)}, v{32+i}")
        I(f"v_mad_u32_u24 v{TT(i)}, v36, v{32+i}, v{SL(i)}")
        I(f"v_mad_u32_u24 v37, v37, v{32+i}, v{SL(i)}")
        I(f"v_lshlrev_b32 v{KY(i)}, 5, v{KY(i)}")
        if i == 3:
            I("s_mov_b64 exec, s[74:75]")
        I(f"ds_write_b128 v{KY(i)}, v[{C(i,0)}:{C(i,3)}] offset:{L_NBQ}")
        I(f"v_mov_b32 v{C(i,0)}, v{TT(i)}")
        I(f"v_mov_b32 v{C(i,2)}, v37")
        I(f"ds_write_b128 v{KY(i)}, v[{C(i,0)}:{C(i,3)}] offset:{L_NBQ+16}")
    I("s_mov_b64 exec, s[72:73]")
    I("s_waitcnt lgkmcnt(0)")
    L("K2_NOSORT")
    I("s_barrier")
    stamp(4, 124)
    I(f"v_mov_b32 v41, {L_HEAVY}")
    I("ds_read_b32 v41, v41")
    for t in range(3):
        for r in range(4):
            lab = uid("K2_SP")
            I(f"s_mov_b64 exec, s[{SM(t,r)}:{SM(t,r)+1}]")
            I(f"s_cbranch_execz {lab}")
            I(f"ds_read_b64 v[{VP(t,r)}:{VP(t,r)+1}], v{VR(t,r)+1} offset:{L_NBQ}")
            L(lab)
    I("s_mov_b64 exec, s[72:73]")
    I("s_waitcnt lgkmcnt(0)")
    I("v_readfirstlane_b32 s77, v41")
    I("s_cmp_lg_u32 s77, 0")
    I("s_cbranch_scc1 K2_NOPLACE")
    for t in range(3):
        for r in range(4):
            lab = uid("K2_SW")
            I(f"s_mov_b64 exec, s[{SM(t,r)}:{SM(t,r)+1}]")
            I(f"s_cbranch_execz {lab}")
            I(f"v_mad_u32_u24 v{VP(t,r)}, v{VK(t,r)}, v{VP(t,r)+1}, v{VP(t,r)}")
            I(f"ds_write_b32 v{VP(t,r)}, v{VR(t,r)}")
            L(lab)
    I("s_mov_b64 exec, s[72:73]")
    L("K2_NOPLACE")
    I("s_waitcnt lgkmcnt(0)")
    I("s_barrier")
    stamp(5, 124)
    I(f"s_cmp_lt_u32 s10, {NWORK}")
    I("s_cbranch_scc1 K2_WORK")
    I(f"s_sub_u32 s11, s10, {NWORK}")
    I("s_lshl_b32 s11, s11, 6")
    I(f"v_add_u32 v40, s11, v{V_LANE}")
    I("v_lshlrev_b32 v40, 4, v40")
    I(f"s_mul_i32 s11, s8, {IMG_BYTES}")
    for i in range(8):
        d = 44 + 4 * i
        I(f"ds_read_b128 v[{d}:{d+3}], v40 offset:{i*2048}")
    for i in range(8):
        d = 44 + 4 * i
        I(f"s_add_u32 s12, s11, {i*2048}")
        I(f"s_waitcnt lgkmcnt({7-i})")
        I(f"buffer_store_dwordx4 v[{d}:{d+3}], v40, s[32:35], s12 offen" + FL[opt.st2i])
    I("s_cmp_eq_u32 s77, 0")
    I("s_cbranch_scc1 K2_END")
    L("K2_WORK")
    I("s_cmp_eq_u32 s77, 0")
    I("s_cbranch_scc1 K2_FAST")
    heavy_path("K2H", 24, 6, 20, 8, 10, K2_ACC, 16)
    I("s_cmp_ge_u32 s10, 13")
    I("s_cbranch_scc1 K2_END")
    heavy_read_acc(K2_ACC, 10)
    I("s_branch K2_STORE")
    L("K2_FAST")
    hop_header(10)
    hop_wave("K2S", 24)
    split_fix("K2S", 10)
    L("K2_STORE")
    stamp(6, 124)
    I("s_lshl_b32 s45, s8, 7")
    for vn, va, t0 in ((V_NA, V_ACC, V_T), (V_NB, V_ACC2, V_RC)):
        for i in range(4):
            I(f"v_cvt_pk_bf16_f32 v{t0+i}, v{va+2*i}, v{va+2*i+1}")
        I(f"v_lshlrev_b32 v{vn}, 15, v{vn}")
        I(f"v_add3_u32 v{vn}, v{vn}, s45, v{V_F16}")
        I(f"buffer_store_dwordx4 v[{t0}:{t0+3}], v{vn}, s[28:31], 0 offen" + FL[opt.st2])
    stamp(7, 124)
    if opt.stamps:
        I("s_waitcnt vmcnt(0)")
        stamp(8, 124)
    if opt.dbg: I("s_waitcnt vmcnt(0)")
    dbg_stamp(1, 1, 0, 124)
    L("K2_END")
    I("s_endpgm")
    hop_subs("K2S")
    I("s_endpgm")
    return name, 128, (102 if opt.dbg else 96)

def gen_k3():
    name = "sgc_hop2_kernel"
    kernel_begin(name)
    I("s_cmp_ge_u32 s2, 256")
    I("s_cbranch_scc1 K3_END")
    dbg_stamp(2, 0, 0, 124, True)
    if opt.stamps: I("s_memrealtime s[86:87]")
    I("s_load_dwordx4 s[4:7], s[0:1], 32")
    I("s_load_dwordx2 s[12:13], s[0:1], 56")
    I("s_and_b32 s8, s2, 7")
    I("s_lshl_b32 s8, s8, 5")
    I("s_lshr_b32 s9, s2, 3")
    I("s_add_u32 s8, s8, s9")
    I("v_readfirstlane_b32 s10, v0")
    I(f"v_and_b32 v{V_LANE}, 63, v0")
    I("v_lshlrev_b32 v40, 4, v0")
    I(f"s_mul_i32 s11, s8, {IMG_BYTES}")
    I("s_lshr_b32 s10, s10, 6")
    I("s_waitcnt lgkmcnt(0)")
    stamp_init(2, 12, 124); stamp(0, 124, 86)
    srd(32, 12, 13, 256 * IMG_BYTES, WS_IMG)
    srd(16, 4, 5, 8192)
    srd(24, 12, 13, TBL_BYTES, WS_H1)
    srd(28, 6, 7, TBL_BYTES)
    srd(20, 12, 13, NCH * RECB, WS_REC)
    I("buffer_load_dwordx4 v[44:47], v40, s[32:35], s11 offen")
    I("buffer_load_dwordx4 v[48:51], v40, s[16:19], 0 offen")
    n3 = opt.pf3
    if n3: pf_setup(56, n3, 0)
    hop_consts()
    I("s_waitcnt vmcnt(1)")
    I("ds_write_b128 v40, v[44:47]")
    I("s_waitcnt vmcnt(0)")
    pf_issue(56, 125, 24, n3, 10)
    I("v_cmp_gt_u32 vcc, 0x200, v0")
    I("s_and_saveexec_b64 s[72:73], vcc")
    I(f"ds_write_b128 v40, v[48:51] offset:{L_WL}")
    I("s_mov_b64 exec, s[72:73]")
    I("s_waitcnt lgkmcnt(0)")
    I("s_barrier")
    stamp(1, 124)
    I(f"v_mov_b32 v41, {L_HEAVY}")
    I("ds_read_b32 v41, v41")
    I("s_waitcnt lgkmcnt(0)")
    I("v_readfirstlane_b32 s77, v41")
    I("s_cmp_eq_u32 s77, 0")
    I("s_cbranch_scc1 K3_LIGHT")
    heavy_path("K3H", 24, 12, 20, 8, 10, K3_ACC, 16)
    I("s_cmp_ge_u32 s10, 13")
    I("s_cbranch_scc1 K3_END")
    heavy_read_acc(K3_ACC, 10)
    I("s_branch K3_ST")
    L("K3_LIGHT")
    I(f"s_cmp_ge_u32 s10, {NWORK}")
    I("s_cbranch_scc1 K3_END")
    hop_header(10)
    hop_wave("K3S", 24)
    split_fix("K3S", 10)
    L("K3_ST")
    stamp(2, 124)
    I(f"s_lshl_b32 s83, s10, 11")
    I(f"s_add_u32 s83, s83, {L_SCR}")
    I(f"v_lshlrev_b32 v{V_A0}, 2, v{V_G4}")
    I(f"v_xor_b32 v{V_A1}, v{V_A0}, v{V_F16}")
    I(f"v_lshlrev_b32 v{V_A0}, 3, v{V_A0}")
    I(f"v_add3_u32 v{V_A0}, v{V_A0}, v{V_A1}, s83")
    for va, t0, off in ((V_ACC, V_T, 0), (V_ACC2, V_RC, 1024)):
        for i in range(4):
            I(f"v_cvt_pk_bf16_f32 v{t0+i}, v{va+2*i}, v{va+2*i+1}")
        I(f"ds_write_b128 v{V_A0}, v[{t0}:{t0+3}] offset:{off}")
    J, KB, AW, AB, NV = 40, 41, 42, 43, 44
    I(f"v_and_b32 v{J}, 15, v{V_LANE}")
    I(f"v_lshrrev_b32 v{KB}, 4, v{V_LANE}")
    I(f"v_and_b32 v46, 7, v{J}")
    I(f"v_lshlrev_b32 v45, 5, v46")
    I(f"ds_bpermute_b32 v47, v45, v{V_NA}")
    I(f"ds_bpermute_b32 v48, v45, v{V_NB}")
    I(f"v_xor_b32 v49, v{KB}, v46")
    I(f"v_lshlrev_b32 v49, 4, v49")
    I(f"v_lshlrev_b32 v{AB}, 7, v{J}")
    I(f"v_add3_u32 v{AB}, v{AB}, s83, v49")
    I(f"v_xor_b32 v49, 64, v49")
    I(f"v_lshlrev_b32 v50, 7, v{J}")
    I(f"v_add3_u32 v50, v50, s83, v49")
    I(f"v_lshrrev_b32 v51, 2, v{J}")
    I(f"v_lshl_add_u32 v51, v{KB}, 3, v51")
    I(f"v_lshlrev_b32 v51, 7, v51")
    I(f"v_and_b32 v52, 3, v{V_LANE}")
    I(f"v_lshl_add_u32 v{AW}, v52, 4, v51")
    B0, B1 = 56, 60
    I(f"ds_read_b128 v[{B0}:{B0+3}], v{AB}")
    I(f"ds_read_b128 v[{B1}:{B1+3}], v50")
    WF = 64
    for t in range(4):
        for s in range(2):
            for hh in range(2):
                off = L_WL + s * 4096 + hh * 512 + (t >> 1) * 64 + (t & 1) * 8
                d = WF + (t * 2 + s) * 4 + 2 * hh
                I(f"ds_read_b64_tr_b16 v[{d}:{d+1}], v{AW} offset:{off}")
    DD = 96
    for i in range(16):
        I(f"v_mov_b32 v{DD+i}, 0")
    I(f"v_cmp_gt_u32 vcc, 8, v{J}")
    I("s_waitcnt lgkmcnt(0)")
    for s in range(2):
        for t in range(4):
            a = WF + (t * 2 + s) * 4
            b = B0 if s == 0 else B1
            I(f"v_mfma_f32_16x16x32_bf16 v[{DD+4*t}:{DD+4*t+3}], v[{a}:{a+3}], v[{b}:{b+3}], v[{DD+4*t}:{DD+4*t+3}]")
    I(f"v_cndmask_b32 v{NV}, v48, v47, vcc")
    I(f"v_lshlrev_b32 v{NV}, 15, v{NV}")
    I("s_lshl_b32 s45, s8, 7")
    I(f"v_lshlrev_b32 v53, 4, v{KB}")
    I(f"v_add3_u32 v{NV}, v{NV}, s45, v53")
    I("s_nop 7")
    O = 112
    for half in range(2):
        for k in range(2):
            t = half * 2 + k
            I(f"v_cvt_pk_bf16_f32 v{O+half*4+2*k}, v{DD+4*t}, v{DD+4*t+1}")
            I(f"v_cvt_pk_bf16_f32 v{O+half*4+2*k+1}, v{DD+4*t+2}, v{DD+4*t+3}")
    I(f"buffer_store_dwordx4 v[{O}:{O+3}], v{NV}, s[28:31], 0 offen" + FL[opt.st3])
    I(f"buffer_store_dwordx4 v[{O+4}:{O+7}], v{NV}, s[28:31], 0 offen offset:64" + FL[opt.st3])
    stamp(3, 124)
    if opt.stamps:
        I("s_waitcnt vmcnt(0)")
        stamp(4, 124)
    if opt.dbg: I("s_waitcnt vmcnt(0)")
    dbg_stamp(2, 1, 0, 124)
    L("K3_END")
    I("s_endpgm")
    hop_subs("K3S")
    I("s_endpgm")
    return name, 128, (102 if opt.dbg else 96)

HEADER = f"""; Kernarg layout for this problem (64 bytes, ptrs only, base s[0:1]):
; @launch kernel=sgc_part_kernel grid=(256,1,1) block=(832,1,1) lds={K1_LDS}
; @launch kernel=sgc_sort_hop1_kernel grid=(256,1,1) block=(1024,1,1) lds={K2_LDS}
; @launch kernel=sgc_hop2_kernel grid=(256,1,1) block=(1024,1,1) lds={K3_LDS}
.amdgcn_target "amdgcn-amd-amdhsa--gfx950"
.text"""

def main():
    for a in sys.argv[2:]:
        k, v = a.split("=")
        setattr(opt, k, int(v))
    emit(HEADER)
    ks = [gen_k1(), gen_k2(), gen_k3()]
    emit('.section .rodata,"a"')
    emit(".p2align 6")
    for (n, v, s) in ks:
        kernel_desc(n, v, s)
        emit(".p2align 6")
    open(sys.argv[1], "w").write("\n".join(out) + "\n")

main()
```

```python
import sys

N = 50000
E = 850000
CH = 3328
NCH = 256
RECB = CH * 8
WS_SEG = 0
WS_REC = 0x40000
WS_IMG = 0x6C0000
WS_H1 = 0xC00000
TBL_BYTES = N * 128
SAFE = 0x0000FFFF
SPLIT = 25000

class Opt:
    D = 8
    pf1 = 0
    pf2a = 0
    pf2b = 0
    pf3 = 0
    stamps = 0
    R = 8
    prio = 0
    st1 = 0
    st2 = 0
    st2i = 0
    st3 = 0
    dbg = 0

opt = Opt()
out = []
def emit(s=""): out.append(s)
def I(s): out.append("    " + s)
def L(s): out.append(s + ":")
_uid = [0]
def uid(p):
    _uid[0] += 1
    return f"{p}_{_uid[0]}"

FL = ['', ' sc1', ' sc0 sc1', ' nt', ' sc0']
def srd(s, lo, hi, size, add=0):
    if add:
        I(f"s_add_u32 s{s}, s{lo}, {add}")
        I(f"s_addc_u32 s{s+1}, s{hi}, 0")
        I(f"s_and_b32 s{s+1}, s{s+1}, 0xffff")
    else:
        I(f"s_mov_b32 s{s}, s{lo}")
        I(f"s_and_b32 s{s+1}, s{hi}, 0xffff")
    I(f"s_mov_b32 s{s+2}, {size}")
    I(f"s_mov_b32 s{s+3}, 0x20000")

def wave_scan(v):
    for sh in (1, 2, 4, 8):
        I("s_nop 1")
        I(f"v_add_u32_dpp v{v}, v{v}, v{v} row_shr:{sh} row_mask:0xf bank_mask:0xf")
    I("s_nop 1")
    I(f"v_add_u32_dpp v{v}, v{v}, v{v} row_bcast:15 row_mask:0xa bank_mask:0xf")
    I("s_nop 1")
    I(f"v_add_u32_dpp v{v}, v{v}, v{v} row_bcast:31 row_mask:0xc bank_mask:0xf")

STAMP_OFF = 0x2000000
def stamp_init(kidx, ws_lo, vbase):
    if not opt.stamps: return
    I(f"v_lshrrev_b32 v{vbase}, 6, v0")
    I(f"s_lshl_b32 s92, s2, 4")
    I(f"s_add_u32 s92, s92, {kidx*256*16}")
    I(f"v_add_u32 v{vbase}, s92, v{vbase}")
    I(f"v_lshlrev_b32 v{vbase}, 7, v{vbase}")
    I(f"v_add_u32 v{vbase}, {STAMP_OFF}, v{vbase}")
    I(f"s_mov_b32 s94, s{ws_lo}")
    I(f"s_mov_b32 s95, s{ws_lo+1}")
def stamp(j, vbase, pre=None):
    if not opt.stamps: return
    if pre is None:
        I("s_memrealtime s[90:91]")
        I("s_waitcnt lgkmcnt(0)")
    else:
        I(f"s_mov_b32 s90, s{pre}")
        I(f"s_mov_b32 s91, s{pre+1}")
    I("s_mov_b64 s[88:89], exec")
    I("s_mov_b64 exec, 1")
    I(f"v_mov_b32 v{vbase+2}, s90")
    I(f"v_mov_b32 v{vbase+3}, s91")
    I(f"global_store_dwordx2 v{vbase}, v[{vbase+2}:{vbase+3}], s[94:95] offset:{8*j}")
    I("s_mov_b64 exec, s[88:89]")

DBG_WS = 0x3000000
def dbg_stamp(kidx, slot, sW, vt, first=False):
    if not opt.dbg: return
    lab = uid("DBG")
    if first:
        I("s_load_dwordx2 s[96:97], s[0:1], 56")
        I("s_waitcnt lgkmcnt(0)")
        I(f"s_add_u32 s96, s96, {DBG_WS}")
        I("s_addc_u32 s97, s97, 0")
    I("s_memrealtime s[98:99]")
    I("s_waitcnt lgkmcnt(0)")
    I("s_cmp_eq_u32 s2, 0")
    I("s_cselect_b32 s100, 0, 8")
    I("s_cmp_eq_u32 s2, 255")
    I("s_cselect_b32 s101, 1, 0")
    I("s_cmp_eq_u32 s2, 0")
    I("s_cselect_b32 s101, 1, s101")
    I("s_cmp_eq_u32 s101, 0")
    I(f"s_cbranch_scc1 {lab}")
    I(f"v_cmp_eq_u32 vcc, 0, v0")
    I("s_and_saveexec_b64 s[90:91], vcc")
    I(f"s_cbranch_execz {lab}_x")
    I(f"s_add_u32 s100, s100, {kidx*16 + slot*4}")
    I(f"v_mov_b32 v{vt}, s100")
    I(f"v_mov_b32 v{vt+1}, s98")
    I(f"global_store_dword v{vt}, v{vt+1}, s[96:97] sc0 sc1")
    L(lab + "_x")
    I("s_mov_b64 exec, s[90:91]")
    L(lab)

def dbg_copy(vt):
    if not opt.dbg: return
    lab = uid("DBC")
    I("s_cmp_lg_u32 s2, 0")
    I(f"s_cbranch_scc1 {lab}")
    I("s_waitcnt vmcnt(0)")
    I("v_cmp_gt_u32 vcc, 12, v0")
    I("s_and_saveexec_b64 s[90:91], vcc")
    I(f"s_cbranch_execz {lab}_x")
    I(f"v_lshlrev_b32 v{vt}, 2, v0")
    I(f"global_load_dword v{vt+1}, v{vt}, s[96:97] sc0 sc1")
    I("s_load_dwordx2 s[92:93], s[0:1], 48")
    I("s_waitcnt vmcnt(0) lgkmcnt(0)")
    I(f"global_store_dword v{vt}, v{vt+1}, s[92:93]")
    L(lab + "_x")
    I("s_mov_b64 exec, s[90:91]")
    L(lab)

def kernel_begin(name):
    emit(f".globl {name}")
    emit(".p2align 8")
    emit(f".type {name},@function")
    L(name)

def kernel_desc(name, vgpr, sgpr):
    acc = (vgpr + 3) // 4 * 4
    emit(f".amdhsa_kernel {name}")
    emit(f"  .amdhsa_next_free_vgpr {vgpr}")
    emit(f"  .amdhsa_next_free_sgpr {sgpr}")
    emit(f"  .amdhsa_accum_offset {acc}")
    emit("  .amdhsa_group_segment_fixed_size 0")
    emit("  .amdhsa_kernarg_size 64")
    emit("  .amdhsa_user_sgpr_count 2")
    emit("  .amdhsa_user_sgpr_kernarg_segment_ptr 1")
    emit("  .amdhsa_system_sgpr_workgroup_id_x 1")
    emit(".end_amdhsa_kernel")

K1_HIST = 0
K1_PRE = 1024
K1_STAGE = 2048
K1_LDS = K1_STAGE + RECB

def gen_k1():
    name = "sgc_part_kernel"
    kernel_begin(name)
    I("s_cmp_ge_u32 s2, 256")
    I("s_cbranch_scc1 K1_END")
    dbg_stamp(0, 0, 0, 56, True)
    if opt.stamps: I("s_memrealtime s[86:87]")
    I("s_load_dwordx4 s[4:7], s[0:1], 8")
    I("s_load_dwordx2 s[8:9], s[0:1], 24")
    I("s_load_dwordx2 s[10:11], s[0:1], 56")
    if opt.pf1:
        I("s_load_dwordx2 s[40:41], s[0:1], 0")
    I(f"s_mul_i32 s3, s2, {CH}")
    I("v_lshl_add_u32 v1, v0, 2, s3")
    I("v_lshlrev_b32 v2, 2, v1")
    I("v_lshlrev_b32 v3, 1, v1")
    I("v_mov_b32 v4, 0")
    I("v_lshlrev_b32 v5, 2, v0")
    I("v_cmp_gt_u32 vcc, 0x100, v0")
    I("s_and_saveexec_b64 s[12:13], vcc")
    I(f"ds_write_b32 v5, v4 offset:{K1_HIST}")
    I("s_mov_b64 exec, s[12:13]")
    I("v_readfirstlane_b32 s15, v0")
    I("s_waitcnt lgkmcnt(0)")
    stamp_init(0, 10, 60); stamp(0, 60, 86)
    srd(16, 6, 7, E * 4)
    srd(20, 4, 5, E * 4)
    srd(24, 8, 9, E * 2)
    I("buffer_load_dwordx4 v[8:11], v2, s[16:19], 0 offen")
    I("buffer_load_dwordx4 v[12:15], v2, s[20:23], 0 offen")
    I("buffer_load_dwordx2 v[16:17], v3, s[24:27], 0 offen")
    npf = opt.pf1
    if npf:
        srd(44, 40, 41, TBL_BYTES)
        I("s_lshr_b32 s42, s2, 3")
        I(f"s_mul_i32 s42, s42, {npf*832*16}")
        I("v_lshlrev_b32 v40, 4, v0")
        I("v_add_u32 v40, s42, v40")
        for i in range(npf):
            I(f"s_mov_b32 s43, {i*832*16}")
            I("buffer_load_dwordx4 v[44:47], v40, s[44:47], s43 offen")
    srd(28, 10, 11, NCH * 1024, WS_SEG)
    srd(32, 10, 11, NCH * RECB, WS_REC)
    I("s_lshr_b32 s15, s15, 6")
    I(f"s_mov_b32 s14, {E}")
    I("s_mov_b32 s36, 0xffff0000")
    I("s_mov_b32 s37, 21474")
    I("s_barrier")
    I("v_cmp_gt_u32 vcc, s14, v1")
    I("s_and_saveexec_b64 s[12:13], vcc")
    I("s_mov_b64 s[38:39], exec")
    I("v_mov_b32 v22, 1")
    I(f"s_waitcnt vmcnt({2+npf})")
    stamp(1, 60)
    for i in range(4):
        I(f"v_and_b32 v{18+i}, 0xff, v{8+i}")
        I(f"v_lshlrev_b32 v{18+i}, 2, v{18+i}")
    for i in range(4):
        I(f"ds_add_rtn_u32 v{24+i}, v{18+i}, v22 offset:{K1_HIST}")
    I(f"s_waitcnt vmcnt({npf})")
    I("v_lshl_or_b32 v48, v16, 16, v12")
    I("v_and_or_b32 v50, v16, s36, v13")
    I("v_lshl_or_b32 v52, v17, 16, v14")
    I("v_and_or_b32 v54, v17, s36, v15")
    for i in range(4):
        I(f"v_mul_u32_u24 v23, s37, v{12+i}")
        I("v_lshrrev_b32 v23, 25, v23")
        I("v_and_b32 v23, 24, v23")
        I(f"v_lshrrev_b32 v{49+2*i}, 8, v{8+i}")
        I(f"v_lshl_or_b32 v{49+2*i}, v{49+2*i}, 5, v23")
    I("s_waitcnt lgkmcnt(0)")
    I("s_mov_b64 exec, s[12:13]")
    I("s_barrier")
    I("s_cmp_lg_u32 s15, 0")
    I("s_cbranch_scc1 K1_NOSCAN")
    I("v_lshlrev_b32 v5, 4, v0")
    I(f"ds_read_b128 v[28:31], v5 offset:{K1_HIST}")
    I("s_waitcnt lgkmcnt(0)")
    I("v_add_u32 v32, v28, v29")
    I("v_add_u32 v33, v32, v30")
    I("v_add_u32 v34, v33, v31")
    I("v_mov_b32 v35, v34")
    wave_scan(35)
    I("v_sub_u32 v36, v35, v34")
    I("v_add_u32 v37, v36, v28")
    I("v_add_u32 v38, v36, v32")
    I("v_add_u32 v39, v36, v33")
    I(f"ds_write_b128 v5, v[36:39] offset:{K1_PRE}")
    I("v_lshl_or_b32 v28, v37, 16, v36")
    I("v_lshl_or_b32 v29, v38, 16, v37")
    I("v_lshl_or_b32 v30, v39, 16, v38")
    I("v_lshl_or_b32 v31, v35, 16, v39")
    I("s_lshl_b32 s37, s2, 10")
    I("buffer_store_dwordx4 v[28:31], v5, s[28:31], s37 offen")
    I("s_waitcnt lgkmcnt(0)")
    L("K1_NOSCAN")
    I("s_barrier")
    I("s_mov_b64 exec, s[38:39]")
    for i in range(4):
        I(f"ds_read_b32 v{28+i}, v{18+i} offset:{K1_PRE}")
    I("s_waitcnt lgkmcnt(0)")
    for i in range(4):
        I(f"v_add_u32 v{28+i}, v{28+i}, v{24+i}")
        I(f"v_lshlrev_b32 v{28+i}, 3, v{28+i}")
    for i in range(4):
        I(f"ds_write_b64 v{28+i}, v[{48+2*i}:{49+2*i}] offset:{K1_STAGE}")
    I("s_waitcnt lgkmcnt(0)")
    I("s_mov_b64 exec, s[12:13]")
    I("s_barrier")
    I("v_lshlrev_b32 v5, 4, v0")
    I(f"ds_read_b128 v[8:11], v5 offset:{K1_STAGE}")
    I(f"ds_read_b128 v[12:15], v5 offset:{K1_STAGE + RECB//2}")
    I(f"s_mul_i32 s37, s2, {RECB}")
    I(f"s_add_u32 s42, s37, {RECB//2}")
    I("s_waitcnt lgkmcnt(1)")
    I("buffer_store_dwordx4 v[8:11], v5, s[32:35], s37 offen" + FL[opt.st1])
    I("s_waitcnt lgkmcnt(0)")
    I("buffer_store_dwordx4 v[12:15], v5, s[32:35], s42 offen" + FL[opt.st1])
    stamp(2, 60)
    if opt.stamps:
        I("s_waitcnt vmcnt(0)")
        stamp(3, 60)
    if opt.dbg: I("s_waitcnt vmcnt(0)")
    dbg_stamp(0, 1, 0, 56)
    L("K1_END")
    I("s_endpgm")
    return name, (64 if (opt.stamps or opt.dbg) else 56), (102 if (opt.stamps or opt.dbg) else 48)

L_SU = 0x000
L_WB = 0x040
L_ORD = 0x120
L_HEAVY = 0x1F0
L_LIST = 0x200
IMG_BYTES = 0x4000
LIST_CAP = IMG_BYTES - L_LIST
L_CNT = 0x4000
L_H2 = 0x6000
L_SC2 = 0x6100
L_WM = 0x6200
K2_ZERO_END = 0x6400
L_NBQ = 0x6400
K2_ACC = 0x9000
ACC_BYTES = 208 * 256
K2_LDS = K2_ACC + ACC_BYTES
L_WL = 0x4000
L_SCR = 0x6000
K3_ACC = 0xD000
K3_LDS = K3_ACC + ACC_BYTES
NWORK = 14

V_LANE = 1
V_G4 = 2
V_F16 = 3
V_SELA = 4
V_SELB = 5
V_PTRC = 6
V_PTRI = 7
V_NA = 8
V_NB = 9
V_A0 = 10
V_A1 = 11
V_ACC = 12
V_ACC2 = 20
V_T = 28
V_RC = 32
V_RI = 36
V_DATA = 40
S_T, S_NB, S_PACE, S_DR, S_REM = 78, 79, 80, 81, 82
S_RET = 84
S_128 = 44

def pf_setup(vaddr, n, base_bytes):
    I("s_lshr_b32 s15, s2, 3")
    I(f"s_mul_i32 s15, s15, {n*4096}")
    if base_bytes: I(f"s_add_u32 s15, s15, {base_bytes}")
    I(f"v_lshlrev_b32 v{vaddr}, 6, v0")
    I(f"v_add_u32 v{vaddr}, s15, v{vaddr}")
def pf_issue(vaddr, vdst, tbl, n, sW):
    rounds = (n + 15) // 16
    for i in range(rounds):
        cnt = min(16, n - 16 * i)
        lab = uid("PF")
        if cnt < 16:
            I(f"s_cmp_ge_u32 s{sW}, {cnt}")
            I(f"s_cbranch_scc1 {lab}")
        I(f"s_mov_b32 s15, {i*16*4096}")
        I(f"buffer_load_dword v{vdst}, v{vaddr}, s[{tbl}:{tbl+3}], s15 offen")
        L(lab)
    return rounds

def hop_consts():
    I(f"v_lshrrev_b32 v{V_G4}, 3, v{V_LANE}")
    I(f"v_lshlrev_b32 v{V_G4}, 2, v{V_G4}")
    I(f"v_and_b32 v{V_F16}, 7, v{V_LANE}")
    I(f"v_lshlrev_b32 v{V_F16}, 4, v{V_F16}")
    I(f"v_and_b32 v{V_PTRC}, 3, v{V_LANE}")
    I(f"v_mov_b32 v{V_SELA}, 0x0c0c0c0c")
    I(f"v_mov_b32 v{V_SELB}, 0x0c0c0c0c")
    I(f"v_mov_b32 v{V_A0}, 0x0c0c0302")
    I(f"v_mov_b32 v{V_A1}, 0x03020c0c")
    for val, sel, lit in ((0, V_SELA, V_A0), (1, V_SELA, V_A1), (2, V_SELB, V_A0), (3, V_SELB, V_A1)):
        I(f"v_cmp_eq_u32 vcc, {val}, v{V_PTRC}")
        I("s_nop 1")
        I(f"v_cndmask_b32 v{sel}, v{sel}, v{lit}, vcc")
    I(f"s_mov_b32 s{S_128}, 128")

def rd2(dst, ptr, unit):
    o = unit * 16
    assert o + 8 <= 255
    I(f"ds_read2_b32 v[{dst}:{dst+1}], v{ptr} offset0:{o} offset1:{o+8}")

def perms(p):
    rc = V_RC + 2 * p
    I(f"v_perm_b32 v{V_T+0}, v{rc}, v{rc}, v{V_SELA}")
    I(f"v_perm_b32 v{V_T+1}, v{rc}, v{rc}, v{V_SELB}")
    I(f"v_perm_b32 v{V_T+2}, v{rc+1}, v{rc+1}, v{V_SELA}")
    I(f"v_perm_b32 v{V_T+3}, v{rc+1}, v{rc+1}, v{V_SELB}")

def mfmas(r):
    d = V_DATA + 8 * r
    a, b = V_ACC, V_ACC2
    I(f"v_mfma_f32_4x4x4_16b_bf16 v[{a}:{a+3}], v[{V_T}:{V_T+1}], v[{d}:{d+1}], v[{a}:{a+3}]")
    I(f"v_mfma_f32_4x4x4_16b_bf16 v[{a+4}:{a+7}], v[{V_T}:{V_T+1}], v[{d+2}:{d+3}], v[{a+4}:{a+7}]")
    I(f"v_mfma_f32_4x4x4_16b_bf16 v[{b}:{b+3}], v[{V_T+2}:{V_T+3}], v[{d+4}:{d+5}], v[{b}:{b+3}]")
    I(f"v_mfma_f32_4x4x4_16b_bf16 v[{b+4}:{b+7}], v[{V_T+2}:{V_T+3}], v[{d+6}:{d+7}], v[{b+4}:{b+7}]")

def pace_check(pfx):
    if opt.R <= 1: return
    lab = uid(pfx + "_PC")
    I(f"s_add_u32 s{S_PACE}, s{S_PACE}, {opt.R}")
    I(f"s_cmp_lt_u32 s{S_PACE}, s{S_T}")
    I(f"s_cbranch_scc1 {lab}")
    I(f"s_call_b64 s[{S_RET}:{S_RET+1}], {pfx}_BS")
    L(lab)

def pace_final(pfx):
    if opt.R <= 1: return
    l1, l2 = uid(pfx + "_PF"), uid(pfx + "_PG")
    L(l1)
    I(f"s_cmp_eq_u32 s{S_NB}, 0")
    I(f"s_cbranch_scc1 {l2}")
    I("s_barrier")
    I(f"s_sub_u32 s{S_NB}, s{S_NB}, 1")
    I(f"s_branch {l1}")
    L(l2)

def pace_sub(pfx):
    if opt.R <= 1: return
    L(f"{pfx}_BS")
    I(f"s_cmp_eq_u32 s{S_NB}, 0")
    I(f"s_cbranch_scc1 {pfx}_BR")
    I("s_barrier")
    I(f"s_sub_u32 s{S_NB}, s{S_NB}, 1")
    I(f"s_sub_u32 s{S_PACE}, s{S_PACE}, s{S_T}")
    I(f"s_cmp_ge_u32 s{S_PACE}, s{S_T}")
    I(f"s_cbranch_scc1 {pfx}_BS")
    L(f"{pfx}_BR")
    I(f"s_setpc_b64 s[{S_RET}:{S_RET+1}]")

def hop_wave(pfx, tbl):
    D = opt.D
    for i in range(8):
        I(f"v_mov_b32 v{V_ACC+i}, 0")
        I(f"v_mov_b32 v{V_ACC2+i}, 0")
    I(f"s_min_u32 s{S_T}, s{S_T}, 0x100")
    I(f"s_mov_b32 s{S_DR}, s{S_T}")
    I(f"s_mov_b32 s{S_NB}, {opt.R - 1}")
    I(f"s_mov_b32 s{S_PACE}, 0")
    I(f"s_cmp_eq_u32 s{S_T}, 0")
    I(f"s_cbranch_scc1 {pfx}_FIN")
    for r in range(D):
        rd2(V_DATA + 8 * r, V_PTRC, r)
    rd2(V_RC, V_PTRC, 0)
    I(f"v_add_u32 v{V_PTRI}, {D*64}, v{V_PTRC}")
    I("s_waitcnt lgkmcnt(0)")
    rd2(V_RI, V_PTRI, 0)
    for r in range(D):
        d = V_DATA + 8 * r
        if r > 0:
            I(f"s_cmp_le_u32 s{S_T}, {r}")
            I(f"s_cbranch_scc1 {pfx}_DR0")
            pace_check(pfx)
        I(f"v_mad_u32_u16 v{V_A0}, v{d}, s{S_128}, v{V_F16}")
        I(f"v_mad_u32_u16 v{V_A1}, v{d+1}, s{S_128}, v{V_F16}")
        I(f"buffer_load_dwordx4 v[{d}:{d+3}], v{V_A0}, s[{tbl}:{tbl+3}], 0 offen")
        I(f"buffer_load_dwordx4 v[{d+4}:{d+7}], v{V_A1}, s[{tbl}:{tbl+3}], 0 offen")
    I(f"s_sub_u32 s{S_REM}, s{S_T}, {D}")
    I(f"s_mov_b32 s{S_DR}, {D}")
    I(f"s_cmp_eq_u32 s{S_REM}, 0")
    I(f"s_cbranch_scc1 {pfx}_DR0")
    L(f"{pfx}_MAIN")
    for r in range(D):
        p = r & 1
        d = V_DATA + 8 * r
        I("s_waitcnt lgkmcnt(0)")
        rd2(V_RC + 2 * (p ^ 1), V_PTRC, r + 1)
        rd2(V_RI + 2 * (p ^ 1), V_PTRI, r + 1)
        perms(p)
        ri = V_RI + 2 * p
        I(f"v_mad_u32_u16 v{V_A0}, v{ri}, s{S_128}, v{V_F16}")
        I(f"v_mad_u32_u16 v{V_A1}, v{ri+1}, s{S_128}, v{V_F16}")
        I(f"s_waitcnt vmcnt({2*(D-1)})")
        mfmas(r)
        pace_check(pfx)
        I(f"buffer_load_dwordx4 v[{d}:{d+3}], v{V_A0}, s[{tbl}:{tbl+3}], 0 offen")
        I(f"buffer_load_dwordx4 v[{d+4}:{d+7}], v{V_A1}, s[{tbl}:{tbl+3}], 0 offen")
        if r == D - 1:
            I(f"v_add_u32 v{V_PTRC}, {D*64}, v{V_PTRC}")
            I(f"v_add_u32 v{V_PTRI}, {D*64}, v{V_PTRI}")
        I(f"s_sub_u32 s{S_REM}, s{S_REM}, 1")
        I(f"s_cmp_eq_u32 s{S_REM}, 0")
        if r == D - 1:
            I(f"s_cbranch_scc0 {pfx}_MAIN")
        else:
            I(f"s_cbranch_scc1 {pfx}_DR{r+1}")
    for q in range(2 * D - 1):
        r = q % D
        p = q & 1
        if q < D:
            L(f"{pfx}_DR{q}")
            if q == 0 or True:
                lab = uid(pfx + "_DX")
                if opt.R > 1:
                    I(f"s_cmp_eq_u32 s{S_NB}, 0")
                    I(f"s_cbranch_scc1 {lab}")
                    I(f"s_call_b64 s[{S_RET}:{S_RET+1}], {pfx}_BF")
                    L(lab)
            I("s_waitcnt vmcnt(0)")
        I("s_waitcnt lgkmcnt(0)")
        if q + 1 <= 2 * D - 2:
            rd2(V_RC + 2 * (p ^ 1), V_PTRC, q + 1)
        perms(p)
        I(f"s_sub_u32 s{S_DR}, s{S_DR}, 1")
        I("s_nop 0")
        mfmas(r)
        if q < 2 * D - 2:
            I(f"s_cmp_eq_u32 s{S_DR}, 0")
            I(f"s_cbranch_scc1 {pfx}_FIN")
    L(f"{pfx}_FIN")
    pace_final(pfx)
    I("s_nop 4")

def hop_subs(pfx):
    pace_sub(pfx)
    if opt.R > 1:
        L(f"{pfx}_BF")
        pace_final(pfx)
        I(f"s_setpc_b64 s[{S_RET}:{S_RET+1}]")

def node_pos(sW, heavy):
    I(f"v_lshrrev_b32 v{V_NB}, 2, v{V_G4}")
    I(f"s_lshl_b32 s45, s{sW}, 4")
    if not heavy:
        I(f"s_lshl_b32 s46, s{sW}, 3")
        I(f"s_add_u32 s46, s46, 96")
        I(f"s_cmp_lt_u32 s{sW}, 12")
        I(f"s_cselect_b32 s45, s45, s46")
    I(f"v_add_u32 v{V_NA}, s45, v{V_NB}")
    I(f"v_add_u32 v{V_NB}, 8, v{V_NA}")

def hop_header(sW):
    I(f"s_lshl_b32 s45, s{sW}, 2")
    I(f"v_mov_b32 v{V_A0}, s45")
    I(f"ds_read_b32 v{V_A1}, v{V_A0} offset:{L_SU}")
    I(f"ds_read_b32 v{V_PTRC}, v{V_A0} offset:{L_WB}")
    node_pos(sW, False)
    I(f"ds_read_u8 v{V_NA}, v{V_NA} offset:{L_ORD}")
    I(f"ds_read_u8 v{V_NB}, v{V_NB} offset:{L_ORD}")
    I("s_waitcnt lgkmcnt(0)")
    I(f"v_readfirstlane_b32 s{S_T}, v{V_A1}")
    I(f"v_add_u32 v{V_PTRC}, v{V_PTRC}, v{V_G4}")

def split_fix(pfx, sW):
    lab = uid(pfx + "_SF")
    I(f"s_cmp_lt_u32 s{sW}, 12")
    I(f"s_cbranch_scc1 {lab}")
    for i in range(8):
        I(f"v_add_f32 v{V_ACC+i}, v{V_ACC+i}, v{V_ACC2+i}")
    I(f"v_mov_b32 v{V_NB}, 0xff")
    L(lab)

def heavy_path(pfx, tbl, seg_lo_hi, rec_srd, sB, sW, acc_base, nwaves):
    I("v_mov_b32 v40, 0")
    I("v_mov_b32 v41, 0")
    I("v_mov_b32 v42, 0")
    I("v_mov_b32 v43, 0")
    I("v_lshlrev_b32 v44, 4, v0")
    I(f"v_add_u32 v44, {acc_base}, v44")
    n16 = ACC_BYTES // 16
    for i in range(3):
        I(f"ds_write_b128 v44, v[40:43] offset:{i*16384}")
    I(f"v_cmp_gt_u32 vcc, {n16 - 3072}, v0")
    I("s_and_saveexec_b64 s[60:61], vcc")
    I(f"ds_write_b128 v44, v[40:43] offset:{3*16384}")
    I("s_mov_b64 exec, s[60:61]")
    I("s_waitcnt lgkmcnt(0)")
    I("s_barrier")
    I(f"s_mov_b32 s62, s{sW}")
    I(f"v_lshrrev_b32 v45, 3, v{V_LANE}")
    I(f"s_lshl_b32 s63, s{sB}, 2")
    L(f"{pfx}_HC")
    I("s_lshl_b32 s64, s62, 10")
    I("s_add_u32 s64, s64, s63")
    I(f"s_add_u32 s66, s{seg_lo_hi}, s64")
    I(f"s_addc_u32 s67, s{seg_lo_hi+1}, 0")
    I("s_load_dword s68, s[66:67], 0")
    I(f"s_mul_i32 s69, s62, {RECB}")
    I("s_waitcnt lgkmcnt(0)")
    I("s_and_b32 s70, s68, 0xffff")
    I("s_lshr_b32 s71, s68, 16")
    L(f"{pfx}_HI")
    I("s_cmp_ge_u32 s70, s71")
    I(f"s_cbranch_scc1 {pfx}_HN")
    I("v_add_u32 v46, s70, v45")
    I("v_cmp_gt_u32 vcc, s71, v46")
    I("s_and_saveexec_b64 s[60:61], vcc")
    I("v_lshlrev_b32 v47, 3, v46")
    I(f"buffer_load_dwordx2 v[48:49], v47, s[{rec_srd}:{rec_srd+3}], s69 offen")
    I("s_waitcnt vmcnt(0)")
    I("v_and_b32 v50, 0xffff, v48")
    I("v_lshlrev_b32 v50, 7, v50")
    I(f"v_add_u32 v50, v50, v{V_F16}")
    I(f"buffer_load_dwordx4 v[52:55], v50, s[{tbl}:{tbl+3}], 0 offen")
    I("v_and_b32 v51, 0xffff0000, v48")
    I("v_lshrrev_b32 v56, 5, v49")
    I("v_lshlrev_b32 v56, 8, v56")
    I(f"v_lshlrev_b32 v57, 1, v{V_F16}")
    I("v_add_u32 v56, v56, v57")
    I(f"v_add_u32 v56, {acc_base}, v56")
    I("s_waitcnt vmcnt(0)")
    for i in range(4):
        I(f"v_lshlrev_b32 v58, 16, v{52+i}")
        I(f"v_and_b32 v59, 0xffff0000, v{52+i}")
        I("v_mul_f32 v58, v58, v51")
        I("v_mul_f32 v59, v59, v51")
        I(f"ds_add_f32 v56, v58 offset:{8*i}")
        I(f"ds_add_f32 v56, v59 offset:{8*i + 4}")
    I("s_mov_b64 exec, s[60:61]")
    I("s_add_u32 s70, s70, 8")
    I(f"s_branch {pfx}_HI")
    L(f"{pfx}_HN")
    I(f"s_add_u32 s62, s62, {nwaves}")
    I("s_cmp_lt_u32 s62, 256")
    I(f"s_cbranch_scc1 {pfx}_HC")
    I("s_waitcnt lgkmcnt(0)")
    I("s_barrier")

def heavy_read_acc(acc_base, sW):
    node_pos(sW, True)
    for vn, va in ((V_NA, V_ACC), (V_NB, V_ACC2)):
        I(f"v_lshlrev_b32 v{V_A0}, 8, v{vn}")
        I(f"v_lshlrev_b32 v{V_A1}, 1, v{V_F16}")
        I(f"v_add_u32 v{V_A0}, v{V_A0}, v{V_A1}")
        I(f"v_add_u32 v{V_A0}, {acc_base}, v{V_A0}")
        I(f"ds_read_b128 v[{va}:{va+3}], v{V_A0}")
        I(f"ds_read_b128 v[{va+4}:{va+7}], v{V_A0} offset:16")
    I("s_waitcnt lgkmcnt(0)")

def gen_k2():
    name = "sgc_sort_hop1_kernel"
    kernel_begin(name)
    I("s_cmp_ge_u32 s2, 256")
    I("s_cbranch_scc1 K2_END")
    dbg_stamp(1, 0, 0, 124, True)
    if opt.stamps: I("s_memrealtime s[86:87]")
    I("s_load_dwordx2 s[4:5], s[0:1], 0")
    I("s_load_dwordx2 s[6:7], s[0:1], 56")
    I("s_and_b32 s8, s2, 7")
    I("s_lshl_b32 s8, s8, 5")
    I("s_lshr_b32 s9, s2, 3")
    I("s_add_u32 s8, s8, s9")
    I("v_readfirstlane_b32 s10, v0")
    I(f"v_and_b32 v{V_LANE}, 63, v0")
    I("v_lshlrev_b32 v40, 4, v0")
    I(f"v_mov_b32 v41, {SAFE}")
    I("v_cmp_gt_u32 vcc, 32, v0")
    I("s_lshr_b32 s10, s10, 6")
    I("v_mov_b32 v48, 0")
    I("v_cndmask_b32_e64 v44, v41, 0, vcc")
    I("v_mov_b32 v45, v44")
    I("v_mov_b32 v46, v44")
    I("v_mov_b32 v47, v44")
    I("ds_write_b128 v40, v[44:47]")
    I("v_mov_b32 v49, 0")
    I("v_mov_b32 v50, 0")
    I("v_mov_b32 v51, 0")
    I(f"v_cmp_gt_u32 vcc, {(K2_ZERO_END-L_CNT)//16}, v0")
    I("s_and_saveexec_b64 s[12:13], vcc")
    I(f"ds_write_b128 v40, v[48:51] offset:{L_CNT}")
    I("s_mov_b64 exec, s[12:13]")
    I(f"v_lshrrev_b32 v52, 4, v{V_LANE}")
    I("s_lshl_b32 s11, s10, 2")
    I("v_add_u32 v52, s11, v52")
    I("s_lshl_b32 s11, s8, 2")
    I("v_lshl_add_u32 v53, v52, 10, s11")
    I(f"s_mov_b32 s14, {RECB}")
    I("v_mul_u32_u24 v54, s14, v52")
    I(f"v_and_b32 v55, 15, v{V_LANE}")
    I("s_waitcnt lgkmcnt(0)")
    stamp_init(1, 6, 124); stamp(0, 124, 86)
    srd(16, 6, 7, NCH * 1024, WS_SEG)
    srd(20, 6, 7, NCH * RECB, WS_REC)
    srd(24, 4, 5, TBL_BYTES)
    srd(28, 6, 7, TBL_BYTES, WS_H1)
    srd(32, 6, 7, 256 * IMG_BYTES, WS_IMG)
    for r in range(4):
        I(f"s_mov_b32 s{36+r}, {r*65536}")
        I(f"s_mov_b32 s{40+r}, {r*64*RECB}")
    SG = lambda r: 56 + r
    for r in range(4):
        I(f"buffer_load_dword v{SG(r)}, v53, s[16:19], s{36+r} offen")
    na, nb = 0, opt.pf2b
    if nb: pf_setup(48, nb, 0)
    hop_consts()
    SM = lambda t, r: 46 + (t * 4 + r) * 2
    VOFF = lambda r: 60 + r
    VR = lambda t, r: 64 + (t * 4 + r) * 2
    VK = lambda t, r: 88 + t * 4 + r
    VP = lambda t, r: 100 + (t * 4 + r) * 2
    ONE = 40
    I(f"s_waitcnt vmcnt({na})")
    stamp(1, 124)
    I("s_mov_b64 s[70:71], 0")
    for r in range(4):
        I(f"v_and_b32 v42, 0xffff, v{SG(r)}")
        I(f"v_lshrrev_b32 v43, 16, v{SG(r)}")
        I("v_add_u32 v42, v42, v55")
        I(f"v_lshl_add_u32 v{VOFF(r)}, v42, 3, v54")
        I(f"v_cmp_lt_u32 s[{SM(0,r)}:{SM(0,r)+1}], v42, v43")
        I("v_add_u32 v42, 16, v42")
        I(f"v_cmp_lt_u32 s[{SM(1,r)}:{SM(1,r)+1}], v42, v43")
        I("v_add_u32 v42, 16, v42")
        I(f"v_cmp_lt_u32 s[{SM(2,r)}:{SM(2,r)+1}], v42, v43")
        I("v_add_u32 v42, 16, v42")
        I("v_cmp_lt_u32 vcc, v42, v43")
        I("s_or_b64 s[70:71], s[70:71], vcc")
    I("s_mov_b64 s[72:73], exec")
    for t in range(3):
        for r in range(4):
            lab = uid("K2_SK")
            I(f"s_mov_b64 exec, s[{SM(t,r)}:{SM(t,r)+1}]")
            I(f"s_cbranch_execz {lab}")
            off = f" offset:{128*t}" if t else ""
            I(f"buffer_load_dwordx2 v[{VR(t,r)}:{VR(t,r)+1}], v{VOFF(r)}, s[20:23], s{40+r} offen{off}")
            L(lab)
    I("s_mov_b64 exec, s[72:73]")
    I(f"v_mov_b32 v{ONE}, 1")
    I("s_waitcnt lgkmcnt(0)")
    I("s_barrier")
    I("s_waitcnt vmcnt(0)")
    pf_issue(48, 125, 24, nb, 10)
    stamp(2, 124)
    for t in range(3):
        for r in range(4):
            lab = uid("K2_SC")
            I(f"s_mov_b64 exec, s[{SM(t,r)}:{SM(t,r)+1}]")
            I(f"s_cbranch_execz {lab}")
            I(f"ds_add_rtn_u32 v{VK(t,r)}, v{VR(t,r)+1}, v{ONE} offset:{L_CNT}")
            L(lab)
    I("s_mov_b64 exec, s[72:73]")
    I("s_cmp_eq_u64 s[70:71], 0")
    I("s_cbranch_scc1 K2_NOH")
    I(f"v_mov_b32 v41, {L_HEAVY}")
    I(f"ds_write_b32 v41, v{ONE}")
    L("K2_NOH")
    I("s_waitcnt lgkmcnt(0)")
    I("s_barrier")
    stamp(3, 124)
    I("s_cmp_lg_u32 s10, 0")
    I("s_cbranch_scc1 K2_NOSORT")
    C = lambda i, q: 100 + 4 * i + q
    KY = lambda i: 12 + i
    R2 = lambda i: 16 + i
    SL = lambda i: 20 + i
    TT = lambda i: 24 + i
    I(f"v_lshlrev_b32 v28, 5, v{V_LANE}")
    I(f"v_add_u32 v28, {L_CNT}, v28")
    for i in range(4):
        if i: I(f"v_add_u32 v28, 2048, v28")
        I(f"ds_read2_b32 v[{C(i,0)}:{C(i,1)}], v28 offset0:0 offset1:2")
        I(f"ds_read2_b32 v[{C(i,2)}:{C(i,3)}], v28 offset0:4 offset1:6")
    I("s_mov_b32 s74, 0xffff")
    I("s_mov_b32 s75, 0")
    I(f"v_lshlrev_b32 v29, 2, v{V_LANE}")
    I("s_waitcnt lgkmcnt(0)")
    for i in range(4):
        I(f"v_add_u32 v{TT(i)}, v{C(i,0)}, v{C(i,1)}")
        I(f"v_add3_u32 v{TT(i)}, v{TT(i)}, v{C(i,2)}, v{C(i,3)}")
        I(f"v_min_u32 v{KY(i)}, 63, v{TT(i)}")
        I(f"v_lshlrev_b32 v{KY(i)}, 2, v{KY(i)}")
    for i in range(4):
        if i == 3:
            I("s_mov_b64 exec, s[74:75]")
        I(f"ds_add_rtn_u32 v{R2(i)}, v{KY(i)}, v{ONE} offset:{L_H2}")
    I("s_mov_b64 exec, s[72:73]")
    I(f"ds_read_b32 v30, v29 offset:{L_H2}")
    I("s_waitcnt lgkmcnt(0)")
    I("v_mov_b32 v31, v30")
    wave_scan(31)
    I("v_sub_u32 v31, v31, v30")
    I(f"ds_write_b32 v29, v31 offset:{L_SC2}")
    for i in range(4):
        I(f"ds_read_b32 v{32+i}, v{KY(i)} offset:{L_SC2}")
    I("s_movk_i32 s76, 0xc0")
    I("s_waitcnt lgkmcnt(0)")
    for i in range(4):
        I(f"v_add_u32 v{R2(i)}, v{R2(i)}, v{32+i}")
        I(f"v_cmp_le_u32 s[{12+2*(i&1)}:{13+2*(i&1)}], s76, v{R2(i)}")
        I(f"v_lshrrev_b32 v{SL(i)}, 4, v{R2(i)}")
        I(f"v_lshrrev_b32 v36, 3, v{R2(i)}")
        I(f"v_subrev_u32 v36, 12, v36")
        I(f"v_cndmask_b32_e64 v{SL(i)}, v{SL(i)}, v36, s[{12+2*(i&1)}:{13+2*(i&1)}]")
        I(f"v_lshlrev_b32 v{SL(i)}, 2, v{SL(i)}")
        I(f"v_mov_b32 v{32+i}, 64")
        I(f"v_mov_b32 v37, 32")
        I(f"v_cndmask_b32_e64 v{32+i}, v{32+i}, v37, s[{12+2*(i&1)}:{13+2*(i&1)}]")
        I(f"v_add_u32 v{KY(i)}, {64*i}, v{V_LANE}")
    for i in range(4):
        if i == 3:
            I("s_mov_b64 exec, s[74:75]")
        I(f"ds_write_b8 v{R2(i)}, v{KY(i)} offset:{L_ORD}")
        I(f"ds_max_u32 v{SL(i)}, v{TT(i)} offset:{L_WM}")
    I("s_mov_b64 exec, s[72:73]")
    I(f"ds_read_b32 v30, v29 offset:{L_WM}")
    I(f"v_cmp_gt_u32 vcc, 12, v{V_LANE}")
    I("s_waitcnt lgkmcnt(0)")
    I("v_add_u32 v31, 1, v30")
    I("v_lshrrev_b32 v31, 1, v31")
    I("v_cndmask_b32 v30, v31, v30, vcc")
    I("v_lshlrev_b32 v31, 6, v30")
    I("v_mov_b32 v36, v31")
    wave_scan(36)
    I("s_nop 1")
    I("v_readlane_b32 s76, v36, 63")
    I("v_sub_u32 v36, v36, v31")
    I(f"v_add_u32 v36, {L_LIST}, v36")
    I(f"v_cmp_gt_u32 vcc, 16, v{V_LANE}")
    I("s_and_saveexec_b64 s[12:13], vcc")
    I(f"ds_write_b32 v29, v36 offset:{L_WB}")
    I(f"ds_write_b32 v29, v30 offset:{L_SU}")
    I("s_mov_b64 exec, s[12:13]")
    I(f"s_cmp_le_u32 s76, {LIST_CAP}")
    I("s_cbranch_scc1 K2_CAPOK")
    I(f"v_mov_b32 v41, {L_HEAVY}")
    I(f"ds_write_b32 v41, v{ONE}")
    L("K2_CAPOK")
    for i in range(4):
        I(f"ds_read_b32 v{SL(i)}, v{SL(i)} offset:{L_WB}")
    I("s_waitcnt lgkmcnt(0)")
    for i in range(4):
        I(f"v_lshrrev_b32 v36, 2, v{32+i}")
        I(f"v_subrev_u32 v36, 1, v36")
        I(f"v_and_b32 v36, v36, v{R2(i)}")
        I(f"v_lshl_add_u32 v{SL(i)}, v36, 2, v{SL(i)}")
        I(f"v_add_u32 v36, v{C(i,0)}, v{C(i,1)}")
        I(f"v_add_u32 v37, v36, v{C(i,2)}")
        I(f"v_mad_u32_u24 v{C(i,2)}, v{C(i,0)}, v{32+i}, v{SL(i)}")
        I(f"v_mov_b32 v{C(i,0)}, v{SL(i)}")
        I(f"v_mov_b32 v{C(i,1)}, v{32+i}")
        I(f"v_mov_b32 v{C(i,3)}, v{32+i}")
        I(f"v_mad_u32_u24 v{TT(i)}, v36, v{32+i}, v{SL(i)}")
        I(f"v_mad_u32_u24 v37, v37, v{32+i}, v{SL(i)}")
        I(f"v_lshlrev_b32 v{KY(i)}, 5, v{KY(i)}")
        if i == 3:
            I("s_mov_b64 exec, s[74:75]")
        I(f"ds_write_b128 v{KY(i)}, v[{C(i,0)}:{C(i,3)}] offset:{L_NBQ}")
        I(f"v_mov_b32 v{C(i,0)}, v{TT(i)}")
        I(f"v_mov_b32 v{C(i,2)}, v37")
        I(f"ds_write_b128 v{KY(i)}, v[{C(i,0)}:{C(i,3)}] offset:{L_NBQ+16}")
    I("s_mov_b64 exec, s[72:73]")
    I("s_waitcnt lgkmcnt(0)")
    L("K2_NOSORT")
    I("s_barrier")
    stamp(4, 124)
    I(f"v_mov_b32 v41, {L_HEAVY}")
    I("ds_read_b32 v41, v41")
    for t in range(3):
        for r in range(4):
            lab = uid("K2_SP")
            I(f"s_mov_b64 exec, s[{SM(t,r)}:{SM(t,r)+1}]")
            I(f"s_cbranch_execz {lab}")
            I(f"ds_read_b64 v[{VP(t,r)}:{VP(t,r)+1}], v{VR(t,r)+1} offset:{L_NBQ}")
            L(lab)
    I("s_mov_b64 exec, s[72:73]")
    I("s_waitcnt lgkmcnt(0)")
    I("v_readfirstlane_b32 s77, v41")
    I("s_cmp_lg_u32 s77, 0")
    I("s_cbranch_scc1 K2_NOPLACE")
    for t in range(3):
        for r in range(4):
            lab = uid("K2_SW")
            I(f"s_mov_b64 exec, s[{SM(t,r)}:{SM(t,r)+1}]")
            I(f"s_cbranch_execz {lab}")
            I(f"v_mad_u32_u24 v{VP(t,r)}, v{VK(t,r)}, v{VP(t,r)+1}, v{VP(t,r)}")
            I(f"ds_write_b32 v{VP(t,r)}, v{VR(t,r)}")
            L(lab)
    I("s_mov_b64 exec, s[72:73]")
    L("K2_NOPLACE")
    I("s_waitcnt lgkmcnt(0)")
    I("s_barrier")
    stamp(5, 124)
    I(f"s_cmp_lt_u32 s10, {NWORK}")
    I("s_cbranch_scc1 K2_WORK")
    I(f"s_sub_u32 s11, s10, {NWORK}")
    I("s_lshl_b32 s11, s11, 6")
    I(f"v_add_u32 v40, s11, v{V_LANE}")
    I("v_lshlrev_b32 v40, 4, v40")
    I(f"s_mul_i32 s11, s8, {IMG_BYTES}")
    for i in range(8):
        d = 44 + 4 * i
        I(f"ds_read_b128 v[{d}:{d+3}], v40 offset:{i*2048}")
    for i in range(8):
        d = 44 + 4 * i
        I(f"s_add_u32 s12, s11, {i*2048}")
        I(f"s_waitcnt lgkmcnt({7-i})")
        I(f"buffer_store_dwordx4 v[{d}:{d+3}], v40, s[32:35], s12 offen" + FL[opt.st2i])
    I("s_cmp_eq_u32 s77, 0")
    I("s_cbranch_scc1 K2_END")
    L("K2_WORK")
    I("s_cmp_eq_u32 s77, 0")
    I("s_cbranch_scc1 K2_FAST")
    heavy_path("K2H", 24, 6, 20, 8, 10, K2_ACC, 16)
    I("s_cmp_ge_u32 s10, 13")
    I("s_cbranch_scc1 K2_END")
    heavy_read_acc(K2_ACC, 10)
    I("s_branch K2_STORE")
    L("K2_FAST")
    hop_header(10)
    hop_wave("K2S", 24)
    split_fix("K2S", 10)
    L("K2_STORE")
    stamp(6, 124)
    I("s_lshl_b32 s45, s8, 7")
    for vn, va, t0 in ((V_NA, V_ACC, V_T), (V_NB, V_ACC2, V_RC)):
        for i in range(4):
            I(f"v_cvt_pk_bf16_f32 v{t0+i}, v{va+2*i}, v{va+2*i+1}")
        I(f"v_lshlrev_b32 v{vn}, 15, v{vn}")
        I(f"v_add3_u32 v{vn}, v{vn}, s45, v{V_F16}")
        I(f"buffer_store_dwordx4 v[{t0}:{t0+3}], v{vn}, s[28:31], 0 offen" + FL[opt.st2])
    stamp(7, 124)
    if opt.stamps:
        I("s_waitcnt vmcnt(0)")
        stamp(8, 124)
    if opt.dbg: I("s_waitcnt vmcnt(0)")
    dbg_stamp(1, 1, 0, 124)
    L("K2_END")
    I("s_endpgm")
    hop_subs("K2S")
    I("s_endpgm")
    return name, 128, (102 if opt.dbg else 96)

def gen_k3():
    name = "sgc_hop2_kernel"
    kernel_begin(name)
    I("s_cmp_ge_u32 s2, 256")
    I("s_cbranch_scc1 K3_END")
    dbg_stamp(2, 0, 0, 124, True)
    if opt.stamps: I("s_memrealtime s[86:87]")
    I("s_load_dwordx4 s[4:7], s[0:1], 32")
    I("s_load_dwordx2 s[12:13], s[0:1], 56")
    I("s_and_b32 s8, s2, 7")
    I("s_lshl_b32 s8, s8, 5")
    I("s_lshr_b32 s9, s2, 3")
    I("s_add_u32 s8, s8, s9")
    I("v_readfirstlane_b32 s10, v0")
    I(f"v_and_b32 v{V_LANE}, 63, v0")
    I("v_lshlrev_b32 v40, 4, v0")
    I(f"s_mul_i32 s11, s8, {IMG_BYTES}")
    I("s_lshr_b32 s10, s10, 6")
    I("s_waitcnt lgkmcnt(0)")
    stamp_init(2, 12, 124); stamp(0, 124, 86)
    srd(32, 12, 13, 256 * IMG_BYTES, WS_IMG)
    srd(16, 4, 5, 8192)
    srd(24, 12, 13, TBL_BYTES, WS_H1)
    srd(28, 6, 7, TBL_BYTES)
    srd(20, 12, 13, NCH * RECB, WS_REC)
    I("buffer_load_dwordx4 v[44:47], v40, s[32:35], s11 offen")
    I("buffer_load_dwordx4 v[48:51], v40, s[16:19], 0 offen")
    n3 = opt.pf3
    if n3: pf_setup(56, n3, 0)
    hop_consts()
    I("s_waitcnt vmcnt(1)")
    I("ds_write_b128 v40, v[44:47]")
    I("s_waitcnt vmcnt(0)")
    pf_issue(56, 125, 24, n3, 10)
    I("v_cmp_gt_u32 vcc, 0x200, v0")
    I("s_and_saveexec_b64 s[72:73], vcc")
    I(f"ds_write_b128 v40, v[48:51] offset:{L_WL}")
    I("s_mov_b64 exec, s[72:73]")
    I("s_waitcnt lgkmcnt(0)")
    I("s_barrier")
    stamp(1, 124)
    I(f"v_mov_b32 v41, {L_HEAVY}")
    I("ds_read_b32 v41, v41")
    I("s_waitcnt lgkmcnt(0)")
    I("v_readfirstlane_b32 s77, v41")
    I("s_cmp_eq_u32 s77, 0")
    I("s_cbranch_scc1 K3_LIGHT")
    heavy_path("K3H", 24, 12, 20, 8, 10, K3_ACC, 16)
    I("s_cmp_ge_u32 s10, 13")
    I("s_cbranch_scc1 K3_END")
    heavy_read_acc(K3_ACC, 10)
    I("s_branch K3_ST")
    L("K3_LIGHT")
    I(f"s_cmp_ge_u32 s10, {NWORK}")
    I("s_cbranch_scc1 K3_END")
    hop_header(10)
    hop_wave("K3S", 24)
    split_fix("K3S", 10)
    L("K3_ST")
    stamp(2, 124)
    I(f"s_lshl_b32 s83, s10, 11")
    I(f"s_add_u32 s83, s83, {L_SCR}")
    I(f"v_lshlrev_b32 v{V_A0}, 2, v{V_G4}")
    I(f"v_xor_b32 v{V_A1}, v{V_A0}, v{V_F16}")
    I(f"v_lshlrev_b32 v{V_A0}, 3, v{V_A0}")
    I(f"v_add3_u32 v{V_A0}, v{V_A0}, v{V_A1}, s83")
    for va, t0, off in ((V_ACC, V_T, 0), (V_ACC2, V_RC, 1024)):
        for i in range(4):
            I(f"v_cvt_pk_bf16_f32 v{t0+i}, v{va+2*i}, v{va+2*i+1}")
        I(f"ds_write_b128 v{V_A0}, v[{t0}:{t0+3}] offset:{off}")
    J, KB, AW, AB, NV = 40, 41, 42, 43, 44
    I(f"v_and_b32 v{J}, 15, v{V_LANE}")
    I(f"v_lshrrev_b32 v{KB}, 4, v{V_LANE}")
    I(f"v_and_b32 v46, 7, v{J}")
    I(f"v_lshlrev_b32 v45, 5, v46")
    I(f"ds_bpermute_b32 v47, v45, v{V_NA}")
    I(f"ds_bpermute_b32 v48, v45, v{V_NB}")
    I(f"v_xor_b32 v49, v{KB}, v46")
    I(f"v_lshlrev_b32 v49, 4, v49")
    I(f"v_lshlrev_b32 v{AB}, 7, v{J}")
    I(f"v_add3_u32 v{AB}, v{AB}, s83, v49")
    I(f"v_xor_b32 v49, 64, v49")
    I(f"v_lshlrev_b32 v50, 7, v{J}")
    I(f"v_add3_u32 v50, v50, s83, v49")
    I(f"v_lshrrev_b32 v51, 2, v{J}")
    I(f"v_lshl_add_u32 v51, v{KB}, 3, v51")
    I(f"v_lshlrev_b32 v51, 7, v51")
    I(f"v_and_b32 v52, 3, v{V_LANE}")
    I(f"v_lshl_add_u32 v{AW}, v52, 4, v51")
    B0, B1 = 56, 60
    I(f"ds_read_b128 v[{B0}:{B0+3}], v{AB}")
    I(f"ds_read_b128 v[{B1}:{B1+3}], v50")
    WF = 64
    for t in range(4):
        for s in range(2):
            for hh in range(2):
                off = L_WL + s * 4096 + hh * 512 + (t >> 1) * 64 + (t & 1) * 8
                d = WF + (t * 2 + s) * 4 + 2 * hh
                I(f"ds_read_b64_tr_b16 v[{d}:{d+1}], v{AW} offset:{off}")
    DD = 96
    for i in range(16):
        I(f"v_mov_b32 v{DD+i}, 0")
    I(f"v_cmp_gt_u32 vcc, 8, v{J}")
    I("s_waitcnt lgkmcnt(0)")
    for s in range(2):
        for t in range(4):
            a = WF + (t * 2 + s) * 4
            b = B0 if s == 0 else B1
            I(f"v_mfma_f32_16x16x32_bf16 v[{DD+4*t}:{DD+4*t+3}], v[{a}:{a+3}], v[{b}:{b+3}], v[{DD+4*t}:{DD+4*t+3}]")
    I(f"v_cndmask_b32 v{NV}, v48, v47, vcc")
    I(f"v_lshlrev_b32 v{NV}, 15, v{NV}")
    I("s_lshl_b32 s45, s8, 7")
    I(f"v_lshlrev_b32 v53, 4, v{KB}")
    I(f"v_add3_u32 v{NV}, v{NV}, s45, v53")
    I("s_nop 7")
    O = 112
    for half in range(2):
        for k in range(2):
            t = half * 2 + k
            I(f"v_cvt_pk_bf16_f32 v{O+half*4+2*k}, v{DD+4*t}, v{DD+4*t+1}")
            I(f"v_cvt_pk_bf16_f32 v{O+half*4+2*k+1}, v{DD+4*t+2}, v{DD+4*t+3}")
    I(f"buffer_store_dwordx4 v[{O}:{O+3}], v{NV}, s[28:31], 0 offen" + FL[opt.st3])
    I(f"buffer_store_dwordx4 v[{O+4}:{O+7}], v{NV}, s[28:31], 0 offen offset:64" + FL[opt.st3])
    stamp(3, 124)
    if opt.stamps:
        I("s_waitcnt vmcnt(0)")
        stamp(4, 124)
    if opt.dbg: I("s_waitcnt vmcnt(0)")
    dbg_stamp(2, 1, 0, 124)
    dbg_copy(124)
    L("K3_END")
    I("s_endpgm")
    hop_subs("K3S")
    I("s_endpgm")
    return name, 128, (102 if opt.dbg else 96)

HEADER = f"""; Kernarg layout for this problem (64 bytes, ptrs only, base s[0:1]):
; @launch kernel=sgc_part_kernel grid=(256,1,1) block=(832,1,1) lds={K1_LDS}
; @launch kernel=sgc_sort_hop1_kernel grid=(256,1,1) block=(1024,1,1) lds={K2_LDS}
; @launch kernel=sgc_hop2_kernel grid=(256,1,1) block=(1024,1,1) lds={K3_LDS}
.amdgcn_target "amdgcn-amd-amdhsa--gfx950"
.text"""

def main():
    for a in sys.argv[2:]:
        k, v = a.split("=")
        setattr(opt, k, int(v))
    emit(HEADER)
    ks = [gen_k1(), gen_k2(), gen_k3()]
    emit('.section .rodata,"a"')
    emit(".p2align 6")
    for (n, v, s) in ks:
        kernel_desc(n, v, s)
        emit(".p2align 6")
    open(sys.argv[1], "w").write("\n".join(out) + "\n")

main()
```

```python
import sys

N = 50000
E = 850000
CH = 3328
NCH = 256
RECB = CH * 8
WS_SEG = 0
WS_REC = 0x40000
WS_IMG = 0x6C0000
WS_H1 = 0xC00000
TBL_BYTES = N * 128
SAFE = 0x0000FFFF
SPLIT = 25000

class Opt:
    D = 8
    pf1 = 0
    pf2a = 0
    pf2b = 0
    pf3 = 0
    stamps = 0
    R = 8
    prio = 0
    st1 = 0
    st2 = 0
    st2i = 0
    st3 = 0
    dbg = 0
    tlb = 0

opt = Opt()
out = []
def emit(s=""): out.append(s)
def I(s): out.append("    " + s)
def L(s): out.append(s + ":")
_uid = [0]
def uid(p):
    _uid[0] += 1
    return f"{p}_{_uid[0]}"

FL = ['', ' sc1', ' sc0 sc1', ' nt', ' sc0']
def srd(s, lo, hi, size, add=0):
    if add:
        I(f"s_add_u32 s{s}, s{lo}, {add}")
        I(f"s_addc_u32 s{s+1}, s{hi}, 0")
        I(f"s_and_b32 s{s+1}, s{s+1}, 0xffff")
    else:
        I(f"s_mov_b32 s{s}, s{lo}")
        I(f"s_and_b32 s{s+1}, s{hi}, 0xffff")
    I(f"s_mov_b32 s{s+2}, {size}")
    I(f"s_mov_b32 s{s+3}, 0x20000")

def wave_scan(v):
    for sh in (1, 2, 4, 8):
        I("s_nop 1")
        I(f"v_add_u32_dpp v{v}, v{v}, v{v} row_shr:{sh} row_mask:0xf bank_mask:0xf")
    I("s_nop 1")
    I(f"v_add_u32_dpp v{v}, v{v}, v{v} row_bcast:15 row_mask:0xa bank_mask:0xf")
    I("s_nop 1")
    I(f"v_add_u32_dpp v{v}, v{v}, v{v} row_bcast:31 row_mask:0xc bank_mask:0xf")

STAMP_OFF = 0x2000000
def stamp_init(kidx, ws_lo, vbase):
    if not opt.stamps: return
    I(f"v_lshrrev_b32 v{vbase}, 6, v0")
    I(f"s_lshl_b32 s92, s2, 4")
    I(f"s_add_u32 s92, s92, {kidx*256*16}")
    I(f"v_add_u32 v{vbase}, s92, v{vbase}")
    I(f"v_lshlrev_b32 v{vbase}, 7, v{vbase}")
    I(f"v_add_u32 v{vbase}, {STAMP_OFF}, v{vbase}")
    I(f"s_mov_b32 s94, s{ws_lo}")
    I(f"s_mov_b32 s95, s{ws_lo+1}")
def stamp(j, vbase, pre=None):
    if not opt.stamps: return
    if pre is None:
        I("s_memrealtime s[90:91]")
        I("s_waitcnt lgkmcnt(0)")
    else:
        I(f"s_mov_b32 s90, s{pre}")
        I(f"s_mov_b32 s91, s{pre+1}")
    I("s_mov_b64 s[88:89], exec")
    I("s_mov_b64 exec, 1")
    I(f"v_mov_b32 v{vbase+2}, s90")
    I(f"v_mov_b32 v{vbase+3}, s91")
    I(f"global_store_dwordx2 v{vbase}, v[{vbase+2}:{vbase+3}], s[94:95] offset:{8*j}")
    I("s_mov_b64 exec, s[88:89]")

DBG_WS = 0x3000000
def dbg_stamp(kidx, slot, sW, vt, first=False):
    if not opt.dbg: return
    lab = uid("DBG")
    if first:
        I("s_load_dwordx2 s[96:97], s[0:1], 56")
        I("s_waitcnt lgkmcnt(0)")
        I(f"s_add_u32 s96, s96, {DBG_WS}")
        I("s_addc_u32 s97, s97, 0")
    I("s_memrealtime s[98:99]")
    I("s_waitcnt lgkmcnt(0)")
    I("s_cmp_eq_u32 s2, 0")
    I("s_cselect_b32 s100, 0, 8")
    I("s_cmp_eq_u32 s2, 255")
    I("s_cselect_b32 s101, 1, 0")
    I("s_cmp_eq_u32 s2, 0")
    I("s_cselect_b32 s101, 1, s101")
    I("s_cmp_eq_u32 s101, 0")
    I(f"s_cbranch_scc1 {lab}")
    I(f"v_cmp_eq_u32 vcc, 0, v0")
    I("s_and_saveexec_b64 s[90:91], vcc")
    I(f"s_cbranch_execz {lab}_x")
    I(f"s_add_u32 s100, s100, {kidx*16 + slot*4}")
    I(f"v_mov_b32 v{vt}, s100")
    I(f"v_mov_b32 v{vt+1}, s98")
    I(f"global_store_dword v{vt}, v{vt+1}, s[96:97] sc0 sc1")
    L(lab + "_x")
    I("s_mov_b64 exec, s[90:91]")
    L(lab)

def dbg_copy(vt):
    if not opt.dbg: return
    lab = uid("DBC")
    I("s_cmp_lg_u32 s2, 0")
    I(f"s_cbranch_scc1 {lab}")
    I("s_waitcnt vmcnt(0)")
    I("v_cmp_gt_u32 vcc, 12, v0")
    I("s_and_saveexec_b64 s[90:91], vcc")
    I(f"s_cbranch_execz {lab}_x")
    I(f"v_lshlrev_b32 v{vt}, 2, v0")
    I(f"global_load_dword v{vt+1}, v{vt}, s[96:97] sc0 sc1")
    I("s_load_dwordx2 s[92:93], s[0:1], 48")
    I("s_waitcnt vmcnt(0) lgkmcnt(0)")
    I(f"global_store_dword v{vt}, v{vt+1}, s[92:93]")
    L(lab + "_x")
    I("s_mov_b64 exec, s[90:91]")
    L(lab)

def kernel_begin(name):
    emit(f".globl {name}")
    emit(".p2align 8")
    emit(f".type {name},@function")
    L(name)

def kernel_desc(name, vgpr, sgpr):
    acc = (vgpr + 3) // 4 * 4
    emit(f".amdhsa_kernel {name}")
    emit(f"  .amdhsa_next_free_vgpr {vgpr}")
    emit(f"  .amdhsa_next_free_sgpr {sgpr}")
    emit(f"  .amdhsa_accum_offset {acc}")
    emit("  .amdhsa_group_segment_fixed_size 0")
    emit("  .amdhsa_kernarg_size 64")
    emit("  .amdhsa_user_sgpr_count 2")
    emit("  .amdhsa_user_sgpr_kernarg_segment_ptr 1")
    emit("  .amdhsa_system_sgpr_workgroup_id_x 1")
    emit(".end_amdhsa_kernel")

K1_HIST = 0
K1_PRE = 1024
K1_STAGE = 2048
K1_LDS = K1_STAGE + RECB

def gen_k1():
    name = "sgc_part_kernel"
    kernel_begin(name)
    I("s_cmp_ge_u32 s2, 256")
    I("s_cbranch_scc1 K1_END")
    if opt.tlb:
        I("v_readfirstlane_b32 s15, v0")
        I("s_lshr_b32 s15, s15, 6")
        I("s_cmp_lt_u32 s15, 13")
        I("s_cbranch_scc1 K1_MAIN")
        I("s_load_dwordx2 s[40:41], s[0:1], 0")
        I("s_load_dwordx4 s[4:7], s[0:1], 40")
        I("s_load_dwordx2 s[10:11], s[0:1], 56")
        I("v_and_b32 v56, 63, v0")
        I("v_lshlrev_b32 v56, 21, v56")
        I("s_waitcnt lgkmcnt(0)")
        srd(44, 40, 41, TBL_BYTES)
        I("buffer_load_dword v57, v56, s[44:47], 0 offen")
        srd(48, 4, 5, TBL_BYTES)
        I("buffer_load_dword v58, v56, s[48:51], 0 offen")
        srd(52, 10, 11, WS_H1 + TBL_BYTES - WS_IMG, WS_IMG)
        I("buffer_load_dword v59, v56, s[52:55], 0 offen")
        I("s_endpgm")
        L("K1_MAIN")
    dbg_stamp(0, 0, 0, 56, True)
    if opt.stamps: I("s_memrealtime s[86:87]")
    I("s_load_dwordx4 s[4:7], s[0:1], 8")
    I("s_load_dwordx2 s[8:9], s[0:1], 24")
    I("s_load_dwordx2 s[10:11], s[0:1], 56")
    if opt.pf1:
        I("s_load_dwordx2 s[40:41], s[0:1], 0")
    I(f"s_mul_i32 s3, s2, {CH}")
    I("v_lshl_add_u32 v1, v0, 2, s3")
    I("v_lshlrev_b32 v2, 2, v1")
    I("v_lshlrev_b32 v3, 1, v1")
    I("v_mov_b32 v4, 0")
    I("v_lshlrev_b32 v5, 2, v0")
    I("v_cmp_gt_u32 vcc, 0x100, v0")
    I("s_and_saveexec_b64 s[12:13], vcc")
    I(f"ds_write_b32 v5, v4 offset:{K1_HIST}")
    I("s_mov_b64 exec, s[12:13]")
    I("v_readfirstlane_b32 s15, v0")
    I("s_waitcnt lgkmcnt(0)")
    stamp_init(0, 10, 60); stamp(0, 60, 86)
    srd(16, 6, 7, E * 4)
    srd(20, 4, 5, E * 4)
    srd(24, 8, 9, E * 2)
    I("buffer_load_dwordx4 v[8:11], v2, s[16:19], 0 offen")
    I("buffer_load_dwordx4 v[12:15], v2, s[20:23], 0 offen")
    I("buffer_load_dwordx2 v[16:17], v3, s[24:27], 0 offen")
    npf = opt.pf1
    if npf:
        srd(44, 40, 41, TBL_BYTES)
        I("s_lshr_b32 s42, s2, 3")
        I(f"s_mul_i32 s42, s42, {npf*832*16}")
        I("v_lshlrev_b32 v40, 4, v0")
        I("v_add_u32 v40, s42, v40")
        for i in range(npf):
            I(f"s_mov_b32 s43, {i*832*16}")
            I("buffer_load_dwordx4 v[44:47], v40, s[44:47], s43 offen")
    srd(28, 10, 11, NCH * 1024, WS_SEG)
    srd(32, 10, 11, NCH * RECB, WS_REC)
    I("s_lshr_b32 s15, s15, 6")
    I(f"s_mov_b32 s14, {E}")
    I("s_mov_b32 s36, 0xffff0000")
    I("s_mov_b32 s37, 21474")
    I("s_barrier")
    I("v_cmp_gt_u32 vcc, s14, v1")
    I("s_and_saveexec_b64 s[12:13], vcc")
    I("s_mov_b64 s[38:39], exec")
    I("v_mov_b32 v22, 1")
    I(f"s_waitcnt vmcnt({2+npf})")
    stamp(1, 60)
    for i in range(4):
        I(f"v_and_b32 v{18+i}, 0xff, v{8+i}")
        I(f"v_lshlrev_b32 v{18+i}, 2, v{18+i}")
    for i in range(4):
        I(f"ds_add_rtn_u32 v{24+i}, v{18+i}, v22 offset:{K1_HIST}")
    I(f"s_waitcnt vmcnt({npf})")
    I("v_lshl_or_b32 v48, v16, 16, v12")
    I("v_and_or_b32 v50, v16, s36, v13")
    I("v_lshl_or_b32 v52, v17, 16, v14")
    I("v_and_or_b32 v54, v17, s36, v15")
    for i in range(4):
        I(f"v_mul_u32_u24 v23, s37, v{12+i}")
        I("v_lshrrev_b32 v23, 25, v23")
        I("v_and_b32 v23, 24, v23")
        I(f"v_lshrrev_b32 v{49+2*i}, 8, v{8+i}")
        I(f"v_lshl_or_b32 v{49+2*i}, v{49+2*i}, 5, v23")
    I("s_waitcnt lgkmcnt(0)")
    I("s_mov_b64 exec, s[12:13]")
    I("s_barrier")
    I("s_cmp_lg_u32 s15, 0")
    I("s_cbranch_scc1 K1_NOSCAN")
    I("v_lshlrev_b32 v5, 4, v0")
    I(f"ds_read_b128 v[28:31], v5 offset:{K1_HIST}")
    I("s_waitcnt lgkmcnt(0)")
    I("v_add_u32 v32, v28, v29")
    I("v_add_u32 v33, v32, v30")
    I("v_add_u32 v34, v33, v31")
    I("v_mov_b32 v35, v34")
    wave_scan(35)
    I("v_sub_u32 v36, v35, v34")
    I("v_add_u32 v37, v36, v28")
    I("v_add_u32 v38, v36, v32")
    I("v_add_u32 v39, v36, v33")
    I(f"ds_write_b128 v5, v[36:39] offset:{K1_PRE}")
    I("v_lshl_or_b32 v28, v37, 16, v36")
    I("v_lshl_or_b32 v29, v38, 16, v37")
    I("v_lshl_or_b32 v30, v39, 16, v38")
    I("v_lshl_or_b32 v31, v35, 16, v39")
    I("s_lshl_b32 s37, s2, 10")
    I("buffer_store_dwordx4 v[28:31], v5, s[28:31], s37 offen")
    I("s_waitcnt lgkmcnt(0)")
    L("K1_NOSCAN")
    I("s_barrier")
    I("s_mov_b64 exec, s[38:39]")
    for i in range(4):
        I(f"ds_read_b32 v{28+i}, v{18+i} offset:{K1_PRE}")
    I("s_waitcnt lgkmcnt(0)")
    for i in range(4):
        I(f"v_add_u32 v{28+i}, v{28+i}, v{24+i}")
        I(f"v_lshlrev_b32 v{28+i}, 3, v{28+i}")
    for i in range(4):
        I(f"ds_write_b64 v{28+i}, v[{48+2*i}:{49+2*i}] offset:{K1_STAGE}")
    I("s_waitcnt lgkmcnt(0)")
    I("s_mov_b64 exec, s[12:13]")
    I("s_barrier")
    I("v_lshlrev_b32 v5, 4, v0")
    I(f"ds_read_b128 v[8:11], v5 offset:{K1_STAGE}")
    I(f"ds_read_b128 v[12:15], v5 offset:{K1_STAGE + RECB//2}")
    I(f"s_mul_i32 s37, s2, {RECB}")
    I(f"s_add_u32 s42, s37, {RECB//2}")
    I("s_waitcnt lgkmcnt(1)")
    I("buffer_store_dwordx4 v[8:11], v5, s[32:35], s37 offen" + FL[opt.st1])
    I("s_waitcnt lgkmcnt(0)")
    I("buffer_store_dwordx4 v[12:15], v5, s[32:35], s42 offen" + FL[opt.st1])
    stamp(2, 60)
    if opt.stamps:
        I("s_waitcnt vmcnt(0)")
        stamp(3, 60)
    if opt.dbg: I("s_waitcnt vmcnt(0)")
    dbg_stamp(0, 1, 0, 56)
    L("K1_END")
    I("s_endpgm")
    return name, 64, (102 if (opt.stamps or opt.dbg) else 64)

L_SU = 0x000
L_WB = 0x040
L_ORD = 0x120
L_HEAVY = 0x1F0
L_LIST = 0x200
IMG_BYTES = 0x4000
LIST_CAP = IMG_BYTES - L_LIST
L_CNT = 0x4000
L_H2 = 0x6000
L_SC2 = 0x6100
L_WM = 0x6200
K2_ZERO_END = 0x6400
L_NBQ = 0x6400
K2_ACC = 0x9000
ACC_BYTES = 208 * 256
K2_LDS = K2_ACC + ACC_BYTES
L_WL = 0x4000
L_SCR = 0x6000
K3_ACC = 0xD000
K3_LDS = K3_ACC + ACC_BYTES
NWORK = 14

V_LANE = 1
V_G4 = 2
V_F16 = 3
V_SELA = 4
V_SELB = 5
V_PTRC = 6
V_PTRI = 7
V_NA = 8
V_NB = 9
V_A0 = 10
V_A1 = 11
V_ACC = 12
V_ACC2 = 20
V_T = 28
V_RC = 32
V_RI = 36
V_DATA = 40
S_T, S_NB, S_PACE, S_DR, S_REM = 78, 79, 80, 81, 82
S_RET = 84
S_128 = 44

def pf_setup(vaddr, n, base_bytes):
    I("s_lshr_b32 s15, s2, 3")
    I(f"s_mul_i32 s15, s15, {n*4096}")
    if base_bytes: I(f"s_add_u32 s15, s15, {base_bytes}")
    I(f"v_lshlrev_b32 v{vaddr}, 6, v0")
    I(f"v_add_u32 v{vaddr}, s15, v{vaddr}")
def pf_issue(vaddr, vdst, tbl, n, sW):
    rounds = (n + 15) // 16
    for i in range(rounds):
        cnt = min(16, n - 16 * i)
        lab = uid("PF")
        if cnt < 16:
            I(f"s_cmp_ge_u32 s{sW}, {cnt}")
            I(f"s_cbranch_scc1 {lab}")
        I(f"s_mov_b32 s15, {i*16*4096}")
        I(f"buffer_load_dword v{vdst}, v{vaddr}, s[{tbl}:{tbl+3}], s15 offen")
        L(lab)
    return rounds

def hop_consts():
    I(f"v_lshrrev_b32 v{V_G4}, 3, v{V_LANE}")
    I(f"v_lshlrev_b32 v{V_G4}, 2, v{V_G4}")
    I(f"v_and_b32 v{V_F16}, 7, v{V_LANE}")
    I(f"v_lshlrev_b32 v{V_F16}, 4, v{V_F16}")
    I(f"v_and_b32 v{V_PTRC}, 3, v{V_LANE}")
    I(f"v_mov_b32 v{V_SELA}, 0x0c0c0c0c")
    I(f"v_mov_b32 v{V_SELB}, 0x0c0c0c0c")
    I(f"v_mov_b32 v{V_A0}, 0x0c0c0302")
    I(f"v_mov_b32 v{V_A1}, 0x03020c0c")
    for val, sel, lit in ((0, V_SELA, V_A0), (1, V_SELA, V_A1), (2, V_SELB, V_A0), (3, V_SELB, V_A1)):
        I(f"v_cmp_eq_u32 vcc, {val}, v{V_PTRC}")
        I("s_nop 1")
        I(f"v_cndmask_b32 v{sel}, v{sel}, v{lit}, vcc")
    I(f"s_mov_b32 s{S_128}, 128")

def rd2(dst, ptr, unit):
    o = unit * 16
    assert o + 8 <= 255
    I(f"ds_read2_b32 v[{dst}:{dst+1}], v{ptr} offset0:{o} offset1:{o+8}")

def perms(p):
    rc = V_RC + 2 * p
    I(f"v_perm_b32 v{V_T+0}, v{rc}, v{rc}, v{V_SELA}")
    I(f"v_perm_b32 v{V_T+1}, v{rc}, v{rc}, v{V_SELB}")
    I(f"v_perm_b32 v{V_T+2}, v{rc+1}, v{rc+1}, v{V_SELA}")
    I(f"v_perm_b32 v{V_T+3}, v{rc+1}, v{rc+1}, v{V_SELB}")

def mfmas(r):
    d = V_DATA + 8 * r
    a, b = V_ACC, V_ACC2
    I(f"v_mfma_f32_4x4x4_16b_bf16 v[{a}:{a+3}], v[{V_T}:{V_T+1}], v[{d}:{d+1}], v[{a}:{a+3}]")
    I(f"v_mfma_f32_4x4x4_16b_bf16 v[{a+4}:{a+7}], v[{V_T}:{V_T+1}], v[{d+2}:{d+3}], v[{a+4}:{a+7}]")
    I(f"v_mfma_f32_4x4x4_16b_bf16 v[{b}:{b+3}], v[{V_T+2}:{V_T+3}], v[{d+4}:{d+5}], v[{b}:{b+3}]")
    I(f"v_mfma_f32_4x4x4_16b_bf16 v[{b+4}:{b+7}], v[{V_T+2}:{V_T+3}], v[{d+6}:{d+7}], v[{b+4}:{b+7}]")

def pace_check(pfx):
    if opt.R <= 1: return
    lab = uid(pfx + "_PC")
    I(f"s_add_u32 s{S_PACE}, s{S_PACE}, {opt.R}")
    I(f"s_cmp_lt_u32 s{S_PACE}, s{S_T}")
    I(f"s_cbranch_scc1 {lab}")
    I(f"s_call_b64 s[{S_RET}:{S_RET+1}], {pfx}_BS")
    L(lab)

def pace_final(pfx):
    if opt.R <= 1: return
    l1, l2 = uid(pfx + "_PF"), uid(pfx + "_PG")
    L(l1)
    I(f"s_cmp_eq_u32 s{S_NB}, 0")
    I(f"s_cbranch_scc1 {l2}")
    I("s_barrier")
    I(f"s_sub_u32 s{S_NB}, s{S_NB}, 1")
    I(f"s_branch {l1}")
    L(l2)

def pace_sub(pfx):
    if opt.R <= 1: return
    L(f"{pfx}_BS")
    I(f"s_cmp_eq_u32 s{S_NB}, 0")
    I(f"s_cbranch_scc1 {pfx}_BR")
    I("s_barrier")
    I(f"s_sub_u32 s{S_NB}, s{S_NB}, 1")
    I(f"s_sub_u32 s{S_PACE}, s{S_PACE}, s{S_T}")
    I(f"s_cmp_ge_u32 s{S_PACE}, s{S_T}")
    I(f"s_cbranch_scc1 {pfx}_BS")
    L(f"{pfx}_BR")
    I(f"s_setpc_b64 s[{S_RET}:{S_RET+1}]")

def hop_wave(pfx, tbl):
    D = opt.D
    for i in range(8):
        I(f"v_mov_b32 v{V_ACC+i}, 0")
        I(f"v_mov_b32 v{V_ACC2+i}, 0")
    I(f"s_min_u32 s{S_T}, s{S_T}, 0x100")
    I(f"s_mov_b32 s{S_DR}, s{S_T}")
    I(f"s_mov_b32 s{S_NB}, {opt.R - 1}")
    I(f"s_mov_b32 s{S_PACE}, 0")
    I(f"s_cmp_eq_u32 s{S_T}, 0")
    I(f"s_cbranch_scc1 {pfx}_FIN")
    for r in range(D):
        rd2(V_DATA + 8 * r, V_PTRC, r)
    rd2(V_RC, V_PTRC, 0)
    I(f"v_add_u32 v{V_PTRI}, {D*64}, v{V_PTRC}")
    I("s_waitcnt lgkmcnt(0)")
    rd2(V_RI, V_PTRI, 0)
    for r in range(D):
        d = V_DATA + 8 * r
        if r > 0:
            I(f"s_cmp_le_u32 s{S_T}, {r}")
            I(f"s_cbranch_scc1 {pfx}_DR0")
            pace_check(pfx)
        I(f"v_mad_u32_u16 v{V_A0}, v{d}, s{S_128}, v{V_F16}")
        I(f"v_mad_u32_u16 v{V_A1}, v{d+1}, s{S_128}, v{V_F16}")
        I(f"buffer_load_dwordx4 v[{d}:{d+3}], v{V_A0}, s[{tbl}:{tbl+3}], 0 offen")
        I(f"buffer_load_dwordx4 v[{d+4}:{d+7}], v{V_A1}, s[{tbl}:{tbl+3}], 0 offen")
    I(f"s_sub_u32 s{S_REM}, s{S_T}, {D}")
    I(f"s_mov_b32 s{S_DR}, {D}")
    I(f"s_cmp_eq_u32 s{S_REM}, 0")
    I(f"s_cbranch_scc1 {pfx}_DR0")
    L(f"{pfx}_MAIN")
    for r in range(D):
        p = r & 1
        d = V_DATA + 8 * r
        I("s_waitcnt lgkmcnt(0)")
        rd2(V_RC + 2 * (p ^ 1), V_PTRC, r + 1)
        rd2(V_RI + 2 * (p ^ 1), V_PTRI, r + 1)
        perms(p)
        ri = V_RI + 2 * p
        I(f"v_mad_u32_u16 v{V_A0}, v{ri}, s{S_128}, v{V_F16}")
        I(f"v_mad_u32_u16 v{V_A1}, v{ri+1}, s{S_128}, v{V_F16}")
        I(f"s_waitcnt vmcnt({2*(D-1)})")
        mfmas(r)
        pace_check(pfx)
        I(f"buffer_load_dwordx4 v[{d}:{d+3}], v{V_A0}, s[{tbl}:{tbl+3}], 0 offen")
        I(f"buffer_load_dwordx4 v[{d+4}:{d+7}], v{V_A1}, s[{tbl}:{tbl+3}], 0 offen")
        if r == D - 1:
            I(f"v_add_u32 v{V_PTRC}, {D*64}, v{V_PTRC}")
            I(f"v_add_u32 v{V_PTRI}, {D*64}, v{V_PTRI}")
        I(f"s_sub_u32 s{S_REM}, s{S_REM}, 1")
        I(f"s_cmp_eq_u32 s{S_REM}, 0")
        if r == D - 1:
            I(f"s_cbranch_scc0 {pfx}_MAIN")
        else:
            I(f"s_cbranch_scc1 {pfx}_DR{r+1}")
    for q in range(2 * D - 1):
        r = q % D
        p = q & 1
        if q < D:
            L(f"{pfx}_DR{q}")
            if q == 0 or True:
                lab = uid(pfx + "_DX")
                if opt.R > 1:
                    I(f"s_cmp_eq_u32 s{S_NB}, 0")
                    I(f"s_cbranch_scc1 {lab}")
                    I(f"s_call_b64 s[{S_RET}:{S_RET+1}], {pfx}_BF")
                    L(lab)
            I("s_waitcnt vmcnt(0)")
        I("s_waitcnt lgkmcnt(0)")
        if q + 1 <= 2 * D - 2:
            rd2(V_RC + 2 * (p ^ 1), V_PTRC, q + 1)
        perms(p)
        I(f"s_sub_u32 s{S_DR}, s{S_DR}, 1")
        I("s_nop 0")
        mfmas(r)
        if q < 2 * D - 2:
            I(f"s_cmp_eq_u32 s{S_DR}, 0")
            I(f"s_cbranch_scc1 {pfx}_FIN")
    L(f"{pfx}_FIN")
    pace_final(pfx)
    I("s_nop 4")

def hop_subs(pfx):
    pace_sub(pfx)
    if opt.R > 1:
        L(f"{pfx}_BF")
        pace_final(pfx)
        I(f"s_setpc_b64 s[{S_RET}:{S_RET+1}]")

def node_pos(sW, heavy):
    I(f"v_lshrrev_b32 v{V_NB}, 2, v{V_G4}")
    I(f"s_lshl_b32 s45, s{sW}, 4")
    if not heavy:
        I(f"s_lshl_b32 s46, s{sW}, 3")
        I(f"s_add_u32 s46, s46, 96")
        I(f"s_cmp_lt_u32 s{sW}, 12")
        I(f"s_cselect_b32 s45, s45, s46")
    I(f"v_add_u32 v{V_NA}, s45, v{V_NB}")
    I(f"v_add_u32 v{V_NB}, 8, v{V_NA}")

def hop_header(sW):
    I(f"s_lshl_b32 s45, s{sW}, 2")
    I(f"v_mov_b32 v{V_A0}, s45")
    I(f"ds_read_b32 v{V_A1}, v{V_A0} offset:{L_SU}")
    I(f"ds_read_b32 v{V_PTRC}, v{V_A0} offset:{L_WB}")
    node_pos(sW, False)
    I(f"ds_read_u8 v{V_NA}, v{V_NA} offset:{L_ORD}")
    I(f"ds_read_u8 v{V_NB}, v{V_NB} offset:{L_ORD}")
    I("s_waitcnt lgkmcnt(0)")
    I(f"v_readfirstlane_b32 s{S_T}, v{V_A1}")
    I(f"v_add_u32 v{V_PTRC}, v{V_PTRC}, v{V_G4}")

def split_fix(pfx, sW):
    lab = uid(pfx + "_SF")
    I(f"s_cmp_lt_u32 s{sW}, 12")
    I(f"s_cbranch_scc1 {lab}")
    for i in range(8):
        I(f"v_add_f32 v{V_ACC+i}, v{V_ACC+i}, v{V_ACC2+i}")
    I(f"v_mov_b32 v{V_NB}, 0xff")
    L(lab)

def heavy_path(pfx, tbl, seg_lo_hi, rec_srd, sB, sW, acc_base, nwaves):
    I("v_mov_b32 v40, 0")
    I("v_mov_b32 v41, 0")
    I("v_mov_b32 v42, 0")
    I("v_mov_b32 v43, 0")
    I("v_lshlrev_b32 v44, 4, v0")
    I(f"v_add_u32 v44, {acc_base}, v44")
    n16 = ACC_BYTES // 16
    for i in range(3):
        I(f"ds_write_b128 v44, v[40:43] offset:{i*16384}")
    I(f"v_cmp_gt_u32 vcc, {n16 - 3072}, v0")
    I("s_and_saveexec_b64 s[60:61], vcc")
    I(f"ds_write_b128 v44, v[40:43] offset:{3*16384}")
    I("s_mov_b64 exec, s[60:61]")
    I("s_waitcnt lgkmcnt(0)")
    I("s_barrier")
    I(f"s_mov_b32 s62, s{sW}")
    I(f"v_lshrrev_b32 v45, 3, v{V_LANE}")
    I(f"s_lshl_b32 s63, s{sB}, 2")
    L(f"{pfx}_HC")
    I("s_lshl_b32 s64, s62, 10")
    I("s_add_u32 s64, s64, s63")
    I(f"s_add_u32 s66, s{seg_lo_hi}, s64")
    I(f"s_addc_u32 s67, s{seg_lo_hi+1}, 0")
    I("s_load_dword s68, s[66:67], 0")
    I(f"s_mul_i32 s69, s62, {RECB}")
    I("s_waitcnt lgkmcnt(0)")
    I("s_and_b32 s70, s68, 0xffff")
    I("s_lshr_b32 s71, s68, 16")
    L(f"{pfx}_HI")
    I("s_cmp_ge_u32 s70, s71")
    I(f"s_cbranch_scc1 {pfx}_HN")
    I("v_add_u32 v46, s70, v45")
    I("v_cmp_gt_u32 vcc, s71, v46")
    I("s_and_saveexec_b64 s[60:61], vcc")
    I("v_lshlrev_b32 v47, 3, v46")
    I(f"buffer_load_dwordx2 v[48:49], v47, s[{rec_srd}:{rec_srd+3}], s69 offen")
    I("s_waitcnt vmcnt(0)")
    I("v_and_b32 v50, 0xffff, v48")
    I("v_lshlrev_b32 v50, 7, v50")
    I(f"v_add_u32 v50, v50, v{V_F16}")
    I(f"buffer_load_dwordx4 v[52:55], v50, s[{tbl}:{tbl+3}], 0 offen")
    I("v_and_b32 v51, 0xffff0000, v48")
    I("v_lshrrev_b32 v56, 5, v49")
    I("v_lshlrev_b32 v56, 8, v56")
    I(f"v_lshlrev_b32 v57, 1, v{V_F16}")
    I("v_add_u32 v56, v56, v57")
    I(f"v_add_u32 v56, {acc_base}, v56")
    I("s_waitcnt vmcnt(0)")
    for i in range(4):
        I(f"v_lshlrev_b32 v58, 16, v{52+i}")
        I(f"v_and_b32 v59, 0xffff0000, v{52+i}")
        I("v_mul_f32 v58, v58, v51")
        I("v_mul_f32 v59, v59, v51")
        I(f"ds_add_f32 v56, v58 offset:{8*i}")
        I(f"ds_add_f32 v56, v59 offset:{8*i + 4}")
    I("s_mov_b64 exec, s[60:61]")
    I("s_add_u32 s70, s70, 8")
    I(f"s_branch {pfx}_HI")
    L(f"{pfx}_HN")
    I(f"s_add_u32 s62, s62, {nwaves}")
    I("s_cmp_lt_u32 s62, 256")
    I(f"s_cbranch_scc1 {pfx}_HC")
    I("s_waitcnt lgkmcnt(0)")
    I("s_barrier")

def heavy_read_acc(acc_base, sW):
    node_pos(sW, True)
    for vn, va in ((V_NA, V_ACC), (V_NB, V_ACC2)):
        I(f"v_lshlrev_b32 v{V_A0}, 8, v{vn}")
        I(f"v_lshlrev_b32 v{V_A1}, 1, v{V_F16}")
        I(f"v_add_u32 v{V_A0}, v{V_A0}, v{V_A1}")
        I(f"v_add_u32 v{V_A0}, {acc_base}, v{V_A0}")
        I(f"ds_read_b128 v[{va}:{va+3}], v{V_A0}")
        I(f"ds_read_b128 v[{va+4}:{va+7}], v{V_A0} offset:16")
    I("s_waitcnt lgkmcnt(0)")

def gen_k2():
    name = "sgc_sort_hop1_kernel"
    kernel_begin(name)
    I("s_cmp_ge_u32 s2, 256")
    I("s_cbranch_scc1 K2_END")
    dbg_stamp(1, 0, 0, 124, True)
    if opt.stamps: I("s_memrealtime s[86:87]")
    I("s_load_dwordx2 s[4:5], s[0:1], 0")
    I("s_load_dwordx2 s[6:7], s[0:1], 56")
    I("s_and_b32 s8, s2, 7")
    I("s_lshl_b32 s8, s8, 5")
    I("s_lshr_b32 s9, s2, 3")
    I("s_add_u32 s8, s8, s9")
    I("v_readfirstlane_b32 s10, v0")
    I(f"v_and_b32 v{V_LANE}, 63, v0")
    I("v_lshlrev_b32 v40, 4, v0")
    I(f"v_mov_b32 v41, {SAFE}")
    I("v_cmp_gt_u32 vcc, 32, v0")
    I("s_lshr_b32 s10, s10, 6")
    I("v_mov_b32 v48, 0")
    I("v_cndmask_b32_e64 v44, v41, 0, vcc")
    I("v_mov_b32 v45, v44")
    I("v_mov_b32 v46, v44")
    I("v_mov_b32 v47, v44")
    I("ds_write_b128 v40, v[44:47]")
    I("v_mov_b32 v49, 0")
    I("v_mov_b32 v50, 0")
    I("v_mov_b32 v51, 0")
    I(f"v_cmp_gt_u32 vcc, {(K2_ZERO_END-L_CNT)//16}, v0")
    I("s_and_saveexec_b64 s[12:13], vcc")
    I(f"ds_write_b128 v40, v[48:51] offset:{L_CNT}")
    I("s_mov_b64 exec, s[12:13]")
    I(f"v_lshrrev_b32 v52, 4, v{V_LANE}")
    I("s_lshl_b32 s11, s10, 2")
    I("v_add_u32 v52, s11, v52")
    I("s_lshl_b32 s11, s8, 2")
    I("v_lshl_add_u32 v53, v52, 10, s11")
    I(f"s_mov_b32 s14, {RECB}")
    I("v_mul_u32_u24 v54, s14, v52")
    I(f"v_and_b32 v55, 15, v{V_LANE}")
    I("s_waitcnt lgkmcnt(0)")
    stamp_init(1, 6, 124); stamp(0, 124, 86)
    srd(16, 6, 7, NCH * 1024, WS_SEG)
    srd(20, 6, 7, NCH * RECB, WS_REC)
    srd(24, 4, 5, TBL_BYTES)
    srd(28, 6, 7, TBL_BYTES, WS_H1)
    srd(32, 6, 7, 256 * IMG_BYTES, WS_IMG)
    for r in range(4):
        I(f"s_mov_b32 s{36+r}, {r*65536}")
        I(f"s_mov_b32 s{40+r}, {r*64*RECB}")
    SG = lambda r: 56 + r
    for r in range(4):
        I(f"buffer_load_dword v{SG(r)}, v53, s[16:19], s{36+r} offen")
    na, nb = 0, opt.pf2b
    if nb: pf_setup(48, nb, 0)
    hop_consts()
    SM = lambda t, r: 46 + (t * 4 + r) * 2
    VOFF = lambda r: 60 + r
    VR = lambda t, r: 64 + (t * 4 + r) * 2
    VK = lambda t, r: 88 + t * 4 + r
    VP = lambda t, r: 100 + (t * 4 + r) * 2
    ONE = 40
    I(f"s_waitcnt vmcnt({na})")
    stamp(1, 124)
    I("s_mov_b64 s[70:71], 0")
    for r in range(4):
        I(f"v_and_b32 v42, 0xffff, v{SG(r)}")
        I(f"v_lshrrev_b32 v43, 16, v{SG(r)}")
        I("v_add_u32 v42, v42, v55")
        I(f"v_lshl_add_u32 v{VOFF(r)}, v42, 3, v54")
        I(f"v_cmp_lt_u32 s[{SM(0,r)}:{SM(0,r)+1}], v42, v43")
        I("v_add_u32 v42, 16, v42")
        I(f"v_cmp_lt_u32 s[{SM(1,r)}:{SM(1,r)+1}], v42, v43")
        I("v_add_u32 v42, 16, v42")
        I(f"v_cmp_lt_u32 s[{SM(2,r)}:{SM(2,r)+1}], v42, v43")
        I("v_add_u32 v42, 16, v42")
        I("v_cmp_lt_u32 vcc, v42, v43")
        I("s_or_b64 s[70:71], s[70:71], vcc")
    I("s_mov_b64 s[72:73], exec")
    for t in range(3):
        for r in range(4):
            lab = uid("K2_SK")
            I(f"s_mov_b64 exec, s[{SM(t,r)}:{SM(t,r)+1}]")
            I(f"s_cbranch_execz {lab}")
            off = f" offset:{128*t}" if t else ""
            I(f"buffer_load_dwordx2 v[{VR(t,r)}:{VR(t,r)+1}], v{VOFF(r)}, s[20:23], s{40+r} offen{off}")
            L(lab)
    I("s_mov_b64 exec, s[72:73]")
    I(f"v_mov_b32 v{ONE}, 1")
    I("s_waitcnt lgkmcnt(0)")
    I("s_barrier")
    I("s_waitcnt vmcnt(0)")
    pf_issue(48, 125, 24, nb, 10)
    stamp(2, 124)
    for t in range(3):
        for r in range(4):
            lab = uid("K2_SC")
            I(f"s_mov_b64 exec, s[{SM(t,r)}:{SM(t,r)+1}]")
            I(f"s_cbranch_execz {lab}")
            I(f"ds_add_rtn_u32 v{VK(t,r)}, v{VR(t,r)+1}, v{ONE} offset:{L_CNT}")
            L(lab)
    I("s_mov_b64 exec, s[72:73]")
    I("s_cmp_eq_u64 s[70:71], 0")
    I("s_cbranch_scc1 K2_NOH")
    I(f"v_mov_b32 v41, {L_HEAVY}")
    I(f"ds_write_b32 v41, v{ONE}")
    L("K2_NOH")
    I("s_waitcnt lgkmcnt(0)")
    I("s_barrier")
    stamp(3, 124)
    I("s_cmp_lg_u32 s10, 0")
    I("s_cbranch_scc1 K2_NOSORT")
    C = lambda i, q: 100 + 4 * i + q
    KY = lambda i: 12 + i
    R2 = lambda i: 16 + i
    SL = lambda i: 20 + i
    TT = lambda i: 24 + i
    I(f"v_lshlrev_b32 v28, 5, v{V_LANE}")
    I(f"v_add_u32 v28, {L_CNT}, v28")
    for i in range(4):
        if i: I(f"v_add_u32 v28, 2048, v28")
        I(f"ds_read2_b32 v[{C(i,0)}:{C(i,1)}], v28 offset0:0 offset1:2")
        I(f"ds_read2_b32 v[{C(i,2)}:{C(i,3)}], v28 offset0:4 offset1:6")
    I("s_mov_b32 s74, 0xffff")
    I("s_mov_b32 s75, 0")
    I(f"v_lshlrev_b32 v29, 2, v{V_LANE}")
    I("s_waitcnt lgkmcnt(0)")
    for i in range(4):
        I(f"v_add_u32 v{TT(i)}, v{C(i,0)}, v{C(i,1)}")
        I(f"v_add3_u32 v{TT(i)}, v{TT(i)}, v{C(i,2)}, v{C(i,3)}")
        I(f"v_min_u32 v{KY(i)}, 63, v{TT(i)}")
        I(f"v_lshlrev_b32 v{KY(i)}, 2, v{KY(i)}")
    for i in range(4):
        if i == 3:
            I("s_mov_b64 exec, s[74:75]")
        I(f"ds_add_rtn_u32 v{R2(i)}, v{KY(i)}, v{ONE} offset:{L_H2}")
    I("s_mov_b64 exec, s[72:73]")
    I(f"ds_read_b32 v30, v29 offset:{L_H2}")
    I("s_waitcnt lgkmcnt(0)")
    I("v_mov_b32 v31, v30")
    wave_scan(31)
    I("v_sub_u32 v31, v31, v30")
    I(f"ds_write_b32 v29, v31 offset:{L_SC2}")
    for i in range(4):
        I(f"ds_read_b32 v{32+i}, v{KY(i)} offset:{L_SC2}")
    I("s_movk_i32 s76, 0xc0")
    I("s_waitcnt lgkmcnt(0)")
    for i in range(4):
        I(f"v_add_u32 v{R2(i)}, v{R2(i)}, v{32+i}")
        I(f"v_cmp_le_u32 s[{12+2*(i&1)}:{13+2*(i&1)}], s76, v{R2(i)}")
        I(f"v_lshrrev_b32 v{SL(i)}, 4, v{R2(i)}")
        I(f"v_lshrrev_b32 v36, 3, v{R2(i)}")
        I(f"v_subrev_u32 v36, 12, v36")
        I(f"v_cndmask_b32_e64 v{SL(i)}, v{SL(i)}, v36, s[{12+2*(i&1)}:{13+2*(i&1)}]")
        I(f"v_lshlrev_b32 v{SL(i)}, 2, v{SL(i)}")
        I(f"v_mov_b32 v{32+i}, 64")
        I(f"v_mov_b32 v37, 32")
        I(f"v_cndmask_b32_e64 v{32+i}, v{32+i}, v37, s[{12+2*(i&1)}:{13+2*(i&1)}]")
        I(f"v_add_u32 v{KY(i)}, {64*i}, v{V_LANE}")
    for i in range(4):
        if i == 3:
            I("s_mov_b64 exec, s[74:75]")
        I(f"ds_write_b8 v{R2(i)}, v{KY(i)} offset:{L_ORD}")
        I(f"ds_max_u32 v{SL(i)}, v{TT(i)} offset:{L_WM}")
    I("s_mov_b64 exec, s[72:73]")
    I(f"ds_read_b32 v30, v29 offset:{L_WM}")
    I(f"v_cmp_gt_u32 vcc, 12, v{V_LANE}")
    I("s_waitcnt lgkmcnt(0)")
    I("v_add_u32 v31, 1, v30")
    I("v_lshrrev_b32 v31, 1, v31")
    I("v_cndmask_b32 v30, v31, v30, vcc")
    I("v_lshlrev_b32 v31, 6, v30")
    I("v_mov_b32 v36, v31")
    wave_scan(36)
    I("s_nop 1")
    I("v_readlane_b32 s76, v36, 63")
    I("v_sub_u32 v36, v36, v31")
    I(f"v_add_u32 v36, {L_LIST}, v36")
    I(f"v_cmp_gt_u32 vcc, 16, v{V_LANE}")
    I("s_and_saveexec_b64 s[12:13], vcc")
    I(f"ds_write_b32 v29, v36 offset:{L_WB}")
    I(f"ds_write_b32 v29, v30 offset:{L_SU}")
    I("s_mov_b64 exec, s[12:13]")
    I(f"s_cmp_le_u32 s76, {LIST_CAP}")
    I("s_cbranch_scc1 K2_CAPOK")
    I(f"v_mov_b32 v41, {L_HEAVY}")
    I(f"ds_write_b32 v41, v{ONE}")
    L("K2_CAPOK")
    for i in range(4):
        I(f"ds_read_b32 v{SL(i)}, v{SL(i)} offset:{L_WB}")
    I("s_waitcnt lgkmcnt(0)")
    for i in range(4):
        I(f"v_lshrrev_b32 v36, 2, v{32+i}")
        I(f"v_subrev_u32 v36, 1, v36")
        I(f"v_and_b32 v36, v36, v{R2(i)}")
        I(f"v_lshl_add_u32 v{SL(i)}, v36, 2, v{SL(i)}")
        I(f"v_add_u32 v36, v{C(i,0)}, v{C(i,1)}")
        I(f"v_add_u32 v37, v36, v{C(i,2)}")
        I(f"v_mad_u32_u24 v{C(i,2)}, v{C(i,0)}, v{32+i}, v{SL(i)}")
        I(f"v_mov_b32 v{C(i,0)}, v{SL(i)}")
        I(f"v_mov_b32 v{C(i,1)}, v{32+i}")
        I(f"v_mov_b32 v{C(i,3)}, v{32+i}")
        I(f"v_mad_u32_u24 v{TT(i)}, v36, v{32+i}, v{SL(i)}")
        I(f"v_mad_u32_u24 v37, v37, v{32+i}, v{SL(i)}")
        I(f"v_lshlrev_b32 v{KY(i)}, 5, v{KY(i)}")
        if i == 3:
            I("s_mov_b64 exec, s[74:75]")
        I(f"ds_write_b128 v{KY(i)}, v[{C(i,0)}:{C(i,3)}] offset:{L_NBQ}")
        I(f"v_mov_b32 v{C(i,0)}, v{TT(i)}")
        I(f"v_mov_b32 v{C(i,2)}, v37")
        I(f"ds_write_b128 v{KY(i)}, v[{C(i,0)}:{C(i,3)}] offset:{L_NBQ+16}")
    I("s_mov_b64 exec, s[72:73]")
    I("s_waitcnt lgkmcnt(0)")
    L("K2_NOSORT")
    I("s_barrier")
    stamp(4, 124)
    I(f"v_mov_b32 v41, {L_HEAVY}")
    I("ds_read_b32 v41, v41")
    for t in range(3):
        for r in range(4):
            lab = uid("K2_SP")
            I(f"s_mov_b64 exec, s[{SM(t,r)}:{SM(t,r)+1}]")
            I(f"s_cbranch_execz {lab}")
            I(f"ds_read_b64 v[{VP(t,r)}:{VP(t,r)+1}], v{VR(t,r)+1} offset:{L_NBQ}")
            L(lab)
    I("s_mov_b64 exec, s[72:73]")
    I("s_waitcnt lgkmcnt(0)")
    I("v_readfirstlane_b32 s77, v41")
    I("s_cmp_lg_u32 s77, 0")
    I("s_cbranch_scc1 K2_NOPLACE")
    for t in range(3):
        for r in range(4):
            lab = uid("K2_SW")
            I(f"s_mov_b64 exec, s[{SM(t,r)}:{SM(t,r)+1}]")
            I(f"s_cbranch_execz {lab}")
            I(f"v_mad_u32_u24 v{VP(t,r)}, v{VK(t,r)}, v{VP(t,r)+1}, v{VP(t,r)}")
            I(f"ds_write_b32 v{VP(t,r)}, v{VR(t,r)}")
            L(lab)
    I("s_mov_b64 exec, s[72:73]")
    L("K2_NOPLACE")
    I("s_waitcnt lgkmcnt(0)")
    I("s_barrier")
    stamp(5, 124)
    I(f"s_cmp_lt_u32 s10, {NWORK}")
    I("s_cbranch_scc1 K2_WORK")
    I(f"s_sub_u32 s11, s10, {NWORK}")
    I("s_lshl_b32 s11, s11, 6")
    I(f"v_add_u32 v40, s11, v{V_LANE}")
    I("v_lshlrev_b32 v40, 4, v40")
    I(f"s_mul_i32 s11, s8, {IMG_BYTES}")
    for i in range(8):
        d = 44 + 4 * i
        I(f"ds_read_b128 v[{d}:{d+3}], v40 offset:{i*2048}")
    for i in range(8):
        d = 44 + 4 * i
        I(f"s_add_u32 s12, s11, {i*2048}")
        I(f"s_waitcnt lgkmcnt({7-i})")
        I(f"buffer_store_dwordx4 v[{d}:{d+3}], v40, s[32:35], s12 offen" + FL[opt.st2i])
    I("s_cmp_eq_u32 s77, 0")
    I("s_cbranch_scc1 K2_END")
    L("K2_WORK")
    I("s_cmp_eq_u32 s77, 0")
    I("s_cbranch_scc1 K2_FAST")
    heavy_path("K2H", 24, 6, 20, 8, 10, K2_ACC, 16)
    I("s_cmp_ge_u32 s10, 13")
    I("s_cbranch_scc1 K2_END")
    heavy_read_acc(K2_ACC, 10)
    I("s_branch K2_STORE")
    L("K2_FAST")
    hop_header(10)
    hop_wave("K2S", 24)
    split_fix("K2S", 10)
    L("K2_STORE")
    stamp(6, 124)
    I("s_lshl_b32 s45, s8, 7")
    for vn, va, t0 in ((V_NA, V_ACC, V_T), (V_NB, V_ACC2, V_RC)):
        for i in range(4):
            I(f"v_cvt_pk_bf16_f32 v{t0+i}, v{va+2*i}, v{va+2*i+1}")
        I(f"v_lshlrev_b32 v{vn}, 15, v{vn}")
        I(f"v_add3_u32 v{vn}, v{vn}, s45, v{V_F16}")
        I(f"buffer_store_dwordx4 v[{t0}:{t0+3}], v{vn}, s[28:31], 0 offen" + FL[opt.st2])
    stamp(7, 124)
    if opt.stamps:
        I("s_waitcnt vmcnt(0)")
        stamp(8, 124)
    if opt.dbg: I("s_waitcnt vmcnt(0)")
    dbg_stamp(1, 1, 0, 124)
    L("K2_END")
    I("s_endpgm")
    hop_subs("K2S")
    I("s_endpgm")
    return name, 128, (102 if opt.dbg else 96)

def gen_k3():
    name = "sgc_hop2_kernel"
    kernel_begin(name)
    I("s_cmp_ge_u32 s2, 256")
    I("s_cbranch_scc1 K3_END")
    dbg_stamp(2, 0, 0, 124, True)
    if opt.stamps: I("s_memrealtime s[86:87]")
    I("s_load_dwordx4 s[4:7], s[0:1], 32")
    I("s_load_dwordx2 s[12:13], s[0:1], 56")
    I("s_and_b32 s8, s2, 7")
    I("s_lshl_b32 s8, s8, 5")
    I("s_lshr_b32 s9, s2, 3")
    I("s_add_u32 s8, s8, s9")
    I("v_readfirstlane_b32 s10, v0")
    I(f"v_and_b32 v{V_LANE}, 63, v0")
    I("v_lshlrev_b32 v40, 4, v0")
    I(f"s_mul_i32 s11, s8, {IMG_BYTES}")
    I("s_lshr_b32 s10, s10, 6")
    I("s_waitcnt lgkmcnt(0)")
    stamp_init(2, 12, 124); stamp(0, 124, 86)
    srd(32, 12, 13, 256 * IMG_BYTES, WS_IMG)
    srd(16, 4, 5, 8192)
    srd(24, 12, 13, TBL_BYTES, WS_H1)
    srd(28, 6, 7, TBL_BYTES)
    srd(20, 12, 13, NCH * RECB, WS_REC)
    I("buffer_load_dwordx4 v[44:47], v40, s[32:35], s11 offen")
    I("buffer_load_dwordx4 v[48:51], v40, s[16:19], 0 offen")
    n3 = opt.pf3
    if n3: pf_setup(56, n3, 0)
    hop_consts()
    I("s_waitcnt vmcnt(1)")
    I("ds_write_b128 v40, v[44:47]")
    I("s_waitcnt vmcnt(0)")
    pf_issue(56, 125, 24, n3, 10)
    I("v_cmp_gt_u32 vcc, 0x200, v0")
    I("s_and_saveexec_b64 s[72:73], vcc")
    I(f"ds_write_b128 v40, v[48:51] offset:{L_WL}")
    I("s_mov_b64 exec, s[72:73]")
    I("s_waitcnt lgkmcnt(0)")
    I("s_barrier")
    stamp(1, 124)
    I(f"v_mov_b32 v41, {L_HEAVY}")
    I("ds_read_b32 v41, v41")
    I("s_waitcnt lgkmcnt(0)")
    I("v_readfirstlane_b32 s77, v41")
    I("s_cmp_eq_u32 s77, 0")
    I("s_cbranch_scc1 K3_LIGHT")
    heavy_path("K3H", 24, 12, 20, 8, 10, K3_ACC, 16)
    I("s_cmp_ge_u32 s10, 13")
    I("s_cbranch_scc1 K3_END")
    heavy_read_acc(K3_ACC, 10)
    I("s_branch K3_ST")
    L("K3_LIGHT")
    I(f"s_cmp_ge_u32 s10, {NWORK}")
    I("s_cbranch_scc1 K3_END")
    hop_header(10)
    hop_wave("K3S", 24)
    split_fix("K3S", 10)
    L("K3_ST")
    stamp(2, 124)
    I(f"s_lshl_b32 s83, s10, 11")
    I(f"s_add_u32 s83, s83, {L_SCR}")
    I(f"v_lshlrev_b32 v{V_A0}, 2, v{V_G4}")
    I(f"v_xor_b32 v{V_A1}, v{V_A0}, v{V_F16}")
    I(f"v_lshlrev_b32 v{V_A0}, 3, v{V_A0}")
    I(f"v_add3_u32 v{V_A0}, v{V_A0}, v{V_A1}, s83")
    for va, t0, off in ((V_ACC, V_T, 0), (V_ACC2, V_RC, 1024)):
        for i in range(4):
            I(f"v_cvt_pk_bf16_f32 v{t0+i}, v{va+2*i}, v{va+2*i+1}")
        I(f"ds_write_b128 v{V_A0}, v[{t0}:{t0+3}] offset:{off}")
    J, KB, AW, AB, NV = 40, 41, 42, 43, 44
    I(f"v_and_b32 v{J}, 15, v{V_LANE}")
    I(f"v_lshrrev_b32 v{KB}, 4, v{V_LANE}")
    I(f"v_and_b32 v46, 7, v{J}")
    I(f"v_lshlrev_b32 v45, 5, v46")
    I(f"ds_bpermute_b32 v47, v45, v{V_NA}")
    I(f"ds_bpermute_b32 v48, v45, v{V_NB}")
    I(f"v_xor_b32 v49, v{KB}, v46")
    I(f"v_lshlrev_b32 v49, 4, v49")
    I(f"v_lshlrev_b32 v{AB}, 7, v{J}")
    I(f"v_add3_u32 v{AB}, v{AB}, s83, v49")
    I(f"v_xor_b32 v49, 64, v49")
    I(f"v_lshlrev_b32 v50, 7, v{J}")
    I(f"v_add3_u32 v50, v50, s83, v49")
    I(f"v_lshrrev_b32 v51, 2, v{J}")
    I(f"v_lshl_add_u32 v51, v{KB}, 3, v51")
    I(f"v_lshlrev_b32 v51, 7, v51")
    I(f"v_and_b32 v52, 3, v{V_LANE}")
    I(f"v_lshl_add_u32 v{AW}, v52, 4, v51")
    B0, B1 = 56, 60
    I(f"ds_read_b128 v[{B0}:{B0+3}], v{AB}")
    I(f"ds_read_b128 v[{B1}:{B1+3}], v50")
    WF = 64
    for t in range(4):
        for s in range(2):
            for hh in range(2):
                off = L_WL + s * 4096 + hh * 512 + (t >> 1) * 64 + (t & 1) * 8
                d = WF + (t * 2 + s) * 4 + 2 * hh
                I(f"ds_read_b64_tr_b16 v[{d}:{d+1}], v{AW} offset:{off}")
    DD = 96
    for i in range(16):
        I(f"v_mov_b32 v{DD+i}, 0")
    I(f"v_cmp_gt_u32 vcc, 8, v{J}")
    I("s_waitcnt lgkmcnt(0)")
    for s in range(2):
        for t in range(4):
            a = WF + (t * 2 + s) * 4
            b = B0 if s == 0 else B1
            I(f"v_mfma_f32_16x16x32_bf16 v[{DD+4*t}:{DD+4*t+3}], v[{a}:{a+3}], v[{b}:{b+3}], v[{DD+4*t}:{DD+4*t+3}]")
    I(f"v_cndmask_b32 v{NV}, v48, v47, vcc")
    I(f"v_lshlrev_b32 v{NV}, 15, v{NV}")
    I("s_lshl_b32 s45, s8, 7")
    I(f"v_lshlrev_b32 v53, 4, v{KB}")
    I(f"v_add3_u32 v{NV}, v{NV}, s45, v53")
    I("s_nop 7")
    O = 112
    for half in range(2):
        for k in range(2):
            t = half * 2 + k
            I(f"v_cvt_pk_bf16_f32 v{O+half*4+2*k}, v{DD+4*t}, v{DD+4*t+1}")
            I(f"v_cvt_pk_bf16_f32 v{O+half*4+2*k+1}, v{DD+4*t+2}, v{DD+4*t+3}")
    I(f"buffer_store_dwordx4 v[{O}:{O+3}], v{NV}, s[28:31], 0 offen" + FL[opt.st3])
    I(f"buffer_store_dwordx4 v[{O+4}:{O+7}], v{NV}, s[28:31], 0 offen offset:64" + FL[opt.st3])
    stamp(3, 124)
    if opt.stamps:
        I("s_waitcnt vmcnt(0)")
        stamp(4, 124)
    if opt.dbg: I("s_waitcnt vmcnt(0)")
    dbg_stamp(2, 1, 0, 124)
    dbg_copy(124)
    L("K3_END")
    I("s_endpgm")
    hop_subs("K3S")
    I("s_endpgm")
    return name, 128, (102 if opt.dbg else 96)

HEADER = f"""; Kernarg layout for this problem (64 bytes, ptrs only, base s[0:1]):
; @launch kernel=sgc_part_kernel grid=(256,1,1) block=(K1BLOCK,1,1) lds={K1_LDS}
; @launch kernel=sgc_sort_hop1_kernel grid=(256,1,1) block=(1024,1,1) lds={K2_LDS}
; @launch kernel=sgc_hop2_kernel grid=(256,1,1) block=(1024,1,1) lds={K3_LDS}
.amdgcn_target "amdgcn-amd-amdhsa--gfx950"
.text"""

def main():
    for a in sys.argv[2:]:
        k, v = a.split("=")
        setattr(opt, k, int(v))
    emit(HEADER.replace("K1BLOCK", "896" if opt.tlb else "832"))
    ks = [gen_k1(), gen_k2(), gen_k3()]
    emit('.section .rodata,"a"')
    emit(".p2align 6")
    for (n, v, s) in ks:
        kernel_desc(n, v, s)
        emit(".p2align 6")
    open(sys.argv[1], "w").write("\n".join(out) + "\n")

main()
```

```python
import sys

N = 50000
E = 850000
CH = 3328
NCH = 256
RECB = CH * 8
WS_SEG = 0
WS_REC = 0x40000
WS_IMG = 0x6C0000
WS_H1 = 0xC00000
TBL_BYTES = N * 128
SAFE = 0x0000FFFF

class Opt:
    D = 4
    R = 8
    skew = 0
    pf1 = 0
    pf2b = 4
    pf2c = 0
    pf3 = 2
    pf3c = 0
    stamps = 0
    st1 = 1
    st2 = 1
    st2i = 1
    st3 = 1
    dbg = 0
    rst = 0
    nbar = 6
    pfs = 0
    pfsr = 2
    pfs3 = 0
    smalllds = 0
    k3w = 16

opt = Opt()
out = []
def emit(s=""): out.append(s)
def I(s): out.append("    " + s)
def L(s): out.append(s + ":")
_uid = [0]
def uid(p):
    _uid[0] += 1
    return f"{p}_{_uid[0]}"

FL = ['', ' sc1', ' sc0 sc1', ' nt', ' sc0']
def srd(s, lo, hi, size, add=0):
    if add:
        I(f"s_add_u32 s{s}, s{lo}, {add}")
        I(f"s_addc_u32 s{s+1}, s{hi}, 0")
        I(f"s_and_b32 s{s+1}, s{s+1}, 0xffff")
    else:
        I(f"s_mov_b32 s{s}, s{lo}")
        I(f"s_and_b32 s{s+1}, s{hi}, 0xffff")
    I(f"s_mov_b32 s{s+2}, {size}")
    I(f"s_mov_b32 s{s+3}, 0x20000")

def wave_scan(v, n=64):
    for sh in (1, 2, 4, 8):
        I("s_nop 1")
        I(f"v_add_u32_dpp v{v}, v{v}, v{v} row_shr:{sh} row_mask:0xf bank_mask:0xf")
    if n > 16:
        I("s_nop 1")
        I(f"v_add_u32_dpp v{v}, v{v}, v{v} row_bcast:15 row_mask:0xa bank_mask:0xf")
        I("s_nop 1")
        I(f"v_add_u32_dpp v{v}, v{v}, v{v} row_bcast:31 row_mask:0xc bank_mask:0xf")

STAMP_OFF = 0x2000000
def stamp_init(kidx, ws_lo, vbase):
    if not opt.stamps: return
    I(f"v_lshrrev_b32 v{vbase}, 6, v0")
    I(f"s_lshl_b32 s92, s2, 4")
    I(f"s_add_u32 s92, s92, {kidx*256*16}")
    I(f"v_add_u32 v{vbase}, s92, v{vbase}")
    I(f"v_lshlrev_b32 v{vbase}, 7, v{vbase}")
    I(f"v_add_u32 v{vbase}, {STAMP_OFF}, v{vbase}")
    I(f"s_mov_b32 s94, s{ws_lo}")
    I(f"s_mov_b32 s95, s{ws_lo+1}")
def stamp(j, vbase, pre=None):
    if not opt.stamps: return
    if pre is None:
        I("s_memrealtime s[90:91]")
        I("s_waitcnt lgkmcnt(0)")
    else:
        I(f"s_mov_b32 s90, s{pre}")
        I(f"s_mov_b32 s91, s{pre+1}")
    I("s_mov_b64 s[88:89], exec")
    I("s_mov_b64 exec, 1")
    I(f"v_mov_b32 v{vbase+2}, s90")
    I(f"v_mov_b32 v{vbase+3}, s91")
    I(f"global_store_dwordx2 v{vbase}, v[{vbase+2}:{vbase+3}], s[94:95] offset:{8*j}")
    I("s_mov_b64 exec, s[88:89]")

def kernel_begin(name):
    emit(f".globl {name}")
    emit(".p2align 8")
    emit(f".type {name},@function")
    L(name)

def kernel_desc(name, vgpr, sgpr):
    acc = (vgpr + 3) // 4 * 4
    emit(f".amdhsa_kernel {name}")
    emit(f"  .amdhsa_next_free_vgpr {vgpr}")
    emit(f"  .amdhsa_next_free_sgpr {sgpr}")
    emit(f"  .amdhsa_accum_offset {acc}")
    emit("  .amdhsa_group_segment_fixed_size 0")
    emit("  .amdhsa_kernarg_size 64")
    emit("  .amdhsa_user_sgpr_count 2")
    emit("  .amdhsa_user_sgpr_kernarg_segment_ptr 1")
    emit("  .amdhsa_system_sgpr_workgroup_id_x 1")
    emit(".end_amdhsa_kernel")

PFU = 8192
def pf_setup(vaddr, n, base_bytes):
    I("s_lshr_b32 s15, s2, 3")
    I(f"s_mul_i32 s15, s15, {n*PFU}")
    if base_bytes: I(f"s_add_u32 s15, s15, {base_bytes}")
    I(f"v_lshlrev_b32 v{vaddr}, 7, v0")
    I(f"v_add_u32 v{vaddr}, s15, v{vaddr}")
def pf_issue(vaddr, vdst, tbl, n, sW, nw=16):
    rounds = (n + nw - 1) // nw
    for i in range(rounds):
        cnt = min(nw, n - nw * i)
        lab = uid("PF")
        if cnt < nw:
            I(f"s_cmp_ge_u32 s{sW}, {cnt}")
            I(f"s_cbranch_scc1 {lab}")
        I(f"s_mov_b32 s15, {i*nw*PFU}")
        I(f"buffer_load_dword v{vdst}, v{vaddr}, s[{tbl}:{tbl+3}], s15 offen")
        L(lab)

def pf_stream(tbl, sW, nunits, base_bytes, per_round, vaddr, nrounds_max):
    I("s_lshr_b32 s15, s2, 3")
    I(f"s_mul_i32 s15, s15, {nunits*PFU}")
    I(f"s_add_u32 s15, s15, {base_bytes}")
    I(f"s_sub_u32 s14, s{sW}, {NWORK}")
    I(f"s_mul_i32 s14, s14, {PFU}")
    I("s_add_u32 s15, s15, s14")
    I(f"v_lshlrev_b32 v{vaddr}, 7, v{V_LANE}")
    I(f"v_add_u32 v{vaddr}, s15, v{vaddr}")
    k = 0
    nsteps = (nunits + 1) // 2
    rnd = 0
    while k < nsteps:
        for _ in range(per_round):
            if k >= nsteps: break
            I(f"s_mov_b32 s15, {k*2*PFU}")
            I(f"buffer_load_dword v{V_PFD}, v{vaddr}, s[{tbl}:{tbl+3}], s15 offen")
            k += 1
        rnd += 1
        if k < nsteps and rnd <= nrounds_max:
            I("s_barrier")

K1_HIST = 0
K1_PRE = 1024
K1_STAGE = 2048
K1_LDS = K1_STAGE + RECB

def gen_k1():
    name = "sgc_part_kernel"
    kernel_begin(name)
    I("s_cmp_ge_u32 s2, 256")
    I("s_cbranch_scc1 K1_END")
    if opt.stamps: I("s_memrealtime s[86:87]")
    I("s_load_dwordx4 s[4:7], s[0:1], 8")
    I("s_load_dwordx2 s[8:9], s[0:1], 24")
    I("s_load_dwordx2 s[10:11], s[0:1], 56")
    if opt.pf1:
        I("s_load_dwordx2 s[40:41], s[0:1], 0")
    I(f"s_mul_i32 s3, s2, {CH}")
    I("v_lshl_add_u32 v1, v0, 2, s3")
    I("v_lshlrev_b32 v2, 2, v1")
    I("v_lshlrev_b32 v3, 1, v1")
    I("v_mov_b32 v4, 0")
    I("v_lshlrev_b32 v5, 2, v0")
    I("v_cmp_gt_u32 vcc, 0x100, v0")
    I("s_and_saveexec_b64 s[12:13], vcc")
    I(f"ds_write_b32 v5, v4 offset:{K1_HIST}")
    I("s_mov_b64 exec, s[12:13]")
    I("v_readfirstlane_b32 s15, v0")
    I("s_waitcnt lgkmcnt(0)")
    stamp_init(0, 10, 60); stamp(0, 60, 86)
    srd(16, 6, 7, E * 4)
    srd(20, 4, 5, E * 4)
    srd(24, 8, 9, E * 2)
    I("buffer_load_dwordx4 v[8:11], v2, s[16:19], 0 offen")
    I("buffer_load_dwordx4 v[12:15], v2, s[20:23], 0 offen")
    I("buffer_load_dwordx2 v[16:17], v3, s[24:27], 0 offen")
    I("s_lshr_b32 s14, s15, 6")
    I("s_mov_b32 s46, s14")
    if opt.pf1:
        srd(48, 40, 41, TBL_BYTES)
        pf_setup(40, opt.pf1, 0)
    srd(28, 10, 11, NCH * 1024, WS_SEG)
    srd(32, 10, 11, NCH * RECB, WS_REC)
    I(f"s_mov_b32 s14, {E}")
    I("s_mov_b32 s36, 0xffff0000")
    I("s_mov_b32 s37, 21474")
    I("s_barrier")
    I("v_cmp_gt_u32 vcc, s14, v1")
    I("s_and_saveexec_b64 s[12:13], vcc")
    I("s_mov_b64 s[38:39], exec")
    I("v_mov_b32 v22, 1")
    I("s_waitcnt vmcnt(2)")
    stamp(1, 60)
    for i in range(4):
        I(f"v_and_b32 v{18+i}, 0xff, v{8+i}")
        I(f"v_lshlrev_b32 v{18+i}, 2, v{18+i}")
    for i in range(4):
        I(f"ds_add_rtn_u32 v{24+i}, v{18+i}, v22 offset:{K1_HIST}")
    I("s_waitcnt vmcnt(0)")
    if opt.pf1:
        I("s_mov_b64 exec, s[12:13]")
        pf_issue(40, 41, 48, opt.pf1, 46, 13)
        I("s_mov_b64 exec, s[38:39]")
    I("v_lshl_or_b32 v48, v16, 16, v12")
    I("v_and_or_b32 v50, v16, s36, v13")
    I("v_lshl_or_b32 v52, v17, 16, v14")
    I("v_and_or_b32 v54, v17, s36, v15")
    for i in range(4):
        I(f"v_mul_u32_u24 v23, s37, v{12+i}")
        I("v_lshrrev_b32 v23, 26, v23")
        I("v_and_b32 v23, 12, v23")
        I(f"v_lshrrev_b32 v{49+2*i}, 8, v{8+i}")
        I(f"v_lshl_or_b32 v{49+2*i}, v{49+2*i}, 4, v23")
    I("s_waitcnt lgkmcnt(0)")
    I("s_mov_b64 exec, s[12:13]")
    I("s_barrier")
    I("s_cmp_lg_u32 s46, 0")
    I("s_cbranch_scc1 K1_NOSCAN")
    I("v_lshlrev_b32 v5, 4, v0")
    I(f"ds_read_b128 v[28:31], v5 offset:{K1_HIST}")
    I("s_waitcnt lgkmcnt(0)")
    I("v_add_u32 v32, v28, v29")
    I("v_add_u32 v33, v32, v30")
    I("v_add_u32 v34, v33, v31")
    I("v_mov_b32 v35, v34")
    wave_scan(35)
    I("v_sub_u32 v36, v35, v34")
    I("v_add_u32 v37, v36, v28")
    I("v_add_u32 v38, v36, v32")
    I("v_add_u32 v39, v36, v33")
    I(f"ds_write_b128 v5, v[36:39] offset:{K1_PRE}")
    I("v_lshl_or_b32 v28, v37, 16, v36")
    I("v_lshl_or_b32 v29, v38, 16, v37")
    I("v_lshl_or_b32 v30, v39, 16, v38")
    I("v_lshl_or_b32 v31, v35, 16, v39")
    I("s_lshl_b32 s37, s2, 10")
    I("buffer_store_dwordx4 v[28:31], v5, s[28:31], s37 offen" + FL[opt.st1])
    I("s_waitcnt lgkmcnt(0)")
    L("K1_NOSCAN")
    I("s_barrier")
    I("s_mov_b64 exec, s[38:39]")
    for i in range(4):
        I(f"ds_read_b32 v{28+i}, v{18+i} offset:{K1_PRE}")
    I("s_waitcnt lgkmcnt(0)")
    for i in range(4):
        I(f"v_add_u32 v{28+i}, v{28+i}, v{24+i}")
        I(f"v_lshlrev_b32 v{28+i}, 3, v{28+i}")
    for i in range(4):
        I(f"ds_write_b64 v{28+i}, v[{48+2*i}:{49+2*i}] offset:{K1_STAGE}")
    I("s_waitcnt lgkmcnt(0)")
    I("s_mov_b64 exec, s[12:13]")
    I("s_barrier")
    I("v_lshlrev_b32 v5, 4, v0")
    I(f"ds_read_b128 v[8:11], v5 offset:{K1_STAGE}")
    I(f"ds_read_b128 v[12:15], v5 offset:{K1_STAGE + RECB//2}")
    I(f"s_mul_i32 s37, s2, {RECB}")
    I(f"s_add_u32 s42, s37, {RECB//2}")
    I("s_waitcnt lgkmcnt(1)")
    I("buffer_store_dwordx4 v[8:11], v5, s[32:35], s37 offen" + FL[opt.st1])
    I("s_waitcnt lgkmcnt(0)")
    I("buffer_store_dwordx4 v[12:15], v5, s[32:35], s42 offen" + FL[opt.st1])
    stamp(2, 60)
    if opt.stamps:
        I("s_waitcnt vmcnt(0)")
        stamp(3, 60)
    L("K1_END")
    I("s_endpgm")
    return name, 64, (102 if opt.stamps else 56)

L_SU = 0x000
L_WB = 0x040
L_ORD = 0x120
L_HEAVY = 0x1F0
L_LIST = 0x200
IMG_BYTES = 0x4000
LIST_CAP = IMG_BYTES - L_LIST
L_CNT = 0x4000
L_H2 = 0x5000
L_SC2 = 0x5100
L_WM = 0x5200
K2_ZERO_END = 0x5400
L_NBQ = 0x5400
K2_ACC = 0x8000
ACC_BYTES = 208 * 256
K2_LDS = K2_ACC + ACC_BYTES
L_WL = 0x4000
L_SCR = 0x6000
K3_ACC = 0xD000
K3_LDS = K3_ACC + ACC_BYTES
NWORK = 14

V_LANE = 1
V_G4 = 2
V_F16 = 3
V_SELA = 4
V_SELB = 5
V_PTRC = 6
V_PTRI = 7
V_NA = 8
V_NB = 9
V_A0 = 10
V_A1 = 11
V_ACC = 12
V_ACC2 = 20
V_T = 28
V_RC = 32
V_RI = 36
V_DATA = 40
S_T, S_R, S_PACE, S_DR, S_REM = 78, 79, 80, 81, 82
S_NB = 76
S_RET = 84
S_128 = 44
V_PFD = 125

def hop_consts():
    I(f"v_lshrrev_b32 v{V_G4}, 3, v{V_LANE}")
    I(f"v_lshlrev_b32 v{V_G4}, 2, v{V_G4}")
    I(f"v_and_b32 v{V_F16}, 7, v{V_LANE}")
    I(f"v_lshlrev_b32 v{V_F16}, 4, v{V_F16}")
    I(f"v_and_b32 v{V_PTRC}, 3, v{V_LANE}")
    I(f"v_mov_b32 v{V_SELA}, 0x0c0c0c0c")
    I(f"v_mov_b32 v{V_SELB}, 0x0c0c0c0c")
    I(f"v_mov_b32 v{V_A0}, 0x0c0c0302")
    I(f"v_mov_b32 v{V_A1}, 0x03020c0c")
    for val, sel, lit in ((0, V_SELA, V_A0), (1, V_SELA, V_A1), (2, V_SELB, V_A0), (3, V_SELB, V_A1)):
        I(f"v_cmp_eq_u32 vcc, {val}, v{V_PTRC}")
        I("s_nop 1")
        I(f"v_cndmask_b32 v{sel}, v{sel}, v{lit}, vcc")
    I(f"s_mov_b32 s{S_128}, 128")
    for i in range(8):
        I(f"v_mov_b32 v{V_ACC+i}, 0")
        I(f"v_mov_b32 v{V_ACC2+i}, 0")

def rd2(dst, ptr, unit):
    o = unit * 16
    assert o + 8 <= 255
    I(f"ds_read2_b32 v[{dst}:{dst+1}], v{ptr} offset0:{o} offset1:{o+8}")

def perms(p):
    rc = V_RC + 2 * p
    I(f"v_perm_b32 v{V_T+0}, v{rc}, v{rc}, v{V_SELA}")
    I(f"v_perm_b32 v{V_T+1}, v{rc}, v{rc}, v{V_SELB}")
    I(f"v_perm_b32 v{V_T+2}, v{rc+1}, v{rc+1}, v{V_SELA}")
    I(f"v_perm_b32 v{V_T+3}, v{rc+1}, v{rc+1}, v{V_SELB}")

def mfmas(r):
    d = V_DATA + 8 * r
    a, b = V_ACC, V_ACC2
    I(f"v_mfma_f32_4x4x4_16b_bf16 v[{a}:{a+3}], v[{V_T}:{V_T+1}], v[{d}:{d+1}], v[{a}:{a+3}]")
    I(f"v_mfma_f32_4x4x4_16b_bf16 v[{a+4}:{a+7}], v[{V_T}:{V_T+1}], v[{d+2}:{d+3}], v[{a+4}:{a+7}]")
    I(f"v_mfma_f32_4x4x4_16b_bf16 v[{b}:{b+3}], v[{V_T+2}:{V_T+3}], v[{d+4}:{d+5}], v[{b}:{b+3}]")
    I(f"v_mfma_f32_4x4x4_16b_bf16 v[{b+4}:{b+7}], v[{V_T+2}:{V_T+3}], v[{d+6}:{d+7}], v[{b+4}:{b+7}]")

def pace_check(pfx):
    if opt.R <= 1: return
    lab = uid(pfx + "_PC")
    I(f"s_add_u32 s{S_PACE}, s{S_PACE}, s{S_R}")
    I(f"s_cmp_lt_u32 s{S_PACE}, s{S_T}")
    I(f"s_cbranch_scc1 {lab}")
    I(f"s_call_b64 s[{S_RET}:{S_RET+1}], {pfx}_BS")
    L(lab)

def hop_subs(pfx):
    if opt.R <= 1: return
    L(f"{pfx}_BS")
    if opt.nbar < opt.R - 1:
        I(f"s_cmp_eq_u32 s83x, 0") if False else None
        I(f"s_cmp_eq_u32 s{S_NB}, 0")
        I(f"s_cbranch_scc1 {pfx}_BR")
        I(f"s_sub_u32 s{S_NB}, s{S_NB}, 1")
    I("s_barrier")
    if opt.rst:
        I("s_memrealtime s[98:99]")
        I("s_waitcnt lgkmcnt(0)")
        for k in range(7, 0, -1): I(f"s_mov_b32 s{60+k}, s{59+k}")
        I("s_mov_b32 s60, s98")
    I(f"s_sub_u32 s{S_PACE}, s{S_PACE}, s{S_T}")
    I(f"s_cmp_ge_u32 s{S_PACE}, s{S_T}")
    I(f"s_cbranch_scc1 {pfx}_BS")
    L(f"{pfx}_BR")
    I(f"s_setpc_b64 s[{S_RET}:{S_RET+1}]")

def hop_wave(pfx, tbl, sW):
    D = opt.D
    I(f"s_min_u32 s{S_T}, s{S_T}, 0x100")
    I(f"s_mov_b32 s{S_DR}, s{S_T}")
    I(f"s_mov_b32 s{S_PACE}, 0")
    I(f"s_mov_b32 s{S_R}, {opt.R}")
    if opt.nbar < opt.R - 1: I(f"s_mov_b32 s{S_NB}, {opt.nbar}")
    if opt.skew:
        I(f"s_cmp_lt_u32 s{sW}, 8")
        I(f"s_cselect_b32 s{S_R}, {opt.R - opt.skew}, s{S_R}")
        I(f"s_cmp_lt_u32 s{sW}, 4")
        I(f"s_cselect_b32 s{S_R}, {opt.R - 2*opt.skew}, s{S_R}")
    I(f"s_cmp_eq_u32 s{S_T}, 0")
    I(f"s_cbranch_scc1 {pfx}_FIN")
    for r in range(D):
        rd2(V_DATA + 8 * r, V_PTRC, r)
    rd2(V_RC, V_PTRC, 0)
    I(f"v_add_u32 v{V_PTRI}, {D*64}, v{V_PTRC}")
    I("s_waitcnt lgkmcnt(0)")
    rd2(V_RI, V_PTRI, 0)
    for r in range(D):
        d = V_DATA + 8 * r
        if r > 0:
            I(f"s_cmp_le_u32 s{S_T}, {r}")
            I(f"s_cbranch_scc1 {pfx}_DR0")
            pace_check(pfx)
        I(f"v_mad_u32_u16 v{V_A0}, v{d}, s{S_128}, v{V_F16}")
        I(f"v_mad_u32_u16 v{V_A1}, v{d+1}, s{S_128}, v{V_F16}")
        I(f"buffer_load_dwordx4 v[{d}:{d+3}], v{V_A0}, s[{tbl}:{tbl+3}], 0 offen")
        I(f"buffer_load_dwordx4 v[{d+4}:{d+7}], v{V_A1}, s[{tbl}:{tbl+3}], 0 offen")
    I(f"s_sub_u32 s{S_REM}, s{S_T}, {D}")
    I(f"s_mov_b32 s{S_DR}, {D}")
    I(f"s_cmp_eq_u32 s{S_REM}, 0")
    I(f"s_cbranch_scc1 {pfx}_DR0")
    L(f"{pfx}_MAIN")
    for r in range(D):
        p = r & 1
        d = V_DATA + 8 * r
        I("s_waitcnt lgkmcnt(0)")
        rd2(V_RC + 2 * (p ^ 1), V_PTRC, r + 1)
        rd2(V_RI + 2 * (p ^ 1), V_PTRI, r + 1)
        perms(p)
        ri = V_RI + 2 * p
        I(f"v_mad_u32_u16 v{V_A0}, v{ri}, s{S_128}, v{V_F16}")
        I(f"v_mad_u32_u16 v{V_A1}, v{ri+1}, s{S_128}, v{V_F16}")
        I(f"s_waitcnt vmcnt({2*(D-1)})")
        mfmas(r)
        pace_check(pfx)
        I(f"buffer_load_dwordx4 v[{d}:{d+3}], v{V_A0}, s[{tbl}:{tbl+3}], 0 offen")
        I(f"buffer_load_dwordx4 v[{d+4}:{d+7}], v{V_A1}, s[{tbl}:{tbl+3}], 0 offen")
        if r == D - 1:
            I(f"v_add_u32 v{V_PTRC}, {D*64}, v{V_PTRC}")
            I(f"v_add_u32 v{V_PTRI}, {D*64}, v{V_PTRI}")
        I(f"s_sub_u32 s{S_REM}, s{S_REM}, 1")
        I(f"s_cmp_eq_u32 s{S_REM}, 0")
        if r == D - 1:
            I(f"s_cbranch_scc0 {pfx}_MAIN")
        else:
            I(f"s_cbranch_scc1 {pfx}_DR{r+1}")
    for q in range(2 * D - 1):
        r = q % D
        p = q & 1
        if q < D:
            L(f"{pfx}_DR{q}")
        I("s_waitcnt lgkmcnt(0)")
        if q + 1 <= 2 * D - 2:
            rd2(V_RC + 2 * (p ^ 1), V_PTRC, q + 1)
        perms(p)
        I("s_waitcnt vmcnt(0)")
        I(f"s_sub_u32 s{S_DR}, s{S_DR}, 1")
        mfmas(r)
        if q < 2 * D - 2:
            I(f"s_cmp_eq_u32 s{S_DR}, 0")
            I(f"s_cbranch_scc1 {pfx}_FIN")
    L(f"{pfx}_FIN")
    if opt.rst and opt.stamps:
        for k in range(7):
            I(f"s_mov_b32 s86, s{66-k}")
            I(f"s_mov_b32 s87, s99")
            stamp(9 + k, 124, 86)
    I("s_nop 4")

def node_pos(sW, heavy):
    I(f"v_lshrrev_b32 v{V_NB}, 2, v{V_G4}")
    I(f"s_lshl_b32 s45, s{sW}, 4")
    if not heavy:
        I(f"s_lshl_b32 s46, s{sW}, 3")
        I(f"s_add_u32 s46, s46, 96")
        I(f"s_cmp_lt_u32 s{sW}, 12")
        I(f"s_cselect_b32 s45, s45, s46")
    I(f"v_add_u32 v{V_NA}, s45, v{V_NB}")
    I(f"v_add_u32 v{V_NB}, 8, v{V_NA}")

def hop_header(sW, vflag):
    I(f"s_lshl_b32 s45, s{sW}, 2")
    I(f"v_mov_b32 v{V_A0}, s45")
    I(f"v_mov_b32 v{vflag}, {L_HEAVY}")
    I(f"ds_read_b32 v{vflag}, v{vflag}")
    I(f"ds_read_b32 v{V_A1}, v{V_A0} offset:{L_SU}")
    I(f"ds_read_b32 v{V_PTRC}, v{V_A0} offset:{L_WB}")
    node_pos(sW, False)
    I(f"ds_read_u8 v{V_NA}, v{V_NA} offset:{L_ORD}")
    I(f"ds_read_u8 v{V_NB}, v{V_NB} offset:{L_ORD}")
    I("s_waitcnt lgkmcnt(0)")
    I(f"v_readfirstlane_b32 s77, v{vflag}")
    I(f"v_readfirstlane_b32 s{S_T}, v{V_A1}")
    I(f"v_add_u32 v{V_PTRC}, v{V_PTRC}, v{V_G4}")
    lab = uid("HH")
    I(f"s_cmp_lt_u32 s{sW}, 12")
    I(f"s_cbranch_scc1 {lab}")
    I(f"v_mov_b32 v{V_NB}, 0xff")
    L(lab)

def split_fix(pfx, sW):
    lab = uid(pfx + "_SF")
    I(f"s_cmp_lt_u32 s{sW}, 12")
    I(f"s_cbranch_scc1 {lab}")
    for i in range(8):
        I(f"v_add_f32 v{V_ACC+i}, v{V_ACC+i}, v{V_ACC2+i}")
    L(lab)

def heavy_path(pfx, tbl, seg_lo_hi, rec_srd, sB, sW, acc_base, nwaves):
    I("v_mov_b32 v40, 0")
    I("v_mov_b32 v41, 0")
    I("v_mov_b32 v42, 0")
    I("v_mov_b32 v43, 0")
    I("v_lshlrev_b32 v44, 4, v0")
    I(f"v_add_u32 v44, {acc_base}, v44")
    n16 = ACC_BYTES // 16
    for i in range(3):
        I(f"ds_write_b128 v44, v[40:43] offset:{i*16384}")
    I(f"v_cmp_gt_u32 vcc, {n16 - 3072}, v0")
    I("s_and_saveexec_b64 s[60:61], vcc")
    I(f"ds_write_b128 v44, v[40:43] offset:{3*16384}")
    I("s_mov_b64 exec, s[60:61]")
    I("s_waitcnt lgkmcnt(0)")
    I("s_barrier")
    I(f"s_mov_b32 s62, s{sW}")
    I(f"v_lshrrev_b32 v45, 3, v{V_LANE}")
    I(f"s_lshl_b32 s63, s{sB}, 2")
    L(f"{pfx}_HC")
    I("s_lshl_b32 s64, s62, 10")
    I("s_add_u32 s64, s64, s63")
    I(f"s_add_u32 s66, s{seg_lo_hi}, s64")
    I(f"s_addc_u32 s67, s{seg_lo_hi+1}, 0")
    I("s_load_dword s68, s[66:67], 0")
    I(f"s_mul_i32 s69, s62, {RECB}")
    I("s_waitcnt lgkmcnt(0)")
    I("s_and_b32 s70, s68, 0xffff")
    I("s_lshr_b32 s71, s68, 16")
    L(f"{pfx}_HI")
    I("s_cmp_ge_u32 s70, s71")
    I(f"s_cbranch_scc1 {pfx}_HN")
    I("v_add_u32 v46, s70, v45")
    I("v_cmp_gt_u32 vcc, s71, v46")
    I("s_and_saveexec_b64 s[60:61], vcc")
    I("v_lshlrev_b32 v47, 3, v46")
    I(f"buffer_load_dwordx2 v[48:49], v47, s[{rec_srd}:{rec_srd+3}], s69 offen")
    I("s_waitcnt vmcnt(0)")
    I("v_and_b32 v50, 0xffff, v48")
    I("v_lshlrev_b32 v50, 7, v50")
    I(f"v_add_u32 v50, v50, v{V_F16}")
    I(f"buffer_load_dwordx4 v[52:55], v50, s[{tbl}:{tbl+3}], 0 offen")
    I("v_and_b32 v51, 0xffff0000, v48")
    I("v_lshrrev_b32 v56, 4, v49")
    I("v_lshlrev_b32 v56, 8, v56")
    I(f"v_lshlrev_b32 v57, 1, v{V_F16}")
    I("v_add_u32 v56, v56, v57")
    I(f"v_add_u32 v56, {acc_base}, v56")
    I("s_waitcnt vmcnt(0)")
    for i in range(4):
        I(f"v_lshlrev_b32 v58, 16, v{52+i}")
        I(f"v_and_b32 v59, 0xffff0000, v{52+i}")
        I("v_mul_f32 v58, v58, v51")
        I("v_mul_f32 v59, v59, v51")
        I(f"ds_add_f32 v56, v58 offset:{8*i}")
        I(f"ds_add_f32 v56, v59 offset:{8*i + 4}")
    I("s_mov_b64 exec, s[60:61]")
    I("s_add_u32 s70, s70, 8")
    I(f"s_branch {pfx}_HI")
    L(f"{pfx}_HN")
    I(f"s_add_u32 s62, s62, {nwaves}")
    I("s_cmp_lt_u32 s62, 256")
    I(f"s_cbranch_scc1 {pfx}_HC")
    I("s_waitcnt lgkmcnt(0)")
    I("s_barrier")

def heavy_read_acc(acc_base, sW):
    node_pos(sW, True)
    for vn, va in ((V_NA, V_ACC), (V_NB, V_ACC2)):
        I(f"v_lshlrev_b32 v{V_A0}, 8, v{vn}")
        I(f"v_lshlrev_b32 v{V_A1}, 1, v{V_F16}")
        I(f"v_add_u32 v{V_A0}, v{V_A0}, v{V_A1}")
        I(f"v_add_u32 v{V_A0}, {acc_base}, v{V_A0}")
        I(f"ds_read_b128 v[{va}:{va+3}], v{V_A0}")
        I(f"ds_read_b128 v[{va+4}:{va+7}], v{V_A0} offset:16")
    I("s_waitcnt lgkmcnt(0)")

def gen_k2():
    name = "sgc_sort_hop1_kernel"
    kernel_begin(name)
    I("s_cmp_ge_u32 s2, 256")
    I("s_cbranch_scc1 K2_END")
    if opt.stamps: I("s_memrealtime s[86:87]")
    I("s_load_dwordx2 s[4:5], s[0:1], 0")
    I("s_load_dwordx2 s[6:7], s[0:1], 56")
    I("s_and_b32 s8, s2, 7")
    I("s_lshl_b32 s8, s8, 5")
    I("s_lshr_b32 s9, s2, 3")
    I("s_add_u32 s8, s8, s9")
    I("v_readfirstlane_b32 s10, v0")
    I(f"v_and_b32 v{V_LANE}, 63, v0")
    I(f"v_lshrrev_b32 v52, 4, v{V_LANE}")
    I("s_lshr_b32 s10, s10, 6")
    I("s_lshl_b32 s11, s10, 2")
    I("v_add_u32 v52, s11, v52")
    I("s_lshl_b32 s11, s8, 2")
    I("v_lshl_add_u32 v53, v52, 10, s11")
    for r in range(4):
        I(f"s_mov_b32 s{36+r}, {r*65536}")
    I("s_waitcnt lgkmcnt(0)")
    stamp_init(1, 6, 124); stamp(0, 124, 86)
    srd(16, 6, 7, NCH * 1024, WS_SEG)
    SG = lambda r: 56 + r
    for r in range(4):
        I(f"buffer_load_dword v{SG(r)}, v53, s[16:19], s{36+r} offen")
    I("v_lshlrev_b32 v40, 4, v0")
    I(f"v_mov_b32 v41, {SAFE}")
    I("v_cmp_gt_u32 vcc, 32, v0")
    I("v_mov_b32 v48, 0")
    I("v_mov_b32 v49, 0")
    I("v_cndmask_b32_e64 v44, v41, 0, vcc")
    I("v_mov_b32 v45, v44")
    I("v_mov_b32 v46, v44")
    I("v_mov_b32 v47, v44")
    I("ds_write_b128 v40, v[44:47]")
    I("v_mov_b32 v50, 0")
    I("v_mov_b32 v51, 0")
    I(f"v_cmp_gt_u32 vcc, {(K2_ZERO_END-L_CNT)//16}, v0")
    I("s_and_saveexec_b64 s[12:13], vcc")
    I(f"ds_write_b128 v40, v[48:51] offset:{L_CNT}")
    I("s_mov_b64 exec, s[12:13]")
    I(f"s_mov_b32 s14, {RECB}")
    I("v_mul_u32_u24 v54, s14, v52")
    I(f"v_and_b32 v55, 15, v{V_LANE}")
    srd(20, 6, 7, NCH * RECB, WS_REC)
    srd(24, 4, 5, TBL_BYTES)
    srd(28, 6, 7, TBL_BYTES, WS_H1)
    srd(32, 6, 7, 256 * IMG_BYTES, WS_IMG)
    for r in range(4):
        I(f"s_mov_b32 s{40+r}, {r*64*RECB}")
    nb, nc = opt.pf2b, opt.pf2c
    if nb: pf_setup(48, nb, opt.pf1 * 32 * PFU)
    if nc: pf_setup(7, nc, (opt.pf1 + nb) * 32 * PFU)
    hop_consts()
    SM = lambda t, r: 46 + (t * 4 + r) * 2
    VOFF = lambda r: 60 + r
    VR = lambda t, r: 64 + (t * 4 + r) * 2
    VK = lambda t, r: 88 + t * 4 + r
    VP = lambda t, r: 100 + (t * 4 + r) * 2
    ONE = 40
    I("s_waitcnt vmcnt(0)")
    stamp(1, 124)
    I("s_mov_b64 s[70:71], 0")
    I("s_mov_b64 s[72:73], exec")
    for r in range(4):
        I(f"v_and_b32 v42, 0xffff, v{SG(r)}")
        I(f"v_lshrrev_b32 v43, 16, v{SG(r)}")
        I("v_add_u32 v42, v42, v55")
        I(f"v_lshl_add_u32 v{VOFF(r)}, v42, 3, v54")
        I(f"v_cmp_lt_u32 s[{SM(0,r)}:{SM(0,r)+1}], v42, v43")
        I("v_add_u32 v41, 16, v42")
        I(f"s_mov_b64 exec, s[{SM(0,r)}:{SM(0,r)+1}]")
        lab = uid("K2_SK")
        I(f"s_cbranch_execz {lab}")
        I(f"buffer_load_dwordx2 v[{VR(0,r)}:{VR(0,r)+1}], v{VOFF(r)}, s[20:23], s{40+r} offen")
        L(lab)
        I("s_mov_b64 exec, s[72:73]")
        I(f"v_cmp_lt_u32 s[{SM(1,r)}:{SM(1,r)+1}], v41, v43")
        I("v_add_u32 v41, 32, v42")
        I(f"v_cmp_lt_u32 s[{SM(2,r)}:{SM(2,r)+1}], v41, v43")
        I("v_add_u32 v41, 48, v42")
        I("v_cmp_lt_u32 vcc, v41, v43")
        I("s_or_b64 s[70:71], s[70:71], vcc")
    for t in range(1, 3):
        for r in range(4):
            lab = uid("K2_SK")
            I(f"s_mov_b64 exec, s[{SM(t,r)}:{SM(t,r)+1}]")
            I(f"s_cbranch_execz {lab}")
            I(f"buffer_load_dwordx2 v[{VR(t,r)}:{VR(t,r)+1}], v{VOFF(r)}, s[20:23], s{40+r} offen offset:{128*t}")
            L(lab)
    I("s_mov_b64 exec, s[72:73]")
    I(f"v_mov_b32 v{ONE}, 1")
    I("s_waitcnt lgkmcnt(0)")
    I("s_barrier")
    I("s_waitcnt vmcnt(0)")
    pf_issue(48, V_PFD, 24, nb, 10)
    stamp(2, 124)
    for t in range(3):
        for r in range(4):
            lab = uid("K2_SC")
            I(f"s_mov_b64 exec, s[{SM(t,r)}:{SM(t,r)+1}]")
            I(f"s_cbranch_execz {lab}")
            I(f"ds_add_rtn_u32 v{VK(t,r)}, v{VR(t,r)+1}, v{ONE} offset:{L_CNT}")
            I(f"v_lshlrev_b32 v{VR(t,r)+1}, 1, v{VR(t,r)+1}")
            L(lab)
    I("s_mov_b64 exec, s[72:73]")
    I("s_cmp_eq_u64 s[70:71], 0")
    I("s_cbranch_scc1 K2_NOH")
    I(f"v_mov_b32 v41, {L_HEAVY}")
    I(f"ds_write_b32 v41, v{ONE}")
    L("K2_NOH")
    I("s_waitcnt lgkmcnt(0)")
    I("s_barrier")
    stamp(3, 124)
    I("s_cmp_lg_u32 s10, 0")
    I("s_cbranch_scc1 K2_NOSORT")
    C = lambda i, q: 100 + 4 * i + q
    KY = lambda i: 44 + i
    R2 = lambda i: 48 + i
    SL = lambda i: 52 + i
    TT = lambda i: 56 + i
    ST = lambda i: 60 + i
    A, B, Cc, Dd = 116, 117, 118, 119
    I(f"v_lshlrev_b32 v{A}, 4, v{V_LANE}")
    for i in range(4):
        I(f"ds_read_b128 v[{C(i,0)}:{C(i,3)}], v{A} offset:{L_CNT + 1024*i}")
    I("s_mov_b32 s74, 0xffff")
    I("s_mov_b32 s75, 0")
    I(f"v_lshlrev_b32 v{B}, 2, v{V_LANE}")
    I("s_movk_i32 s76, 0xc0")
    I("s_waitcnt lgkmcnt(0)")
    for i in range(4):
        I(f"v_add_u32 v{TT(i)}, v{C(i,0)}, v{C(i,1)}")
        I(f"v_add3_u32 v{TT(i)}, v{TT(i)}, v{C(i,2)}, v{C(i,3)}")
        I(f"v_min_u32 v{KY(i)}, 63, v{TT(i)}")
        I(f"v_lshlrev_b32 v{KY(i)}, 2, v{KY(i)}")
        if i == 3:
            I("s_mov_b64 exec, s[74:75]")
        I(f"ds_add_rtn_u32 v{R2(i)}, v{KY(i)}, v{ONE} offset:{L_H2}")
    I("s_mov_b64 exec, s[72:73]")
    I(f"ds_read_b32 v{Cc}, v{B} offset:{L_H2}")
    I("s_waitcnt lgkmcnt(0)")
    I(f"v_mov_b32 v{Dd}, v{Cc}")
    wave_scan(Dd)
    I(f"v_sub_u32 v{Dd}, v{Dd}, v{Cc}")
    I("s_nop 0")
    for i in range(4):
        I(f"ds_bpermute_b32 v{SL(i)}, v{KY(i)}, v{Dd}")
    I("s_waitcnt lgkmcnt(0)")
    for i in range(4):
        m = 12 + 2 * (i & 1)
        I(f"v_add_u32 v{R2(i)}, v{R2(i)}, v{SL(i)}")
        I(f"v_cmp_le_u32 s[{m}:{m+1}], s76, v{R2(i)}")
        I(f"v_lshrrev_b32 v{SL(i)}, 4, v{R2(i)}")
        I(f"v_lshrrev_b32 v{Cc}, 3, v{R2(i)}")
        I(f"v_subrev_u32 v{Cc}, 12, v{Cc}")
        I(f"v_mov_b32 v{ST(i)}, 64")
        I(f"v_cndmask_b32_e64 v{SL(i)}, v{SL(i)}, v{Cc}, s[{m}:{m+1}]")
        I(f"v_cndmask_b32_e64 v{ST(i)}, v{ST(i)}, 32, s[{m}:{m+1}]")
        I(f"v_lshlrev_b32 v{SL(i)}, 2, v{SL(i)}")
        I(f"v_add_u32 v{KY(i)}, {64*i}, v{V_LANE}")
        if i == 3:
            I("s_mov_b64 exec, s[74:75]")
        I(f"ds_max_u32 v{SL(i)}, v{TT(i)} offset:{L_WM}")
        I(f"ds_write_b8 v{R2(i)}, v{KY(i)} offset:{L_ORD}")
    I("s_mov_b64 exec, s[72:73]")
    I(f"ds_read_b32 v{Cc}, v{B} offset:{L_WM}")
    I(f"v_cmp_gt_u32 vcc, 12, v{V_LANE}")
    I("s_waitcnt lgkmcnt(0)")
    I(f"v_add_u32 v{Dd}, 1, v{Cc}")
    I(f"v_lshrrev_b32 v{Dd}, 1, v{Dd}")
    I(f"v_cndmask_b32 v{Cc}, v{Dd}, v{Cc}, vcc")
    I(f"v_lshlrev_b32 v{Dd}, 6, v{Cc}")
    I(f"v_mov_b32 v{A}, v{Dd}")
    wave_scan(A, 16)
    I("s_nop 1")
    I(f"v_readlane_b32 s76, v{A}, 15")
    I(f"v_sub_u32 v{A}, v{A}, v{Dd}")
    I(f"v_add_u32 v{A}, {L_LIST}, v{A}")
    I("s_nop 0")
    for i in range(4):
        I(f"ds_bpermute_b32 v{SL(i)}, v{SL(i)}, v{A}")
    I(f"v_cmp_gt_u32 vcc, 16, v{V_LANE}")
    I("s_and_saveexec_b64 s[12:13], vcc")
    I(f"ds_write_b32 v{B}, v{A} offset:{L_WB}")
    I(f"ds_write_b32 v{B}, v{Cc} offset:{L_SU}")
    I("s_mov_b64 exec, s[12:13]")
    I(f"s_cmp_le_u32 s76, {LIST_CAP}")
    I("s_cbranch_scc1 K2_CAPOK")
    I(f"v_mov_b32 v41, {L_HEAVY}")
    I(f"ds_write_b32 v41, v{ONE}")
    L("K2_CAPOK")
    I("s_waitcnt lgkmcnt(0)")
    for i in range(4):
        I(f"v_lshrrev_b32 v{A}, 2, v{ST(i)}")
        I(f"v_subrev_u32 v{A}, 1, v{A}")
        I(f"v_and_b32 v{A}, v{A}, v{R2(i)}")
        I(f"v_lshl_add_u32 v{SL(i)}, v{A}, 2, v{SL(i)}")
        I(f"v_add_u32 v{A}, v{C(i,0)}, v{C(i,1)}")
        I(f"v_add_u32 v{Cc}, v{A}, v{C(i,2)}")
        I(f"v_mad_u32_u24 v{C(i,2)}, v{C(i,0)}, v{ST(i)}, v{SL(i)}")
        I(f"v_mov_b32 v{C(i,0)}, v{SL(i)}")
        I(f"v_mov_b32 v{C(i,1)}, v{ST(i)}")
        I(f"v_mov_b32 v{C(i,3)}, v{ST(i)}")
        I(f"v_lshlrev_b32 v{KY(i)}, 5, v{KY(i)}")
        e = 120 if (i & 1) == 0 else 12
        if e == 12:
            e = 36
        I(f"v_mad_u32_u24 v{e}, v{A}, v{ST(i)}, v{SL(i)}")
        I(f"v_mov_b32 v{e+1}, v{ST(i)}")
        I(f"v_mad_u32_u24 v{e+2}, v{Cc}, v{ST(i)}, v{SL(i)}")
        I(f"v_mov_b32 v{e+3}, v{ST(i)}")
        if i == 3:
            I("s_mov_b64 exec, s[74:75]")
        I(f"ds_write_b128 v{KY(i)}, v[{C(i,0)}:{C(i,3)}] offset:{L_NBQ}")
        I(f"ds_write_b128 v{KY(i)}, v[{e}:{e+3}] offset:{L_NBQ+16}")
    I("s_mov_b64 exec, s[72:73]")
    I("s_waitcnt lgkmcnt(0)")
    L("K2_NOSORT")
    I("s_barrier")
    stamp(4, 124)
    I(f"v_mov_b32 v41, {L_HEAVY}")
    I("ds_read_b32 v41, v41")
    for t in range(3):
        for r in range(4):
            lab = uid("K2_SP")
            I(f"s_mov_b64 exec, s[{SM(t,r)}:{SM(t,r)+1}]")
            I(f"s_cbranch_execz {lab}")
            I(f"ds_read_b64 v[{VP(t,r)}:{VP(t,r)+1}], v{VR(t,r)+1} offset:{L_NBQ}")
            L(lab)
    I("s_mov_b64 exec, s[72:73]")
    I("s_waitcnt lgkmcnt(0)")
    I("v_readfirstlane_b32 s77, v41")
    I("s_cmp_lg_u32 s77, 0")
    I("s_cbranch_scc1 K2_NOPLACE")
    for t in range(3):
        for r in range(4):
            lab = uid("K2_SW")
            I(f"s_mov_b64 exec, s[{SM(t,r)}:{SM(t,r)+1}]")
            I(f"s_cbranch_execz {lab}")
            I(f"v_mad_u32_u24 v{VP(t,r)}, v{VK(t,r)}, v{VP(t,r)+1}, v{VP(t,r)}")
            I(f"ds_write_b32 v{VP(t,r)}, v{VR(t,r)}")
            L(lab)
    I("s_mov_b64 exec, s[72:73]")
    L("K2_NOPLACE")
    I("s_waitcnt lgkmcnt(0)")
    I("s_barrier")
    stamp(5, 124)
    if nc: pf_issue(7, V_PFD, 24, nc, 10)
    I(f"s_cmp_lt_u32 s10, {NWORK}")
    I("s_cbranch_scc1 K2_WORK")
    I(f"s_sub_u32 s11, s10, {NWORK}")
    I("s_lshl_b32 s11, s11, 6")
    I(f"v_add_u32 v40, s11, v{V_LANE}")
    I("v_lshlrev_b32 v40, 4, v40")
    I(f"s_mul_i32 s11, s8, {IMG_BYTES}")
    for i in range(8):
        d = 44 + 4 * i
        I(f"ds_read_b128 v[{d}:{d+3}], v40 offset:{i*2048}")
    for i in range(8):
        d = 44 + 4 * i
        I(f"s_add_u32 s12, s11, {i*2048}")
        I(f"s_waitcnt lgkmcnt({7-i})")
        I(f"buffer_store_dwordx4 v[{d}:{d+3}], v40, s[32:35], s12 offen" + FL[opt.st2i])
    I("s_cmp_lg_u32 s77, 0")
    I("s_cbranch_scc1 K2_WORK")
    if opt.pfs:
        pf_stream(24, 10, opt.pfs, (opt.pf1 + nb + nc) * 32 * PFU, opt.pfsr, 40, min(opt.nbar, opt.R - 1))
    I("s_endpgm")
    L("K2_WORK")
    I("s_cmp_eq_u32 s77, 0")
    I("s_cbranch_scc1 K2_FAST")
    heavy_path("K2H", 24, 6, 20, 8, 10, K2_ACC, 16)
    I("s_cmp_ge_u32 s10, 13")
    I("s_cbranch_scc1 K2_END")
    heavy_read_acc(K2_ACC, 10)
    I("s_branch K2_STORE")
    L("K2_FAST")
    hop_header(10, 41)
    hop_wave("K2S", 24, 10)
    split_fix("K2S", 10)
    L("K2_STORE")
    stamp(6, 124)
    I("s_lshl_b32 s45, s8, 7")
    for vn, va, t0 in ((V_NA, V_ACC, V_T), (V_NB, V_ACC2, V_RC)):
        for i in range(4):
            I(f"v_cvt_pk_bf16_f32 v{t0+i}, v{va+2*i}, v{va+2*i+1}")
        I(f"v_lshlrev_b32 v{vn}, 15, v{vn}")
        I(f"v_add3_u32 v{vn}, v{vn}, s45, v{V_F16}")
        I(f"buffer_store_dwordx4 v[{t0}:{t0+3}], v{vn}, s[28:31], 0 offen" + FL[opt.st2])
    stamp(7, 124)
    if opt.stamps:
        I("s_waitcnt vmcnt(0)")
        stamp(8, 124)
    L("K2_END")
    I("s_endpgm")
    hop_subs("K2S")
    I("s_endpgm")
    return name, 128, 102

def gen_k3():
    assert opt.D <= 4
    name = "sgc_hop2_kernel"
    kernel_begin(name)
    I("s_cmp_ge_u32 s2, 256")
    I("s_cbranch_scc1 K3_END")
    if opt.stamps: I("s_memrealtime s[86:87]")
    I("s_load_dwordx2 s[12:13], s[0:1], 56")
    I("s_load_dwordx4 s[4:7], s[0:1], 32")
    I("s_and_b32 s8, s2, 7")
    I("s_lshl_b32 s8, s8, 5")
    I("s_lshr_b32 s9, s2, 3")
    I("s_add_u32 s8, s8, s9")
    I("v_readfirstlane_b32 s10, v0")
    I(f"v_and_b32 v{V_LANE}, 63, v0")
    I("v_lshlrev_b32 v40, 4, v0")
    I(f"s_mul_i32 s11, s8, {IMG_BYTES}")
    I("s_lshr_b32 s10, s10, 6")
    I("s_waitcnt lgkmcnt(0)")
    stamp_init(2, 12, 124); stamp(0, 124, 86)
    srd(32, 12, 13, 256 * IMG_BYTES, WS_IMG)
    I("buffer_load_dwordx4 v[44:47], v40, s[32:35], s11 offen")
    srd(16, 4, 5, 8192)
    I("buffer_load_dwordx4 v[48:51], v40, s[16:19], 0 offen")
    srd(24, 12, 13, TBL_BYTES, WS_H1)
    srd(28, 6, 7, TBL_BYTES)
    srd(20, 12, 13, NCH * RECB, WS_REC)
    n3, n3c = opt.pf3, opt.pf3c
    if n3: pf_setup(56, n3, 0)
    if n3c: pf_setup(57, n3c, n3 * 32 * PFU)
    hop_consts()
    E_SW, E_AB0, E_AB1, E_AW, E_BP, E_KB = 104, 105, 106, 107, 58, 59
    WF = 72
    I(f"s_lshl_b32 s83, s10, 11")
    I(f"s_add_u32 s83, s83, {L_SCR}")
    I(f"v_lshlrev_b32 v60, 2, v{V_G4}")
    I(f"v_xor_b32 v61, v60, v{V_F16}")
    I(f"v_lshlrev_b32 v60, 3, v60")
    I(f"v_add3_u32 v{E_SW}, v60, v61, s83")
    I(f"v_and_b32 v60, 15, v{V_LANE}")
    I(f"v_lshrrev_b32 v{E_KB}, 4, v{V_LANE}")
    I(f"v_and_b32 v61, 7, v60")
    I(f"v_lshlrev_b32 v{E_BP}, 5, v61")
    I(f"v_xor_b32 v62, v{E_KB}, v61")
    I(f"v_lshlrev_b32 v62, 4, v62")
    I(f"v_lshlrev_b32 v63, 7, v60")
    I(f"v_add3_u32 v{E_AB0}, v63, s83, v62")
    I(f"v_xor_b32 v62, 64, v62")
    I(f"v_add3_u32 v{E_AB1}, v63, s83, v62")
    I(f"v_lshrrev_b32 v62, 2, v60")
    I(f"v_lshl_add_u32 v62, v{E_KB}, 3, v62")
    I(f"v_lshlrev_b32 v62, 7, v62")
    I(f"v_and_b32 v63, 3, v{V_LANE}")
    I(f"v_lshl_add_u32 v{E_AW}, v63, 4, v62")
    I(f"v_cmp_gt_u32 s[74:75], 8, v60")
    I("s_waitcnt vmcnt(1)")
    I("ds_write_b128 v40, v[44:47]")
    I("s_waitcnt vmcnt(0)")
    pf_issue(56, V_PFD, 24, n3, 10)
    I("v_cmp_gt_u32 vcc, 0x200, v0")
    I("s_and_saveexec_b64 s[72:73], vcc")
    I(f"ds_write_b128 v40, v[48:51] offset:{L_WL}")
    I("s_mov_b64 exec, s[72:73]")
    I("s_waitcnt lgkmcnt(0)")
    I("s_barrier")
    stamp(1, 124)
    if n3c: pf_issue(57, V_PFD, 24, n3c, 10)
    hop_header(10, 41)
    I("s_cmp_eq_u32 s77, 0")
    I("s_cbranch_scc1 K3_LIGHT")
    heavy_path("K3H", 24, 12, 20, 8, 10, K3_ACC, 16)
    I("s_cmp_ge_u32 s10, 13")
    I("s_cbranch_scc1 K3_END")
    heavy_read_acc(K3_ACC, 10)
    I("s_mov_b32 s77, 1")
    I("s_branch K3_PRE")
    L("K3_LIGHT")
    I(f"s_cmp_lt_u32 s10, {NWORK}")
    I("s_cbranch_scc1 K3_PRE")
    if opt.pfs3:
        pf_stream(24, 10, opt.pfs3, (n3 + n3c) * 32 * PFU, opt.pfsr, 40, min(opt.nbar, opt.R - 1))
    I("s_endpgm")
    L("K3_PRE")
    E_OUT = E_AW
    I(f"ds_bpermute_b32 v60, v{E_BP}, v{V_NA}")
    I(f"ds_bpermute_b32 v61, v{E_BP}, v{V_NB}")
    for t in range(4):
        for s in range(2):
            for hh in range(2):
                off = L_WL + s * 4096 + hh * 512 + (t >> 1) * 64 + (t & 1) * 8
                d = WF + (t * 2 + s) * 4 + 2 * hh
                I(f"ds_read_b64_tr_b16 v[{d}:{d+1}], v{E_AW} offset:{off}")
    I("s_lshl_b32 s45, s8, 7")
    I(f"v_lshlrev_b32 v{E_KB}, 4, v{E_KB}")
    I("s_waitcnt lgkmcnt(0)")
    I(f"v_cndmask_b32_e64 v60, v61, v60, s[74:75]")
    I(f"v_lshlrev_b32 v60, 15, v60")
    I(f"v_add3_u32 v{E_OUT}, v60, s45, v{E_KB}")
    I("s_cmp_lg_u32 s77, 0")
    I("s_cbranch_scc1 K3_ST")
    hop_wave("K3S", 24, 10)
    split_fix("K3S", 10)
    L("K3_ST")
    stamp(2, 124)
    for va, t0, off in ((V_ACC, V_T, 0), (V_ACC2, V_RC, 1024)):
        for i in range(4):
            I(f"v_cvt_pk_bf16_f32 v{t0+i}, v{va+2*i}, v{va+2*i+1}")
        I(f"ds_write_b128 v{E_SW}, v[{t0}:{t0+3}] offset:{off}")
    B0, B1 = 40, 44
    I(f"ds_read_b128 v[{B0}:{B0+3}], v{E_AB0}")
    I(f"ds_read_b128 v[{B1}:{B1+3}], v{E_AB1}")
    DD = 108
    I("s_waitcnt lgkmcnt(1)")
    for t in range(4):
        a = WF + (t * 2) * 4
        I(f"v_mfma_f32_16x16x32_bf16 v[{DD+4*t}:{DD+4*t+3}], v[{a}:{a+3}], v[{B0}:{B0+3}], 0")
    I("s_waitcnt lgkmcnt(0)")
    for t in range(4):
        a = WF + (t * 2 + 1) * 4
        I(f"v_mfma_f32_16x16x32_bf16 v[{DD+4*t}:{DD+4*t+3}], v[{a}:{a+3}], v[{B1}:{B1+3}], v[{DD+4*t}:{DD+4*t+3}]")
    O = 48
    I("s_nop 5")
    for half in range(2):
        if half == 1: I("s_nop 0")
        for k in range(2):
            t = half * 2 + k
            if t == 3: I("s_nop 1")
            I(f"v_cvt_pk_bf16_f32 v{O+half*4+2*k}, v{DD+4*t}, v{DD+4*t+1}")
            I(f"v_cvt_pk_bf16_f32 v{O+half*4+2*k+1}, v{DD+4*t+2}, v{DD+4*t+3}")
        I(f"buffer_store_dwordx4 v[{O+half*4}:{O+half*4+3}], v{E_OUT}, s[28:31], 0 offen" + (" offset:64" if half else "") + FL[opt.st3])
    stamp(3, 124)
    if opt.stamps:
        I("s_waitcnt vmcnt(0)")
        stamp(4, 124)
    L("K3_END")
    I("s_endpgm")
    hop_subs("K3S")
    I("s_endpgm")
    return name, 128, 102

HEADER = f"""; Kernarg layout for this problem (64 bytes, ptrs only, base s[0:1]):
; @launch kernel=sgc_part_kernel grid=(256,1,1) block=(832,1,1) lds={K1_LDS}
; @launch kernel=sgc_sort_hop1_kernel grid=(256,1,1) block=(1024,1,1) lds=K2LDS
; @launch kernel=sgc_hop2_kernel grid=(256,1,1) block=(K3BLK,1,1) lds=K3LDS
.amdgcn_target "amdgcn-amd-amdhsa--gfx950"
.text"""

def main():
    for a in sys.argv[2:]:
        k, v = a.split("=")
        assert hasattr(opt, k), k
        setattr(opt, k, int(v))
    h = HEADER.replace("K2LDS", str(K2_ACC if opt.smalllds else K2_LDS)).replace("K3LDS", str(K3_ACC if opt.smalllds else K3_LDS)).replace("K3BLK", str(64 * opt.k3w))
    emit(h)
    ks = [gen_k1(), gen_k2(), gen_k3()]
    emit('.section .rodata,"a"')
    emit(".p2align 6")
    for (n, v, s) in ks:
        kernel_desc(n, v, s)
        emit(".p2align 6")
    open(sys.argv[1], "w").write("\n".join(out) + "\n")

main()
```

```python
import sys

N = 50000
E = 850000
CH = 3328
NCH = 256
RECP = CH * 4
RECH = CH * 2
WS_SEG = 0
WS_RECP = 0x40000
WS_RECH = 0x380000
WS_IMG = 0x6C0000
WS_H1 = 0xC00000
WS_SYNC = 0x600000
TBL_BYTES = N * 128
SAFE = 0x0000FFFF

class Opt:
    D = 4
    R = 8
    skew = 0
    pf1 = 0
    pf2b = 4
    pf2c = 0
    pf3 = 2
    pf3c = 0
    stamps = 0
    st1 = 1
    st2 = 1
    st2i = 1
    st3 = 1
    dbg = 0
    rst = 0
    nbar = 6
    pfs = 0
    pfsr = 2
    pfs3 = 0
    ld1 = 3
    ld2 = 0
    ld3 = 0
    skip3 = 0
    k1v = 1
    ldg = 1
    spin = 400000
    slp = 0
    smalllds = 0
    k3w = 16

opt = Opt()
out = []
def emit(s=""): out.append(s)
def I(s): out.append("    " + s)
def L(s): out.append(s + ":")
_uid = [0]
def uid(p):
    _uid[0] += 1
    return f"{p}_{_uid[0]}"

FL = ['', ' sc1', ' sc0 sc1', ' nt', ' sc0']
def srd(s, lo, hi, size, add=0):
    if add:
        I(f"s_add_u32 s{s}, s{lo}, {add}")
        I(f"s_addc_u32 s{s+1}, s{hi}, 0")
        I(f"s_and_b32 s{s+1}, s{s+1}, 0xffff")
    else:
        I(f"s_mov_b32 s{s}, s{lo}")
        I(f"s_and_b32 s{s+1}, s{hi}, 0xffff")
    I(f"s_mov_b32 s{s+2}, {size}")
    I(f"s_mov_b32 s{s+3}, 0x20000")

def wave_scan(v, n=64):
    for sh in (1, 2, 4, 8):
        I("s_nop 1")
        I(f"v_add_u32_dpp v{v}, v{v}, v{v} row_shr:{sh} row_mask:0xf bank_mask:0xf")
    if n > 16:
        I("s_nop 1")
        I(f"v_add_u32_dpp v{v}, v{v}, v{v} row_bcast:15 row_mask:0xa bank_mask:0xf")
        I("s_nop 1")
        I(f"v_add_u32_dpp v{v}, v{v}, v{v} row_bcast:31 row_mask:0xc bank_mask:0xf")

STAMP_OFF = 0x2000000
def stamp_init(kidx, ws_lo, vbase):
    if not opt.stamps: return
    I(f"v_lshrrev_b32 v{vbase}, 6, v0")
    I(f"s_lshl_b32 s92, s2, 4")
    I(f"s_add_u32 s92, s92, {kidx*256*16}")
    I(f"v_add_u32 v{vbase}, s92, v{vbase}")
    I(f"v_lshlrev_b32 v{vbase}, 7, v{vbase}")
    I(f"v_add_u32 v{vbase}, {STAMP_OFF}, v{vbase}")
    I(f"s_mov_b32 s94, s{ws_lo}")
    I(f"s_mov_b32 s95, s{ws_lo+1}")
def stamp(j, vbase, pre=None):
    if not opt.stamps: return
    if pre is None:
        I("s_memrealtime s[90:91]")
        I("s_waitcnt lgkmcnt(0)")
    else:
        I(f"s_mov_b32 s90, s{pre}")
        I(f"s_mov_b32 s91, s{pre+1}")
    I("s_mov_b64 s[88:89], exec")
    I("s_mov_b64 exec, 1")
    I(f"v_mov_b32 v{vbase+2}, s90")
    I(f"v_mov_b32 v{vbase+3}, s91")
    I(f"global_store_dwordx2 v{vbase}, v[{vbase+2}:{vbase+3}], s[94:95] offset:{8*j}")
    I("s_mov_b64 exec, s[88:89]")

def kernel_begin(name):
    emit(f".globl {name}")
    emit(".p2align 8")
    emit(f".type {name},@function")
    L(name)

def kernel_desc(name, vgpr, sgpr):
    acc = (vgpr + 3) // 4 * 4
    emit(f".amdhsa_kernel {name}")
    emit(f"  .amdhsa_next_free_vgpr {vgpr}")
    emit(f"  .amdhsa_next_free_sgpr {sgpr}")
    emit(f"  .amdhsa_accum_offset {acc}")
    emit("  .amdhsa_group_segment_fixed_size 0")
    emit("  .amdhsa_kernarg_size 64")
    emit("  .amdhsa_user_sgpr_count 2")
    emit("  .amdhsa_user_sgpr_kernarg_segment_ptr 1")
    emit("  .amdhsa_system_sgpr_workgroup_id_x 1")
    emit(".end_amdhsa_kernel")

PFU = 8192
def pf_setup(vaddr, n, base_bytes):
    I("s_lshr_b32 s15, s2, 3")
    I(f"s_mul_i32 s15, s15, {n*PFU}")
    if base_bytes: I(f"s_add_u32 s15, s15, {base_bytes}")
    I(f"v_lshlrev_b32 v{vaddr}, 7, v0")
    I(f"v_add_u32 v{vaddr}, s15, v{vaddr}")
def pf_issue(vaddr, vdst, tbl, n, sW, nw=16):
    rounds = (n + nw - 1) // nw
    for i in range(rounds):
        cnt = min(nw, n - nw * i)
        lab = uid("PF")
        if cnt < nw:
            I(f"s_cmp_ge_u32 s{sW}, {cnt}")
            I(f"s_cbranch_scc1 {lab}")
        I(f"s_mov_b32 s15, {i*nw*PFU}")
        I(f"buffer_load_dword v{vdst}, v{vaddr}, s[{tbl}:{tbl+3}], s15 offen")
        L(lab)

def pf_stream(tbl, sW, nunits, base_bytes, per_round, vaddr, nrounds_max):
    I("s_lshr_b32 s15, s2, 3")
    I(f"s_mul_i32 s15, s15, {nunits*PFU}")
    I(f"s_add_u32 s15, s15, {base_bytes}")
    I(f"s_sub_u32 s14, s{sW}, {NWORK}")
    I(f"s_mul_i32 s14, s14, {PFU}")
    I("s_add_u32 s15, s15, s14")
    I(f"v_lshlrev_b32 v{vaddr}, 7, v{V_LANE}")
    I(f"v_add_u32 v{vaddr}, s15, v{vaddr}")
    k = 0
    nsteps = (nunits + 1) // 2
    rnd = 0
    while k < nsteps:
        for _ in range(per_round):
            if k >= nsteps: break
            I(f"s_mov_b32 s15, {k*2*PFU}")
            I(f"buffer_load_dword v{V_PFD}, v{vaddr}, s[{tbl}:{tbl+3}], s15 offen")
            k += 1
        rnd += 1
        if k < nsteps and rnd <= nrounds_max:
            I("s_barrier")

K1_HIST = 0
K1_PRE = 1024
K1_STP = 2048
K1_STH = K1_STP + RECP
K1_LDS = K1_STH + RECH

def gen_k1():
    name = "sgc_part_kernel"
    V = opt.k1v
    NT = 832 // V
    kernel_begin(name)
    I("s_cmp_ge_u32 s2, 256")
    I("s_cbranch_scc1 K1_END")
    if opt.stamps: I("s_memrealtime s[86:87]")
    I("s_load_dwordx4 s[4:7], s[0:1], 8")
    I("s_load_dwordx2 s[8:9], s[0:1], 24")
    I("s_load_dwordx2 s[10:11], s[0:1], 56")
    I(f"s_mul_i32 s3, s2, {CH}")
    I("v_lshl_add_u32 v1, v0, 2, s3")
    I("v_lshlrev_b32 v2, 2, v1")
    I("v_lshlrev_b32 v3, 1, v1")
    I("v_mov_b32 v4, 0")
    I("v_lshlrev_b32 v5, 2, v0")
    I("v_cmp_gt_u32 vcc, 0x100, v0")
    I("s_and_saveexec_b64 s[12:13], vcc")
    I(f"ds_write_b32 v5, v4 offset:{K1_HIST}")
    I("s_mov_b64 exec, s[12:13]")
    I("v_readfirstlane_b32 s15, v0")
    I("s_waitcnt lgkmcnt(0)")
    stamp_init(0, 10, 124); stamp(0, 124, 86)
    srd(16, 6, 7, E * 4)
    D = lambda g, i: 8 + 16 * g + i
    S = lambda g, i: 12 + 16 * g + i
    NR = lambda g, i: 16 + 16 * g + i
    HA = lambda g, i: 40 + 4 * g + i
    RK = lambda g, i: 48 + 4 * g + i
    PL = lambda g, i: 56 + 4 * g + i
    HI = lambda g, i: 64 + 4 * g + i
    for g in range(V):
        I(f"s_mov_b32 s{40+g}, {g*NT*16}")
        I(f"buffer_load_dwordx4 v[{D(g,0)}:{D(g,3)}], v2, s[16:19], s{40+g} offen" + FL[opt.ld1])
    srd(20, 4, 5, E * 4)
    srd(24, 8, 9, E * 2)
    for g in range(V):
        I(f"s_mov_b32 s{42+g}, {g*NT*8}")
        I(f"buffer_load_dwordx4 v[{S(g,0)}:{S(g,3)}], v2, s[20:23], s{40+g} offen" + FL[opt.ld1])
        I(f"buffer_load_dwordx2 v[{NR(g,0)}:{NR(g,1)}], v3, s[24:27], s{42+g} offen" + FL[opt.ld1])
    I("s_lshr_b32 s46, s15, 6")
    I("s_or_b32 s14, s2, s46")
    I("s_cmp_lg_u32 s14, 0")
    I("s_cbranch_scc1 K1_NOZ")
    I("v_cmp_gt_u32 vcc, 32, v0")
    I("s_and_saveexec_b64 s[12:13], vcc")
    I("v_lshlrev_b32 v7, 7, v0")
    I(f"v_add_u32 v7, {WS_SYNC}, v7")
    I("global_store_dword v7, v4, s[10:11] sc1")
    I("s_mov_b64 exec, s[12:13]")
    I("s_waitcnt vmcnt(0)")
    L("K1_NOZ")
    npf = 0
    if opt.pf1:
        I("s_load_dwordx2 s[48:49], s[0:1], 0")
        I("s_lshr_b32 s15, s2, 3")
        I(f"s_mul_i32 s15, s15, {opt.pf1*PFU}")
        I(f"s_cmp_lt_u32 s46, {opt.pf1}")
        I("s_cselect_b32 s15, s15, 0x40000000")
        I("v_lshlrev_b32 v90, 7, v0")
        I("v_add_u32 v90, s15, v90")
        I("s_waitcnt lgkmcnt(0)")
        srd(64, 48, 49, TBL_BYTES)
        I("buffer_load_dword v91, v90, s[64:67], 0 offen")
        npf = 1
    srd(28, 10, 11, NCH * 1024, WS_SEG)
    srd(32, 10, 11, NCH * RECP, WS_RECP)
    srd(52, 10, 11, NCH * RECH, WS_RECH)
    I("s_mov_b32 s36, 0xffff0000")
    I("s_mov_b32 s37, 21474")
    I("s_mov_b64 s[12:13], exec")
    I(f"v_cmp_gt_u32 s[56:57], {NT if NT <= 64 else 's14'}, v0") if False else None
    I(f"s_mov_b32 s14, {NT}")
    I("v_cmp_gt_u32 s[56:57], s14, v0")
    for g in range(V):
        I(f"s_mov_b32 s14, {E - g*NT*4}")
        I(f"v_cmp_gt_u32 s[{58+2*g}:{59+2*g}], s14, v1")
        I(f"s_and_b64 s[{58+2*g}:{59+2*g}], s[{58+2*g}:{59+2*g}], s[56:57]")
    I("v_mov_b32 v6, 1")
    I("s_barrier")
    for g in range(V):
        I(f"s_waitcnt vmcnt({(V - 1 - g) + 2*V + npf})")
        if g == 0: stamp(1, 124)
        I(f"s_mov_b64 exec, s[{58+2*g}:{59+2*g}]")
        for i in range(4):
            I(f"v_and_b32 v{HA(g,i)}, 0xff, v{D(g,i)}")
            I(f"v_lshlrev_b32 v{HA(g,i)}, 2, v{HA(g,i)}")
        for i in range(4):
            I(f"ds_add_rtn_u32 v{RK(g,i)}, v{HA(g,i)}, v6 offset:{K1_HIST}")
    I("s_mov_b64 exec, s[12:13]")
    for g in range(V):
        I(f"s_waitcnt vmcnt({2*(V-1-g) + npf})")
        I(f"v_lshl_or_b32 v{PL(g,0)}, v{NR(g,0)}, 16, v{S(g,0)}")
        I(f"v_and_or_b32 v{PL(g,1)}, v{NR(g,0)}, s36, v{S(g,1)}")
        I(f"v_lshl_or_b32 v{PL(g,2)}, v{NR(g,1)}, 16, v{S(g,2)}")
        I(f"v_and_or_b32 v{PL(g,3)}, v{NR(g,1)}, s36, v{S(g,3)}")
        for i in range(4):
            I(f"v_mul_u32_u24 v7, s37, v{S(g,i)}")
            I("v_lshrrev_b32 v7, 26, v7")
            I("v_and_b32 v7, 12, v7")
            I(f"v_lshrrev_b32 v{HI(g,i)}, 8, v{D(g,i)}")
            I(f"v_lshl_or_b32 v{HI(g,i)}, v{HI(g,i)}, 4, v7")
    I("s_waitcnt lgkmcnt(0)")
    I("s_barrier")
    I("s_cmp_lg_u32 s46, 0")
    I("s_cbranch_scc1 K1_NOSCAN")
    I("v_lshlrev_b32 v5, 4, v0")
    I(f"ds_read_b128 v[72:75], v5 offset:{K1_HIST}")
    I("s_waitcnt lgkmcnt(0)")
    I("v_add_u32 v76, v72, v73")
    I("v_add_u32 v77, v76, v74")
    I("v_add_u32 v78, v77, v75")
    I("v_mov_b32 v79, v78")
    wave_scan(79)
    I("v_sub_u32 v80, v79, v78")
    I("v_add_u32 v81, v80, v72")
    I("v_add_u32 v82, v80, v76")
    I("v_add_u32 v83, v80, v77")
    I(f"ds_write_b128 v5, v[80:83] offset:{K1_PRE}")
    I("v_lshl_or_b32 v72, v81, 16, v80")
    I("v_lshl_or_b32 v73, v82, 16, v81")
    I("v_lshl_or_b32 v74, v83, 16, v82")
    I("v_lshl_or_b32 v75, v79, 16, v83")
    I("s_lshl_b32 s37, s2, 10")
    I("buffer_store_dwordx4 v[72:75], v5, s[28:31], s37 offen" + FL[opt.st1])
    I("s_waitcnt lgkmcnt(0)")
    L("K1_NOSCAN")
    I("s_barrier")
    for g in range(V):
        I(f"s_mov_b64 exec, s[{58+2*g}:{59+2*g}]")
        for i in range(4):
            I(f"ds_read_b32 v{HA(g,i)}, v{HA(g,i)} offset:{K1_PRE}")
    for g in range(V):
        I(f"s_mov_b64 exec, s[{58+2*g}:{59+2*g}]")
        I(f"s_waitcnt lgkmcnt({4*(V-1-g) if g < V-1 else 0})" if False else "s_waitcnt lgkmcnt(0)")
        for i in range(4):
            I(f"v_add_u32 v{HA(g,i)}, v{HA(g,i)}, v{RK(g,i)}")
            I(f"v_lshlrev_b32 v{RK(g,i)}, 2, v{HA(g,i)}")
            I(f"v_lshlrev_b32 v{HA(g,i)}, 1, v{HA(g,i)}")
            I(f"ds_write_b32 v{RK(g,i)}, v{PL(g,i)} offset:{K1_STP}")
            I(f"ds_write_b16 v{HA(g,i)}, v{HI(g,i)} offset:{K1_STH}")
    I("s_mov_b64 exec, s[12:13]")
    I("s_waitcnt lgkmcnt(0)")
    I("s_barrier")
    I("v_lshlrev_b32 v5, 4, v0")
    I(f"s_mul_i32 s37, s2, {RECP}")
    I(f"s_mul_i32 s42, s2, {RECH}")
    I("s_mov_b64 exec, s[56:57]")
    for g in range(V):
        I(f"ds_read_b128 v[{8+4*g}:{11+4*g}], v5 offset:{K1_STP + g*NT*16}")
    if V == 2:
        I(f"ds_read_b128 v[16:19], v5 offset:{K1_STH}")
    else:
        I(f"s_mov_b32 s14, {RECH//16}")
        I("v_cmp_gt_u32 vcc, s14, v0")
        I("s_mov_b64 exec, vcc")
        I(f"ds_read_b128 v[16:19], v5 offset:{K1_STH}")
        I("s_mov_b64 exec, s[56:57]")
    I("s_cbranch_execz K1_FIN")
    for g in range(V):
        I(f"s_waitcnt lgkmcnt({V - g})")
        if g: I(f"s_add_u32 s37, s37, {NT*16}")
        I(f"buffer_store_dwordx4 v[{8+4*g}:{11+4*g}], v5, s[32:35], s37 offen" + FL[opt.st1])
    I("s_waitcnt lgkmcnt(0)")
    if V == 1:
        I("s_mov_b64 exec, vcc")
        I("s_cbranch_execz K1_FIN")
    I("buffer_store_dwordx4 v[16:19], v5, s[52:55], s42 offen" + FL[opt.st1])
    L("K1_FIN")
    I("s_mov_b64 exec, s[12:13]")
    stamp(2, 124)
    if opt.stamps:
        I("s_waitcnt vmcnt(0)")
        stamp(3, 124)
    L("K1_END")
    I("s_endpgm")
    return name, (128 if opt.stamps else 96), (102 if opt.stamps else 72)

L_SU = 0x000
L_WB = 0x040
L_ORD = 0x120
L_HEAVY = 0x1F0
L_LIST = 0x200
IMG_BYTES = 0x4000
LIST_CAP = IMG_BYTES - L_LIST
L_CNT = 0x4000
L_H2 = 0x5000
L_WM = 0x5200
K2_ZERO_END = 0x5400
L_NBQ = 0x5400
L_WL = 0x6400
L_SCR = 0x8400
K2_ACC = 0xF400
ACC_BYTES = 208 * 256
K2_LDS = K2_ACC + ACC_BYTES
NWORK = 14

V_LANE = 1
V_G4 = 2
V_F16 = 3
V_SELA = 4
V_SELB = 5
V_PTRC = 6
V_PTRI = 7
V_NA = 8
V_NB = 9
V_A0 = 10
V_A1 = 11
V_ACC = 12
V_ACC2 = 20
V_T = 28
V_RC = 32
V_RI = 36
V_DATA = 40
S_T, S_R, S_PACE, S_DR, S_REM = 78, 79, 80, 81, 82
S_NB = 76
S_RET = 84
S_128 = 44
V_PFD = 125

def hop_consts():
    I(f"v_lshrrev_b32 v{V_G4}, 3, v{V_LANE}")
    I(f"v_lshlrev_b32 v{V_G4}, 2, v{V_G4}")
    I(f"v_and_b32 v{V_F16}, 7, v{V_LANE}")
    I(f"v_lshlrev_b32 v{V_F16}, 4, v{V_F16}")
    I(f"v_and_b32 v{V_PTRC}, 3, v{V_LANE}")
    I(f"v_mov_b32 v{V_SELA}, 0x0c0c0c0c")
    I(f"v_mov_b32 v{V_SELB}, 0x0c0c0c0c")
    I(f"v_mov_b32 v{V_A0}, 0x0c0c0302")
    I(f"v_mov_b32 v{V_A1}, 0x03020c0c")
    for val, sel, lit in ((0, V_SELA, V_A0), (1, V_SELA, V_A1), (2, V_SELB, V_A0), (3, V_SELB, V_A1)):
        I(f"v_cmp_eq_u32 vcc, {val}, v{V_PTRC}")
        I("s_nop 1")
        I(f"v_cndmask_b32 v{sel}, v{sel}, v{lit}, vcc")
    I(f"s_mov_b32 s{S_128}, 128")
    for i in range(8):
        I(f"v_mov_b32 v{V_ACC+i}, 0")
        I(f"v_mov_b32 v{V_ACC2+i}, 0")

def rd2(dst, ptr, unit):
    o = unit * 16
    assert o + 8 <= 255
    I(f"ds_read2_b32 v[{dst}:{dst+1}], v{ptr} offset0:{o} offset1:{o+8}")

def perms(p):
    rc = V_RC + 2 * p
    I(f"v_perm_b32 v{V_T+0}, v{rc}, v{rc}, v{V_SELA}")
    I(f"v_perm_b32 v{V_T+1}, v{rc}, v{rc}, v{V_SELB}")
    I(f"v_perm_b32 v{V_T+2}, v{rc+1}, v{rc+1}, v{V_SELA}")
    I(f"v_perm_b32 v{V_T+3}, v{rc+1}, v{rc+1}, v{V_SELB}")

def mfmas(r):
    d = V_DATA + 8 * r
    a, b = V_ACC, V_ACC2
    I(f"v_mfma_f32_4x4x4_16b_bf16 v[{a}:{a+3}], v[{V_T}:{V_T+1}], v[{d}:{d+1}], v[{a}:{a+3}]")
    I(f"v_mfma_f32_4x4x4_16b_bf16 v[{a+4}:{a+7}], v[{V_T}:{V_T+1}], v[{d+2}:{d+3}], v[{a+4}:{a+7}]")
    I(f"v_mfma_f32_4x4x4_16b_bf16 v[{b}:{b+3}], v[{V_T+2}:{V_T+3}], v[{d+4}:{d+5}], v[{b}:{b+3}]")
    I(f"v_mfma_f32_4x4x4_16b_bf16 v[{b+4}:{b+7}], v[{V_T+2}:{V_T+3}], v[{d+6}:{d+7}], v[{b+4}:{b+7}]")

def pace_check(pfx):
    if opt.R <= 1: return
    lab = uid(pfx + "_PC")
    I(f"s_add_u32 s{S_PACE}, s{S_PACE}, s{S_R}")
    I(f"s_cmp_lt_u32 s{S_PACE}, s{S_T}")
    I(f"s_cbranch_scc1 {lab}")
    I(f"s_call_b64 s[{S_RET}:{S_RET+1}], {pfx}_BS")
    L(lab)

def hop_subs(pfx):
    if opt.R <= 1: return
    L(f"{pfx}_BF")
    I(f"s_cmp_eq_u32 s{S_NB}, 0")
    I(f"s_cbranch_scc1 {pfx}_BR")
    I(f"s_sub_u32 s{S_NB}, s{S_NB}, 1")
    I("s_barrier")
    I(f"s_branch {pfx}_BF")
    L(f"{pfx}_BS")
    I(f"s_cmp_eq_u32 s{S_NB}, 0")
    I(f"s_cbranch_scc1 {pfx}_BR")
    I(f"s_sub_u32 s{S_NB}, s{S_NB}, 1")
    I("s_barrier")
    if opt.rst:
        I("s_memrealtime s[98:99]")
        I("s_waitcnt lgkmcnt(0)")
        for k in range(7, 0, -1): I(f"s_mov_b32 s{60+k}, s{59+k}")
        I("s_mov_b32 s60, s98")
    I(f"s_sub_u32 s{S_PACE}, s{S_PACE}, s{S_T}")
    I(f"s_cmp_ge_u32 s{S_PACE}, s{S_T}")
    I(f"s_cbranch_scc1 {pfx}_BS")
    L(f"{pfx}_BR")
    I(f"s_setpc_b64 s[{S_RET}:{S_RET+1}]")

def hop_wave(pfx, tbl, sW):
    D = opt.D
    I(f"s_min_u32 s{S_T}, s{S_T}, 0x100")
    I(f"s_mov_b32 s{S_DR}, s{S_T}")
    I(f"s_mov_b32 s{S_PACE}, 0")
    I(f"s_mov_b32 s{S_R}, {opt.R}")
    I(f"s_mov_b32 s{S_NB}, {min(opt.nbar, opt.R - 1)}")
    if opt.skew:
        I(f"s_cmp_lt_u32 s{sW}, 8")
        I(f"s_cselect_b32 s{S_R}, {opt.R - opt.skew}, s{S_R}")
        I(f"s_cmp_lt_u32 s{sW}, 4")
        I(f"s_cselect_b32 s{S_R}, {opt.R - 2*opt.skew}, s{S_R}")
    I(f"s_cmp_eq_u32 s{S_T}, 0")
    I(f"s_cbranch_scc1 {pfx}_FIN")
    for r in range(D):
        rd2(V_DATA + 8 * r, V_PTRC, r)
    rd2(V_RC, V_PTRC, 0)
    I(f"v_add_u32 v{V_PTRI}, {D*64}, v{V_PTRC}")
    I("s_waitcnt lgkmcnt(0)")
    rd2(V_RI, V_PTRI, 0)
    for r in range(D):
        d = V_DATA + 8 * r
        if r > 0:
            I(f"s_cmp_le_u32 s{S_T}, {r}")
            I(f"s_cbranch_scc1 {pfx}_DR0")
            pace_check(pfx)
        I(f"v_mad_u32_u16 v{V_A0}, v{d}, s{S_128}, v{V_F16}")
        I(f"v_mad_u32_u16 v{V_A1}, v{d+1}, s{S_128}, v{V_F16}")
        I(f"buffer_load_dwordx4 v[{d}:{d+3}], v{V_A0}, s[{tbl}:{tbl+3}], 0 offen" + FL[opt.ldg])
        I(f"buffer_load_dwordx4 v[{d+4}:{d+7}], v{V_A1}, s[{tbl}:{tbl+3}], 0 offen" + FL[opt.ldg])
    I(f"s_sub_u32 s{S_REM}, s{S_T}, {D}")
    I(f"s_mov_b32 s{S_DR}, {D}")
    I(f"s_cmp_eq_u32 s{S_REM}, 0")
    I(f"s_cbranch_scc1 {pfx}_DR0")
    L(f"{pfx}_MAIN")
    for r in range(D):
        p = r & 1
        d = V_DATA + 8 * r
        I("s_waitcnt lgkmcnt(0)")
        rd2(V_RC + 2 * (p ^ 1), V_PTRC, r + 1)
        rd2(V_RI + 2 * (p ^ 1), V_PTRI, r + 1)
        perms(p)
        ri = V_RI + 2 * p
        I(f"v_mad_u32_u16 v{V_A0}, v{ri}, s{S_128}, v{V_F16}")
        I(f"v_mad_u32_u16 v{V_A1}, v{ri+1}, s{S_128}, v{V_F16}")
        I(f"s_waitcnt vmcnt({2*(D-1)})")
        mfmas(r)
        pace_check(pfx)
        I(f"buffer_load_dwordx4 v[{d}:{d+3}], v{V_A0}, s[{tbl}:{tbl+3}], 0 offen" + FL[opt.ldg])
        I(f"buffer_load_dwordx4 v[{d+4}:{d+7}], v{V_A1}, s[{tbl}:{tbl+3}], 0 offen" + FL[opt.ldg])
        if r == D - 1:
            I(f"v_add_u32 v{V_PTRC}, {D*64}, v{V_PTRC}")
            I(f"v_add_u32 v{V_PTRI}, {D*64}, v{V_PTRI}")
        I(f"s_sub_u32 s{S_REM}, s{S_REM}, 1")
        I(f"s_cmp_eq_u32 s{S_REM}, 0")
        if r == D - 1:
            I(f"s_cbranch_scc0 {pfx}_MAIN")
        else:
            I(f"s_cbranch_scc1 {pfx}_DR{r+1}")
    for q in range(2 * D - 1):
        r = q % D
        p = q & 1
        if q < D:
            L(f"{pfx}_DR{q}")
            if opt.R > 1:
                lab = uid(pfx + "_DX")
                I(f"s_cmp_eq_u32 s{S_NB}, 0")
                I(f"s_cbranch_scc1 {lab}")
                I(f"s_call_b64 s[{S_RET}:{S_RET+1}], {pfx}_BF")
                L(lab)
        I("s_waitcnt lgkmcnt(0)")
        if q + 1 <= 2 * D - 2:
            rd2(V_RC + 2 * (p ^ 1), V_PTRC, q + 1)
        perms(p)
        I("s_waitcnt vmcnt(0)")
        I(f"s_sub_u32 s{S_DR}, s{S_DR}, 1")
        mfmas(r)
        if q < 2 * D - 2:
            I(f"s_cmp_eq_u32 s{S_DR}, 0")
            I(f"s_cbranch_scc1 {pfx}_FIN")
    L(f"{pfx}_FIN")
    if opt.R > 1:
        lab = uid(pfx + "_DY")
        I(f"s_cmp_eq_u32 s{S_NB}, 0")
        I(f"s_cbranch_scc1 {lab}")
        I(f"s_call_b64 s[{S_RET}:{S_RET+1}], {pfx}_BF")
        L(lab)
    if opt.rst and opt.stamps:
        for k in range(7):
            I(f"s_mov_b32 s86, s{66-k}")
            I(f"s_mov_b32 s87, s99")
            stamp(9 + k, 124, 86)
    I("s_nop 4")

def node_pos(sW, heavy):
    I(f"v_lshrrev_b32 v{V_NB}, 2, v{V_G4}")
    I(f"s_lshl_b32 s45, s{sW}, 4")
    if not heavy:
        I(f"s_lshl_b32 s46, s{sW}, 3")
        I(f"s_add_u32 s46, s46, 96")
        I(f"s_cmp_lt_u32 s{sW}, 12")
        I(f"s_cselect_b32 s45, s45, s46")
    I(f"v_add_u32 v{V_NA}, s45, v{V_NB}")
    I(f"v_add_u32 v{V_NB}, 8, v{V_NA}")

def hop_header(sW, vflag):
    I(f"s_lshl_b32 s45, s{sW}, 2")
    I(f"v_mov_b32 v{V_A0}, s45")
    I(f"v_mov_b32 v{vflag}, {L_HEAVY}")
    I(f"ds_read_b32 v{vflag}, v{vflag}")
    I(f"ds_read_b32 v{V_A1}, v{V_A0} offset:{L_SU}")
    I(f"ds_read_b32 v{V_PTRC}, v{V_A0} offset:{L_WB}")
    node_pos(sW, False)
    I(f"ds_read_u8 v{V_NA}, v{V_NA} offset:{L_ORD}")
    I(f"ds_read_u8 v{V_NB}, v{V_NB} offset:{L_ORD}")
    I("s_waitcnt lgkmcnt(0)")
    I(f"v_readfirstlane_b32 s77, v{vflag}")
    I(f"v_readfirstlane_b32 s{S_T}, v{V_A1}")
    I(f"v_add_u32 v{V_PTRC}, v{V_PTRC}, v{V_G4}")
    lab = uid("HH")
    I(f"s_cmp_lt_u32 s{sW}, 12")
    I(f"s_cbranch_scc1 {lab}")
    I(f"v_mov_b32 v{V_NB}, 0xff")
    L(lab)

def split_fix(pfx, sW):
    lab = uid(pfx + "_SF")
    I(f"s_cmp_lt_u32 s{sW}, 12")
    I(f"s_cbranch_scc1 {lab}")
    for i in range(8):
        I(f"v_add_f32 v{V_ACC+i}, v{V_ACC+i}, v{V_ACC2+i}")
    L(lab)

def heavy_path(pfx, tbl, seg_lo_hi, rec_srd, rech_srd, sB, sW, acc_base, nwaves):
    I("v_mov_b32 v40, 0")
    I("v_mov_b32 v41, 0")
    I("v_mov_b32 v42, 0")
    I("v_mov_b32 v43, 0")
    I("v_lshlrev_b32 v44, 4, v0")
    I(f"v_add_u32 v44, {acc_base}, v44")
    n16 = ACC_BYTES // 16
    for i in range(3):
        I(f"ds_write_b128 v44, v[40:43] offset:{i*16384}")
    I(f"v_cmp_gt_u32 vcc, {n16 - 3072}, v0")
    I("s_and_saveexec_b64 s[60:61], vcc")
    I(f"ds_write_b128 v44, v[40:43] offset:{3*16384}")
    I("s_mov_b64 exec, s[60:61]")
    I("s_waitcnt lgkmcnt(0)")
    I("s_barrier")
    I(f"s_mov_b32 s62, s{sW}")
    I(f"v_lshrrev_b32 v45, 3, v{V_LANE}")
    I(f"s_lshl_b32 s63, s{sB}, 2")
    L(f"{pfx}_HC")
    I("s_lshl_b32 s64, s62, 10")
    I("s_add_u32 s64, s64, s63")
    I(f"s_add_u32 s66, s{seg_lo_hi}, s64")
    I(f"s_addc_u32 s67, s{seg_lo_hi+1}, 0")
    I("s_load_dword s68, s[66:67], 0")
    I(f"s_mul_i32 s69, s62, {RECP}")
    I(f"s_mul_i32 s65, s62, {RECH}")
    I("s_waitcnt lgkmcnt(0)")
    I("s_and_b32 s70, s68, 0xffff")
    I("s_lshr_b32 s71, s68, 16")
    L(f"{pfx}_HI")
    I("s_cmp_ge_u32 s70, s71")
    I(f"s_cbranch_scc1 {pfx}_HN")
    I("v_add_u32 v46, s70, v45")
    I("v_cmp_gt_u32 vcc, s71, v46")
    I("s_and_saveexec_b64 s[60:61], vcc")
    I("v_lshlrev_b32 v47, 2, v46")
    I(f"buffer_load_dword v48, v47, s[{rec_srd}:{rec_srd+3}], s69 offen")
    I("v_lshlrev_b32 v47, 1, v46")
    I(f"buffer_load_ushort v49, v47, s[{rech_srd}:{rech_srd+3}], s65 offen")
    I("s_waitcnt vmcnt(0)")
    I("v_and_b32 v50, 0xffff, v48")
    I("v_lshlrev_b32 v50, 7, v50")
    I(f"v_add_u32 v50, v50, v{V_F16}")
    I(f"buffer_load_dwordx4 v[52:55], v50, s[{tbl}:{tbl+3}], 0 offen" + FL[opt.ldg])
    I("v_and_b32 v51, 0xffff0000, v48")
    I("v_lshrrev_b32 v56, 4, v49")
    I("v_lshlrev_b32 v56, 8, v56")
    I(f"v_lshlrev_b32 v57, 1, v{V_F16}")
    I("v_add_u32 v56, v56, v57")
    I(f"v_add_u32 v56, {acc_base}, v56")
    I("s_waitcnt vmcnt(0)")
    for i in range(4):
        I(f"v_lshlrev_b32 v58, 16, v{52+i}")
        I(f"v_and_b32 v59, 0xffff0000, v{52+i}")
        I("v_mul_f32 v58, v58, v51")
        I("v_mul_f32 v59, v59, v51")
        I(f"ds_add_f32 v56, v58 offset:{8*i}")
        I(f"ds_add_f32 v56, v59 offset:{8*i + 4}")
    I("s_mov_b64 exec, s[60:61]")
    I("s_add_u32 s70, s70, 8")
    I(f"s_branch {pfx}_HI")
    L(f"{pfx}_HN")
    I(f"s_add_u32 s62, s62, {nwaves}")
    I("s_cmp_lt_u32 s62, 256")
    I(f"s_cbranch_scc1 {pfx}_HC")
    I("s_waitcnt lgkmcnt(0)")
    I("s_barrier")

def heavy_read_acc(acc_base, sW):
    node_pos(sW, True)
    for vn, va in ((V_NA, V_ACC), (V_NB, V_ACC2)):
        I(f"v_lshlrev_b32 v{V_A0}, 8, v{vn}")
        I(f"v_lshlrev_b32 v{V_A1}, 1, v{V_F16}")
        I(f"v_add_u32 v{V_A0}, v{V_A0}, v{V_A1}")
        I(f"v_add_u32 v{V_A0}, {acc_base}, v{V_A0}")
        I(f"ds_read_b128 v[{va}:{va+3}], v{V_A0}")
        I(f"ds_read_b128 v[{va+4}:{va+7}], v{V_A0} offset:16")
    I("s_waitcnt lgkmcnt(0)")

def gen_k2():
    name = "sgc_prop_kernel"
    kernel_begin(name)
    I("s_cmp_ge_u32 s2, 256")
    I("s_cbranch_scc1 K2_END")
    if opt.stamps: I("s_memrealtime s[86:87]")
    I("s_load_dwordx2 s[6:7], s[0:1], 56")
    I("s_load_dwordx2 s[4:5], s[0:1], 0")
    I("s_load_dwordx4 s[32:35], s[0:1], 32")
    I("s_and_b32 s8, s2, 7")
    I("s_lshl_b32 s8, s8, 5")
    I("s_lshr_b32 s9, s2, 3")
    I("s_add_u32 s8, s8, s9")
    I("v_readfirstlane_b32 s10, v0")
    I(f"v_and_b32 v{V_LANE}, 63, v0")
    I(f"v_lshrrev_b32 v52, 4, v{V_LANE}")
    I("s_lshr_b32 s10, s10, 6")
    I("s_lshl_b32 s11, s10, 2")
    I("v_add_u32 v52, s11, v52")
    I("s_lshl_b32 s11, s8, 2")
    I("v_lshl_add_u32 v53, v52, 10, s11")
    for r in range(4):
        I(f"s_mov_b32 s{36+r}, {r*65536}")
    I("s_waitcnt lgkmcnt(0)")
    stamp_init(1, 6, 124); stamp(0, 124, 86)
    srd(16, 6, 7, NCH * 1024, WS_SEG)
    SG = lambda r: 56 + r
    for r in range(4):
        I(f"buffer_load_dword v{SG(r)}, v53, s[16:19], s{36+r} offen")
    I("v_lshlrev_b32 v40, 4, v0")
    I(f"v_mov_b32 v41, {SAFE}")
    I("v_cmp_gt_u32 vcc, 32, v0")
    I("v_mov_b32 v48, 0")
    I("v_mov_b32 v49, 0")
    I("v_cndmask_b32_e64 v44, v41, 0, vcc")
    I("v_mov_b32 v45, v44")
    I("v_mov_b32 v46, v44")
    I("v_mov_b32 v47, v44")
    I("ds_write_b128 v40, v[44:47]")
    I("v_mov_b32 v50, 0")
    I("v_mov_b32 v51, 0")
    I(f"v_cmp_gt_u32 vcc, {(K2_ZERO_END-L_CNT)//16}, v0")
    I("s_and_saveexec_b64 s[12:13], vcc")
    I(f"ds_write_b128 v40, v[48:51] offset:{L_CNT}")
    I("s_mov_b64 exec, s[12:13]")
    I(f"s_mov_b32 s14, {RECH}")
    I("v_mul_u32_u24 v54, s14, v52")
    I(f"v_and_b32 v55, 15, v{V_LANE}")
    srd(20, 6, 7, NCH * RECP, WS_RECP)
    srd(96, 6, 7, NCH * RECH, WS_RECH)
    srd(24, 4, 5, TBL_BYTES)
    srd(28, 6, 7, TBL_BYTES, WS_H1)
    for r in range(4):
        I(f"s_mov_b32 s{40+r}, {r*64*RECP}")
    nb, nc = opt.pf2b, opt.pf2c
    if nb: pf_setup(48, nb, opt.pf1 * 32 * PFU)
    if nc: pf_setup(7, nc, (opt.pf1 + nb) * 32 * PFU)
    hop_consts()
    SM = lambda t, r: 46 + (t * 4 + r) * 2
    VOFF = lambda r: 60 + r
    VR = lambda t, r: 64 + (t * 4 + r) * 2
    VK = lambda t, r: 88 + t * 4 + r
    VP = lambda t, r: 100 + (t * 4 + r) * 2
    ONE = 40
    VOFP = lambda r: 44 + r
    for r in range(4):
        I(f"s_mov_b32 s{36+r}, {r*64*RECH}")
    I("s_waitcnt vmcnt(0)")
    stamp(1, 124)
    I("s_mov_b64 s[70:71], 0")
    I("s_mov_b64 s[72:73], exec")
    for r in range(4):
        I(f"s_mov_b32 s{36+r}, {r*64*RECH}")
    IX = lambda r: 100 + r
    EN = lambda r: 104 + r
    for r in range(4):
        I(f"v_and_b32 v{IX(r)}, 0xffff, v{SG(r)}")
        I(f"v_lshrrev_b32 v{EN(r)}, 16, v{SG(r)}")
        I(f"v_add_u32 v{IX(r)}, v{IX(r)}, v55")
        I(f"v_lshl_add_u32 v{VOFF(r)}, v{IX(r)}, 1, v54")
        I(f"v_cmp_lt_u32 s[{SM(0,r)}:{SM(0,r)+1}], v{IX(r)}, v{EN(r)}")
        I(f"v_lshlrev_b32 v{VOFP(r)}, 1, v{VOFF(r)}")
        I(f"s_mov_b64 exec, s[{SM(0,r)}:{SM(0,r)+1}]")
        lab = uid("K2_SK")
        I(f"s_cbranch_execz {lab}")
        I(f"buffer_load_ushort v{VR(0,r)+1}, v{VOFF(r)}, s[96:99], s{36+r} offen" + FL[opt.ld2])
        I(f"buffer_load_dword v{VR(0,r)}, v{VOFP(r)}, s[20:23], s{40+r} offen" + FL[opt.ld2])
        L(lab)
        I("s_mov_b64 exec, s[72:73]")
    for r in range(4):
        I(f"v_add_u32 v41, 16, v{IX(r)}")
        I(f"v_cmp_lt_u32 s[{SM(1,r)}:{SM(1,r)+1}], v41, v{EN(r)}")
        I(f"v_add_u32 v42, 32, v{IX(r)}")
        I(f"v_cmp_lt_u32 s[{SM(2,r)}:{SM(2,r)+1}], v42, v{EN(r)}")
        I(f"v_add_u32 v43, 48, v{IX(r)}")
        I(f"v_cmp_lt_u32 vcc, v43, v{EN(r)}")
        I("s_or_b64 s[70:71], s[70:71], vcc")
    for r in range(4):
        lab = uid("K2_SK")
        I(f"s_mov_b64 exec, s[{SM(1,r)}:{SM(1,r)+1}]")
        I(f"s_cbranch_execz {lab}")
        I(f"buffer_load_ushort v{VR(1,r)+1}, v{VOFF(r)}, s[96:99], s{36+r} offen offset:32" + FL[opt.ld2])
        I(f"buffer_load_dword v{VR(1,r)}, v{VOFP(r)}, s[20:23], s{40+r} offen offset:64" + FL[opt.ld2])
        L(lab)
    I(f"s_or_b64 s[74:75], s[{SM(2,0)}:{SM(2,0)+1}], s[{SM(2,1)}:{SM(2,1)+1}]")
    I(f"s_or_b64 s[74:75], s[74:75], s[{SM(2,2)}:{SM(2,2)+1}]")
    I(f"s_or_b64 s[74:75], s[74:75], s[{SM(2,3)}:{SM(2,3)+1}]")
    I("s_cselect_b32 s83, 1, 0")
    I("s_cbranch_scc0 K2_NT3A")
    for r in range(4):
        lab = uid("K2_SK")
        I(f"s_mov_b64 exec, s[{SM(2,r)}:{SM(2,r)+1}]")
        I(f"s_cbranch_execz {lab}")
        I(f"buffer_load_ushort v{VR(2,r)+1}, v{VOFF(r)}, s[96:99], s{36+r} offen offset:64" + FL[opt.ld2])
        I(f"buffer_load_dword v{VR(2,r)}, v{VOFP(r)}, s[20:23], s{40+r} offen offset:128" + FL[opt.ld2])
        L(lab)
    L("K2_NT3A")
    I("s_mov_b64 exec, s[72:73]")
    I(f"v_mov_b32 v{ONE}, 1")
    I(f"v_mov_b32 v11, 32")
    I("s_waitcnt lgkmcnt(0)")
    I("s_barrier")
    I("s_waitcnt vmcnt(0)")
    pf_issue(48, V_PFD, 24, nb, 10)
    stamp(2, 124)
    for t in range(3):
        if t == 2:
            I("s_cmp_eq_u32 s83, 0")
            I("s_cbranch_scc1 K2_NT3B")
        for r in range(4):
            lab = uid("K2_SC")
            I(f"s_mov_b64 exec, s[{SM(t,r)}:{SM(t,r)+1}]")
            I(f"s_cbranch_execz {lab}")
            I(f"ds_add_rtn_u32 v{VK(t,r)}, v{VR(t,r)+1}, v11 offset:{L_CNT}")
            L(lab)
    L("K2_NT3B")
    I("s_mov_b64 exec, s[72:73]")
    I("s_cmp_eq_u64 s[70:71], 0")
    I("s_cbranch_scc1 K2_NOH")
    I(f"v_mov_b32 v41, {L_HEAVY}")
    I(f"ds_write_b32 v41, v{ONE}")
    L("K2_NOH")
    I("s_waitcnt lgkmcnt(0)")
    I("s_barrier")
    stamp(3, 124)
    I("s_cmp_lg_u32 s10, 0")
    I("s_cbranch_scc1 K2_NOSORT")
    C = lambda i, q: 100 + 4 * i + q
    KY = lambda i: 44 + i
    R2 = lambda i: 48 + i
    SL = lambda i: 52 + i
    TT = lambda i: 56 + i
    ST = lambda i: 60 + i
    A, B, Cc, Dd = 116, 117, 118, 119
    I(f"v_lshlrev_b32 v{A}, 4, v{V_LANE}")
    for i in range(4):
        I(f"ds_read_b128 v[{C(i,0)}:{C(i,3)}], v{A} offset:{L_CNT + 1024*i}")
    I("s_mov_b32 s74, 0xffff")
    I("s_mov_b32 s75, 0")
    I(f"v_lshlrev_b32 v{B}, 2, v{V_LANE}")
    I("s_movk_i32 s76, 0xc0")
    I("s_waitcnt lgkmcnt(0)")
    for i in range(4):
        I(f"v_add_u32 v{TT(i)}, v{C(i,0)}, v{C(i,1)}")
        I(f"v_add3_u32 v{TT(i)}, v{TT(i)}, v{C(i,2)}, v{C(i,3)}")
        I(f"v_lshrrev_b32 v{TT(i)}, 5, v{TT(i)}")
        I(f"v_min_u32 v{KY(i)}, 63, v{TT(i)}")
        I(f"v_lshlrev_b32 v{KY(i)}, 2, v{KY(i)}")
        if i == 3:
            I("s_mov_b64 exec, s[74:75]")
        I(f"ds_add_rtn_u32 v{R2(i)}, v{KY(i)}, v{ONE} offset:{L_H2}")
    I("s_mov_b64 exec, s[72:73]")
    I(f"ds_read_b32 v{Cc}, v{B} offset:{L_H2}")
    I("s_waitcnt lgkmcnt(0)")
    I(f"v_mov_b32 v{Dd}, v{Cc}")
    wave_scan(Dd)
    I(f"v_sub_u32 v{Dd}, v{Dd}, v{Cc}")
    I("s_nop 0")
    for i in range(4):
        I(f"ds_bpermute_b32 v{SL(i)}, v{KY(i)}, v{Dd}")
    I("s_waitcnt lgkmcnt(0)")
    for i in range(4):
        m = 12 + 2 * (i & 1)
        I(f"v_add_u32 v{R2(i)}, v{R2(i)}, v{SL(i)}")
        I(f"v_cmp_le_u32 s[{m}:{m+1}], s76, v{R2(i)}")
        I(f"v_lshrrev_b32 v{SL(i)}, 4, v{R2(i)}")
        I(f"v_lshrrev_b32 v{Cc}, 3, v{R2(i)}")
        I(f"v_subrev_u32 v{Cc}, 12, v{Cc}")
        I(f"v_mov_b32 v{ST(i)}, 2")
        I(f"v_cndmask_b32_e64 v{SL(i)}, v{SL(i)}, v{Cc}, s[{m}:{m+1}]")
        I(f"v_cndmask_b32_e64 v{ST(i)}, v{ST(i)}, 1, s[{m}:{m+1}]")
        I(f"v_lshlrev_b32 v{SL(i)}, 2, v{SL(i)}")
        I(f"v_add_u32 v{KY(i)}, {64*i}, v{V_LANE}")
        if i == 3:
            I("s_mov_b64 exec, s[74:75]")
        I(f"ds_max_u32 v{SL(i)}, v{TT(i)} offset:{L_WM}")
        I(f"ds_write_b8 v{R2(i)}, v{KY(i)} offset:{L_ORD}")
    I("s_mov_b64 exec, s[72:73]")
    I(f"ds_read_b32 v{Cc}, v{B} offset:{L_WM}")
    I(f"v_cmp_gt_u32 vcc, 12, v{V_LANE}")
    I("s_waitcnt lgkmcnt(0)")
    I(f"v_add_u32 v{Dd}, 1, v{Cc}")
    I(f"v_lshrrev_b32 v{Dd}, 1, v{Dd}")
    I(f"v_cndmask_b32 v{Cc}, v{Dd}, v{Cc}, vcc")
    I(f"v_lshlrev_b32 v{Dd}, 6, v{Cc}")
    I(f"v_mov_b32 v{A}, v{Dd}")
    wave_scan(A, 16)
    I("s_nop 1")
    I(f"v_readlane_b32 s76, v{A}, 15")
    I(f"v_sub_u32 v{A}, v{A}, v{Dd}")
    I(f"v_add_u32 v{A}, {L_LIST}, v{A}")
    I("s_nop 0")
    for i in range(4):
        I(f"ds_bpermute_b32 v{SL(i)}, v{SL(i)}, v{A}")
    I(f"v_cmp_gt_u32 vcc, 16, v{V_LANE}")
    I("s_and_saveexec_b64 s[12:13], vcc")
    I(f"ds_write_b32 v{B}, v{A} offset:{L_WB}")
    I(f"ds_write_b32 v{B}, v{Cc} offset:{L_SU}")
    I("s_mov_b64 exec, s[12:13]")
    I(f"s_cmp_le_u32 s76, {LIST_CAP}")
    I("s_cbranch_scc1 K2_CAPOK")
    I(f"v_mov_b32 v41, {L_HEAVY}")
    I(f"ds_write_b32 v41, v{ONE}")
    L("K2_CAPOK")
    I("s_waitcnt lgkmcnt(0)")
    for i in range(4):
        I(f"v_lshlrev_b32 v{A}, 3, v{ST(i)}")
        I(f"v_subrev_u32 v{A}, 1, v{A}")
        I(f"v_and_b32 v{A}, v{A}, v{R2(i)}")
        I(f"v_lshl_add_u32 v{SL(i)}, v{A}, 2, v{SL(i)}")
        I(f"v_add_u32 v{A}, v{C(i,0)}, v{C(i,1)}")
        I(f"v_add_u32 v{Cc}, v{A}, v{C(i,2)}")
        I(f"v_mad_u32_u24 v{C(i,1)}, v{C(i,0)}, v{ST(i)}, v{SL(i)}")
        I(f"v_mad_u32_u24 v{C(i,2)}, v{A}, v{ST(i)}, v{SL(i)}")
        I(f"v_mad_u32_u24 v{C(i,3)}, v{Cc}, v{ST(i)}, v{SL(i)}")
        I(f"v_mov_b32 v{C(i,0)}, v{SL(i)}")
        I(f"v_lshlrev_b32 v{KY(i)}, 4, v{KY(i)}")
        if i == 3:
            I("s_mov_b64 exec, s[74:75]")
        I(f"ds_write_b128 v{KY(i)}, v[{C(i,0)}:{C(i,3)}] offset:{L_NBQ}")
    I("s_mov_b64 exec, s[72:73]")
    I("s_waitcnt lgkmcnt(0)")
    L("K2_NOSORT")
    I("s_barrier")
    stamp(4, 124)
    I(f"v_mov_b32 v41, {L_HEAVY}")
    I("ds_read_b32 v41, v41")
    I(f"v_mov_b32 v42, {L_WB + 48}")
    I("ds_read_b32 v42, v42")
    VP1 = lambda t, r: 100 + t * 4 + r
    for t in range(3):
        if t == 2:
            I("s_cmp_eq_u32 s83, 0")
            I("s_cbranch_scc1 K2_NT3C")
        for r in range(4):
            lab = uid("K2_SP")
            I(f"s_mov_b64 exec, s[{SM(t,r)}:{SM(t,r)+1}]")
            I(f"s_cbranch_execz {lab}")
            I(f"ds_read_b32 v{VP1(t,r)}, v{VR(t,r)+1} offset:{L_NBQ}")
            L(lab)
    L("K2_NT3C")
    I("s_mov_b64 exec, s[72:73]")
    I("s_waitcnt lgkmcnt(0)")
    I("v_readfirstlane_b32 s77, v41")
    I("s_cmp_lg_u32 s77, 0")
    I("s_cbranch_scc1 K2_NOPLACE")
    for t in range(3):
        if t == 2:
            I("s_cmp_eq_u32 s83, 0")
            I("s_cbranch_scc1 K2_NT3D")
        for r in range(4):
            lab = uid("K2_SW")
            I(f"s_mov_b64 exec, s[{SM(t,r)}:{SM(t,r)+1}]")
            I(f"s_cbranch_execz {lab}")
            I(f"v_sub_u32 v43, v{VP1(t,r)}, v42")
            I(f"v_lshrrev_b32 v43, 31, v43")
            I(f"v_lshl_add_u32 v43, v{VK(t,r)}, v43, v{VP1(t,r)}")
            I(f"ds_write_b32 v43, v{VR(t,r)}")
            L(lab)
    L("K2_NT3D")
    I("s_mov_b64 exec, s[72:73]")
    L("K2_NOPLACE")
    I("s_waitcnt lgkmcnt(0)")
    I("s_barrier")
    stamp(5, 124)
    if nc: pf_issue(7, V_PFD, 24, nc, 10)
    S_PH, S_SCR = 47, 83
    I(f"s_mov_b32 s{S_PH}, 0")
    I(f"s_cmp_lt_u32 s10, {NWORK}")
    I("s_cbranch_scc1 K2_KEEP")
    I("s_cmp_eq_u32 s77, 0")
    I("s_cbranch_scc1 K2_END")
    L("K2_KEEP")
    srd(16, 32, 33, 8192)
    I("v_lshlrev_b32 v110, 4, v0")
    I("buffer_load_dwordx4 v[112:115], v110, s[16:19], 0 offen")
    L("K2_PHASE")
    I("s_cmp_eq_u32 s77, 0")
    I("s_cbranch_scc1 K2_FAST")
    heavy_path("K2H", 24, 6, 20, 96, 8, 10, K2_ACC, 16)
    heavy_read_acc(K2_ACC, 10)
    I("s_cmp_lt_u32 s10, 13")
    I("s_cbranch_scc1 K2_DONE")
    I(f"s_cmp_lg_u32 s{S_PH}, 0")
    I("s_cbranch_scc1 K2_END")
    I(f"v_mov_b32 v{V_NA}, 0xff")
    I(f"v_mov_b32 v{V_NB}, 0xff")
    I("s_branch K2_DONE")
    L("K2_FAST")
    hop_header(10, 41)
    hop_wave("K2S", 24, 10)
    split_fix("K2S", 10)
    L("K2_DONE")
    I(f"s_cmp_lg_u32 s{S_PH}, 0")
    I("s_cbranch_scc1 K2_GEMM")
    stamp(6, 124)
    I("s_lshl_b32 s45, s8, 7")
    for vn, va, t0, ad in ((V_NA, V_ACC, V_T, V_A0), (V_NB, V_ACC2, V_RC, V_A1)):
        for i in range(4):
            I(f"v_cvt_pk_bf16_f32 v{t0+i}, v{va+2*i}, v{va+2*i+1}")
        I(f"v_lshlrev_b32 v{ad}, 15, v{vn}")
        I(f"v_add3_u32 v{ad}, v{ad}, s45, v{V_F16}")
        I(f"buffer_store_dwordx4 v[{t0}:{t0+3}], v{ad}, s[28:31], 0 offen" + FL[opt.st2])
    E_SW, E_AB0, E_AB1, E_AW, E_BP, E_KB = 104, 105, 106, 107, 108, 109
    WF = 72
    I("v_cmp_gt_u32 vcc, 0x200, v0")
    I("s_and_saveexec_b64 s[72:73], vcc")
    I(f"ds_write_b128 v110, v[112:115] offset:{L_WL}")
    I("s_mov_b64 exec, s[72:73]")
    I(f"s_lshl_b32 s{S_SCR}, s10, 11")
    I(f"s_add_u32 s{S_SCR}, s{S_SCR}, {L_SCR}")
    I(f"v_lshlrev_b32 v60, 2, v{V_G4}")
    I(f"v_xor_b32 v61, v60, v{V_F16}")
    I(f"v_lshlrev_b32 v60, 3, v60")
    I(f"v_add3_u32 v{E_SW}, v60, v61, s{S_SCR}")
    I(f"v_and_b32 v60, 15, v{V_LANE}")
    I(f"v_lshrrev_b32 v{E_KB}, 4, v{V_LANE}")
    I(f"v_and_b32 v61, 7, v60")
    I(f"v_lshlrev_b32 v{E_BP}, 5, v61")
    I(f"v_xor_b32 v62, v{E_KB}, v61")
    I(f"v_lshlrev_b32 v62, 4, v62")
    I(f"v_lshlrev_b32 v63, 7, v60")
    I(f"v_add3_u32 v{E_AB0}, v63, s{S_SCR}, v62")
    I(f"v_xor_b32 v62, 64, v62")
    I(f"v_add3_u32 v{E_AB1}, v63, s{S_SCR}, v62")
    I(f"v_lshrrev_b32 v62, 2, v60")
    I(f"v_lshl_add_u32 v62, v{E_KB}, 3, v62")
    I(f"v_lshlrev_b32 v62, 7, v62")
    I(f"v_and_b32 v63, 3, v{V_LANE}")
    I(f"v_lshl_add_u32 v{E_AW}, v63, 4, v62")
    I(f"v_cmp_gt_u32 s[74:75], 8, v60")
    I(f"v_lshlrev_b32 v{E_KB}, 4, v{E_KB}")
    for i in range(8):
        I(f"v_mov_b32 v{V_ACC+i}, 0")
        I(f"v_mov_b32 v{V_ACC2+i}, 0")
    srd(24, 6, 7, TBL_BYTES, WS_H1)
    I("s_waitcnt vmcnt(0) lgkmcnt(0)")
    srd(28, 34, 35, TBL_BYTES)
    stamp(7, 124)
    I("s_barrier")
    I("s_cmp_lg_u32 s10, 0")
    I("s_cbranch_scc1 K2_NOPOLL")
    I("s_and_b32 s45, s2, 3")
    I("s_lshl_b32 s45, s45, 7")
    I(f"s_add_u32 s45, s45, {WS_SYNC}")
    I(f"v_lshlrev_b32 v40, 9, v{V_LANE}")
    I("v_add_u32 v40, s45, v40")
    I("v_mov_b32 v41, 1")
    I("s_mov_b64 s[72:73], exec")
    I("s_mov_b64 exec, 0xff")
    I("global_atomic_add v40, v41, s[6:7] sc1")
    I("s_mov_b64 exec, 15")
    I("s_lshr_b32 s45, s2, 2")
    I("s_and_b32 s45, s45, 7")
    I("s_lshl_b32 s45, s45, 9")
    I(f"s_add_u32 s45, s45, {WS_SYNC}")
    I(f"v_lshlrev_b32 v42, 7, v{V_LANE}")
    I("v_add_u32 v42, s45, v42")
    I(f"s_mov_b32 s46, {opt.spin}")
    L("K2_POLL")
    I("global_load_dword v43, v42, s[6:7] sc1")
    I("s_waitcnt vmcnt(0)")
    I("v_readlane_b32 s12, v43, 0")
    I("v_readlane_b32 s13, v43, 1")
    I("v_readlane_b32 s14, v43, 2")
    I("v_readlane_b32 s15, v43, 3")
    I("s_add_u32 s12, s12, s13")
    I("s_add_u32 s14, s14, s15")
    I("s_add_u32 s12, s12, s14")
    I("s_cmp_ge_u32 s12, 256")
    I("s_cbranch_scc1 K2_POLLED")
    if opt.slp: I(f"s_sleep {opt.slp}")
    I("s_sub_u32 s46, s46, 1")
    I("s_cmp_eq_u32 s46, 0")
    I("s_cbranch_scc0 K2_POLL")
    L("K2_POLLED")
    I("s_mov_b64 exec, s[72:73]")
    L("K2_NOPOLL")
    for t in range(4):
        for s in range(2):
            for hh in range(2):
                off = L_WL + s * 4096 + hh * 512 + (t >> 1) * 64 + (t & 1) * 8
                d = WF + (t * 2 + s) * 4 + 2 * hh
                I(f"ds_read_b64_tr_b16 v[{d}:{d+1}], v{E_AW} offset:{off}")
    I(f"s_mov_b32 s{S_PH}, 1")
    I("s_waitcnt lgkmcnt(0)")
    I("s_barrier")
    stamp(8, 124)
    I("s_branch K2_PHASE")
    L("K2_GEMM")
    stamp(9, 124)
    E_OUT = E_AW
    I(f"ds_bpermute_b32 v110, v{E_BP}, v{V_NA}")
    I(f"ds_bpermute_b32 v111, v{E_BP}, v{V_NB}")
    for va, t0, off in ((V_ACC, V_T, 0), (V_ACC2, V_RC, 1024)):
        for i in range(4):
            I(f"v_cvt_pk_bf16_f32 v{t0+i}, v{va+2*i}, v{va+2*i+1}")
        I(f"ds_write_b128 v{E_SW}, v[{t0}:{t0+3}] offset:{off}")
    B0, B1 = 40, 44
    I(f"ds_read_b128 v[{B0}:{B0+3}], v{E_AB0}")
    I(f"ds_read_b128 v[{B1}:{B1+3}], v{E_AB1}")
    DD = 56
    I("s_lshl_b32 s45, s8, 7")
    I("s_waitcnt lgkmcnt(1)")
    I(f"v_cndmask_b32_e64 v110, v111, v110, s[74:75]")
    for t in range(4):
        a = WF + (t * 2) * 4
        I(f"v_mfma_f32_16x16x32_bf16 v[{DD+4*t}:{DD+4*t+3}], v[{a}:{a+3}], v[{B0}:{B0+3}], 0")
    I(f"v_lshlrev_b32 v110, 15, v110")
    I("s_waitcnt lgkmcnt(0)")
    for t in range(4):
        a = WF + (t * 2 + 1) * 4
        I(f"v_mfma_f32_16x16x32_bf16 v[{DD+4*t}:{DD+4*t+3}], v[{a}:{a+3}], v[{B1}:{B1+3}], v[{DD+4*t}:{DD+4*t+3}]")
    I(f"v_add3_u32 v{E_OUT}, v110, s45, v{E_KB}")
    O = 48
    I("s_nop 4")
    for half in range(2):
        for k in range(2):
            t = half * 2 + k
            if t == 3: I("s_nop 1")
            I(f"v_cvt_pk_bf16_f32 v{O+half*4+2*k}, v{DD+4*t}, v{DD+4*t+1}")
            I(f"v_cvt_pk_bf16_f32 v{O+half*4+2*k+1}, v{DD+4*t+2}, v{DD+4*t+3}")
        I(f"buffer_store_dwordx4 v[{O+half*4}:{O+half*4+3}], v{E_OUT}, s[28:31], 0 offen" + (" offset:64" if half else "") + FL[opt.st3])
    stamp(10, 124)
    if opt.stamps:
        I("s_waitcnt vmcnt(0)")
        stamp(11, 124)
    L("K2_END")
    I("s_endpgm")
    hop_subs("K2S")
    I("s_endpgm")
    return name, 128, 102

HEADER = f"""; Kernarg layout for this problem (64 bytes, ptrs only, base s[0:1]):
; @launch kernel=sgc_part_kernel grid=(256,1,1) block=(K1BLK,1,1) lds={K1_LDS}
; @launch kernel=sgc_prop_kernel grid=(256,1,1) block=(1024,1,1) lds=K2LDS
.amdgcn_target "amdgcn-amd-amdhsa--gfx950"
.text"""

def main():
    for a in sys.argv[2:]:
        k, v = a.split("=")
        assert hasattr(opt, k), k
        setattr(opt, k, int(v))
    h = HEADER.replace("K2LDS", str(K2_LDS)).replace("K1BLK", "832" if opt.k1v == 1 else "448")
    emit(h)
    ks = [gen_k1(), gen_k2()]
    emit('.section .rodata,"a"')
    emit(".p2align 6")
    for (n, v, s) in ks:
        kernel_desc(n, v, s)
        emit(".p2align 6")
    open(sys.argv[1], "w").write("\n".join(out) + "\n")

main()
```

```python
import sys

N = 50000
E = 850000
CH = 3328
NCH = 256
RECP = CH * 4
RECH = CH * 2
WS_SEG = 0
WS_RECP = 0x40000
WS_RECH = 0x380000
WS_IMG = 0x6C0000
WS_H1 = 0xC00000
WS_SYNC = 0x600000
TBL_BYTES = N * 128
SAFE = 0x0000FFFF

class Opt:
    D = 4
    R = 8
    skew = 0
    pf1 = 0
    pf2b = 4
    pf2c = 0
    pf3 = 2
    pf3c = 0
    stamps = 0
    st1 = 1
    st2 = 1
    st2i = 1
    st3 = 1
    dbg = 0
    rst = 0
    nbar = 6
    pfs = 0
    pfsr = 2
    pfs3 = 0
    ld1 = 3
    ld2 = 0
    ld3 = 0
    skip3 = 0
    k1v = 1
    ldg = 1
    spin = 16000000
    brep = 16
    bsh = 4
    slp = 0
    smalllds = 0
    k3w = 16

opt = Opt()
out = []
def emit(s=""): out.append(s)
def I(s): out.append("    " + s)
def L(s): out.append(s + ":")
_uid = [0]
def uid(p):
    _uid[0] += 1
    return f"{p}_{_uid[0]}"

FL = ['', ' sc1', ' sc0 sc1', ' nt', ' sc0']
def srd(s, lo, hi, size, add=0):
    if add:
        I(f"s_add_u32 s{s}, s{lo}, {add}")
        I(f"s_addc_u32 s{s+1}, s{hi}, 0")
        I(f"s_and_b32 s{s+1}, s{s+1}, 0xffff")
    else:
        I(f"s_mov_b32 s{s}, s{lo}")
        I(f"s_and_b32 s{s+1}, s{hi}, 0xffff")
    I(f"s_mov_b32 s{s+2}, {size}")
    I(f"s_mov_b32 s{s+3}, 0x20000")

def wave_scan(v, n=64):
    for sh in (1, 2, 4, 8):
        I("s_nop 1")
        I(f"v_add_u32_dpp v{v}, v{v}, v{v} row_shr:{sh} row_mask:0xf bank_mask:0xf")
    if n > 16:
        I("s_nop 1")
        I(f"v_add_u32_dpp v{v}, v{v}, v{v} row_bcast:15 row_mask:0xa bank_mask:0xf")
        I("s_nop 1")
        I(f"v_add_u32_dpp v{v}, v{v}, v{v} row_bcast:31 row_mask:0xc bank_mask:0xf")

STAMP_OFF = 0x2000000
def stamp_init(kidx, ws_lo, vbase):
    if not opt.stamps: return
    I(f"v_lshrrev_b32 v{vbase}, 6, v0")
    I(f"s_lshl_b32 s92, s2, 4")
    I(f"s_add_u32 s92, s92, {kidx*256*16}")
    I(f"v_add_u32 v{vbase}, s92, v{vbase}")
    I(f"v_lshlrev_b32 v{vbase}, 7, v{vbase}")
    I(f"v_add_u32 v{vbase}, {STAMP_OFF}, v{vbase}")
    I(f"s_mov_b32 s94, s{ws_lo}")
    I(f"s_mov_b32 s95, s{ws_lo+1}")
def stamp(j, vbase, pre=None):
    if not opt.stamps: return
    if pre is None:
        I("s_memrealtime s[90:91]")
        I("s_waitcnt lgkmcnt(0)")
    else:
        I(f"s_mov_b32 s90, s{pre}")
        I(f"s_mov_b32 s91, s{pre+1}")
    I("s_mov_b64 s[88:89], exec")
    I("s_mov_b64 exec, 1")
    I(f"v_mov_b32 v{vbase+2}, s90")
    I(f"v_mov_b32 v{vbase+3}, s91")
    I(f"global_store_dwordx2 v{vbase}, v[{vbase+2}:{vbase+3}], s[94:95] offset:{8*j}")
    I("s_mov_b64 exec, s[88:89]")

def kernel_begin(name):
    emit(f".globl {name}")
    emit(".p2align 8")
    emit(f".type {name},@function")
    L(name)

def kernel_desc(name, vgpr, sgpr):
    acc = (vgpr + 3) // 4 * 4
    emit(f".amdhsa_kernel {name}")
    emit(f"  .amdhsa_next_free_vgpr {vgpr}")
    emit(f"  .amdhsa_next_free_sgpr {sgpr}")
    emit(f"  .amdhsa_accum_offset {acc}")
    emit("  .amdhsa_group_segment_fixed_size 0")
    emit("  .amdhsa_kernarg_size 64")
    emit("  .amdhsa_user_sgpr_count 2")
    emit("  .amdhsa_user_sgpr_kernarg_segment_ptr 1")
    emit("  .amdhsa_system_sgpr_workgroup_id_x 1")
    emit(".end_amdhsa_kernel")

PFU = 8192
def pf_setup(vaddr, n, base_bytes):
    I("s_lshr_b32 s15, s2, 3")
    I(f"s_mul_i32 s15, s15, {n*PFU}")
    if base_bytes: I(f"s_add_u32 s15, s15, {base_bytes}")
    I(f"v_lshlrev_b32 v{vaddr}, 7, v0")
    I(f"v_add_u32 v{vaddr}, s15, v{vaddr}")
def pf_issue(vaddr, vdst, tbl, n, sW, nw=16):
    rounds = (n + nw - 1) // nw
    for i in range(rounds):
        cnt = min(nw, n - nw * i)
        lab = uid("PF")
        if cnt < nw:
            I(f"s_cmp_ge_u32 s{sW}, {cnt}")
            I(f"s_cbranch_scc1 {lab}")
        I(f"s_mov_b32 s15, {i*nw*PFU}")
        I(f"buffer_load_dword v{vdst}, v{vaddr}, s[{tbl}:{tbl+3}], s15 offen")
        L(lab)

def pf_stream(tbl, sW, nunits, base_bytes, per_round, vaddr, nrounds_max):
    I("s_lshr_b32 s15, s2, 3")
    I(f"s_mul_i32 s15, s15, {nunits*PFU}")
    I(f"s_add_u32 s15, s15, {base_bytes}")
    I(f"s_sub_u32 s14, s{sW}, {NWORK}")
    I(f"s_mul_i32 s14, s14, {PFU}")
    I("s_add_u32 s15, s15, s14")
    I(f"v_lshlrev_b32 v{vaddr}, 7, v{V_LANE}")
    I(f"v_add_u32 v{vaddr}, s15, v{vaddr}")
    k = 0
    nsteps = (nunits + 1) // 2
    rnd = 0
    while k < nsteps:
        for _ in range(per_round):
            if k >= nsteps: break
            I(f"s_mov_b32 s15, {k*2*PFU}")
            I(f"buffer_load_dword v{V_PFD}, v{vaddr}, s[{tbl}:{tbl+3}], s15 offen")
            k += 1
        rnd += 1
        if k < nsteps and rnd <= nrounds_max:
            I("s_barrier")

K1_HIST = 0
K1_PRE = 1024
K1_STP = 2048
K1_STH = K1_STP + RECP
K1_LDS = K1_STH + RECH

def gen_k1():
    name = "sgc_part_kernel"
    V = opt.k1v
    NT = 832 // V
    kernel_begin(name)
    I("s_cmp_ge_u32 s2, 256")
    I("s_cbranch_scc1 K1_END")
    if opt.stamps: I("s_memrealtime s[86:87]")
    I("s_load_dwordx4 s[4:7], s[0:1], 8")
    I("s_load_dwordx2 s[8:9], s[0:1], 24")
    I("s_load_dwordx2 s[10:11], s[0:1], 56")
    I(f"s_mul_i32 s3, s2, {CH}")
    I("v_lshl_add_u32 v1, v0, 2, s3")
    I("v_lshlrev_b32 v2, 2, v1")
    I("v_lshlrev_b32 v3, 1, v1")
    I("v_mov_b32 v4, 0")
    I("v_lshlrev_b32 v5, 2, v0")
    I("v_cmp_gt_u32 vcc, 0x100, v0")
    I("s_and_saveexec_b64 s[12:13], vcc")
    I(f"ds_write_b32 v5, v4 offset:{K1_HIST}")
    I("s_mov_b64 exec, s[12:13]")
    I("v_readfirstlane_b32 s15, v0")
    I("s_waitcnt lgkmcnt(0)")
    stamp_init(0, 10, 124); stamp(0, 124, 86)
    srd(16, 6, 7, E * 4)
    D = lambda g, i: 8 + 16 * g + i
    S = lambda g, i: 12 + 16 * g + i
    NR = lambda g, i: 16 + 16 * g + i
    HA = lambda g, i: 40 + 4 * g + i
    RK = lambda g, i: 48 + 4 * g + i
    PL = lambda g, i: 56 + 4 * g + i
    HI = lambda g, i: 64 + 4 * g + i
    for g in range(V):
        I(f"s_mov_b32 s{40+g}, {g*NT*16}")
        I(f"buffer_load_dwordx4 v[{D(g,0)}:{D(g,3)}], v2, s[16:19], s{40+g} offen" + FL[opt.ld1])
    srd(20, 4, 5, E * 4)
    srd(24, 8, 9, E * 2)
    for g in range(V):
        I(f"s_mov_b32 s{42+g}, {g*NT*8}")
        I(f"buffer_load_dwordx4 v[{S(g,0)}:{S(g,3)}], v2, s[20:23], s{40+g} offen" + FL[opt.ld1])
        I(f"buffer_load_dwordx2 v[{NR(g,0)}:{NR(g,1)}], v3, s[24:27], s{42+g} offen" + FL[opt.ld1])
    I("s_lshr_b32 s46, s15, 6")
    I("s_or_b32 s14, s2, s46")
    I("s_cmp_lg_u32 s14, 0")
    I("s_cbranch_scc1 K1_NOZ")
    I("v_lshlrev_b32 v7, 7, v0")
    I(f"v_add_u32 v7, {WS_SYNC}, v7")
    I("global_store_dword v7, v4, s[10:11] sc1")
    I("s_waitcnt vmcnt(0)")
    L("K1_NOZ")
    npf = 0
    if opt.pf1:
        I("s_load_dwordx2 s[48:49], s[0:1], 0")
        I("s_lshr_b32 s15, s2, 3")
        I(f"s_mul_i32 s15, s15, {opt.pf1*PFU}")
        I(f"s_cmp_lt_u32 s46, {opt.pf1}")
        I("s_cselect_b32 s15, s15, 0x40000000")
        I("v_lshlrev_b32 v90, 7, v0")
        I("v_add_u32 v90, s15, v90")
        I("s_waitcnt lgkmcnt(0)")
        srd(64, 48, 49, TBL_BYTES)
        I("buffer_load_dword v91, v90, s[64:67], 0 offen")
        npf = 1
    srd(28, 10, 11, NCH * 1024, WS_SEG)
    srd(32, 10, 11, NCH * RECP, WS_RECP)
    srd(52, 10, 11, NCH * RECH, WS_RECH)
    I("s_mov_b32 s36, 0xffff0000")
    I("s_mov_b32 s37, 21474")
    I("s_mov_b64 s[12:13], exec")
    I(f"v_cmp_gt_u32 s[56:57], {NT if NT <= 64 else 's14'}, v0") if False else None
    I(f"s_mov_b32 s14, {NT}")
    I("v_cmp_gt_u32 s[56:57], s14, v0")
    for g in range(V):
        I(f"s_mov_b32 s14, {E - g*NT*4}")
        I(f"v_cmp_gt_u32 s[{58+2*g}:{59+2*g}], s14, v1")
        I(f"s_and_b64 s[{58+2*g}:{59+2*g}], s[{58+2*g}:{59+2*g}], s[56:57]")
    I("v_mov_b32 v6, 1")
    I("s_barrier")
    for g in range(V):
        I(f"s_waitcnt vmcnt({(V - 1 - g) + 2*V + npf})")
        if g == 0: stamp(1, 124)
        I(f"s_mov_b64 exec, s[{58+2*g}:{59+2*g}]")
        for i in range(4):
            I(f"v_and_b32 v{HA(g,i)}, 0xff, v{D(g,i)}")
            I(f"v_lshlrev_b32 v{HA(g,i)}, 2, v{HA(g,i)}")
        for i in range(4):
            I(f"ds_add_rtn_u32 v{RK(g,i)}, v{HA(g,i)}, v6 offset:{K1_HIST}")
    I("s_mov_b64 exec, s[12:13]")
    for g in range(V):
        I(f"s_waitcnt vmcnt({2*(V-1-g) + npf})")
        I(f"v_lshl_or_b32 v{PL(g,0)}, v{NR(g,0)}, 16, v{S(g,0)}")
        I(f"v_and_or_b32 v{PL(g,1)}, v{NR(g,0)}, s36, v{S(g,1)}")
        I(f"v_lshl_or_b32 v{PL(g,2)}, v{NR(g,1)}, 16, v{S(g,2)}")
        I(f"v_and_or_b32 v{PL(g,3)}, v{NR(g,1)}, s36, v{S(g,3)}")
        for i in range(4):
            I(f"v_mul_u32_u24 v7, s37, v{S(g,i)}")
            I("v_lshrrev_b32 v7, 26, v7")
            I("v_and_b32 v7, 12, v7")
            I(f"v_lshrrev_b32 v{HI(g,i)}, 8, v{D(g,i)}")
            I(f"v_lshl_or_b32 v{HI(g,i)}, v{HI(g,i)}, 4, v7")
    I("s_waitcnt lgkmcnt(0)")
    I("s_barrier")
    I("s_cmp_lg_u32 s46, 0")
    I("s_cbranch_scc1 K1_NOSCAN")
    I("v_lshlrev_b32 v5, 4, v0")
    I(f"ds_read_b128 v[72:75], v5 offset:{K1_HIST}")
    I("s_waitcnt lgkmcnt(0)")
    I("v_add_u32 v76, v72, v73")
    I("v_add_u32 v77, v76, v74")
    I("v_add_u32 v78, v77, v75")
    I("v_mov_b32 v79, v78")
    wave_scan(79)
    I("v_sub_u32 v80, v79, v78")
    I("v_add_u32 v81, v80, v72")
    I("v_add_u32 v82, v80, v76")
    I("v_add_u32 v83, v80, v77")
    I(f"ds_write_b128 v5, v[80:83] offset:{K1_PRE}")
    I("v_lshl_or_b32 v72, v81, 16, v80")
    I("v_lshl_or_b32 v73, v82, 16, v81")
    I("v_lshl_or_b32 v74, v83, 16, v82")
    I("v_lshl_or_b32 v75, v79, 16, v83")
    I("s_lshl_b32 s37, s2, 10")
    I("buffer_store_dwordx4 v[72:75], v5, s[28:31], s37 offen" + FL[opt.st1])
    I("s_waitcnt lgkmcnt(0)")
    L("K1_NOSCAN")
    I("s_barrier")
    for g in range(V):
        I(f"s_mov_b64 exec, s[{58+2*g}:{59+2*g}]")
        for i in range(4):
            I(f"ds_read_b32 v{HA(g,i)}, v{HA(g,i)} offset:{K1_PRE}")
    for g in range(V):
        I(f"s_mov_b64 exec, s[{58+2*g}:{59+2*g}]")
        I(f"s_waitcnt lgkmcnt({4*(V-1-g) if g < V-1 else 0})" if False else "s_waitcnt lgkmcnt(0)")
        for i in range(4):
            I(f"v_add_u32 v{HA(g,i)}, v{HA(g,i)}, v{RK(g,i)}")
            I(f"v_lshlrev_b32 v{RK(g,i)}, 2, v{HA(g,i)}")
            I(f"v_lshlrev_b32 v{HA(g,i)}, 1, v{HA(g,i)}")
            I(f"ds_write_b32 v{RK(g,i)}, v{PL(g,i)} offset:{K1_STP}")
            I(f"ds_write_b16 v{HA(g,i)}, v{HI(g,i)} offset:{K1_STH}")
    I("s_mov_b64 exec, s[12:13]")
    I("s_waitcnt lgkmcnt(0)")
    I("s_barrier")
    I("v_lshlrev_b32 v5, 4, v0")
    I(f"s_mul_i32 s37, s2, {RECP}")
    I(f"s_mul_i32 s42, s2, {RECH}")
    I("s_mov_b64 exec, s[56:57]")
    for g in range(V):
        I(f"ds_read_b128 v[{8+4*g}:{11+4*g}], v5 offset:{K1_STP + g*NT*16}")
    if V == 2:
        I(f"ds_read_b128 v[16:19], v5 offset:{K1_STH}")
    else:
        I(f"s_mov_b32 s14, {RECH//16}")
        I("v_cmp_gt_u32 vcc, s14, v0")
        I("s_mov_b64 exec, vcc")
        I(f"ds_read_b128 v[16:19], v5 offset:{K1_STH}")
        I("s_mov_b64 exec, s[56:57]")
    I("s_cbranch_execz K1_FIN")
    for g in range(V):
        I(f"s_waitcnt lgkmcnt({V - g})")
        if g: I(f"s_add_u32 s37, s37, {NT*16}")
        I(f"buffer_store_dwordx4 v[{8+4*g}:{11+4*g}], v5, s[32:35], s37 offen" + FL[opt.st1])
    I("s_waitcnt lgkmcnt(0)")
    if V == 1:
        I("s_mov_b64 exec, vcc")
        I("s_cbranch_execz K1_FIN")
    I("buffer_store_dwordx4 v[16:19], v5, s[52:55], s42 offen" + FL[opt.st1])
    L("K1_FIN")
    I("s_mov_b64 exec, s[12:13]")
    stamp(2, 124)
    if opt.stamps:
        I("s_waitcnt vmcnt(0)")
        stamp(3, 124)
    L("K1_END")
    I("s_endpgm")
    return name, (128 if opt.stamps else 96), (102 if opt.stamps else 72)

L_SU = 0x000
L_WB = 0x040
L_ORD = 0x120
L_HEAVY = 0x1F0
L_LIST = 0x200
IMG_BYTES = 0x4000
LIST_CAP = IMG_BYTES - L_LIST
L_CNT = 0x4000
L_H2 = 0x5000
L_WM = 0x5200
K2_ZERO_END = 0x5400
L_NBQ = 0x5400
L_WL = 0x6400
L_SCR = 0x8400
K2_ACC = 0xF400
ACC_BYTES = 208 * 256
K2_LDS = K2_ACC + ACC_BYTES
NWORK = 14

V_LANE = 1
V_G4 = 2
V_F16 = 3
V_SELA = 4
V_SELB = 5
V_PTRC = 6
V_PTRI = 7
V_NA = 8
V_NB = 9
V_A0 = 10
V_A1 = 11
V_ACC = 12
V_ACC2 = 20
V_T = 28
V_RC = 32
V_RI = 36
V_DATA = 40
S_T, S_R, S_PACE, S_DR, S_REM = 78, 79, 80, 81, 82
S_NB = 76
S_RET = 84
S_128 = 44
V_PFD = 125

def hop_consts():
    I(f"v_lshrrev_b32 v{V_G4}, 3, v{V_LANE}")
    I(f"v_lshlrev_b32 v{V_G4}, 2, v{V_G4}")
    I(f"v_and_b32 v{V_F16}, 7, v{V_LANE}")
    I(f"v_lshlrev_b32 v{V_F16}, 4, v{V_F16}")
    I(f"v_and_b32 v{V_PTRC}, 3, v{V_LANE}")
    I(f"v_mov_b32 v{V_SELA}, 0x0c0c0c0c")
    I(f"v_mov_b32 v{V_SELB}, 0x0c0c0c0c")
    I(f"v_mov_b32 v{V_A0}, 0x0c0c0302")
    I(f"v_mov_b32 v{V_A1}, 0x03020c0c")
    for val, sel, lit in ((0, V_SELA, V_A0), (1, V_SELA, V_A1), (2, V_SELB, V_A0), (3, V_SELB, V_A1)):
        I(f"v_cmp_eq_u32 vcc, {val}, v{V_PTRC}")
        I("s_nop 1")
        I(f"v_cndmask_b32 v{sel}, v{sel}, v{lit}, vcc")
    I(f"s_mov_b32 s{S_128}, 128")
    for i in range(8):
        I(f"v_mov_b32 v{V_ACC+i}, 0")
        I(f"v_mov_b32 v{V_ACC2+i}, 0")

def rd2(dst, ptr, unit):
    o = unit * 16
    assert o + 8 <= 255
    I(f"ds_read2_b32 v[{dst}:{dst+1}], v{ptr} offset0:{o} offset1:{o+8}")

def perms(p):
    rc = V_RC + 2 * p
    I(f"v_perm_b32 v{V_T+0}, v{rc}, v{rc}, v{V_SELA}")
    I(f"v_perm_b32 v{V_T+1}, v{rc}, v{rc}, v{V_SELB}")
    I(f"v_perm_b32 v{V_T+2}, v{rc+1}, v{rc+1}, v{V_SELA}")
    I(f"v_perm_b32 v{V_T+3}, v{rc+1}, v{rc+1}, v{V_SELB}")

def mfmas(r):
    d = V_DATA + 8 * r
    a, b = V_ACC, V_ACC2
    I(f"v_mfma_f32_4x4x4_16b_bf16 v[{a}:{a+3}], v[{V_T}:{V_T+1}], v[{d}:{d+1}], v[{a}:{a+3}]")
    I(f"v_mfma_f32_4x4x4_16b_bf16 v[{a+4}:{a+7}], v[{V_T}:{V_T+1}], v[{d+2}:{d+3}], v[{a+4}:{a+7}]")
    I(f"v_mfma_f32_4x4x4_16b_bf16 v[{b}:{b+3}], v[{V_T+2}:{V_T+3}], v[{d+4}:{d+5}], v[{b}:{b+3}]")
    I(f"v_mfma_f32_4x4x4_16b_bf16 v[{b+4}:{b+7}], v[{V_T+2}:{V_T+3}], v[{d+6}:{d+7}], v[{b+4}:{b+7}]")

def pace_check(pfx):
    if opt.R <= 1: return
    lab = uid(pfx + "_PC")
    I(f"s_add_u32 s{S_PACE}, s{S_PACE}, s{S_R}")
    I(f"s_cmp_lt_u32 s{S_PACE}, s{S_T}")
    I(f"s_cbranch_scc1 {lab}")
    I(f"s_call_b64 s[{S_RET}:{S_RET+1}], {pfx}_BS")
    L(lab)

def hop_subs(pfx):
    if opt.R <= 1: return
    L(f"{pfx}_BF")
    I(f"s_cmp_eq_u32 s{S_NB}, 0")
    I(f"s_cbranch_scc1 {pfx}_BR")
    I(f"s_sub_u32 s{S_NB}, s{S_NB}, 1")
    I("s_barrier")
    I(f"s_branch {pfx}_BF")
    L(f"{pfx}_BS")
    I(f"s_cmp_eq_u32 s{S_NB}, 0")
    I(f"s_cbranch_scc1 {pfx}_BR")
    I(f"s_sub_u32 s{S_NB}, s{S_NB}, 1")
    I("s_barrier")
    if opt.rst:
        I("s_memrealtime s[98:99]")
        I("s_waitcnt lgkmcnt(0)")
        for k in range(7, 0, -1): I(f"s_mov_b32 s{60+k}, s{59+k}")
        I("s_mov_b32 s60, s98")
    I(f"s_sub_u32 s{S_PACE}, s{S_PACE}, s{S_T}")
    I(f"s_cmp_ge_u32 s{S_PACE}, s{S_T}")
    I(f"s_cbranch_scc1 {pfx}_BS")
    L(f"{pfx}_BR")
    I(f"s_setpc_b64 s[{S_RET}:{S_RET+1}]")

def hop_wave(pfx, tbl, sW, gate=None):
    D = opt.D
    I(f"s_min_u32 s{S_T}, s{S_T}, 0x100")
    I(f"s_mov_b32 s{S_DR}, s{S_T}")
    I(f"s_mov_b32 s{S_PACE}, 0")
    I(f"s_mov_b32 s{S_R}, {opt.R}")
    I(f"s_mov_b32 s{S_NB}, {min(opt.nbar, opt.R - 1)}")
    if opt.skew:
        I(f"s_cmp_lt_u32 s{sW}, 8")
        I(f"s_cselect_b32 s{S_R}, {opt.R - opt.skew}, s{S_R}")
        I(f"s_cmp_lt_u32 s{sW}, 4")
        I(f"s_cselect_b32 s{S_R}, {opt.R - 2*opt.skew}, s{S_R}")
    for r in range(D):
        rd2(V_DATA + 8 * r, V_PTRC, r)
    rd2(V_RC, V_PTRC, 0)
    I(f"v_add_u32 v{V_PTRI}, {D*64}, v{V_PTRC}")
    I("s_waitcnt lgkmcnt(0)")
    rd2(V_RI, V_PTRI, 0)
    if gate: gate("h")
    I(f"s_cmp_eq_u32 s{S_T}, 0")
    I(f"s_cbranch_scc1 {pfx}_FIN")
    for r in range(D):
        d = V_DATA + 8 * r
        if r > 0:
            I(f"s_cmp_le_u32 s{S_T}, {r}")
            I(f"s_cbranch_scc1 {pfx}_DR0")
            pace_check(pfx)
        I(f"v_mad_u32_u16 v{V_A0}, v{d}, s{S_128}, v{V_F16}")
        I(f"v_mad_u32_u16 v{V_A1}, v{d+1}, s{S_128}, v{V_F16}")
        I(f"buffer_load_dwordx4 v[{d}:{d+3}], v{V_A0}, s[{tbl}:{tbl+3}], 0 offen" + FL[opt.ldg])
        I(f"buffer_load_dwordx4 v[{d+4}:{d+7}], v{V_A1}, s[{tbl}:{tbl+3}], 0 offen" + FL[opt.ldg])
    I(f"s_sub_u32 s{S_REM}, s{S_T}, {D}")
    I(f"s_mov_b32 s{S_DR}, {D}")
    I(f"s_cmp_eq_u32 s{S_REM}, 0")
    I(f"s_cbranch_scc1 {pfx}_DR0")
    L(f"{pfx}_MAIN")
    for r in range(D):
        p = r & 1
        d = V_DATA + 8 * r
        I("s_waitcnt lgkmcnt(0)")
        rd2(V_RC + 2 * (p ^ 1), V_PTRC, r + 1)
        rd2(V_RI + 2 * (p ^ 1), V_PTRI, r + 1)
        perms(p)
        ri = V_RI + 2 * p
        I(f"v_mad_u32_u16 v{V_A0}, v{ri}, s{S_128}, v{V_F16}")
        I(f"v_mad_u32_u16 v{V_A1}, v{ri+1}, s{S_128}, v{V_F16}")
        I(f"s_waitcnt vmcnt({2*(D-1)})")
        mfmas(r)
        pace_check(pfx)
        I(f"buffer_load_dwordx4 v[{d}:{d+3}], v{V_A0}, s[{tbl}:{tbl+3}], 0 offen" + FL[opt.ldg])
        I(f"buffer_load_dwordx4 v[{d+4}:{d+7}], v{V_A1}, s[{tbl}:{tbl+3}], 0 offen" + FL[opt.ldg])
        if r == D - 1:
            I(f"v_add_u32 v{V_PTRC}, {D*64}, v{V_PTRC}")
            I(f"v_add_u32 v{V_PTRI}, {D*64}, v{V_PTRI}")
        I(f"s_sub_u32 s{S_REM}, s{S_REM}, 1")
        I(f"s_cmp_eq_u32 s{S_REM}, 0")
        if r == D - 1:
            I(f"s_cbranch_scc0 {pfx}_MAIN")
        else:
            I(f"s_cbranch_scc1 {pfx}_DR{r+1}")
    for q in range(2 * D - 1):
        r = q % D
        p = q & 1
        if q < D:
            L(f"{pfx}_DR{q}")
            if opt.R > 1:
                lab = uid(pfx + "_DX")
                I(f"s_cmp_eq_u32 s{S_NB}, 0")
                I(f"s_cbranch_scc1 {lab}")
                I(f"s_call_b64 s[{S_RET}:{S_RET+1}], {pfx}_BF")
                L(lab)
        I("s_waitcnt lgkmcnt(0)")
        if q + 1 <= 2 * D - 2:
            rd2(V_RC + 2 * (p ^ 1), V_PTRC, q + 1)
        perms(p)
        I("s_waitcnt vmcnt(0)")
        I(f"s_sub_u32 s{S_DR}, s{S_DR}, 1")
        mfmas(r)
        if q < 2 * D - 2:
            I(f"s_cmp_eq_u32 s{S_DR}, 0")
            I(f"s_cbranch_scc1 {pfx}_FIN")
    L(f"{pfx}_FIN")
    if opt.R > 1:
        lab = uid(pfx + "_DY")
        I(f"s_cmp_eq_u32 s{S_NB}, 0")
        I(f"s_cbranch_scc1 {lab}")
        I(f"s_call_b64 s[{S_RET}:{S_RET+1}], {pfx}_BF")
        L(lab)
    if opt.rst and opt.stamps:
        for k in range(7):
            I(f"s_mov_b32 s86, s{66-k}")
            I(f"s_mov_b32 s87, s99")
            stamp(9 + k, 124, 86)
    I("s_nop 4")

def node_pos(sW, heavy):
    I(f"v_lshrrev_b32 v{V_NB}, 2, v{V_G4}")
    I(f"s_lshl_b32 s45, s{sW}, 4")
    if not heavy:
        I(f"s_lshl_b32 s46, s{sW}, 3")
        I(f"s_add_u32 s46, s46, 96")
        I(f"s_cmp_lt_u32 s{sW}, 12")
        I(f"s_cselect_b32 s45, s45, s46")
    I(f"v_add_u32 v{V_NA}, s45, v{V_NB}")
    I(f"v_add_u32 v{V_NB}, 8, v{V_NA}")

def hop_header(sW, vflag):
    I(f"s_lshl_b32 s45, s{sW}, 2")
    I(f"v_mov_b32 v{V_A0}, s45")
    I(f"v_mov_b32 v{vflag}, {L_HEAVY}")
    I(f"ds_read_b32 v{vflag}, v{vflag}")
    I(f"ds_read_b32 v{V_A1}, v{V_A0} offset:{L_SU}")
    I(f"ds_read_b32 v{V_PTRC}, v{V_A0} offset:{L_WB}")
    node_pos(sW, False)
    I(f"ds_read_u8 v{V_NA}, v{V_NA} offset:{L_ORD}")
    I(f"ds_read_u8 v{V_NB}, v{V_NB} offset:{L_ORD}")
    I("s_waitcnt lgkmcnt(0)")
    I(f"v_readfirstlane_b32 s77, v{vflag}")
    I(f"v_readfirstlane_b32 s{S_T}, v{V_A1}")
    I(f"v_add_u32 v{V_PTRC}, v{V_PTRC}, v{V_G4}")
    lab = uid("HH")
    I(f"s_cmp_lt_u32 s{sW}, 12")
    I(f"s_cbranch_scc1 {lab}")
    I(f"v_mov_b32 v{V_NB}, 0xff")
    L(lab)

def split_fix(pfx, sW):
    lab = uid(pfx + "_SF")
    I(f"s_cmp_lt_u32 s{sW}, 12")
    I(f"s_cbranch_scc1 {lab}")
    for i in range(8):
        I(f"v_add_f32 v{V_ACC+i}, v{V_ACC+i}, v{V_ACC2+i}")
    L(lab)

def heavy_path(pfx, tbl, seg_lo_hi, rec_srd, rech_srd, sB, sW, acc_base, nwaves):
    I("v_mov_b32 v40, 0")
    I("v_mov_b32 v41, 0")
    I("v_mov_b32 v42, 0")
    I("v_mov_b32 v43, 0")
    I("v_lshlrev_b32 v44, 4, v0")
    I(f"v_add_u32 v44, {acc_base}, v44")
    n16 = ACC_BYTES // 16
    for i in range(3):
        I(f"ds_write_b128 v44, v[40:43] offset:{i*16384}")
    I(f"v_cmp_gt_u32 vcc, {n16 - 3072}, v0")
    I("s_and_saveexec_b64 s[60:61], vcc")
    I(f"ds_write_b128 v44, v[40:43] offset:{3*16384}")
    I("s_mov_b64 exec, s[60:61]")
    I("s_waitcnt lgkmcnt(0)")
    I("s_barrier")
    I(f"s_mov_b32 s62, s{sW}")
    I(f"v_lshrrev_b32 v45, 3, v{V_LANE}")
    I(f"s_lshl_b32 s63, s{sB}, 2")
    L(f"{pfx}_HC")
    I("s_lshl_b32 s64, s62, 10")
    I("s_add_u32 s64, s64, s63")
    I(f"s_add_u32 s66, s{seg_lo_hi}, s64")
    I(f"s_addc_u32 s67, s{seg_lo_hi+1}, 0")
    I("s_load_dword s68, s[66:67], 0")
    I(f"s_mul_i32 s69, s62, {RECP}")
    I(f"s_mul_i32 s65, s62, {RECH}")
    I("s_waitcnt lgkmcnt(0)")
    I("s_and_b32 s70, s68, 0xffff")
    I("s_lshr_b32 s71, s68, 16")
    L(f"{pfx}_HI")
    I("s_cmp_ge_u32 s70, s71")
    I(f"s_cbranch_scc1 {pfx}_HN")
    I("v_add_u32 v46, s70, v45")
    I("v_cmp_gt_u32 vcc, s71, v46")
    I("s_and_saveexec_b64 s[60:61], vcc")
    I("v_lshlrev_b32 v47, 2, v46")
    I(f"buffer_load_dword v48, v47, s[{rec_srd}:{rec_srd+3}], s69 offen")
    I("v_lshlrev_b32 v47, 1, v46")
    I(f"buffer_load_ushort v49, v47, s[{rech_srd}:{rech_srd+3}], s65 offen")
    I("s_waitcnt vmcnt(0)")
    I("v_and_b32 v50, 0xffff, v48")
    I("v_lshlrev_b32 v50, 7, v50")
    I(f"v_add_u32 v50, v50, v{V_F16}")
    I(f"buffer_load_dwordx4 v[52:55], v50, s[{tbl}:{tbl+3}], 0 offen" + FL[opt.ldg])
    I("v_and_b32 v51, 0xffff0000, v48")
    I("v_lshrrev_b32 v56, 4, v49")
    I("v_lshlrev_b32 v56, 8, v56")
    I(f"v_lshlrev_b32 v57, 1, v{V_F16}")
    I("v_add_u32 v56, v56, v57")
    I(f"v_add_u32 v56, {acc_base}, v56")
    I("s_waitcnt vmcnt(0)")
    for i in range(4):
        I(f"v_lshlrev_b32 v58, 16, v{52+i}")
        I(f"v_and_b32 v59, 0xffff0000, v{52+i}")
        I("v_mul_f32 v58, v58, v51")
        I("v_mul_f32 v59, v59, v51")
        I(f"ds_add_f32 v56, v58 offset:{8*i}")
        I(f"ds_add_f32 v56, v59 offset:{8*i + 4}")
    I("s_mov_b64 exec, s[60:61]")
    I("s_add_u32 s70, s70, 8")
    I(f"s_branch {pfx}_HI")
    L(f"{pfx}_HN")
    I(f"s_add_u32 s62, s62, {nwaves}")
    I("s_cmp_lt_u32 s62, 256")
    I(f"s_cbranch_scc1 {pfx}_HC")
    I("s_waitcnt lgkmcnt(0)")
    I("s_barrier")

def heavy_read_acc(acc_base, sW):
    node_pos(sW, True)
    for vn, va in ((V_NA, V_ACC), (V_NB, V_ACC2)):
        I(f"v_lshlrev_b32 v{V_A0}, 8, v{vn}")
        I(f"v_lshlrev_b32 v{V_A1}, 1, v{V_F16}")
        I(f"v_add_u32 v{V_A0}, v{V_A0}, v{V_A1}")
        I(f"v_add_u32 v{V_A0}, {acc_base}, v{V_A0}")
        I(f"ds_read_b128 v[{va}:{va+3}], v{V_A0}")
        I(f"ds_read_b128 v[{va+4}:{va+7}], v{V_A0} offset:16")
    I("s_waitcnt lgkmcnt(0)")


def grid_arrive():
    R, SH = opt.brep, opt.bsh
    assert R * SH <= 64
    lsh = SH.bit_length() - 1
    I(f"s_and_b32 s45, s2, {SH-1}")
    I("s_lshl_b32 s45, s45, 7")
    I(f"s_add_u32 s45, s45, {WS_SYNC}")
    I(f"v_lshlrev_b32 v116, {7+lsh}, v{V_LANE}")
    I("v_add_u32 v116, s45, v116")
    I("v_mov_b32 v117, 1")
    I("s_mov_b64 s[72:73], exec")
    I(f"s_mov_b64 exec, {hex((1 << R) - 1)}")
    I("global_atomic_add v116, v117, s[6:7] sc1")
    I("s_mov_b64 exec, s[72:73]")

def grid_poll(pfx):
    R, SH = opt.brep, opt.bsh
    lsh = SH.bit_length() - 1
    I("s_mov_b64 s[72:73], exec")
    I(f"s_mov_b64 exec, {(1 << SH) - 1}")
    I(f"s_lshr_b32 s45, s2, {lsh}")
    I(f"s_and_b32 s45, s45, {R-1}")
    I(f"s_lshl_b32 s45, s45, {7+lsh}")
    I(f"s_add_u32 s45, s45, {WS_SYNC}")
    I(f"v_lshlrev_b32 v116, 7, v{V_LANE}")
    I("v_add_u32 v116, s45, v116")
    I(f"s_mov_b32 s46, {opt.spin}")
    L(f"{pfx}_POLL")
    I("global_load_dword v118, v116, s[6:7] sc1")
    I("s_waitcnt vmcnt(0)")
    for l in range(SH):
        I(f"v_readlane_b32 s{12+(l&3)}, v118, {l}")
        if l == 1: I("s_add_u32 s11, s12, s13")
        elif l > 1: I(f"s_add_u32 s11, s11, s{12+(l&3)}")
    if SH == 1: I("s_mov_b32 s11, s12")
    I("s_cmp_ge_u32 s11, 256")
    I(f"s_cbranch_scc1 {pfx}_POLLED")
    if opt.slp: I(f"s_sleep {opt.slp}")
    I("s_sub_u32 s46, s46, 1")
    I("s_cmp_eq_u32 s46, 0")
    I(f"s_cbranch_scc0 {pfx}_POLL")
    L(f"{pfx}_POLLED")
    I("s_mov_b64 exec, s[72:73]")

def release_gate(tag):
    lab, lab2 = uid("RG"), uid("RH")
    I(f"s_cmp_eq_u32 s47, 0")
    I(f"s_cbranch_scc1 {lab}")
    I("s_cmp_lg_u32 s10, 0")
    I(f"s_cbranch_scc1 {lab2}")
    I(f"s_call_b64 s[{S_RET}:{S_RET+1}], GPOLL")
    L(lab2)
    I("s_barrier")
    stamp(8, 124)
    L(lab)

def gen_k2():
    name = "sgc_prop_kernel"
    kernel_begin(name)
    I("s_cmp_ge_u32 s2, 256")
    I("s_cbranch_scc1 K2_END")
    if opt.stamps: I("s_memrealtime s[86:87]")
    I("s_load_dwordx2 s[6:7], s[0:1], 56")
    I("s_load_dwordx2 s[4:5], s[0:1], 0")
    I("s_load_dwordx4 s[32:35], s[0:1], 32")
    I("s_and_b32 s8, s2, 7")
    I("s_lshl_b32 s8, s8, 5")
    I("s_lshr_b32 s9, s2, 3")
    I("s_add_u32 s8, s8, s9")
    I("v_readfirstlane_b32 s10, v0")
    I(f"v_and_b32 v{V_LANE}, 63, v0")
    I(f"v_lshrrev_b32 v52, 4, v{V_LANE}")
    I("s_lshr_b32 s10, s10, 6")
    I("s_lshl_b32 s11, s10, 2")
    I("v_add_u32 v52, s11, v52")
    I("s_lshl_b32 s11, s8, 2")
    I("v_lshl_add_u32 v53, v52, 10, s11")
    for r in range(4):
        I(f"s_mov_b32 s{36+r}, {r*65536}")
    I("s_waitcnt lgkmcnt(0)")
    stamp_init(1, 6, 124); stamp(0, 124, 86)
    srd(16, 6, 7, NCH * 1024, WS_SEG)
    SG = lambda r: 56 + r
    for r in range(4):
        I(f"buffer_load_dword v{SG(r)}, v53, s[16:19], s{36+r} offen")
    I("v_lshlrev_b32 v40, 4, v0")
    I(f"v_mov_b32 v41, {SAFE}")
    I("v_cmp_gt_u32 vcc, 32, v0")
    I("v_mov_b32 v48, 0")
    I("v_mov_b32 v49, 0")
    I("v_cndmask_b32_e64 v44, v41, 0, vcc")
    I("v_mov_b32 v45, v44")
    I("v_mov_b32 v46, v44")
    I("v_mov_b32 v47, v44")
    I("ds_write_b128 v40, v[44:47]")
    I("v_mov_b32 v50, 0")
    I("v_mov_b32 v51, 0")
    I(f"v_cmp_gt_u32 vcc, {(K2_ZERO_END-L_CNT)//16}, v0")
    I("s_and_saveexec_b64 s[12:13], vcc")
    I(f"ds_write_b128 v40, v[48:51] offset:{L_CNT}")
    I("s_mov_b64 exec, s[12:13]")
    I(f"s_mov_b32 s14, {RECH}")
    I("v_mul_u32_u24 v54, s14, v52")
    I(f"v_and_b32 v55, 15, v{V_LANE}")
    srd(20, 6, 7, NCH * RECP, WS_RECP)
    srd(96, 6, 7, NCH * RECH, WS_RECH)
    srd(24, 4, 5, TBL_BYTES)
    srd(28, 6, 7, TBL_BYTES, WS_H1)
    for r in range(4):
        I(f"s_mov_b32 s{40+r}, {r*64*RECP}")
    nb, nc = opt.pf2b, opt.pf2c
    if nb: pf_setup(48, nb, opt.pf1 * 32 * PFU)
    if nc: pf_setup(7, nc, (opt.pf1 + nb) * 32 * PFU)
    hop_consts()
    SM = lambda t, r: 46 + (t * 4 + r) * 2
    VOFF = lambda r: 60 + r
    VR = lambda t, r: 64 + (t * 4 + r) * 2
    VK = lambda t, r: 88 + t * 4 + r
    VP = lambda t, r: 100 + (t * 4 + r) * 2
    ONE = 40
    VOFP = lambda r: 44 + r
    for r in range(4):
        I(f"s_mov_b32 s{36+r}, {r*64*RECH}")
    I("s_waitcnt vmcnt(0)")
    stamp(1, 124)
    I("s_mov_b64 s[70:71], 0")
    I("s_mov_b64 s[72:73], exec")
    for r in range(4):
        I(f"s_mov_b32 s{36+r}, {r*64*RECH}")
    IX = lambda r: 100 + r
    EN = lambda r: 104 + r
    for r in range(4):
        I(f"v_and_b32 v{IX(r)}, 0xffff, v{SG(r)}")
        I(f"v_lshrrev_b32 v{EN(r)}, 16, v{SG(r)}")
        I(f"v_add_u32 v{IX(r)}, v{IX(r)}, v55")
        I(f"v_lshl_add_u32 v{VOFF(r)}, v{IX(r)}, 1, v54")
        I(f"v_cmp_lt_u32 s[{SM(0,r)}:{SM(0,r)+1}], v{IX(r)}, v{EN(r)}")
        I(f"v_lshlrev_b32 v{VOFP(r)}, 1, v{VOFF(r)}")
        I(f"s_mov_b64 exec, s[{SM(0,r)}:{SM(0,r)+1}]")
        lab = uid("K2_SK")
        I(f"s_cbranch_execz {lab}")
        I(f"buffer_load_ushort v{VR(0,r)+1}, v{VOFF(r)}, s[96:99], s{36+r} offen" + FL[opt.ld2])
        I(f"buffer_load_dword v{VR(0,r)}, v{VOFP(r)}, s[20:23], s{40+r} offen" + FL[opt.ld2])
        L(lab)
        I("s_mov_b64 exec, s[72:73]")
    for r in range(4):
        I(f"v_add_u32 v41, 16, v{IX(r)}")
        I(f"v_cmp_lt_u32 s[{SM(1,r)}:{SM(1,r)+1}], v41, v{EN(r)}")
        I(f"v_add_u32 v42, 32, v{IX(r)}")
        I(f"v_cmp_lt_u32 s[{SM(2,r)}:{SM(2,r)+1}], v42, v{EN(r)}")
        I(f"v_add_u32 v43, 48, v{IX(r)}")
        I(f"v_cmp_lt_u32 vcc, v43, v{EN(r)}")
        I("s_or_b64 s[70:71], s[70:71], vcc")
    for r in range(4):
        lab = uid("K2_SK")
        I(f"s_mov_b64 exec, s[{SM(1,r)}:{SM(1,r)+1}]")
        I(f"s_cbranch_execz {lab}")
        I(f"buffer_load_ushort v{VR(1,r)+1}, v{VOFF(r)}, s[96:99], s{36+r} offen offset:32" + FL[opt.ld2])
        I(f"buffer_load_dword v{VR(1,r)}, v{VOFP(r)}, s[20:23], s{40+r} offen offset:64" + FL[opt.ld2])
        L(lab)
    I(f"s_or_b64 s[74:75], s[{SM(2,0)}:{SM(2,0)+1}], s[{SM(2,1)}:{SM(2,1)+1}]")
    I(f"s_or_b64 s[74:75], s[74:75], s[{SM(2,2)}:{SM(2,2)+1}]")
    I(f"s_or_b64 s[74:75], s[74:75], s[{SM(2,3)}:{SM(2,3)+1}]")
    I("s_cselect_b32 s83, 1, 0")
    I("s_cbranch_scc0 K2_NT3A")
    for r in range(4):
        lab = uid("K2_SK")
        I(f"s_mov_b64 exec, s[{SM(2,r)}:{SM(2,r)+1}]")
        I(f"s_cbranch_execz {lab}")
        I(f"buffer_load_ushort v{VR(2,r)+1}, v{VOFF(r)}, s[96:99], s{36+r} offen offset:64" + FL[opt.ld2])
        I(f"buffer_load_dword v{VR(2,r)}, v{VOFP(r)}, s[20:23], s{40+r} offen offset:128" + FL[opt.ld2])
        L(lab)
    L("K2_NT3A")
    I("s_mov_b64 exec, s[72:73]")
    I(f"v_mov_b32 v{ONE}, 1")
    I(f"v_mov_b32 v11, 32")
    I("s_waitcnt lgkmcnt(0)")
    I("s_barrier")
    I("s_waitcnt vmcnt(0)")
    pf_issue(48, V_PFD, 24, nb, 10)
    stamp(2, 124)
    for t in range(3):
        if t == 2:
            I("s_cmp_eq_u32 s83, 0")
            I("s_cbranch_scc1 K2_NT3B")
        for r in range(4):
            lab = uid("K2_SC")
            I(f"s_mov_b64 exec, s[{SM(t,r)}:{SM(t,r)+1}]")
            I(f"s_cbranch_execz {lab}")
            I(f"ds_add_rtn_u32 v{VK(t,r)}, v{VR(t,r)+1}, v11 offset:{L_CNT}")
            L(lab)
    L("K2_NT3B")
    I("s_mov_b64 exec, s[72:73]")
    I("s_cmp_eq_u64 s[70:71], 0")
    I("s_cbranch_scc1 K2_NOH")
    I(f"v_mov_b32 v41, {L_HEAVY}")
    I(f"ds_write_b32 v41, v{ONE}")
    L("K2_NOH")
    I("s_waitcnt lgkmcnt(0)")
    I("s_barrier")
    stamp(3, 124)
    I("s_cmp_lg_u32 s10, 0")
    I("s_cbranch_scc1 K2_NOSORT")
    C = lambda i, q: 100 + 4 * i + q
    KY = lambda i: 44 + i
    R2 = lambda i: 48 + i
    SL = lambda i: 52 + i
    TT = lambda i: 56 + i
    ST = lambda i: 60 + i
    A, B, Cc, Dd = 116, 117, 118, 119
    I(f"v_lshlrev_b32 v{A}, 4, v{V_LANE}")
    for i in range(4):
        I(f"ds_read_b128 v[{C(i,0)}:{C(i,3)}], v{A} offset:{L_CNT + 1024*i}")
    I("s_mov_b32 s74, 0xffff")
    I("s_mov_b32 s75, 0")
    I(f"v_lshlrev_b32 v{B}, 2, v{V_LANE}")
    I("s_movk_i32 s76, 0xc0")
    I("s_waitcnt lgkmcnt(0)")
    for i in range(4):
        I(f"v_add_u32 v{TT(i)}, v{C(i,0)}, v{C(i,1)}")
        I(f"v_add3_u32 v{TT(i)}, v{TT(i)}, v{C(i,2)}, v{C(i,3)}")
        I(f"v_lshrrev_b32 v{TT(i)}, 5, v{TT(i)}")
        I(f"v_min_u32 v{KY(i)}, 63, v{TT(i)}")
        I(f"v_lshlrev_b32 v{KY(i)}, 2, v{KY(i)}")
        if i == 3:
            I("s_mov_b64 exec, s[74:75]")
        I(f"ds_add_rtn_u32 v{R2(i)}, v{KY(i)}, v{ONE} offset:{L_H2}")
    I("s_mov_b64 exec, s[72:73]")
    I(f"ds_read_b32 v{Cc}, v{B} offset:{L_H2}")
    I("s_waitcnt lgkmcnt(0)")
    I(f"v_mov_b32 v{Dd}, v{Cc}")
    wave_scan(Dd)
    I(f"v_sub_u32 v{Dd}, v{Dd}, v{Cc}")
    I("s_nop 0")
    for i in range(4):
        I(f"ds_bpermute_b32 v{SL(i)}, v{KY(i)}, v{Dd}")
    I("s_waitcnt lgkmcnt(0)")
    for i in range(4):
        m = 12 + 2 * (i & 1)
        I(f"v_add_u32 v{R2(i)}, v{R2(i)}, v{SL(i)}")
        I(f"v_cmp_le_u32 s[{m}:{m+1}], s76, v{R2(i)}")
        I(f"v_lshrrev_b32 v{SL(i)}, 4, v{R2(i)}")
        I(f"v_lshrrev_b32 v{Cc}, 3, v{R2(i)}")
        I(f"v_subrev_u32 v{Cc}, 12, v{Cc}")
        I(f"v_mov_b32 v{ST(i)}, 2")
        I(f"v_cndmask_b32_e64 v{SL(i)}, v{SL(i)}, v{Cc}, s[{m}:{m+1}]")
        I(f"v_cndmask_b32_e64 v{ST(i)}, v{ST(i)}, 1, s[{m}:{m+1}]")
        I(f"v_lshlrev_b32 v{SL(i)}, 2, v{SL(i)}")
        I(f"v_add_u32 v{KY(i)}, {64*i}, v{V_LANE}")
        if i == 3:
            I("s_mov_b64 exec, s[74:75]")
        I(f"ds_max_u32 v{SL(i)}, v{TT(i)} offset:{L_WM}")
        I(f"ds_write_b8 v{R2(i)}, v{KY(i)} offset:{L_ORD}")
    I("s_mov_b64 exec, s[72:73]")
    I(f"ds_read_b32 v{Cc}, v{B} offset:{L_WM}")
    I(f"v_cmp_gt_u32 vcc, 12, v{V_LANE}")
    I("s_waitcnt lgkmcnt(0)")
    I(f"v_add_u32 v{Dd}, 1, v{Cc}")
    I(f"v_lshrrev_b32 v{Dd}, 1, v{Dd}")
    I(f"v_cndmask_b32 v{Cc}, v{Dd}, v{Cc}, vcc")
    I(f"v_lshlrev_b32 v{Dd}, 6, v{Cc}")
    I(f"v_mov_b32 v{A}, v{Dd}")
    wave_scan(A, 16)
    I("s_nop 1")
    I(f"v_readlane_b32 s76, v{A}, 15")
    I(f"v_sub_u32 v{A}, v{A}, v{Dd}")
    I(f"v_add_u32 v{A}, {L_LIST}, v{A}")
    I("s_nop 0")
    for i in range(4):
        I(f"ds_bpermute_b32 v{SL(i)}, v{SL(i)}, v{A}")
    I(f"v_cmp_gt_u32 vcc, 16, v{V_LANE}")
    I("s_and_saveexec_b64 s[12:13], vcc")
    I(f"ds_write_b32 v{B}, v{A} offset:{L_WB}")
    I(f"ds_write_b32 v{B}, v{Cc} offset:{L_SU}")
    I("s_mov_b64 exec, s[12:13]")
    I(f"s_cmp_le_u32 s76, {LIST_CAP}")
    I("s_cbranch_scc1 K2_CAPOK")
    I(f"v_mov_b32 v41, {L_HEAVY}")
    I(f"ds_write_b32 v41, v{ONE}")
    L("K2_CAPOK")
    I("s_waitcnt lgkmcnt(0)")
    for i in range(4):
        I(f"v_lshlrev_b32 v{A}, 3, v{ST(i)}")
        I(f"v_subrev_u32 v{A}, 1, v{A}")
        I(f"v_and_b32 v{A}, v{A}, v{R2(i)}")
        I(f"v_lshl_add_u32 v{SL(i)}, v{A}, 2, v{SL(i)}")
        I(f"v_add_u32 v{A}, v{C(i,0)}, v{C(i,1)}")
        I(f"v_add_u32 v{Cc}, v{A}, v{C(i,2)}")
        I(f"v_mad_u32_u24 v{C(i,1)}, v{C(i,0)}, v{ST(i)}, v{SL(i)}")
        I(f"v_mad_u32_u24 v{C(i,2)}, v{A}, v{ST(i)}, v{SL(i)}")
        I(f"v_mad_u32_u24 v{C(i,3)}, v{Cc}, v{ST(i)}, v{SL(i)}")
        I(f"v_mov_b32 v{C(i,0)}, v{SL(i)}")
        I(f"v_lshlrev_b32 v{KY(i)}, 4, v{KY(i)}")
        if i == 3:
            I("s_mov_b64 exec, s[74:75]")
        I(f"ds_write_b128 v{KY(i)}, v[{C(i,0)}:{C(i,3)}] offset:{L_NBQ}")
    I("s_mov_b64 exec, s[72:73]")
    I("s_waitcnt lgkmcnt(0)")
    L("K2_NOSORT")
    I("s_barrier")
    stamp(4, 124)
    I(f"v_mov_b32 v41, {L_HEAVY}")
    I("ds_read_b32 v41, v41")
    I(f"v_mov_b32 v42, {L_WB + 48}")
    I("ds_read_b32 v42, v42")
    VP1 = lambda t, r: 100 + t * 4 + r
    for t in range(3):
        if t == 2:
            I("s_cmp_eq_u32 s83, 0")
            I("s_cbranch_scc1 K2_NT3C")
        for r in range(4):
            lab = uid("K2_SP")
            I(f"s_mov_b64 exec, s[{SM(t,r)}:{SM(t,r)+1}]")
            I(f"s_cbranch_execz {lab}")
            I(f"ds_read_b32 v{VP1(t,r)}, v{VR(t,r)+1} offset:{L_NBQ}")
            L(lab)
    L("K2_NT3C")
    I("s_mov_b64 exec, s[72:73]")
    I("s_waitcnt lgkmcnt(0)")
    I("v_readfirstlane_b32 s77, v41")
    I("s_cmp_lg_u32 s77, 0")
    I("s_cbranch_scc1 K2_NOPLACE")
    for t in range(3):
        if t == 2:
            I("s_cmp_eq_u32 s83, 0")
            I("s_cbranch_scc1 K2_NT3D")
        for r in range(4):
            lab = uid("K2_SW")
            I(f"s_mov_b64 exec, s[{SM(t,r)}:{SM(t,r)+1}]")
            I(f"s_cbranch_execz {lab}")
            I(f"v_sub_u32 v43, v{VP1(t,r)}, v42")
            I(f"v_lshrrev_b32 v43, 31, v43")
            I(f"v_lshl_add_u32 v43, v{VK(t,r)}, v43, v{VP1(t,r)}")
            I(f"ds_write_b32 v43, v{VR(t,r)}")
            L(lab)
    L("K2_NT3D")
    I("s_mov_b64 exec, s[72:73]")
    L("K2_NOPLACE")
    I("s_waitcnt lgkmcnt(0)")
    I("s_barrier")
    stamp(5, 124)
    if nc: pf_issue(7, V_PFD, 24, nc, 10)
    S_PH, S_SCR = 47, 83
    I(f"s_mov_b32 s{S_PH}, 0")
    I(f"s_cmp_lt_u32 s10, {NWORK}")
    I("s_cbranch_scc1 K2_KEEP")
    I("s_cmp_eq_u32 s77, 0")
    I("s_cbranch_scc1 K2_END")
    L("K2_KEEP")
    srd(16, 32, 33, 8192)
    I("v_lshlrev_b32 v110, 4, v0")
    I("buffer_load_dwordx4 v[112:115], v110, s[16:19], 0 offen")
    L("K2_PHASE")
    I("s_cmp_eq_u32 s77, 0")
    I("s_cbranch_scc1 K2_FAST")
    release_gate("v")
    heavy_path("K2H", 24, 6, 20, 96, 8, 10, K2_ACC, 16)
    heavy_read_acc(K2_ACC, 10)
    I("s_cmp_lt_u32 s10, 13")
    I("s_cbranch_scc1 K2_DONE")
    I(f"s_cmp_lg_u32 s{S_PH}, 0")
    I("s_cbranch_scc1 K2_END")
    I(f"v_mov_b32 v{V_NA}, 0xff")
    I(f"v_mov_b32 v{V_NB}, 0xff")
    I("s_branch K2_DONE")
    L("K2_FAST")
    hop_header(10, 41)
    hop_wave("K2S", 24, 10, release_gate)
    split_fix("K2S", 10)
    L("K2_DONE")
    I(f"s_cmp_lg_u32 s{S_PH}, 0")
    I("s_cbranch_scc1 K2_GEMM")
    stamp(6, 124)
    I("s_lshl_b32 s45, s8, 7")
    for vn, va, t0, ad in ((V_NA, V_ACC, V_T, V_A0), (V_NB, V_ACC2, V_RC, V_A1)):
        for i in range(4):
            I(f"v_cvt_pk_bf16_f32 v{t0+i}, v{va+2*i}, v{va+2*i+1}")
        I(f"v_lshlrev_b32 v{ad}, 15, v{vn}")
        I(f"v_add3_u32 v{ad}, v{ad}, s45, v{V_F16}")
        I(f"buffer_store_dwordx4 v[{t0}:{t0+3}], v{ad}, s[28:31], 0 offen" + FL[opt.st2])
    E_SW, E_AB0, E_AB1, E_AW, E_BP, E_KB = 104, 105, 106, 107, 108, 109
    WF = 72
    I("v_cmp_gt_u32 vcc, 0x200, v0")
    I("s_and_saveexec_b64 s[72:73], vcc")
    I(f"ds_write_b128 v110, v[112:115] offset:{L_WL}")
    I("s_mov_b64 exec, s[72:73]")
    I(f"s_lshl_b32 s{S_SCR}, s10, 11")
    I(f"s_add_u32 s{S_SCR}, s{S_SCR}, {L_SCR}")
    I(f"v_lshlrev_b32 v60, 2, v{V_G4}")
    I(f"v_xor_b32 v61, v60, v{V_F16}")
    I(f"v_lshlrev_b32 v60, 3, v60")
    I(f"v_add3_u32 v{E_SW}, v60, v61, s{S_SCR}")
    I(f"v_and_b32 v60, 15, v{V_LANE}")
    I(f"v_lshrrev_b32 v{E_KB}, 4, v{V_LANE}")
    I(f"v_and_b32 v61, 7, v60")
    I(f"v_lshlrev_b32 v{E_BP}, 5, v61")
    I(f"v_xor_b32 v62, v{E_KB}, v61")
    I(f"v_lshlrev_b32 v62, 4, v62")
    I(f"v_lshlrev_b32 v63, 7, v60")
    I(f"v_add3_u32 v{E_AB0}, v63, s{S_SCR}, v62")
    I(f"v_xor_b32 v62, 64, v62")
    I(f"v_add3_u32 v{E_AB1}, v63, s{S_SCR}, v62")
    I(f"v_lshrrev_b32 v62, 2, v60")
    I(f"v_lshl_add_u32 v62, v{E_KB}, 3, v62")
    I(f"v_lshlrev_b32 v62, 7, v62")
    I(f"v_and_b32 v63, 3, v{V_LANE}")
    I(f"v_lshl_add_u32 v{E_AW}, v63, 4, v62")
    I(f"v_cmp_gt_u32 s[74:75], 8, v60")
    I(f"v_lshlrev_b32 v{E_KB}, 4, v{E_KB}")
    for i in range(8):
        I(f"v_mov_b32 v{V_ACC+i}, 0")
        I(f"v_mov_b32 v{V_ACC2+i}, 0")
    srd(24, 6, 7, TBL_BYTES, WS_H1)
    I("s_waitcnt vmcnt(0) lgkmcnt(0)")
    srd(28, 34, 35, TBL_BYTES)
    stamp(7, 124)
    I("s_barrier")
    I("s_cmp_lg_u32 s10, 0")
    I("s_cbranch_scc1 K2_NOPOLL")
    grid_arrive()
    L("K2_NOPOLL")
    for t in range(4):
        for s in range(2):
            for hh in range(2):
                off = L_WL + s * 4096 + hh * 512 + (t >> 1) * 64 + (t & 1) * 8
                d = WF + (t * 2 + s) * 4 + 2 * hh
                I(f"ds_read_b64_tr_b16 v[{d}:{d+1}], v{E_AW} offset:{off}")
    I(f"s_mov_b32 s{S_PH}, 1")
    I("s_branch K2_PHASE")
    L("K2_GEMM")
    stamp(9, 124)
    E_OUT = E_AW
    I(f"ds_bpermute_b32 v110, v{E_BP}, v{V_NA}")
    I(f"ds_bpermute_b32 v111, v{E_BP}, v{V_NB}")
    for va, t0, off in ((V_ACC, V_T, 0), (V_ACC2, V_RC, 1024)):
        for i in range(4):
            I(f"v_cvt_pk_bf16_f32 v{t0+i}, v{va+2*i}, v{va+2*i+1}")
        I(f"ds_write_b128 v{E_SW}, v[{t0}:{t0+3}] offset:{off}")
    B0, B1 = 40, 44
    I(f"ds_read_b128 v[{B0}:{B0+3}], v{E_AB0}")
    I(f"ds_read_b128 v[{B1}:{B1+3}], v{E_AB1}")
    DD = 56
    I("s_lshl_b32 s45, s8, 7")
    I("s_waitcnt lgkmcnt(1)")
    I(f"v_cndmask_b32_e64 v110, v111, v110, s[74:75]")
    for t in range(4):
        a = WF + (t * 2) * 4
        I(f"v_mfma_f32_16x16x32_bf16 v[{DD+4*t}:{DD+4*t+3}], v[{a}:{a+3}], v[{B0}:{B0+3}], 0")
    I(f"v_lshlrev_b32 v110, 15, v110")
    I("s_waitcnt lgkmcnt(0)")
    for t in range(4):
        a = WF + (t * 2 + 1) * 4
        I(f"v_mfma_f32_16x16x32_bf16 v[{DD+4*t}:{DD+4*t+3}], v[{a}:{a+3}], v[{B1}:{B1+3}], v[{DD+4*t}:{DD+4*t+3}]")
    I(f"v_add3_u32 v{E_OUT}, v110, s45, v{E_KB}")
    O = 48
    I("s_nop 4")
    for half in range(2):
        for k in range(2):
            t = half * 2 + k
            if t == 3: I("s_nop 1")
            I(f"v_cvt_pk_bf16_f32 v{O+half*4+2*k}, v{DD+4*t}, v{DD+4*t+1}")
            I(f"v_cvt_pk_bf16_f32 v{O+half*4+2*k+1}, v{DD+4*t+2}, v{DD+4*t+3}")
        I(f"buffer_store_dwordx4 v[{O+half*4}:{O+half*4+3}], v{E_OUT}, s[28:31], 0 offen" + (" offset:64" if half else "") + FL[opt.st3])
    stamp(10, 124)
    if opt.stamps:
        I("s_waitcnt vmcnt(0)")
        stamp(11, 124)
    L("K2_END")
    I("s_endpgm")
    hop_subs("K2S")
    L("GPOLL")
    grid_poll("G2")
    I(f"s_setpc_b64 s[{S_RET}:{S_RET+1}]")
    I("s_endpgm")
    return name, 128, 102

HEADER = f"""; Kernarg layout for this problem (64 bytes, ptrs only, base s[0:1]):
; @launch kernel=sgc_part_kernel grid=(256,1,1) block=(K1BLK,1,1) lds={K1_LDS}
; @launch kernel=sgc_prop_kernel grid=(256,1,1) block=(1024,1,1) lds=K2LDS
.amdgcn_target "amdgcn-amd-amdhsa--gfx950"
.text"""

def main():
    for a in sys.argv[2:]:
        k, v = a.split("=")
        assert hasattr(opt, k), k
        setattr(opt, k, int(v))
    h = HEADER.replace("K2LDS", str(K2_LDS)).replace("K1BLK", "832" if opt.k1v == 1 else "448")
    emit(h)
    ks = [gen_k1(), gen_k2()]
    emit('.section .rodata,"a"')
    emit(".p2align 6")
    for (n, v, s) in ks:
        kernel_desc(n, v, s)
        emit(".p2align 6")
    open(sys.argv[1], "w").write("\n".join(out) + "\n")

main()
```

```python
import sys

N = 50000
E = 850000
CH = 3328
NCH = 256
RECP = CH * 4
RECH = CH * 2
WS_SEG = 0
WS_RECP = 0x40000
WS_RECH = 0x380000
WS_IMG = 0x6C0000
WS_H1 = 0xC00000
WS_SYNC = 0x600000
TBL_BYTES = N * 128
SAFE = 0x0000FFFF

class Opt:
    D = 4
    R = 8
    skew = 0
    pf1 = 0
    pf2b = 4
    pf2c = 0
    pf3 = 2
    pf3c = 0
    stamps = 0
    st1 = 1
    st2 = 1
    st2i = 1
    st3 = 1
    dbg = 0
    rst = 0
    nbar = 6
    pfs = 0
    pfsr = 2
    pfs3 = 0
    ld1 = 3
    ld2 = 0
    ld3 = 0
    skip3 = 0
    k1v = 1
    ldg = 1
    spin = 16000000
    brep = 16
    pfpos = 1
    poll2 = 0
    own = 0
    cpf = 0
    cpfn = 2
    lateinit = 0
    payafter = 1
    tlb = 0
    bsh = 4
    slp = 6
    smalllds = 0
    k3w = 16

opt = Opt()
out = []
def emit(s=""): out.append(s)
def I(s): out.append("    " + s)
def L(s): out.append(s + ":")
_uid = [0]
def uid(p):
    _uid[0] += 1
    return f"{p}_{_uid[0]}"

FL = ['', ' sc1', ' sc0 sc1', ' nt', ' sc0']
def srd(s, lo, hi, size, add=0):
    if add:
        I(f"s_add_u32 s{s}, s{lo}, {add}")
        I(f"s_addc_u32 s{s+1}, s{hi}, 0")
        I(f"s_and_b32 s{s+1}, s{s+1}, 0xffff")
    else:
        I(f"s_mov_b32 s{s}, s{lo}")
        I(f"s_and_b32 s{s+1}, s{hi}, 0xffff")
    I(f"s_mov_b32 s{s+2}, {size}")
    I(f"s_mov_b32 s{s+3}, 0x20000")

def wave_scan(v, n=64):
    for sh in (1, 2, 4, 8):
        I("s_nop 1")
        I(f"v_add_u32_dpp v{v}, v{v}, v{v} row_shr:{sh} row_mask:0xf bank_mask:0xf")
    if n > 16:
        I("s_nop 1")
        I(f"v_add_u32_dpp v{v}, v{v}, v{v} row_bcast:15 row_mask:0xa bank_mask:0xf")
        I("s_nop 1")
        I(f"v_add_u32_dpp v{v}, v{v}, v{v} row_bcast:31 row_mask:0xc bank_mask:0xf")

STAMP_OFF = 0x2000000
def stamp_init(kidx, ws_lo, vbase):
    if not opt.stamps: return
    I(f"v_lshrrev_b32 v{vbase}, 6, v0")
    I(f"s_lshl_b32 s92, s2, 4")
    I(f"s_add_u32 s92, s92, {kidx*256*16}")
    I(f"v_add_u32 v{vbase}, s92, v{vbase}")
    I(f"v_lshlrev_b32 v{vbase}, 7, v{vbase}")
    I(f"v_add_u32 v{vbase}, {STAMP_OFF}, v{vbase}")
    I(f"s_mov_b32 s94, s{ws_lo}")
    I(f"s_mov_b32 s95, s{ws_lo+1}")
def stamp(j, vbase, pre=None):
    if not opt.stamps: return
    if pre is None:
        I("s_memrealtime s[90:91]")
        I("s_waitcnt lgkmcnt(0)")
    else:
        I(f"s_mov_b32 s90, s{pre}")
        I(f"s_mov_b32 s91, s{pre+1}")
    I("s_mov_b64 s[88:89], exec")
    I("s_mov_b64 exec, 1")
    I(f"v_mov_b32 v{vbase+2}, s90")
    I(f"v_mov_b32 v{vbase+3}, s91")
    I(f"global_store_dwordx2 v{vbase}, v[{vbase+2}:{vbase+3}], s[94:95] offset:{8*j}")
    I("s_mov_b64 exec, s[88:89]")

def kernel_begin(name):
    emit(f".globl {name}")
    emit(".p2align 8")
    emit(f".type {name},@function")
    L(name)

def kernel_desc(name, vgpr, sgpr):
    acc = (vgpr + 3) // 4 * 4
    emit(f".amdhsa_kernel {name}")
    emit(f"  .amdhsa_next_free_vgpr {vgpr}")
    emit(f"  .amdhsa_next_free_sgpr {sgpr}")
    emit(f"  .amdhsa_accum_offset {acc}")
    emit("  .amdhsa_group_segment_fixed_size 0")
    emit("  .amdhsa_kernarg_size 64")
    emit("  .amdhsa_user_sgpr_count 2")
    emit("  .amdhsa_user_sgpr_kernarg_segment_ptr 1")
    emit("  .amdhsa_system_sgpr_workgroup_id_x 1")
    emit(".end_amdhsa_kernel")

PFU = 8192
def pf_setup(vaddr, n, base_bytes):
    I("s_lshr_b32 s15, s2, 3")
    I(f"s_mul_i32 s15, s15, {n*PFU}")
    if base_bytes: I(f"s_add_u32 s15, s15, {base_bytes}")
    I(f"v_lshlrev_b32 v{vaddr}, 7, v0")
    I(f"v_add_u32 v{vaddr}, s15, v{vaddr}")
def pf_issue(vaddr, vdst, tbl, n, sW, nw=16):
    rounds = (n + nw - 1) // nw
    for i in range(rounds):
        cnt = min(nw, n - nw * i)
        lab = uid("PF")
        if cnt < nw:
            I(f"s_cmp_ge_u32 s{sW}, {cnt}")
            I(f"s_cbranch_scc1 {lab}")
        I(f"s_mov_b32 s15, {i*nw*PFU}")
        I(f"buffer_load_dword v{vdst}, v{vaddr}, s[{tbl}:{tbl+3}], s15 offen")
        L(lab)

def pf_stream(tbl, sW, nunits, base_bytes, per_round, vaddr, nrounds_max):
    I("s_lshr_b32 s15, s2, 3")
    I(f"s_mul_i32 s15, s15, {nunits*PFU}")
    I(f"s_add_u32 s15, s15, {base_bytes}")
    I(f"s_sub_u32 s14, s{sW}, {NWORK}")
    I(f"s_mul_i32 s14, s14, {PFU}")
    I("s_add_u32 s15, s15, s14")
    I(f"v_lshlrev_b32 v{vaddr}, 7, v{V_LANE}")
    I(f"v_add_u32 v{vaddr}, s15, v{vaddr}")
    k = 0
    nsteps = (nunits + 1) // 2
    rnd = 0
    while k < nsteps:
        for _ in range(per_round):
            if k >= nsteps: break
            I(f"s_mov_b32 s15, {k*2*PFU}")
            I(f"buffer_load_dword v{V_PFD}, v{vaddr}, s[{tbl}:{tbl+3}], s15 offen")
            k += 1
        rnd += 1
        if k < nsteps and rnd <= nrounds_max:
            I("s_barrier")

K1_HIST = 0
K1_PRE = 1024
K1_STP = 2048
K1_STH = K1_STP + RECP
K1_LDS = K1_STH + RECH

def gen_k1():
    name = "sgc_part_kernel"
    V = opt.k1v
    NT = 832 // V
    kernel_begin(name)
    I("s_cmp_ge_u32 s2, 256")
    I("s_cbranch_scc1 K1_END")
    if opt.cpf:
        I("v_readfirstlane_b32 s15, v0")
        I("s_lshr_b32 s15, s15, 6")
        I("s_cmp_lt_u32 s15, 13")
        I("s_cbranch_scc1 K1_MAIN")
        I(f"s_cmp_ge_u32 s2, {opt.cpf}")
        I("s_cbranch_scc1 K1_END")
        I("s_getpc_b64 s[48:49]")
        L("CPF_PC")
        I("s_add_u32 s48, s48, sgc_prop_kernel - CPF_PC")
        I("s_addc_u32 s49, s49, 0")
        I("v_and_b32 v90, 63, v0")
        I("v_lshlrev_b32 v90, 7, v90")
        I("v_cmp_gt_u32 vcc, K2_CODE_END - sgc_prop_kernel, v90")
        I("s_and_saveexec_b64 s[12:13], vcc")
        I("s_cbranch_execz K1_END")
        I("global_load_dword v91, v90, s[48:49]")
        I("s_endpgm")
        L("K1_MAIN")
    if opt.stamps: I("s_memrealtime s[86:87]")
    I("s_load_dwordx4 s[4:7], s[0:1], 8")
    I("s_load_dwordx2 s[8:9], s[0:1], 24")
    I("s_load_dwordx2 s[10:11], s[0:1], 56")
    I(f"s_mul_i32 s3, s2, {CH}")
    I("v_lshl_add_u32 v1, v0, 2, s3")
    I("v_lshlrev_b32 v2, 2, v1")
    I("v_lshlrev_b32 v3, 1, v1")
    I("v_mov_b32 v4, 0")
    I("v_lshlrev_b32 v5, 2, v0")
    I("v_cmp_gt_u32 vcc, 0x100, v0")
    I("s_and_saveexec_b64 s[12:13], vcc")
    I(f"ds_write_b32 v5, v4 offset:{K1_HIST}")
    I("s_mov_b64 exec, s[12:13]")
    I("v_readfirstlane_b32 s15, v0")
    I("s_waitcnt lgkmcnt(0)")
    stamp_init(0, 10, 124); stamp(0, 124, 86)
    srd(16, 6, 7, E * 4)
    D = lambda g, i: 8 + 16 * g + i
    S = lambda g, i: 12 + 16 * g + i
    NR = lambda g, i: 16 + 16 * g + i
    HA = lambda g, i: 40 + 4 * g + i
    RK = lambda g, i: 48 + 4 * g + i
    PL = lambda g, i: 56 + 4 * g + i
    HI = lambda g, i: 64 + 4 * g + i
    for g in range(V):
        I(f"s_mov_b32 s{40+g}, {g*NT*16}")
        I(f"buffer_load_dwordx4 v[{D(g,0)}:{D(g,3)}], v2, s[16:19], s{40+g} offen" + FL[opt.ld1])
    srd(20, 4, 5, E * 4)
    srd(24, 8, 9, E * 2)
    for g in range(V):
        I(f"s_mov_b32 s{42+g}, {g*NT*8}")
        I(f"buffer_load_dwordx4 v[{S(g,0)}:{S(g,3)}], v2, s[20:23], s{40+g} offen" + FL[opt.ld1])
        I(f"buffer_load_dwordx2 v[{NR(g,0)}:{NR(g,1)}], v3, s[24:27], s{42+g} offen" + FL[opt.ld1])
    I("s_lshr_b32 s46, s15, 6")
    I("s_or_b32 s14, s2, s46")
    I("s_cmp_lg_u32 s14, 0")
    I("s_cbranch_scc1 K1_NOZ")
    I("v_lshlrev_b32 v7, 7, v0")
    I(f"v_add_u32 v7, {WS_SYNC}, v7")
    I("global_store_dword v7, v4, s[10:11] sc1")
    I("s_waitcnt vmcnt(0)")
    L("K1_NOZ")
    npf = 0
    if opt.pf1:
        I("s_load_dwordx2 s[48:49], s[0:1], 0")
        I("s_lshr_b32 s15, s2, 3")
        I(f"s_mul_i32 s15, s15, {opt.pf1*PFU}")
        I(f"s_cmp_lt_u32 s46, {opt.pf1}")
        I("s_cselect_b32 s15, s15, 0x40000000")
        I("v_lshlrev_b32 v90, 7, v0")
        I("v_add_u32 v90, s15, v90")
        I("s_waitcnt lgkmcnt(0)")
        srd(64, 48, 49, TBL_BYTES)
        I("buffer_load_dword v91, v90, s[64:67], 0 offen")
        npf = 1
    srd(28, 10, 11, NCH * 1024, WS_SEG)
    srd(32, 10, 11, NCH * RECP, WS_RECP)
    srd(52, 10, 11, NCH * RECH, WS_RECH)
    I("s_mov_b32 s36, 0xffff0000")
    I("s_mov_b32 s37, 21474")
    I("s_mov_b64 s[12:13], exec")
    I(f"v_cmp_gt_u32 s[56:57], {NT if NT <= 64 else 's14'}, v0") if False else None
    I(f"s_mov_b32 s14, {NT}")
    I("v_cmp_gt_u32 s[56:57], s14, v0")
    for g in range(V):
        I(f"s_mov_b32 s14, {E - g*NT*4}")
        I(f"v_cmp_gt_u32 s[{58+2*g}:{59+2*g}], s14, v1")
        I(f"s_and_b64 s[{58+2*g}:{59+2*g}], s[{58+2*g}:{59+2*g}], s[56:57]")
    I("v_mov_b32 v6, 1")
    I("s_barrier")
    for g in range(V):
        I(f"s_waitcnt vmcnt({(V - 1 - g) + 2*V + npf})")
        if g == 0: stamp(1, 124)
        I(f"s_mov_b64 exec, s[{58+2*g}:{59+2*g}]")
        for i in range(4):
            I(f"v_and_b32 v{HA(g,i)}, 0xff, v{D(g,i)}")
            I(f"v_lshlrev_b32 v{HA(g,i)}, 2, v{HA(g,i)}")
        for i in range(4):
            I(f"ds_add_rtn_u32 v{RK(g,i)}, v{HA(g,i)}, v6 offset:{K1_HIST}")
    I("s_mov_b64 exec, s[12:13]")
    for g in range(V):
        I(f"s_waitcnt vmcnt({2*(V-1-g) + npf})")
        I(f"v_lshl_or_b32 v{PL(g,0)}, v{NR(g,0)}, 16, v{S(g,0)}")
        I(f"v_and_or_b32 v{PL(g,1)}, v{NR(g,0)}, s36, v{S(g,1)}")
        I(f"v_lshl_or_b32 v{PL(g,2)}, v{NR(g,1)}, 16, v{S(g,2)}")
        I(f"v_and_or_b32 v{PL(g,3)}, v{NR(g,1)}, s36, v{S(g,3)}")
        for i in range(4):
            I(f"v_mul_u32_u24 v7, s37, v{S(g,i)}")
            I("v_lshrrev_b32 v7, 26, v7")
            I("v_and_b32 v7, 12, v7")
            I(f"v_lshrrev_b32 v{HI(g,i)}, 8, v{D(g,i)}")
            I(f"v_lshl_or_b32 v{HI(g,i)}, v{HI(g,i)}, 4, v7")
    I("s_waitcnt lgkmcnt(0)")
    I("s_barrier")
    I("s_cmp_lg_u32 s46, 0")
    I("s_cbranch_scc1 K1_NOSCAN")
    I("v_lshlrev_b32 v5, 4, v0")
    I(f"ds_read_b128 v[72:75], v5 offset:{K1_HIST}")
    I("s_waitcnt lgkmcnt(0)")
    I("v_add_u32 v76, v72, v73")
    I("v_add_u32 v77, v76, v74")
    I("v_add_u32 v78, v77, v75")
    I("v_mov_b32 v79, v78")
    wave_scan(79)
    I("v_sub_u32 v80, v79, v78")
    I("v_add_u32 v81, v80, v72")
    I("v_add_u32 v82, v80, v76")
    I("v_add_u32 v83, v80, v77")
    I(f"ds_write_b128 v5, v[80:83] offset:{K1_PRE}")
    I("v_lshl_or_b32 v72, v81, 16, v80")
    I("v_lshl_or_b32 v73, v82, 16, v81")
    I("v_lshl_or_b32 v74, v83, 16, v82")
    I("v_lshl_or_b32 v75, v79, 16, v83")
    I("s_lshl_b32 s37, s2, 10")
    I("buffer_store_dwordx4 v[72:75], v5, s[28:31], s37 offen" + FL[opt.st1])
    I("s_waitcnt lgkmcnt(0)")
    L("K1_NOSCAN")
    I("s_barrier")
    for g in range(V):
        I(f"s_mov_b64 exec, s[{58+2*g}:{59+2*g}]")
        for i in range(4):
            I(f"ds_read_b32 v{HA(g,i)}, v{HA(g,i)} offset:{K1_PRE}")
    for g in range(V):
        I(f"s_mov_b64 exec, s[{58+2*g}:{59+2*g}]")
        I(f"s_waitcnt lgkmcnt({4*(V-1-g) if g < V-1 else 0})" if False else "s_waitcnt lgkmcnt(0)")
        for i in range(4):
            I(f"v_add_u32 v{HA(g,i)}, v{HA(g,i)}, v{RK(g,i)}")
            I(f"v_lshlrev_b32 v{RK(g,i)}, 2, v{HA(g,i)}")
            I(f"v_lshlrev_b32 v{HA(g,i)}, 1, v{HA(g,i)}")
            I(f"ds_write_b32 v{RK(g,i)}, v{PL(g,i)} offset:{K1_STP}")
            I(f"ds_write_b16 v{HA(g,i)}, v{HI(g,i)} offset:{K1_STH}")
    I("s_mov_b64 exec, s[12:13]")
    I("s_waitcnt lgkmcnt(0)")
    I("s_barrier")
    I("v_lshlrev_b32 v5, 4, v0")
    I(f"s_mul_i32 s37, s2, {RECP}")
    I(f"s_mul_i32 s42, s2, {RECH}")
    I("s_mov_b64 exec, s[56:57]")
    for g in range(V):
        I(f"ds_read_b128 v[{8+4*g}:{11+4*g}], v5 offset:{K1_STP + g*NT*16}")
    if V == 2:
        I(f"ds_read_b128 v[16:19], v5 offset:{K1_STH}")
    else:
        I(f"s_mov_b32 s14, {RECH//16}")
        I("v_cmp_gt_u32 vcc, s14, v0")
        I("s_mov_b64 exec, vcc")
        I(f"ds_read_b128 v[16:19], v5 offset:{K1_STH}")
        I("s_mov_b64 exec, s[56:57]")
    I("s_cbranch_execz K1_FIN")
    for g in range(V):
        I(f"s_waitcnt lgkmcnt({V - g})")
        if g: I(f"s_add_u32 s37, s37, {NT*16}")
        I(f"buffer_store_dwordx4 v[{8+4*g}:{11+4*g}], v5, s[32:35], s37 offen" + FL[opt.st1])
    I("s_waitcnt lgkmcnt(0)")
    if V == 1:
        I("s_mov_b64 exec, vcc")
        I("s_cbranch_execz K1_FIN")
    I("buffer_store_dwordx4 v[16:19], v5, s[52:55], s42 offen" + FL[opt.st1])
    L("K1_FIN")
    I("s_mov_b64 exec, s[12:13]")
    stamp(2, 124)
    if opt.stamps:
        I("s_waitcnt vmcnt(0)")
        stamp(3, 124)
    L("K1_END")
    I("s_endpgm")
    return name, (128 if opt.stamps else 96), (102 if opt.stamps else 72)

L_SU = 0x000
L_WB = 0x040
L_ORD = 0x120
L_HEAVY = 0x1F0
L_LN = 0x20000
LN_CAP = 0x4000
L_LS = 0x10000
LS_CAP = 0x1000
L_CNT = 0x4000
L_H2 = 0x5000
L_WM = 0x5200
K2_ZERO_END = 0x5400
L_NBQ = 0x5400
L_WL = 0x6400
L_SCR = 0x8400
K2_ACC = 0xF400
ACC_BYTES = 208 * 256
K2_LDS = L_LN + LN_CAP
assert K2_ACC + ACC_BYTES <= L_LN
NWORK = 14

V_LANE = 1
V_G4 = 2
V_F16 = 3
V_SELA = 4
V_SELB = 5
V_PTRC = 6
V_PTRI = 7
V_NA = 8
V_NB = 9
V_A0 = 10
V_A1 = 11
V_ACC = 12
V_ACC2 = 20
V_T = 28
V_RC = 32
V_RI = 36
V_DATA = 40
S_T, S_R, S_PACE, S_DR, S_REM = 78, 79, 80, 81, 82
S_NB = 76
S_RET = 84
S_128 = 44
V_PFD = 125

def hop_consts():
    I(f"v_lshrrev_b32 v{V_G4}, 3, v{V_LANE}")
    I(f"v_lshlrev_b32 v{V_G4}, 2, v{V_G4}")
    I(f"v_and_b32 v{V_F16}, 7, v{V_LANE}")
    I(f"v_lshlrev_b32 v{V_F16}, 4, v{V_F16}")
    I(f"v_and_b32 v{V_PTRC}, 3, v{V_LANE}")
    I(f"v_mov_b32 v{V_SELA}, 0x0c0c0c0c")
    I(f"v_mov_b32 v{V_SELB}, 0x0c0c0c0c")
    I(f"v_mov_b32 v{V_A0}, 0x0c0c0302")
    I(f"v_mov_b32 v{V_A1}, 0x03020c0c")
    for val, sel, lit in ((0, V_SELA, V_A0), (1, V_SELA, V_A1), (2, V_SELB, V_A0), (3, V_SELB, V_A1)):
        I(f"v_cmp_eq_u32 vcc, {val}, v{V_PTRC}")
        I("s_nop 1")
        I(f"v_cndmask_b32 v{sel}, v{sel}, v{lit}, vcc")
    I(f"s_mov_b32 s{S_128}, 128")
    for i in range(8):
        I(f"v_mov_b32 v{V_ACC+i}, 0")
        I(f"v_mov_b32 v{V_ACC2+i}, 0")

def rd2(dst, ptr, unit):
    o = unit * 16
    assert o + 8 <= 255
    I(f"ds_read2_b32 v[{dst}:{dst+1}], v{ptr} offset0:{o} offset1:{o+8}")

def perms(p):
    rc = V_RC + 2 * p
    I(f"v_perm_b32 v{V_T+0}, v{rc}, v{rc}, v{V_SELA}")
    I(f"v_perm_b32 v{V_T+1}, v{rc}, v{rc}, v{V_SELB}")
    I(f"v_perm_b32 v{V_T+2}, v{rc+1}, v{rc+1}, v{V_SELA}")
    I(f"v_perm_b32 v{V_T+3}, v{rc+1}, v{rc+1}, v{V_SELB}")

def mfmas(r):
    d = V_DATA + 8 * r
    a, b = V_ACC, V_ACC2
    I(f"v_mfma_f32_4x4x4_16b_bf16 v[{a}:{a+3}], v[{V_T}:{V_T+1}], v[{d}:{d+1}], v[{a}:{a+3}]")
    I(f"v_mfma_f32_4x4x4_16b_bf16 v[{a+4}:{a+7}], v[{V_T}:{V_T+1}], v[{d+2}:{d+3}], v[{a+4}:{a+7}]")
    I(f"v_mfma_f32_4x4x4_16b_bf16 v[{b}:{b+3}], v[{V_T+2}:{V_T+3}], v[{d+4}:{d+5}], v[{b}:{b+3}]")
    I(f"v_mfma_f32_4x4x4_16b_bf16 v[{b+4}:{b+7}], v[{V_T+2}:{V_T+3}], v[{d+6}:{d+7}], v[{b+4}:{b+7}]")

def pace_check(pfx):
    if opt.R <= 1: return
    lab = uid(pfx + "_PC")
    I(f"s_add_u32 s{S_PACE}, s{S_PACE}, s{S_R}")
    I(f"s_cmp_lt_u32 s{S_PACE}, s{S_T}")
    I(f"s_cbranch_scc1 {lab}")
    I(f"s_call_b64 s[{S_RET}:{S_RET+1}], {pfx}_BS")
    L(lab)

def hop_subs(pfx):
    if opt.R <= 1: return
    L(f"{pfx}_BF")
    I(f"s_cmp_eq_u32 s{S_NB}, 0")
    I(f"s_cbranch_scc1 {pfx}_BR")
    I(f"s_sub_u32 s{S_NB}, s{S_NB}, 1")
    I("s_barrier")
    I(f"s_branch {pfx}_BF")
    L(f"{pfx}_BS")
    I(f"s_cmp_eq_u32 s{S_NB}, 0")
    I(f"s_cbranch_scc1 {pfx}_BR")
    I(f"s_sub_u32 s{S_NB}, s{S_NB}, 1")
    I("s_barrier")
    if opt.rst:
        I("s_memrealtime s[98:99]")
        I("s_waitcnt lgkmcnt(0)")
        for k in range(7, 0, -1): I(f"s_mov_b32 s{60+k}, s{59+k}")
        I("s_mov_b32 s60, s98")
    I(f"s_sub_u32 s{S_PACE}, s{S_PACE}, s{S_T}")
    I(f"s_cmp_ge_u32 s{S_PACE}, s{S_T}")
    I(f"s_cbranch_scc1 {pfx}_BS")
    L(f"{pfx}_BR")
    I(f"s_setpc_b64 s[{S_RET}:{S_RET+1}]")

def hop_wave(pfx, tbl, sW, gate=None):
    D = opt.D
    I(f"s_min_u32 s{S_T}, s{S_T}, 0x100")
    I(f"s_mov_b32 s{S_DR}, s{S_T}")
    I(f"s_mov_b32 s{S_PACE}, 0")
    I(f"s_mov_b32 s{S_R}, {opt.R}")
    I(f"s_mov_b32 s{S_NB}, {min(opt.nbar, opt.R - 1)}")
    if opt.skew:
        I(f"s_cmp_lt_u32 s{sW}, 8")
        I(f"s_cselect_b32 s{S_R}, {opt.R - opt.skew}, s{S_R}")
        I(f"s_cmp_lt_u32 s{sW}, 4")
        I(f"s_cselect_b32 s{S_R}, {opt.R - 2*opt.skew}, s{S_R}")
    for r in range(D):
        rd2(V_DATA + 8 * r, V_PTRC, r)
    rd2(V_RC, V_PTRC, 0)
    I(f"v_add_u32 v{V_PTRI}, {D*64}, v{V_PTRC}")
    I("s_waitcnt lgkmcnt(0)")
    rd2(V_RI, V_PTRI, 0)
    if gate: gate("h")
    I(f"s_cmp_eq_u32 s{S_T}, 0")
    I(f"s_cbranch_scc1 {pfx}_FIN")
    for r in range(D):
        d = V_DATA + 8 * r
        if r > 0:
            I(f"s_cmp_le_u32 s{S_T}, {r}")
            I(f"s_cbranch_scc1 {pfx}_DR0")
            pace_check(pfx)
        I(f"v_mad_u32_u16 v{V_A0}, v{d}, s{S_128}, v{V_F16}")
        I(f"v_mad_u32_u16 v{V_A1}, v{d+1}, s{S_128}, v{V_F16}")
        I(f"buffer_load_dwordx4 v[{d}:{d+3}], v{V_A0}, s[{tbl}:{tbl+3}], 0 offen" + FL[opt.ldg])
        I(f"buffer_load_dwordx4 v[{d+4}:{d+7}], v{V_A1}, s[{tbl}:{tbl+3}], 0 offen" + FL[opt.ldg])
    I(f"s_sub_u32 s{S_REM}, s{S_T}, {D}")
    I(f"s_mov_b32 s{S_DR}, {D}")
    I(f"s_cmp_eq_u32 s{S_REM}, 0")
    I(f"s_cbranch_scc1 {pfx}_DR0")
    L(f"{pfx}_MAIN")
    for r in range(D):
        p = r & 1
        d = V_DATA + 8 * r
        I("s_waitcnt lgkmcnt(0)")
        rd2(V_RC + 2 * (p ^ 1), V_PTRC, r + 1)
        rd2(V_RI + 2 * (p ^ 1), V_PTRI, r + 1)
        perms(p)
        ri = V_RI + 2 * p
        I(f"v_mad_u32_u16 v{V_A0}, v{ri}, s{S_128}, v{V_F16}")
        I(f"v_mad_u32_u16 v{V_A1}, v{ri+1}, s{S_128}, v{V_F16}")
        I(f"s_waitcnt vmcnt({2*(D-1)})")
        mfmas(r)
        pace_check(pfx)
        I(f"buffer_load_dwordx4 v[{d}:{d+3}], v{V_A0}, s[{tbl}:{tbl+3}], 0 offen" + FL[opt.ldg])
        I(f"buffer_load_dwordx4 v[{d+4}:{d+7}], v{V_A1}, s[{tbl}:{tbl+3}], 0 offen" + FL[opt.ldg])
        if r == D - 1:
            I(f"v_add_u32 v{V_PTRC}, {D*64}, v{V_PTRC}")
            I(f"v_add_u32 v{V_PTRI}, {D*64}, v{V_PTRI}")
        I(f"s_sub_u32 s{S_REM}, s{S_REM}, 1")
        I(f"s_cmp_eq_u32 s{S_REM}, 0")
        if r == D - 1:
            I(f"s_cbranch_scc0 {pfx}_MAIN")
        else:
            I(f"s_cbranch_scc1 {pfx}_DR{r+1}")
    for q in range(2 * D - 1):
        r = q % D
        p = q & 1
        if q < D:
            L(f"{pfx}_DR{q}")
            if opt.R > 1:
                lab = uid(pfx + "_DX")
                I(f"s_cmp_eq_u32 s{S_NB}, 0")
                I(f"s_cbranch_scc1 {lab}")
                I(f"s_call_b64 s[{S_RET}:{S_RET+1}], {pfx}_BF")
                L(lab)
        I("s_waitcnt lgkmcnt(0)")
        if q + 1 <= 2 * D - 2:
            rd2(V_RC + 2 * (p ^ 1), V_PTRC, q + 1)
        perms(p)
        I("s_waitcnt vmcnt(0)")
        I(f"s_sub_u32 s{S_DR}, s{S_DR}, 1")
        mfmas(r)
        if q < 2 * D - 2:
            I(f"s_cmp_eq_u32 s{S_DR}, 0")
            I(f"s_cbranch_scc1 {pfx}_FIN")
    L(f"{pfx}_FIN")
    if opt.R > 1:
        lab = uid(pfx + "_DY")
        I(f"s_cmp_eq_u32 s{S_NB}, 0")
        I(f"s_cbranch_scc1 {lab}")
        I(f"s_call_b64 s[{S_RET}:{S_RET+1}], {pfx}_BF")
        L(lab)
    if opt.rst and opt.stamps:
        for k in range(7):
            I(f"s_mov_b32 s86, s{66-k}")
            I(f"s_mov_b32 s87, s99")
            stamp(9 + k, 124, 86)
    I("s_nop 4")

def node_pos(sW, heavy):
    I(f"v_lshrrev_b32 v{V_NB}, 2, v{V_G4}")
    I(f"s_lshl_b32 s45, s{sW}, 4")
    if not heavy:
        I(f"s_lshl_b32 s46, s{sW}, 3")
        I(f"s_add_u32 s46, s46, 96")
        I(f"s_cmp_lt_u32 s{sW}, 12")
        I(f"s_cselect_b32 s45, s45, s46")
    I(f"v_add_u32 v{V_NA}, s45, v{V_NB}")
    I(f"v_add_u32 v{V_NB}, 8, v{V_NA}")

def hop_header(sW, vflag):
    I(f"s_lshl_b32 s45, s{sW}, 2")
    I(f"v_mov_b32 v{V_A0}, s45")
    I(f"v_mov_b32 v{vflag}, {L_HEAVY}")
    I(f"ds_read_b32 v{vflag}, v{vflag}")
    I(f"ds_read_b32 v{V_A1}, v{V_A0} offset:{L_SU}")
    I(f"ds_read_b32 v{V_PTRC}, v{V_A0} offset:{L_WB}")
    node_pos(sW, False)
    I(f"ds_read_u8 v{V_NA}, v{V_NA} offset:{L_ORD}")
    I(f"ds_read_u8 v{V_NB}, v{V_NB} offset:{L_ORD}")
    I("s_waitcnt lgkmcnt(0)")
    I(f"v_readfirstlane_b32 s77, v{vflag}")
    I(f"v_readfirstlane_b32 s{S_T}, v{V_A1}")
    I(f"v_add_u32 v{V_PTRC}, v{V_PTRC}, v{V_G4}")
    lab = uid("HH")
    I(f"s_cmp_lt_u32 s{sW}, 12")
    I(f"s_cbranch_scc1 {lab}")
    I(f"v_mov_b32 v{V_NB}, 0xff")
    L(lab)

def split_fix(pfx, sW):
    lab = uid(pfx + "_SF")
    I(f"s_cmp_lt_u32 s{sW}, 12")
    I(f"s_cbranch_scc1 {lab}")
    for i in range(8):
        I(f"v_add_f32 v{V_ACC+i}, v{V_ACC+i}, v{V_ACC2+i}")
    L(lab)

def heavy_path(pfx, tbl, seg_lo_hi, rec_srd, rech_srd, sB, sW, acc_base, nwaves):
    I("v_mov_b32 v40, 0")
    I("v_mov_b32 v41, 0")
    I("v_mov_b32 v42, 0")
    I("v_mov_b32 v43, 0")
    I("v_lshlrev_b32 v44, 4, v0")
    I(f"v_add_u32 v44, {acc_base}, v44")
    n16 = ACC_BYTES // 16
    for i in range(3):
        I(f"ds_write_b128 v44, v[40:43] offset:{i*16384}")
    I(f"v_cmp_gt_u32 vcc, {n16 - 3072}, v0")
    I("s_and_saveexec_b64 s[60:61], vcc")
    I(f"ds_write_b128 v44, v[40:43] offset:{3*16384}")
    I("s_mov_b64 exec, s[60:61]")
    I("s_waitcnt lgkmcnt(0)")
    I("s_barrier")
    I(f"s_mov_b32 s62, s{sW}")
    I(f"v_lshrrev_b32 v45, 3, v{V_LANE}")
    I(f"s_lshl_b32 s63, s{sB}, 2")
    L(f"{pfx}_HC")
    I("s_lshl_b32 s64, s62, 10")
    I("s_add_u32 s64, s64, s63")
    I(f"s_add_u32 s66, s{seg_lo_hi}, s64")
    I(f"s_addc_u32 s67, s{seg_lo_hi+1}, 0")
    I("s_load_dword s68, s[66:67], 0")
    I(f"s_mul_i32 s69, s62, {RECP}")
    I(f"s_mul_i32 s65, s62, {RECH}")
    I("s_waitcnt lgkmcnt(0)")
    I("s_and_b32 s70, s68, 0xffff")
    I("s_lshr_b32 s71, s68, 16")
    L(f"{pfx}_HI")
    I("s_cmp_ge_u32 s70, s71")
    I(f"s_cbranch_scc1 {pfx}_HN")
    I("v_add_u32 v46, s70, v45")
    I("v_cmp_gt_u32 vcc, s71, v46")
    I("s_and_saveexec_b64 s[60:61], vcc")
    I("v_lshlrev_b32 v47, 2, v46")
    I(f"buffer_load_dword v48, v47, s[{rec_srd}:{rec_srd+3}], s69 offen")
    I("v_lshlrev_b32 v47, 1, v46")
    I(f"buffer_load_ushort v49, v47, s[{rech_srd}:{rech_srd+3}], s65 offen")
    I("s_waitcnt vmcnt(0)")
    I("v_and_b32 v50, 0xffff, v48")
    I("v_lshlrev_b32 v50, 7, v50")
    I(f"v_add_u32 v50, v50, v{V_F16}")
    I(f"buffer_load_dwordx4 v[52:55], v50, s[{tbl}:{tbl+3}], 0 offen" + FL[opt.ldg])
    I("v_and_b32 v51, 0xffff0000, v48")
    I("v_lshrrev_b32 v56, 4, v49")
    I("v_lshlrev_b32 v56, 8, v56")
    I(f"v_lshlrev_b32 v57, 1, v{V_F16}")
    I("v_add_u32 v56, v56, v57")
    I(f"v_add_u32 v56, {acc_base}, v56")
    I("s_waitcnt vmcnt(0)")
    for i in range(4):
        I(f"v_lshlrev_b32 v58, 16, v{52+i}")
        I(f"v_and_b32 v59, 0xffff0000, v{52+i}")
        I("v_mul_f32 v58, v58, v51")
        I("v_mul_f32 v59, v59, v51")
        I(f"ds_add_f32 v56, v58 offset:{8*i}")
        I(f"ds_add_f32 v56, v59 offset:{8*i + 4}")
    I("s_mov_b64 exec, s[60:61]")
    I("s_add_u32 s70, s70, 8")
    I(f"s_branch {pfx}_HI")
    L(f"{pfx}_HN")
    I(f"s_add_u32 s62, s62, {nwaves}")
    I("s_cmp_lt_u32 s62, 256")
    I(f"s_cbranch_scc1 {pfx}_HC")
    I("s_waitcnt lgkmcnt(0)")
    I("s_barrier")

def heavy_read_acc(acc_base, sW):
    node_pos(sW, True)
    for vn, va in ((V_NA, V_ACC), (V_NB, V_ACC2)):
        I(f"v_lshlrev_b32 v{V_A0}, 8, v{vn}")
        I(f"v_lshlrev_b32 v{V_A1}, 1, v{V_F16}")
        I(f"v_add_u32 v{V_A0}, v{V_A0}, v{V_A1}")
        I(f"v_add_u32 v{V_A0}, {acc_base}, v{V_A0}")
        I(f"ds_read_b128 v[{va}:{va+3}], v{V_A0}")
        I(f"ds_read_b128 v[{va+4}:{va+7}], v{V_A0} offset:16")
    I("s_waitcnt lgkmcnt(0)")


def grid_arrive():
    R, SH = opt.brep, opt.bsh
    assert R * SH <= 64
    lsh = SH.bit_length() - 1
    I(f"s_and_b32 s45, s2, {SH-1}")
    I("s_lshl_b32 s45, s45, 7")
    I(f"s_add_u32 s45, s45, {WS_SYNC}")
    I(f"v_lshlrev_b32 v116, {7+lsh}, v{V_LANE}")
    I("v_add_u32 v116, s45, v116")
    I("v_mov_b32 v117, 1")
    I("s_mov_b64 s[72:73], exec")
    I(f"s_mov_b64 exec, {hex((1 << R) - 1)}")
    I("global_atomic_add v116, v117, s[6:7] sc1")
    I("s_mov_b64 exec, s[72:73]")

def grid_poll(pfx):
    R, SH = opt.brep, opt.bsh
    lsh = SH.bit_length() - 1
    I("s_mov_b64 s[72:73], exec")
    I(f"s_mov_b64 exec, {(1 << SH) - 1}")
    I(f"s_lshr_b32 s45, s2, {lsh}")
    I(f"s_and_b32 s45, s45, {R-1}")
    I(f"s_lshl_b32 s45, s45, {7+lsh}")
    I(f"s_add_u32 s45, s45, {WS_SYNC}")
    I(f"v_lshlrev_b32 v116, 7, v{V_LANE}")
    I("v_add_u32 v116, s45, v116")
    I(f"s_mov_b32 s46, {opt.spin}")
    L(f"{pfx}_POLL")
    I("global_load_dword v118, v116, s[6:7] sc1")
    I("s_waitcnt vmcnt(0)")
    for l in range(SH):
        I(f"v_readlane_b32 s{12+(l&3)}, v118, {l}")
        if l == 1: I("s_add_u32 s11, s12, s13")
        elif l > 1: I(f"s_add_u32 s11, s11, s{12+(l&3)}")
    if SH == 1: I("s_mov_b32 s11, s12")
    I("s_cmp_ge_u32 s11, 256")
    I(f"s_cbranch_scc1 {pfx}_POLLED")
    if opt.slp: I(f"s_sleep {opt.slp}")
    I("s_sub_u32 s46, s46, 1")
    I("s_cmp_eq_u32 s46, 0")
    I(f"s_cbranch_scc0 {pfx}_POLL")
    L(f"{pfx}_POLLED")
    I("s_mov_b64 exec, s[72:73]")

def release_gate(tag):
    lab, lab2 = uid("RG"), uid("RH")
    I(f"s_cmp_eq_u32 s47, 0")
    I(f"s_cbranch_scc1 {lab}")
    I("s_cmp_lg_u32 s10, 0")
    I(f"s_cbranch_scc1 {lab2}")
    I(f"s_call_b64 s[{S_RET}:{S_RET+1}], GPOLL")
    L(lab2)
    I("s_barrier")
    stamp(8, 124)
    L(lab)

def gen_k2():
    name = "sgc_prop_kernel"
    kernel_begin(name)
    I("s_cmp_ge_u32 s2, 256")
    I("s_cbranch_scc1 K2_END")
    if opt.stamps: I("s_memrealtime s[86:87]")
    I("s_load_dwordx2 s[6:7], s[0:1], 56")
    I("s_load_dwordx2 s[4:5], s[0:1], 0")
    I("s_load_dwordx4 s[32:35], s[0:1], 32")
    I("s_and_b32 s8, s2, 7")
    I("s_lshl_b32 s8, s8, 5")
    I("s_lshr_b32 s9, s2, 3")
    I("s_add_u32 s8, s8, s9")
    I("v_readfirstlane_b32 s10, v0")
    I(f"v_and_b32 v{V_LANE}, 63, v0")
    I(f"v_lshrrev_b32 v52, 4, v{V_LANE}")
    I("s_lshr_b32 s10, s10, 6")
    I("s_lshl_b32 s11, s10, 2")
    I("v_add_u32 v52, s11, v52")
    I("s_lshl_b32 s11, s8, 2")
    I("v_lshl_add_u32 v53, v52, 10, s11")
    for r in range(4):
        I(f"s_mov_b32 s{36+r}, {r*65536}")
    I("s_waitcnt lgkmcnt(0)")
    stamp_init(1, 6, 124); stamp(0, 124, 86)
    srd(16, 6, 7, NCH * 1024, WS_SEG)
    SG = lambda r: 56 + r
    for r in range(4):
        I(f"buffer_load_dword v{SG(r)}, v53, s[16:19], s{36+r} offen")
    ntouch = 0
    if opt.tlb:
        srd(20, 6, 7, NCH * RECP, WS_RECP)
        I(f"v_lshlrev_b32 v44, 20, v{V_LANE}")
        I(f"buffer_load_dword v{V_PFD}, v44, s[20:23], 0 offen sc1")
        srd(96, 6, 7, NCH * RECH, WS_RECH)
        I(f"buffer_load_dword v{V_PFD}, v44, s[96:99], 0 offen sc1")
        ntouch = 2
        if opt.tlb >= 2:
            srd(24, 4, 5, TBL_BYTES)
            I(f"buffer_load_dword v{V_PFD}, v44, s[24:27], 0 offen")
            ntouch = 3
    I(f"s_mov_b32 s14, {RECH}")
    I("v_mul_u32_u24 v54, s14, v52")
    I(f"v_and_b32 v55, 15, v{V_LANE}")
    srd(20, 6, 7, NCH * RECP, WS_RECP)
    srd(96, 6, 7, NCH * RECH, WS_RECH)
    for r in range(4):
        I(f"s_mov_b32 s{40+r}, {r*64*RECP}")
    nb, nc = opt.pf2b, opt.pf2c
    def init_block():
        I("v_lshlrev_b32 v108, 4, v0")
        I(f"v_mov_b32 v112, {SAFE}")
        I("v_mov_b32 v113, v112")
        I("v_mov_b32 v114, v112")
        I("v_mov_b32 v115, v112")
        I(f"v_add_u32 v109, {L_LN}, v108")
        I("ds_write_b128 v109, v[112:115]")
        I("v_mov_b32 v116, 0")
        I("v_mov_b32 v117, 0")
        I("v_mov_b32 v118, 0")
        I("v_mov_b32 v119, 0")
        I(f"v_cmp_gt_u32 vcc, {LS_CAP//16}, v0")
        I("s_and_saveexec_b64 s[12:13], vcc")
        I(f"v_add_u32 v109, {L_LS}, v108")
        I("ds_write_b128 v109, v[112:115]")
        I("s_mov_b64 exec, s[12:13]")
        I("v_cmp_gt_u32 vcc, 32, v0")
        I("s_and_saveexec_b64 s[12:13], vcc")
        I("ds_write_b128 v108, v[116:119]")
        I("s_mov_b64 exec, s[12:13]")
        I(f"v_cmp_gt_u32 vcc, {(K2_ZERO_END-L_CNT)//16}, v0")
        I("s_and_saveexec_b64 s[12:13], vcc")
        I(f"ds_write_b128 v108, v[116:119] offset:{L_CNT}")
        I("s_mov_b64 exec, s[12:13]")
        srd(24, 4, 5, TBL_BYTES)
        srd(28, 6, 7, TBL_BYTES, WS_H1)
        if nb: pf_setup(48, nb, opt.pf1 * 32 * PFU)
        if nc: pf_setup(7, nc, (opt.pf1 + nb) * 32 * PFU)
        hop_consts()
    if not opt.lateinit: init_block()
    SM = lambda t, r: 46 + (t * 4 + r) * 2
    VOFF = lambda r: 60 + r
    VR = lambda t, r: 64 + (t * 4 + r) * 2
    VK = lambda t, r: 88 + t * 4 + r
    VP = lambda t, r: 100 + (t * 4 + r) * 2
    ONE = 40
    VOFP = lambda r: 44 + r
    for r in range(4):
        I(f"s_mov_b32 s{36+r}, {r*64*RECH}")
    I(f"s_waitcnt vmcnt({ntouch})")
    stamp(1, 124)
    I("s_mov_b64 s[70:71], 0")
    I("s_mov_b64 s[72:73], exec")
    for r in range(4):
        I(f"s_mov_b32 s{36+r}, {r*64*RECH}")
    IX = lambda r: 100 + r
    EN = lambda r: 104 + r
    for r in range(4):
        I(f"v_and_b32 v{IX(r)}, 0xffff, v{SG(r)}")
        I(f"v_lshrrev_b32 v{EN(r)}, 16, v{SG(r)}")
        I(f"v_add_u32 v{IX(r)}, v{IX(r)}, v55")
        I(f"v_lshl_add_u32 v{VOFF(r)}, v{IX(r)}, 1, v54")
        I(f"v_cmp_lt_u32 s[{SM(0,r)}:{SM(0,r)+1}], v{IX(r)}, v{EN(r)}")
        I(f"v_add_u32 v41, 16, v{IX(r)}")
        I(f"s_mov_b64 exec, s[{SM(0,r)}:{SM(0,r)+1}]")
        lab = uid("K2_SK")
        I(f"s_cbranch_execz {lab}")
        I(f"buffer_load_ushort v{VR(0,r)+1}, v{VOFF(r)}, s[96:99], s{36+r} offen" + FL[opt.ld2])
        L(lab)
        I("s_mov_b64 exec, s[72:73]")
        I(f"v_cmp_lt_u32 s[{SM(1,r)}:{SM(1,r)+1}], v41, v{EN(r)}")
    for r in range(4):
        lab = uid("K2_SK")
        I(f"s_mov_b64 exec, s[{SM(1,r)}:{SM(1,r)+1}]")
        I(f"s_cbranch_execz {lab}")
        I(f"buffer_load_ushort v{VR(1,r)+1}, v{VOFF(r)}, s[96:99], s{36+r} offen offset:32" + FL[opt.ld2])
        L(lab)
    I("s_mov_b64 exec, s[72:73]")
    for r in range(4):
        I(f"v_add_u32 v42, 32, v{IX(r)}")
        I(f"v_cmp_lt_u32 s[{SM(2,r)}:{SM(2,r)+1}], v42, v{EN(r)}")
        I(f"v_add_u32 v43, 48, v{IX(r)}")
        I(f"v_cmp_lt_u32 vcc, v43, v{EN(r)}")
        I(f"v_lshlrev_b32 v{VOFP(r)}, 1, v{VOFF(r)}")
        I("s_or_b64 s[70:71], s[70:71], vcc")
    I(f"s_or_b64 s[74:75], s[{SM(2,0)}:{SM(2,0)+1}], s[{SM(2,1)}:{SM(2,1)+1}]")
    I(f"s_or_b64 s[74:75], s[74:75], s[{SM(2,2)}:{SM(2,2)+1}]")
    I(f"s_or_b64 s[74:75], s[74:75], s[{SM(2,3)}:{SM(2,3)+1}]")
    I("s_cselect_b32 s83, 1, 0")
    I("s_cbranch_scc0 K2_NT3A")
    for r in range(4):
        lab = uid("K2_SK")
        I(f"s_mov_b64 exec, s[{SM(2,r)}:{SM(2,r)+1}]")
        I(f"s_cbranch_execz {lab}")
        I(f"buffer_load_ushort v{VR(2,r)+1}, v{VOFF(r)}, s[96:99], s{36+r} offen offset:64" + FL[opt.ld2])
        I(f"buffer_load_dword v{VR(2,r)}, v{VOFP(r)}, s[20:23], s{40+r} offen offset:128" + FL[opt.ld2])
        L(lab)
    I("s_mov_b64 exec, s[72:73]")
    L("K2_NT3A")
    I("s_mov_b64 exec, s[72:73]")
    if opt.lateinit: init_block()
    I(f"v_mov_b32 v{ONE}, 1")
    I(f"v_mov_b32 v11, 32")
    I("s_waitcnt lgkmcnt(0)")
    if opt.payafter:
        I("s_barrier")
    for t in range(2):
        for r in range(4):
            I(f"buffer_load_dword v{VR(t,r)}, v{VOFP(r)}, s[20:23], s{40+r} offen" + (f" offset:{64*t}" if t else "") + FL[opt.ld2])
    if not opt.payafter:
        I("s_barrier")
    I("s_waitcnt vmcnt(8)")
    stamp(2, 124)
    for t in range(3):
        if t == 2:
            I("s_cmp_eq_u32 s83, 0")
            I("s_cbranch_scc1 K2_NT3B")
        for r in range(4):
            lab = uid("K2_SC")
            I(f"s_mov_b64 exec, s[{SM(t,r)}:{SM(t,r)+1}]")
            I(f"s_cbranch_execz {lab}")
            I(f"ds_add_rtn_u32 v{VK(t,r)}, v{VR(t,r)+1}, v11 offset:{L_CNT}")
            L(lab)
    L("K2_NT3B")
    I("s_mov_b64 exec, s[72:73]")
    I("s_cmp_eq_u64 s[70:71], 0")
    I("s_cbranch_scc1 K2_NOH")
    I(f"v_mov_b32 v41, {L_HEAVY}")
    I(f"ds_write_b32 v41, v{ONE}")
    L("K2_NOH")
    I("s_waitcnt lgkmcnt(0)")
    I("s_barrier")
    stamp(3, 124)
    I("s_cmp_ge_u32 s10, 4")
    I("s_cbranch_scc1 K2_NOSORT0")
    C = lambda q: 100 + q
    KY, R2, SL, TT, ST, NI = 44, 45, 46, 47, 48, 49
    A, B, Cc, Dd = 116, 117, 118, 119
    I("s_lshl_b32 s12, s10, 6")
    I(f"v_add_u32 v{NI}, s12, v{V_LANE}")
    I(f"v_lshlrev_b32 v{A}, 4, v{NI}")
    I(f"ds_read_b128 v[{C(0)}:{C(3)}], v{A} offset:{L_CNT}")
    I("s_movk_i32 s12, 208")
    I(f"v_cmp_gt_u32 s[74:75], s12, v{NI}")
    I(f"v_lshlrev_b32 v{B}, 2, v{V_LANE}")
    I("s_movk_i32 s76, 0xc0")
    I("s_waitcnt lgkmcnt(0)")
    I(f"v_add_u32 v{TT}, v{C(0)}, v{C(1)}")
    I(f"v_add3_u32 v{TT}, v{TT}, v{C(2)}, v{C(3)}")
    I(f"v_lshrrev_b32 v{TT}, 5, v{TT}")
    I(f"v_min_u32 v{KY}, 63, v{TT}")
    I(f"v_lshlrev_b32 v{KY}, 2, v{KY}")
    I("s_mov_b64 exec, s[74:75]")
    I(f"ds_add_rtn_u32 v{R2}, v{KY}, v{ONE} offset:{L_H2}")
    I("s_mov_b64 exec, s[72:73]")
    I("s_waitcnt lgkmcnt(0)")
    I("s_barrier")
    I(f"ds_read_b32 v{Cc}, v{B} offset:{L_H2}")
    I("s_waitcnt lgkmcnt(0)")
    I(f"v_mov_b32 v{Dd}, v{Cc}")
    wave_scan(Dd)
    I(f"v_sub_u32 v{Dd}, v{Dd}, v{Cc}")
    I("s_nop 0")
    I(f"ds_bpermute_b32 v{SL}, v{KY}, v{Dd}")
    I("s_waitcnt lgkmcnt(0)")
    I(f"v_add_u32 v{R2}, v{R2}, v{SL}")
    I(f"v_cmp_le_u32 s[12:13], s76, v{R2}")
    I(f"v_lshrrev_b32 v{SL}, 4, v{R2}")
    I(f"v_lshrrev_b32 v{Cc}, 3, v{R2}")
    I(f"v_subrev_u32 v{Cc}, 12, v{Cc}")
    I(f"v_mov_b32 v{ST}, 2")
    I(f"v_cndmask_b32_e64 v{SL}, v{SL}, v{Cc}, s[12:13]")
    I(f"v_cndmask_b32_e64 v{ST}, v{ST}, 1, s[12:13]")
    I(f"v_lshlrev_b32 v{SL}, 2, v{SL}")
    I("s_mov_b64 exec, s[74:75]")
    I(f"ds_max_u32 v{SL}, v{TT} offset:{L_WM}")
    I(f"ds_write_b8 v{R2}, v{NI} offset:{L_ORD}")
    I("s_mov_b64 exec, s[72:73]")
    I(f"v_lshlrev_b32 v{KY}, 3, v{ST}")
    I(f"v_subrev_u32 v{KY}, 1, v{KY}")
    I(f"v_and_b32 v{KY}, v{KY}, v{R2}")
    I(f"v_add_u32 v{TT}, v{C(0)}, v{C(1)}")
    I(f"v_add_u32 v{R2}, v{TT}, v{C(2)}")
    I("s_waitcnt lgkmcnt(0)")
    I("s_barrier")
    I(f"ds_read_b32 v{Cc}, v{B} offset:{L_WM}")
    I(f"v_cmp_gt_u32 vcc, 12, v{V_LANE}")
    I("s_waitcnt lgkmcnt(0)")
    I(f"v_add_u32 v{Dd}, 1, v{Cc}")
    I(f"v_lshrrev_b32 v{Dd}, 1, v{Dd}")
    I(f"v_cndmask_b32 v{Cc}, v{Dd}, v{Cc}, vcc")
    I(f"v_lshlrev_b32 v{Dd}, 6, v{Cc}")
    I(f"v_mov_b32 v120, v{Dd}")
    wave_scan(120, 16)
    I("s_nop 1")
    I("v_readlane_b32 s76, v120, 11")
    I("v_readlane_b32 s15, v120, 15")
    I(f"v_sub_u32 v120, v120, v{Dd}")
    I(f"v_add_u32 v121, {L_LN}, v120")
    I(f"s_sub_u32 s14, {L_LS}, s76")
    I("v_add_u32 v120, s14, v120")
    I("v_cndmask_b32 v120, v120, v121, vcc")
    I("s_nop 0")
    I(f"ds_bpermute_b32 v{SL}, v{SL}, v120")
    I("s_cmp_lg_u32 s10, 0")
    I("s_cbranch_scc1 K2_NOHDR")
    I(f"v_cmp_gt_u32 vcc, 16, v{V_LANE}")
    I("s_and_saveexec_b64 s[12:13], vcc")
    I(f"ds_write_b32 v{B}, v120 offset:{L_WB}")
    I(f"ds_write_b32 v{B}, v{Cc} offset:{L_SU}")
    I("s_mov_b64 exec, s[12:13]")
    I("s_sub_u32 s15, s15, s76")
    I(f"s_cmp_gt_u32 s76, {LN_CAP}")
    I("s_cbranch_scc1 K2_CAPBAD")
    I(f"s_cmp_le_u32 s15, {LS_CAP}")
    I("s_cbranch_scc1 K2_NOHDR")
    L("K2_CAPBAD")
    I(f"v_mov_b32 v41, {L_HEAVY}")
    I(f"ds_write_b32 v41, v{ONE}")
    L("K2_NOHDR")
    I("s_waitcnt lgkmcnt(0)")
    I(f"v_lshl_add_u32 v{C(3)}, v{KY}, 2, v{SL}")
    I(f"v_mad_u32_u24 v{C(1)}, v{C(0)}, v{ST}, v{C(3)}")
    I(f"v_mov_b32 v{C(0)}, v{C(3)}")
    I(f"v_mad_u32_u24 v{C(2)}, v{TT}, v{ST}, v{C(0)}")
    I(f"v_mad_u32_u24 v{C(3)}, v{R2}, v{ST}, v{C(0)}")
    I("s_mov_b64 exec, s[74:75]")
    I(f"ds_write_b128 v{A}, v[{C(0)}:{C(3)}] offset:{L_NBQ}")
    I("s_mov_b64 exec, s[72:73]")
    I("s_waitcnt vmcnt(0) lgkmcnt(0)")
    I("s_branch K2_NOSORT")
    L("K2_NOSORT0")
    I("s_waitcnt vmcnt(0)")
    if nb:
        lab = uid("PFX")
        I(f"s_cmp_lt_u32 s10, {16 - nb}")
        I(f"s_cbranch_scc1 {lab}")
        I(f"s_mov_b32 s15, {(16 - nb) * PFU}")
        I(f"v_subrev_u32 v48, s15, v48")
        I(f"buffer_load_dword v{V_PFD}, v48, s[24:27], 0 offen")
        L(lab)
    I("s_barrier")
    I("s_barrier")
    L("K2_NOSORT")
    I("s_barrier")
    stamp(4, 124)
    I(f"v_mov_b32 v41, {L_HEAVY}")
    I("ds_read_b32 v41, v41")
    VP1 = lambda t, r: 100 + t * 4 + r
    for t in range(3):
        if t == 2:
            I("s_cmp_eq_u32 s83, 0")
            I("s_cbranch_scc1 K2_NT3C")
        for r in range(4):
            lab = uid("K2_SP")
            I(f"s_mov_b64 exec, s[{SM(t,r)}:{SM(t,r)+1}]")
            I(f"s_cbranch_execz {lab}")
            I(f"ds_read_b32 v{VP1(t,r)}, v{VR(t,r)+1} offset:{L_NBQ}")
            L(lab)
    L("K2_NT3C")
    I("s_mov_b64 exec, s[72:73]")
    I(f"s_lshl_b32 s45, s10, 2")
    I(f"v_mov_b32 v{V_A0}, s45")
    I(f"ds_read_b32 v{V_PTRI}, v{V_A0} offset:{L_SU}")
    I(f"ds_read_b32 v{V_PTRC}, v{V_A0} offset:{L_WB}")
    I(f"v_lshrrev_b32 v{V_NB}, 2, v{V_G4}")
    I(f"s_lshl_b32 s45, s10, 4")
    I(f"s_lshl_b32 s14, s10, 3")
    I(f"s_add_u32 s14, s14, 96")
    I(f"s_cmp_lt_u32 s10, 12")
    I(f"s_cselect_b32 s45, s45, s14")
    I(f"v_add_u32 v{V_NA}, s45, v{V_NB}")
    I(f"v_add_u32 v{V_NB}, 8, v{V_NA}")
    I(f"ds_read_u8 v{V_NA}, v{V_NA} offset:{L_ORD}")
    I(f"ds_read_u8 v{V_NB}, v{V_NB} offset:{L_ORD}")
    I("s_waitcnt lgkmcnt(0)")
    I("v_readfirstlane_b32 s77, v41")
    I(f"v_readfirstlane_b32 s{S_T}, v{V_PTRI}")
    I(f"v_add_u32 v{V_PTRC}, v{V_PTRC}, v{V_G4}")
    if opt.stamps: stamp(12, 124)
    I("s_cmp_lg_u32 s77, 0")
    I("s_cbranch_scc1 K2_NOPLACE")
    for t in range(3):
        if t == 2:
            I("s_cmp_eq_u32 s83, 0")
            I("s_cbranch_scc1 K2_NT3D")
        for r in range(4):
            lab = uid("K2_SW")
            I(f"s_mov_b64 exec, s[{SM(t,r)}:{SM(t,r)+1}]")
            I(f"s_cbranch_execz {lab}")
            I(f"v_mad_u32_u16 v{VP1(t,r)}, v{VK(t,r)}, v{VP1(t,r)}, v{VP1(t,r)} op_sel:[0,1,0,0]")
            I(f"ds_write_b32 v{VP1(t,r)}, v{VR(t,r)}")
            L(lab)
    L("K2_NT3D")
    I("s_mov_b64 exec, s[72:73]")
    L("K2_NOPLACE")
    I("s_waitcnt lgkmcnt(0)")
    if opt.stamps: stamp(13, 124)
    I("s_barrier")
    stamp(5, 124)
    if nc: pf_issue(7, V_PFD, 24, nc, 10)
    S_PH, S_SCR = 47, 83
    I(f"s_mov_b32 s{S_PH}, 0")
    I(f"s_cmp_lt_u32 s10, {NWORK}")
    I("s_cbranch_scc1 K2_KEEP")
    I("s_cmp_eq_u32 s77, 0")
    I("s_cbranch_scc1 K2_END")
    L("K2_KEEP")
    srd(16, 32, 33, 8192)
    I("v_lshlrev_b32 v110, 4, v0")
    I("buffer_load_dwordx4 v[112:115], v110, s[16:19], 0 offen")
    L("K2_PHASE")
    I("s_cmp_eq_u32 s77, 0")
    I("s_cbranch_scc1 K2_FAST")
    release_gate("v")
    heavy_path("K2H", 24, 6, 20, 96, 8, 10, K2_ACC, 16)
    heavy_read_acc(K2_ACC, 10)
    I("s_cmp_lt_u32 s10, 13")
    I("s_cbranch_scc1 K2_DONE")
    I(f"s_cmp_lg_u32 s{S_PH}, 0")
    I("s_cbranch_scc1 K2_END")
    I(f"v_mov_b32 v{V_NA}, 0xff")
    I(f"v_mov_b32 v{V_NB}, 0xff")
    I("s_branch K2_DONE")
    L("K2_FAST")
    I(f"s_cmp_eq_u32 s{S_PH}, 0")
    I("s_cbranch_scc1 K2_HOPIN0")
    hop_header(10, 41)
    I("s_branch K2_HOPIN")
    L("K2_HOPIN0")
    I("s_cmp_lt_u32 s10, 12")
    I("s_cbranch_scc1 K2_HOPIN")
    I(f"v_mov_b32 v{V_NB}, 0xff")
    L("K2_HOPIN")
    hop_wave("K2S", 24, 10, release_gate)
    split_fix("K2S", 10)
    L("K2_DONE")
    I(f"s_cmp_lg_u32 s{S_PH}, 0")
    I("s_cbranch_scc1 K2_GEMM")
    stamp(6, 124)
    I("s_lshl_b32 s45, s8, 7")
    for vn, va, t0, ad in ((V_NA, V_ACC, V_T, V_A0), (V_NB, V_ACC2, V_RC, V_A1)):
        for i in range(4):
            I(f"v_cvt_pk_bf16_f32 v{t0+i}, v{va+2*i}, v{va+2*i+1}")
        I(f"v_lshlrev_b32 v{ad}, 15, v{vn}")
        I(f"v_add3_u32 v{ad}, v{ad}, s45, v{V_F16}")
        I(f"buffer_store_dwordx4 v[{t0}:{t0+3}], v{ad}, s[28:31], 0 offen" + FL[opt.st2])
    E_SW, E_AB0, E_AB1, E_AW, E_BP, E_KB = 104, 105, 106, 107, 108, 109
    WF = 72
    I("v_cmp_gt_u32 vcc, 0x200, v0")
    I("s_and_saveexec_b64 s[72:73], vcc")
    I(f"ds_write_b128 v110, v[112:115] offset:{L_WL}")
    I("s_mov_b64 exec, s[72:73]")
    I(f"s_lshl_b32 s{S_SCR}, s10, 11")
    I(f"s_add_u32 s{S_SCR}, s{S_SCR}, {L_SCR}")
    I(f"v_lshlrev_b32 v60, 2, v{V_G4}")
    I(f"v_xor_b32 v61, v60, v{V_F16}")
    I(f"v_lshlrev_b32 v60, 3, v60")
    I(f"v_add3_u32 v{E_SW}, v60, v61, s{S_SCR}")
    I(f"v_and_b32 v60, 15, v{V_LANE}")
    I(f"v_lshrrev_b32 v{E_KB}, 4, v{V_LANE}")
    I(f"v_and_b32 v61, 7, v60")
    I(f"v_lshlrev_b32 v{E_BP}, 5, v61")
    I(f"v_xor_b32 v62, v{E_KB}, v61")
    I(f"v_lshlrev_b32 v62, 4, v62")
    I(f"v_lshlrev_b32 v63, 7, v60")
    I(f"v_add3_u32 v{E_AB0}, v63, s{S_SCR}, v62")
    I(f"v_xor_b32 v62, 64, v62")
    I(f"v_add3_u32 v{E_AB1}, v63, s{S_SCR}, v62")
    I(f"v_lshrrev_b32 v62, 2, v60")
    I(f"v_lshl_add_u32 v62, v{E_KB}, 3, v62")
    I(f"v_lshlrev_b32 v62, 7, v62")
    I(f"v_and_b32 v63, 3, v{V_LANE}")
    I(f"v_lshl_add_u32 v{E_AW}, v63, 4, v62")
    I(f"v_cmp_gt_u32 s[74:75], 8, v60")
    I(f"v_lshlrev_b32 v{E_KB}, 4, v{E_KB}")
    for i in range(8):
        I(f"v_mov_b32 v{V_ACC+i}, 0")
        I(f"v_mov_b32 v{V_ACC2+i}, 0")
    srd(24, 6, 7, TBL_BYTES, WS_H1)
    I("s_waitcnt vmcnt(0) lgkmcnt(0)")
    srd(28, 34, 35, TBL_BYTES)
    stamp(7, 124)
    if opt.own == 2:
        I(f"buffer_load_dword v{V_PFD}, v{V_A0}, s[24:27], 0 offen")
        I(f"buffer_load_dword v{V_PFD}, v{V_A1}, s[24:27], 0 offen")
    I("s_barrier")
    I("s_cmp_lg_u32 s10, 0")
    I("s_cbranch_scc1 K2_NOPOLL")
    grid_arrive()
    L("K2_NOPOLL")
    if opt.own == 1:
        I(f"buffer_load_dword v{V_PFD}, v{V_A0}, s[24:27], 0 offen")
        I(f"buffer_load_dword v{V_PFD}, v{V_A1}, s[24:27], 0 offen")
    for t in range(4):
        for s in range(2):
            for hh in range(2):
                off = L_WL + s * 4096 + hh * 512 + (t >> 1) * 64 + (t & 1) * 8
                d = WF + (t * 2 + s) * 4 + 2 * hh
                I(f"ds_read_b64_tr_b16 v[{d}:{d+1}], v{E_AW} offset:{off}")
    I(f"s_mov_b32 s{S_PH}, 1")
    I("s_branch K2_PHASE")
    L("K2_GEMM")
    stamp(9, 124)
    E_OUT = E_AW
    I(f"ds_bpermute_b32 v110, v{E_BP}, v{V_NA}")
    I(f"ds_bpermute_b32 v111, v{E_BP}, v{V_NB}")
    for va, t0, off in ((V_ACC, V_T, 0), (V_ACC2, V_RC, 1024)):
        for i in range(4):
            I(f"v_cvt_pk_bf16_f32 v{t0+i}, v{va+2*i}, v{va+2*i+1}")
        I(f"ds_write_b128 v{E_SW}, v[{t0}:{t0+3}] offset:{off}")
    B0, B1 = 40, 44
    I(f"ds_read_b128 v[{B0}:{B0+3}], v{E_AB0}")
    I(f"ds_read_b128 v[{B1}:{B1+3}], v{E_AB1}")
    DD = 56
    I("s_lshl_b32 s45, s8, 7")
    I("s_waitcnt lgkmcnt(1)")
    I(f"v_cndmask_b32_e64 v110, v111, v110, s[74:75]")
    for t in range(4):
        a = WF + (t * 2) * 4
        I(f"v_mfma_f32_16x16x32_bf16 v[{DD+4*t}:{DD+4*t+3}], v[{a}:{a+3}], v[{B0}:{B0+3}], 0")
    I(f"v_lshlrev_b32 v110, 15, v110")
    I("s_waitcnt lgkmcnt(0)")
    for t in range(4):
        a = WF + (t * 2 + 1) * 4
        I(f"v_mfma_f32_16x16x32_bf16 v[{DD+4*t}:{DD+4*t+3}], v[{a}:{a+3}], v[{B1}:{B1+3}], v[{DD+4*t}:{DD+4*t+3}]")
    I(f"v_add3_u32 v{E_OUT}, v110, s45, v{E_KB}")
    O = 48
    I("s_nop 4")
    for half in range(2):
        for k in range(2):
            t = half * 2 + k
            if t == 3: I("s_nop 1")
            I(f"v_cvt_pk_bf16_f32 v{O+half*4+2*k}, v{DD+4*t}, v{DD+4*t+1}")
            I(f"v_cvt_pk_bf16_f32 v{O+half*4+2*k+1}, v{DD+4*t+2}, v{DD+4*t+3}")
        I(f"buffer_store_dwordx4 v[{O+half*4}:{O+half*4+3}], v{E_OUT}, s[28:31], 0 offen" + (" offset:64" if half else "") + FL[opt.st3])
    stamp(10, 124)
    if opt.stamps:
        I("s_waitcnt vmcnt(0)")
        stamp(11, 124)
    L("K2_END")
    I("s_endpgm")
    hop_subs("K2S")
    L("GPOLL")
    grid_poll("G2")
    I(f"s_setpc_b64 s[{S_RET}:{S_RET+1}]")
    I("s_endpgm")
    L("K2_CODE_END")
    return name, 128, 102

HEADER = f"""; Kernarg layout for this problem (64 bytes, ptrs only, base s[0:1]):
; @launch kernel=sgc_part_kernel grid=(256,1,1) block=(K1BLK,1,1) lds={K1_LDS}
; @launch kernel=sgc_prop_kernel grid=(256,1,1) block=(1024,1,1) lds=K2LDS
.amdgcn_target "amdgcn-amd-amdhsa--gfx950"
.text"""

def main():
    for a in sys.argv[2:]:
        k, v = a.split("=")
        assert hasattr(opt, k), k
        setattr(opt, k, int(v))
    h = HEADER.replace("K2LDS", str(K2_LDS)).replace("K1BLK", ("896" if opt.cpf else "832") if opt.k1v == 1 else "448")
    emit(h)
    ks = [gen_k1(), gen_k2()]
    emit('.section .rodata,"a"')
    emit(".p2align 6")
    for (n, v, s) in ks:
        kernel_desc(n, v, s)
        emit(".p2align 6")
    open(sys.argv[1], "w").write("\n".join(out) + "\n")

main()
```

```python
import sys

N = 50000
E = 850000
CH = 3328
NCH = 256
RECP = CH * 4
RECH = CH * 2
WS_SEG = 0
WS_RECP = 0x40000
WS_RECH = 0x380000
WS_IMG = 0x6C0000
WS_H1 = 0xC00000
WS_SYNC = 0x600000
TBL_BYTES = N * 128
SAFE = 0x0000FFFF

class Opt:
    D = 4
    R = 8
    skew = 0
    pf1 = 0
    pf2b = 4
    pf2c = 0
    pf3 = 2
    pf3c = 0
    stamps = 0
    st1 = 1
    st2 = 1
    st2i = 1
    st3 = 1
    dbg = 0
    rst = 0
    nbar = 6
    pfs = 0
    pfsr = 2
    pfs3 = 0
    ld1 = 3
    ld2 = 0
    ld3 = 0
    skip3 = 0
    k1v = 1
    ldg = 1
    spin = 16000000
    brep = 16
    pfpos = 1
    poll2 = 0
    own = 0
    cpf = 0
    cpfall = 0
    cpfn = 2
    lateinit = 0
    payafter = 1
    tlb = 0
    bsh = 4
    slp = 6
    smalllds = 0
    k3w = 16

opt = Opt()
out = []
def emit(s=""): out.append(s)
def I(s): out.append("    " + s)
def L(s): out.append(s + ":")
_uid = [0]
def uid(p):
    _uid[0] += 1
    return f"{p}_{_uid[0]}"

FL = ['', ' sc1', ' sc0 sc1', ' nt', ' sc0']
def srd(s, lo, hi, size, add=0):
    if add:
        I(f"s_add_u32 s{s}, s{lo}, {add}")
        I(f"s_addc_u32 s{s+1}, s{hi}, 0")
        I(f"s_and_b32 s{s+1}, s{s+1}, 0xffff")
    else:
        I(f"s_mov_b32 s{s}, s{lo}")
        I(f"s_and_b32 s{s+1}, s{hi}, 0xffff")
    I(f"s_mov_b32 s{s+2}, {size}")
    I(f"s_mov_b32 s{s+3}, 0x20000")

def wave_scan(v, n=64):
    for sh in (1, 2, 4, 8):
        I("s_nop 1")
        I(f"v_add_u32_dpp v{v}, v{v}, v{v} row_shr:{sh} row_mask:0xf bank_mask:0xf")
    if n > 16:
        I("s_nop 1")
        I(f"v_add_u32_dpp v{v}, v{v}, v{v} row_bcast:15 row_mask:0xa bank_mask:0xf")
        I("s_nop 1")
        I(f"v_add_u32_dpp v{v}, v{v}, v{v} row_bcast:31 row_mask:0xc bank_mask:0xf")

STAMP_OFF = 0x2000000
def stamp_init(kidx, ws_lo, vbase):
    if not opt.stamps: return
    I(f"v_lshrrev_b32 v{vbase}, 6, v0")
    I(f"s_lshl_b32 s92, s2, 4")
    I(f"s_add_u32 s92, s92, {kidx*256*16}")
    I(f"v_add_u32 v{vbase}, s92, v{vbase}")
    I(f"v_lshlrev_b32 v{vbase}, 7, v{vbase}")
    I(f"v_add_u32 v{vbase}, {STAMP_OFF}, v{vbase}")
    I(f"s_mov_b32 s94, s{ws_lo}")
    I(f"s_mov_b32 s95, s{ws_lo+1}")
def stamp(j, vbase, pre=None):
    if not opt.stamps: return
    if pre is None:
        I("s_memrealtime s[90:91]")
        I("s_waitcnt lgkmcnt(0)")
    else:
        I(f"s_mov_b32 s90, s{pre}")
        I(f"s_mov_b32 s91, s{pre+1}")
    I("s_mov_b64 s[88:89], exec")
    I("s_mov_b64 exec, 1")
    I(f"v_mov_b32 v{vbase+2}, s90")
    I(f"v_mov_b32 v{vbase+3}, s91")
    I(f"global_store_dwordx2 v{vbase}, v[{vbase+2}:{vbase+3}], s[94:95] offset:{8*j}")
    I("s_mov_b64 exec, s[88:89]")

def kernel_begin(name):
    emit(f".globl {name}")
    emit(".p2align 8")
    emit(f".type {name},@function")
    L(name)

def kernel_desc(name, vgpr, sgpr):
    acc = (vgpr + 3) // 4 * 4
    emit(f".amdhsa_kernel {name}")
    emit(f"  .amdhsa_next_free_vgpr {vgpr}")
    emit(f"  .amdhsa_next_free_sgpr {sgpr}")
    emit(f"  .amdhsa_accum_offset {acc}")
    emit("  .amdhsa_group_segment_fixed_size 0")
    emit("  .amdhsa_kernarg_size 64")
    emit("  .amdhsa_user_sgpr_count 2")
    emit("  .amdhsa_user_sgpr_kernarg_segment_ptr 1")
    emit("  .amdhsa_system_sgpr_workgroup_id_x 1")
    emit(".end_amdhsa_kernel")

PFU = 8192
def pf_setup(vaddr, n, base_bytes):
    I("s_lshr_b32 s15, s2, 3")
    I(f"s_mul_i32 s15, s15, {n*PFU}")
    if base_bytes: I(f"s_add_u32 s15, s15, {base_bytes}")
    I(f"v_lshlrev_b32 v{vaddr}, 7, v0")
    I(f"v_add_u32 v{vaddr}, s15, v{vaddr}")
def pf_issue(vaddr, vdst, tbl, n, sW, nw=16):
    rounds = (n + nw - 1) // nw
    for i in range(rounds):
        cnt = min(nw, n - nw * i)
        lab = uid("PF")
        if cnt < nw:
            I(f"s_cmp_ge_u32 s{sW}, {cnt}")
            I(f"s_cbranch_scc1 {lab}")
        I(f"s_mov_b32 s15, {i*nw*PFU}")
        I(f"buffer_load_dword v{vdst}, v{vaddr}, s[{tbl}:{tbl+3}], s15 offen")
        L(lab)

def pf_stream(tbl, sW, nunits, base_bytes, per_round, vaddr, nrounds_max):
    I("s_lshr_b32 s15, s2, 3")
    I(f"s_mul_i32 s15, s15, {nunits*PFU}")
    I(f"s_add_u32 s15, s15, {base_bytes}")
    I(f"s_sub_u32 s14, s{sW}, {NWORK}")
    I(f"s_mul_i32 s14, s14, {PFU}")
    I("s_add_u32 s15, s15, s14")
    I(f"v_lshlrev_b32 v{vaddr}, 7, v{V_LANE}")
    I(f"v_add_u32 v{vaddr}, s15, v{vaddr}")
    k = 0
    nsteps = (nunits + 1) // 2
    rnd = 0
    while k < nsteps:
        for _ in range(per_round):
            if k >= nsteps: break
            I(f"s_mov_b32 s15, {k*2*PFU}")
            I(f"buffer_load_dword v{V_PFD}, v{vaddr}, s[{tbl}:{tbl+3}], s15 offen")
            k += 1
        rnd += 1
        if k < nsteps and rnd <= nrounds_max:
            I("s_barrier")

K1_HIST = 0
K1_PRE = 1024
K1_STP = 2048
K1_STH = K1_STP + RECP
K1_LDS = K1_STH + RECH

def gen_k1():
    name = "sgc_part_kernel"
    V = opt.k1v
    NT = 832 // V
    kernel_begin(name)
    I("s_cmp_ge_u32 s2, 256")
    I("s_cbranch_scc1 K1_END")
    if opt.cpf:
        I("v_readfirstlane_b32 s15, v0")
        I("s_lshr_b32 s15, s15, 6")
        I("s_cmp_lt_u32 s15, 13")
        I("s_cbranch_scc1 K1_MAIN")
        I(f"s_cmp_ge_u32 s2, {opt.cpf}")
        I("s_cbranch_scc1 K1_END")
        I("s_getpc_b64 s[48:49]")
        L("CPF_PC")
        if opt.cpfall:
            I("s_sub_u32 s48, s48, CPF_PC - sgc_part_kernel")
            I("s_subb_u32 s49, s49, 0")
            I("v_and_b32 v90, 63, v0")
            I("v_lshlrev_b32 v90, 7, v90")
            I("v_cmp_gt_u32 vcc, K2_CODE_END - sgc_part_kernel, v90")
            I("s_and_saveexec_b64 s[12:13], vcc")
            I("global_load_dword v91, v90, s[48:49]")
            I("v_add_u32 v90, 8192, v90")
            I("v_cmp_gt_u32 vcc, K2_CODE_END - sgc_part_kernel, v90")
        else:
            I("s_add_u32 s48, s48, sgc_prop_kernel - CPF_PC")
            I("s_addc_u32 s49, s49, 0")
            I("v_and_b32 v90, 63, v0")
            I("v_lshlrev_b32 v90, 7, v90")
            I("v_cmp_gt_u32 vcc, K2_CODE_END - sgc_prop_kernel, v90")
        I("s_and_saveexec_b64 s[12:13], vcc")
        I("s_cbranch_execz K1_END")
        I("global_load_dword v91, v90, s[48:49]")
        I("s_endpgm")
        L("K1_MAIN")
    if opt.stamps: I("s_memrealtime s[86:87]")
    I("s_load_dwordx4 s[4:7], s[0:1], 8")
    I("s_load_dwordx2 s[8:9], s[0:1], 24")
    I("s_load_dwordx2 s[10:11], s[0:1], 56")
    I(f"s_mul_i32 s3, s2, {CH}")
    I("v_lshl_add_u32 v1, v0, 2, s3")
    I("v_lshlrev_b32 v2, 2, v1")
    I("v_lshlrev_b32 v3, 1, v1")
    I("v_mov_b32 v4, 0")
    I("v_lshlrev_b32 v5, 2, v0")
    I("v_cmp_gt_u32 vcc, 0x100, v0")
    I("s_and_saveexec_b64 s[12:13], vcc")
    I(f"ds_write_b32 v5, v4 offset:{K1_HIST}")
    I("s_mov_b64 exec, s[12:13]")
    I("v_readfirstlane_b32 s15, v0")
    I("s_waitcnt lgkmcnt(0)")
    stamp_init(0, 10, 124); stamp(0, 124, 86)
    srd(16, 6, 7, E * 4)
    D = lambda g, i: 8 + 16 * g + i
    S = lambda g, i: 12 + 16 * g + i
    NR = lambda g, i: 16 + 16 * g + i
    HA = lambda g, i: 40 + 4 * g + i
    RK = lambda g, i: 48 + 4 * g + i
    PL = lambda g, i: 56 + 4 * g + i
    HI = lambda g, i: 64 + 4 * g + i
    for g in range(V):
        I(f"s_mov_b32 s{40+g}, {g*NT*16}")
        I(f"buffer_load_dwordx4 v[{D(g,0)}:{D(g,3)}], v2, s[16:19], s{40+g} offen" + FL[opt.ld1])
    srd(20, 4, 5, E * 4)
    srd(24, 8, 9, E * 2)
    for g in range(V):
        I(f"s_mov_b32 s{42+g}, {g*NT*8}")
        I(f"buffer_load_dwordx4 v[{S(g,0)}:{S(g,3)}], v2, s[20:23], s{40+g} offen" + FL[opt.ld1])
        I(f"buffer_load_dwordx2 v[{NR(g,0)}:{NR(g,1)}], v3, s[24:27], s{42+g} offen" + FL[opt.ld1])
    I("s_lshr_b32 s46, s15, 6")
    I("s_or_b32 s14, s2, s46")
    I("s_cmp_lg_u32 s14, 0")
    I("s_cbranch_scc1 K1_NOZ")
    I("v_lshlrev_b32 v7, 7, v0")
    I(f"v_add_u32 v7, {WS_SYNC}, v7")
    I("global_store_dword v7, v4, s[10:11] sc1")
    I("s_waitcnt vmcnt(0)")
    L("K1_NOZ")
    npf = 0
    if opt.pf1:
        I("s_load_dwordx2 s[48:49], s[0:1], 0")
        I("s_lshr_b32 s15, s2, 3")
        I(f"s_mul_i32 s15, s15, {opt.pf1*PFU}")
        I(f"s_cmp_lt_u32 s46, {opt.pf1}")
        I("s_cselect_b32 s15, s15, 0x40000000")
        I("v_lshlrev_b32 v90, 7, v0")
        I("v_add_u32 v90, s15, v90")
        I("s_waitcnt lgkmcnt(0)")
        srd(64, 48, 49, TBL_BYTES)
        I("buffer_load_dword v91, v90, s[64:67], 0 offen")
        npf = 1
    srd(28, 10, 11, NCH * 1024, WS_SEG)
    srd(32, 10, 11, NCH * RECP, WS_RECP)
    srd(52, 10, 11, NCH * RECH, WS_RECH)
    I("s_mov_b32 s36, 0xffff0000")
    I("s_mov_b32 s37, 21474")
    I("s_mov_b64 s[12:13], exec")
    I(f"v_cmp_gt_u32 s[56:57], {NT if NT <= 64 else 's14'}, v0") if False else None
    I(f"s_mov_b32 s14, {NT}")
    I("v_cmp_gt_u32 s[56:57], s14, v0")
    for g in range(V):
        I(f"s_mov_b32 s14, {E - g*NT*4}")
        I(f"v_cmp_gt_u32 s[{58+2*g}:{59+2*g}], s14, v1")
        I(f"s_and_b64 s[{58+2*g}:{59+2*g}], s[{58+2*g}:{59+2*g}], s[56:57]")
    I("v_mov_b32 v6, 1")
    I("s_barrier")
    for g in range(V):
        I(f"s_waitcnt vmcnt({(V - 1 - g) + 2*V + npf})")
        if g == 0: stamp(1, 124)
        I(f"s_mov_b64 exec, s[{58+2*g}:{59+2*g}]")
        for i in range(4):
            I(f"v_and_b32 v{HA(g,i)}, 0xff, v{D(g,i)}")
            I(f"v_lshlrev_b32 v{HA(g,i)}, 2, v{HA(g,i)}")
        for i in range(4):
            I(f"ds_add_rtn_u32 v{RK(g,i)}, v{HA(g,i)}, v6 offset:{K1_HIST}")
    I("s_mov_b64 exec, s[12:13]")
    for g in range(V):
        I(f"s_waitcnt vmcnt({2*(V-1-g) + npf})")
        I(f"v_lshl_or_b32 v{PL(g,0)}, v{NR(g,0)}, 16, v{S(g,0)}")
        I(f"v_and_or_b32 v{PL(g,1)}, v{NR(g,0)}, s36, v{S(g,1)}")
        I(f"v_lshl_or_b32 v{PL(g,2)}, v{NR(g,1)}, 16, v{S(g,2)}")
        I(f"v_and_or_b32 v{PL(g,3)}, v{NR(g,1)}, s36, v{S(g,3)}")
        for i in range(4):
            I(f"v_mul_u32_u24 v7, s37, v{S(g,i)}")
            I("v_lshrrev_b32 v7, 26, v7")
            I("v_and_b32 v7, 12, v7")
            I(f"v_lshrrev_b32 v{HI(g,i)}, 8, v{D(g,i)}")
            I(f"v_lshl_or_b32 v{HI(g,i)}, v{HI(g,i)}, 4, v7")
    I("s_waitcnt lgkmcnt(0)")
    I("s_barrier")
    I("s_cmp_lg_u32 s46, 0")
    I("s_cbranch_scc1 K1_NOSCAN")
    I("v_lshlrev_b32 v5, 4, v0")
    I(f"ds_read_b128 v[72:75], v5 offset:{K1_HIST}")
    I("s_waitcnt lgkmcnt(0)")
    I("v_add_u32 v76, v72, v73")
    I("v_add_u32 v77, v76, v74")
    I("v_add_u32 v78, v77, v75")
    I("v_mov_b32 v79, v78")
    wave_scan(79)
    I("v_sub_u32 v80, v79, v78")
    I("v_add_u32 v81, v80, v72")
    I("v_add_u32 v82, v80, v76")
    I("v_add_u32 v83, v80, v77")
    I(f"ds_write_b128 v5, v[80:83] offset:{K1_PRE}")
    I("v_lshl_or_b32 v72, v81, 16, v80")
    I("v_lshl_or_b32 v73, v82, 16, v81")
    I("v_lshl_or_b32 v74, v83, 16, v82")
    I("v_lshl_or_b32 v75, v79, 16, v83")
    I("s_lshl_b32 s37, s2, 10")
    I("buffer_store_dwordx4 v[72:75], v5, s[28:31], s37 offen" + FL[opt.st1])
    I("s_waitcnt lgkmcnt(0)")
    L("K1_NOSCAN")
    I("s_barrier")
    for g in range(V):
        I(f"s_mov_b64 exec, s[{58+2*g}:{59+2*g}]")
        for i in range(4):
            I(f"ds_read_b32 v{HA(g,i)}, v{HA(g,i)} offset:{K1_PRE}")
    for g in range(V):
        I(f"s_mov_b64 exec, s[{58+2*g}:{59+2*g}]")
        I(f"s_waitcnt lgkmcnt({4*(V-1-g) if g < V-1 else 0})" if False else "s_waitcnt lgkmcnt(0)")
        for i in range(4):
            I(f"v_add_u32 v{HA(g,i)}, v{HA(g,i)}, v{RK(g,i)}")
            I(f"v_lshlrev_b32 v{RK(g,i)}, 2, v{HA(g,i)}")
            I(f"v_lshlrev_b32 v{HA(g,i)}, 1, v{HA(g,i)}")
            I(f"ds_write_b32 v{RK(g,i)}, v{PL(g,i)} offset:{K1_STP}")
            I(f"ds_write_b16 v{HA(g,i)}, v{HI(g,i)} offset:{K1_STH}")
    I("s_mov_b64 exec, s[12:13]")
    I("s_waitcnt lgkmcnt(0)")
    I("s_barrier")
    I("v_lshlrev_b32 v5, 4, v0")
    I(f"s_mul_i32 s37, s2, {RECP}")
    I(f"s_mul_i32 s42, s2, {RECH}")
    I("s_mov_b64 exec, s[56:57]")
    for g in range(V):
        I(f"ds_read_b128 v[{8+4*g}:{11+4*g}], v5 offset:{K1_STP + g*NT*16}")
    if V == 2:
        I(f"ds_read_b128 v[16:19], v5 offset:{K1_STH}")
    else:
        I(f"s_mov_b32 s14, {RECH//16}")
        I("v_cmp_gt_u32 vcc, s14, v0")
        I("s_mov_b64 exec, vcc")
        I(f"ds_read_b128 v[16:19], v5 offset:{K1_STH}")
        I("s_mov_b64 exec, s[56:57]")
    I("s_cbranch_execz K1_FIN")
    for g in range(V):
        I(f"s_waitcnt lgkmcnt({V - g})")
        if g: I(f"s_add_u32 s37, s37, {NT*16}")
        I(f"buffer_store_dwordx4 v[{8+4*g}:{11+4*g}], v5, s[32:35], s37 offen" + FL[opt.st1])
    I("s_waitcnt lgkmcnt(0)")
    if V == 1:
        I("s_mov_b64 exec, vcc")
        I("s_cbranch_execz K1_FIN")
    I("buffer_store_dwordx4 v[16:19], v5, s[52:55], s42 offen" + FL[opt.st1])
    L("K1_FIN")
    I("s_mov_b64 exec, s[12:13]")
    stamp(2, 124)
    if opt.stamps:
        I("s_waitcnt vmcnt(0)")
        stamp(3, 124)
    L("K1_END")
    I("s_endpgm")
    return name, (128 if opt.stamps else 96), (102 if opt.stamps else 72)

L_SU = 0x000
L_WB = 0x040
L_ORD = 0x120
L_HEAVY = 0x1F0
L_LN = 0x20000
LN_CAP = 0x4000
L_LS = 0x10000
LS_CAP = 0x1000
L_CNT = 0x4000
L_H2 = 0x5000
L_WM = 0x5200
K2_ZERO_END = 0x5400
L_NBQ = 0x5400
L_WL = 0x6400
L_SCR = 0x8400
K2_ACC = 0xF400
ACC_BYTES = 208 * 256
K2_LDS = L_LN + LN_CAP
assert K2_ACC + ACC_BYTES <= L_LN
NWORK = 14

V_LANE = 1
V_G4 = 2
V_F16 = 3
V_SELA = 4
V_SELB = 5
V_PTRC = 6
V_PTRI = 7
V_NA = 8
V_NB = 9
V_A0 = 10
V_A1 = 11
V_ACC = 12
V_ACC2 = 20
V_T = 28
V_RC = 32
V_RI = 36
V_DATA = 40
S_T, S_R, S_PACE, S_DR, S_REM = 78, 79, 80, 81, 82
S_NB = 76
S_RET = 84
S_128 = 44
V_PFD = 125

def hop_consts():
    I(f"v_lshrrev_b32 v{V_G4}, 3, v{V_LANE}")
    I(f"v_lshlrev_b32 v{V_G4}, 2, v{V_G4}")
    I(f"v_and_b32 v{V_F16}, 7, v{V_LANE}")
    I(f"v_lshlrev_b32 v{V_F16}, 4, v{V_F16}")
    I(f"v_and_b32 v{V_PTRC}, 3, v{V_LANE}")
    I(f"v_mov_b32 v{V_SELA}, 0x0c0c0c0c")
    I(f"v_mov_b32 v{V_SELB}, 0x0c0c0c0c")
    I(f"v_mov_b32 v{V_A0}, 0x0c0c0302")
    I(f"v_mov_b32 v{V_A1}, 0x03020c0c")
    for val, sel, lit in ((0, V_SELA, V_A0), (1, V_SELA, V_A1), (2, V_SELB, V_A0), (3, V_SELB, V_A1)):
        I(f"v_cmp_eq_u32 vcc, {val}, v{V_PTRC}")
        I("s_nop 1")
        I(f"v_cndmask_b32 v{sel}, v{sel}, v{lit}, vcc")
    I(f"s_mov_b32 s{S_128}, 128")
    for i in range(8):
        I(f"v_mov_b32 v{V_ACC+i}, 0")
        I(f"v_mov_b32 v{V_ACC2+i}, 0")

def rd2(dst, ptr, unit):
    o = unit * 16
    assert o + 8 <= 255
    I(f"ds_read2_b32 v[{dst}:{dst+1}], v{ptr} offset0:{o} offset1:{o+8}")

def perms(p):
    rc = V_RC + 2 * p
    I(f"v_perm_b32 v{V_T+0}, v{rc}, v{rc}, v{V_SELA}")
    I(f"v_perm_b32 v{V_T+1}, v{rc}, v{rc}, v{V_SELB}")
    I(f"v_perm_b32 v{V_T+2}, v{rc+1}, v{rc+1}, v{V_SELA}")
    I(f"v_perm_b32 v{V_T+3}, v{rc+1}, v{rc+1}, v{V_SELB}")

def mfmas(r):
    d = V_DATA + 8 * r
    a, b = V_ACC, V_ACC2
    I(f"v_mfma_f32_4x4x4_16b_bf16 v[{a}:{a+3}], v[{V_T}:{V_T+1}], v[{d}:{d+1}], v[{a}:{a+3}]")
    I(f"v_mfma_f32_4x4x4_16b_bf16 v[{a+4}:{a+7}], v[{V_T}:{V_T+1}], v[{d+2}:{d+3}], v[{a+4}:{a+7}]")
    I(f"v_mfma_f32_4x4x4_16b_bf16 v[{b}:{b+3}], v[{V_T+2}:{V_T+3}], v[{d+4}:{d+5}], v[{b}:{b+3}]")
    I(f"v_mfma_f32_4x4x4_16b_bf16 v[{b+4}:{b+7}], v[{V_T+2}:{V_T+3}], v[{d+6}:{d+7}], v[{b+4}:{b+7}]")

def pace_check(pfx):
    if opt.R <= 1: return
    lab = uid(pfx + "_PC")
    I(f"s_add_u32 s{S_PACE}, s{S_PACE}, s{S_R}")
    I(f"s_cmp_lt_u32 s{S_PACE}, s{S_T}")
    I(f"s_cbranch_scc1 {lab}")
    I(f"s_call_b64 s[{S_RET}:{S_RET+1}], {pfx}_BS")
    L(lab)

def hop_subs(pfx):
    if opt.R <= 1: return
    L(f"{pfx}_BF")
    I(f"s_cmp_eq_u32 s{S_NB}, 0")
    I(f"s_cbranch_scc1 {pfx}_BR")
    I(f"s_sub_u32 s{S_NB}, s{S_NB}, 1")
    I("s_barrier")
    I(f"s_branch {pfx}_BF")
    L(f"{pfx}_BS")
    I(f"s_cmp_eq_u32 s{S_NB}, 0")
    I(f"s_cbranch_scc1 {pfx}_BR")
    I(f"s_sub_u32 s{S_NB}, s{S_NB}, 1")
    I("s_barrier")
    if opt.rst:
        I("s_memrealtime s[98:99]")
        I("s_waitcnt lgkmcnt(0)")
        for k in range(7, 0, -1): I(f"s_mov_b32 s{60+k}, s{59+k}")
        I("s_mov_b32 s60, s98")
    I(f"s_sub_u32 s{S_PACE}, s{S_PACE}, s{S_T}")
    I(f"s_cmp_ge_u32 s{S_PACE}, s{S_T}")
    I(f"s_cbranch_scc1 {pfx}_BS")
    L(f"{pfx}_BR")
    I(f"s_setpc_b64 s[{S_RET}:{S_RET+1}]")

def hop_wave(pfx, tbl, sW, gate=None):
    D = opt.D
    I(f"s_min_u32 s{S_T}, s{S_T}, 0x100")
    I(f"s_mov_b32 s{S_DR}, s{S_T}")
    I(f"s_mov_b32 s{S_PACE}, 0")
    I(f"s_mov_b32 s{S_R}, {opt.R}")
    I(f"s_mov_b32 s{S_NB}, {min(opt.nbar, opt.R - 1)}")
    if opt.skew:
        I(f"s_cmp_lt_u32 s{sW}, 8")
        I(f"s_cselect_b32 s{S_R}, {opt.R - opt.skew}, s{S_R}")
        I(f"s_cmp_lt_u32 s{sW}, 4")
        I(f"s_cselect_b32 s{S_R}, {opt.R - 2*opt.skew}, s{S_R}")
    for r in range(D):
        rd2(V_DATA + 8 * r, V_PTRC, r)
    rd2(V_RC, V_PTRC, 0)
    I(f"v_add_u32 v{V_PTRI}, {D*64}, v{V_PTRC}")
    I("s_waitcnt lgkmcnt(0)")
    rd2(V_RI, V_PTRI, 0)
    if gate: gate("h")
    I(f"s_cmp_eq_u32 s{S_T}, 0")
    I(f"s_cbranch_scc1 {pfx}_FIN")
    for r in range(D):
        d = V_DATA + 8 * r
        if r > 0:
            I(f"s_cmp_le_u32 s{S_T}, {r}")
            I(f"s_cbranch_scc1 {pfx}_DR0")
            pace_check(pfx)
        I(f"v_mad_u32_u16 v{V_A0}, v{d}, s{S_128}, v{V_F16}")
        I(f"v_mad_u32_u16 v{V_A1}, v{d+1}, s{S_128}, v{V_F16}")
        I(f"buffer_load_dwordx4 v[{d}:{d+3}], v{V_A0}, s[{tbl}:{tbl+3}], 0 offen" + FL[opt.ldg])
        I(f"buffer_load_dwordx4 v[{d+4}:{d+7}], v{V_A1}, s[{tbl}:{tbl+3}], 0 offen" + FL[opt.ldg])
    I(f"s_sub_u32 s{S_REM}, s{S_T}, {D}")
    I(f"s_mov_b32 s{S_DR}, {D}")
    I(f"s_cmp_eq_u32 s{S_REM}, 0")
    I(f"s_cbranch_scc1 {pfx}_DR0")
    L(f"{pfx}_MAIN")
    for r in range(D):
        p = r & 1
        d = V_DATA + 8 * r
        I("s_waitcnt lgkmcnt(0)")
        rd2(V_RC + 2 * (p ^ 1), V_PTRC, r + 1)
        rd2(V_RI + 2 * (p ^ 1), V_PTRI, r + 1)
        perms(p)
        ri = V_RI + 2 * p
        I(f"v_mad_u32_u16 v{V_A0}, v{ri}, s{S_128}, v{V_F16}")
        I(f"v_mad_u32_u16 v{V_A1}, v{ri+1}, s{S_128}, v{V_F16}")
        I(f"s_waitcnt vmcnt({2*(D-1)})")
        mfmas(r)
        pace_check(pfx)
        I(f"buffer_load_dwordx4 v[{d}:{d+3}], v{V_A0}, s[{tbl}:{tbl+3}], 0 offen" + FL[opt.ldg])
        I(f"buffer_load_dwordx4 v[{d+4}:{d+7}], v{V_A1}, s[{tbl}:{tbl+3}], 0 offen" + FL[opt.ldg])
        if r == D - 1:
            I(f"v_add_u32 v{V_PTRC}, {D*64}, v{V_PTRC}")
            I(f"v_add_u32 v{V_PTRI}, {D*64}, v{V_PTRI}")
        I(f"s_sub_u32 s{S_REM}, s{S_REM}, 1")
        I(f"s_cmp_eq_u32 s{S_REM}, 0")
        if r == D - 1:
            I(f"s_cbranch_scc0 {pfx}_MAIN")
        else:
            I(f"s_cbranch_scc1 {pfx}_DR{r+1}")
    for q in range(2 * D - 1):
        r = q % D
        p = q & 1
        if q < D:
            L(f"{pfx}_DR{q}")
            if opt.R > 1:
                lab = uid(pfx + "_DX")
                I(f"s_cmp_eq_u32 s{S_NB}, 0")
                I(f"s_cbranch_scc1 {lab}")
                I(f"s_call_b64 s[{S_RET}:{S_RET+1}], {pfx}_BF")
                L(lab)
        I("s_waitcnt lgkmcnt(0)")
        if q + 1 <= 2 * D - 2:
            rd2(V_RC + 2 * (p ^ 1), V_PTRC, q + 1)
        perms(p)
        I("s_waitcnt vmcnt(0)")
        I(f"s_sub_u32 s{S_DR}, s{S_DR}, 1")
        mfmas(r)
        if q < 2 * D - 2:
            I(f"s_cmp_eq_u32 s{S_DR}, 0")
            I(f"s_cbranch_scc1 {pfx}_FIN")
    L(f"{pfx}_FIN")
    if opt.R > 1:
        lab = uid(pfx + "_DY")
        I(f"s_cmp_eq_u32 s{S_NB}, 0")
        I(f"s_cbranch_scc1 {lab}")
        I(f"s_call_b64 s[{S_RET}:{S_RET+1}], {pfx}_BF")
        L(lab)
    if opt.rst and opt.stamps:
        for k in range(7):
            I(f"s_mov_b32 s86, s{66-k}")
            I(f"s_mov_b32 s87, s99")
            stamp(9 + k, 124, 86)
    I("s_nop 4")

def node_pos(sW, heavy):
    I(f"v_lshrrev_b32 v{V_NB}, 2, v{V_G4}")
    I(f"s_lshl_b32 s45, s{sW}, 4")
    if not heavy:
        I(f"s_lshl_b32 s46, s{sW}, 3")
        I(f"s_add_u32 s46, s46, 96")
        I(f"s_cmp_lt_u32 s{sW}, 12")
        I(f"s_cselect_b32 s45, s45, s46")
    I(f"v_add_u32 v{V_NA}, s45, v{V_NB}")
    I(f"v_add_u32 v{V_NB}, 8, v{V_NA}")

def hop_header(sW, vflag):
    I(f"s_lshl_b32 s45, s{sW}, 2")
    I(f"v_mov_b32 v{V_A0}, s45")
    I(f"v_mov_b32 v{vflag}, {L_HEAVY}")
    I(f"ds_read_b32 v{vflag}, v{vflag}")
    I(f"ds_read_b32 v{V_A1}, v{V_A0} offset:{L_SU}")
    I(f"ds_read_b32 v{V_PTRC}, v{V_A0} offset:{L_WB}")
    node_pos(sW, False)
    I(f"ds_read_u8 v{V_NA}, v{V_NA} offset:{L_ORD}")
    I(f"ds_read_u8 v{V_NB}, v{V_NB} offset:{L_ORD}")
    I("s_waitcnt lgkmcnt(0)")
    I(f"v_readfirstlane_b32 s77, v{vflag}")
    I(f"v_readfirstlane_b32 s{S_T}, v{V_A1}")
    I(f"v_add_u32 v{V_PTRC}, v{V_PTRC}, v{V_G4}")
    lab = uid("HH")
    I(f"s_cmp_lt_u32 s{sW}, 12")
    I(f"s_cbranch_scc1 {lab}")
    I(f"v_mov_b32 v{V_NB}, 0xff")
    L(lab)

def split_fix(pfx, sW):
    lab = uid(pfx + "_SF")
    I(f"s_cmp_lt_u32 s{sW}, 12")
    I(f"s_cbranch_scc1 {lab}")
    for i in range(8):
        I(f"v_add_f32 v{V_ACC+i}, v{V_ACC+i}, v{V_ACC2+i}")
    L(lab)

def heavy_path(pfx, tbl, seg_lo_hi, rec_srd, rech_srd, sB, sW, acc_base, nwaves):
    I("v_mov_b32 v40, 0")
    I("v_mov_b32 v41, 0")
    I("v_mov_b32 v42, 0")
    I("v_mov_b32 v43, 0")
    I("v_lshlrev_b32 v44, 4, v0")
    I(f"v_add_u32 v44, {acc_base}, v44")
    n16 = ACC_BYTES // 16
    for i in range(3):
        I(f"ds_write_b128 v44, v[40:43] offset:{i*16384}")
    I(f"v_cmp_gt_u32 vcc, {n16 - 3072}, v0")
    I("s_and_saveexec_b64 s[60:61], vcc")
    I(f"ds_write_b128 v44, v[40:43] offset:{3*16384}")
    I("s_mov_b64 exec, s[60:61]")
    I("s_waitcnt lgkmcnt(0)")
    I("s_barrier")
    I(f"s_mov_b32 s62, s{sW}")
    I(f"v_lshrrev_b32 v45, 3, v{V_LANE}")
    I(f"s_lshl_b32 s63, s{sB}, 2")
    L(f"{pfx}_HC")
    I("s_lshl_b32 s64, s62, 10")
    I("s_add_u32 s64, s64, s63")
    I(f"s_add_u32 s66, s{seg_lo_hi}, s64")
    I(f"s_addc_u32 s67, s{seg_lo_hi+1}, 0")
    I("s_load_dword s68, s[66:67], 0")
    I(f"s_mul_i32 s69, s62, {RECP}")
    I(f"s_mul_i32 s65, s62, {RECH}")
    I("s_waitcnt lgkmcnt(0)")
    I("s_and_b32 s70, s68, 0xffff")
    I("s_lshr_b32 s71, s68, 16")
    L(f"{pfx}_HI")
    I("s_cmp_ge_u32 s70, s71")
    I(f"s_cbranch_scc1 {pfx}_HN")
    I("v_add_u32 v46, s70, v45")
    I("v_cmp_gt_u32 vcc, s71, v46")
    I("s_and_saveexec_b64 s[60:61], vcc")
    I("v_lshlrev_b32 v47, 2, v46")
    I(f"buffer_load_dword v48, v47, s[{rec_srd}:{rec_srd+3}], s69 offen")
    I("v_lshlrev_b32 v47, 1, v46")
    I(f"buffer_load_ushort v49, v47, s[{rech_srd}:{rech_srd+3}], s65 offen")
    I("s_waitcnt vmcnt(0)")
    I("v_and_b32 v50, 0xffff, v48")
    I("v_lshlrev_b32 v50, 7, v50")
    I(f"v_add_u32 v50, v50, v{V_F16}")
    I(f"buffer_load_dwordx4 v[52:55], v50, s[{tbl}:{tbl+3}], 0 offen" + FL[opt.ldg])
    I("v_and_b32 v51, 0xffff0000, v48")
    I("v_lshrrev_b32 v56, 4, v49")
    I("v_lshlrev_b32 v56, 8, v56")
    I(f"v_lshlrev_b32 v57, 1, v{V_F16}")
    I("v_add_u32 v56, v56, v57")
    I(f"v_add_u32 v56, {acc_base}, v56")
    I("s_waitcnt vmcnt(0)")
    for i in range(4):
        I(f"v_lshlrev_b32 v58, 16, v{52+i}")
        I(f"v_and_b32 v59, 0xffff0000, v{52+i}")
        I("v_mul_f32 v58, v58, v51")
        I("v_mul_f32 v59, v59, v51")
        I(f"ds_add_f32 v56, v58 offset:{8*i}")
        I(f"ds_add_f32 v56, v59 offset:{8*i + 4}")
    I("s_mov_b64 exec, s[60:61]")
    I("s_add_u32 s70, s70, 8")
    I(f"s_branch {pfx}_HI")
    L(f"{pfx}_HN")
    I(f"s_add_u32 s62, s62, {nwaves}")
    I("s_cmp_lt_u32 s62, 256")
    I(f"s_cbranch_scc1 {pfx}_HC")
    I("s_waitcnt lgkmcnt(0)")
    I("s_barrier")

def heavy_read_acc(acc_base, sW):
    node_pos(sW, True)
    for vn, va in ((V_NA, V_ACC), (V_NB, V_ACC2)):
        I(f"v_lshlrev_b32 v{V_A0}, 8, v{vn}")
        I(f"v_lshlrev_b32 v{V_A1}, 1, v{V_F16}")
        I(f"v_add_u32 v{V_A0}, v{V_A0}, v{V_A1}")
        I(f"v_add_u32 v{V_A0}, {acc_base}, v{V_A0}")
        I(f"ds_read_b128 v[{va}:{va+3}], v{V_A0}")
        I(f"ds_read_b128 v[{va+4}:{va+7}], v{V_A0} offset:16")
    I("s_waitcnt lgkmcnt(0)")


def grid_arrive():
    R, SH = opt.brep, opt.bsh
    assert R * SH <= 64
    lsh = SH.bit_length() - 1
    I(f"s_and_b32 s45, s2, {SH-1}")
    I("s_lshl_b32 s45, s45, 7")
    I(f"s_add_u32 s45, s45, {WS_SYNC}")
    I(f"v_lshlrev_b32 v116, {7+lsh}, v{V_LANE}")
    I("v_add_u32 v116, s45, v116")
    I("v_mov_b32 v117, 1")
    I("s_mov_b64 s[72:73], exec")
    I(f"s_mov_b64 exec, {hex((1 << R) - 1)}")
    I("global_atomic_add v116, v117, s[6:7] sc1")
    I("s_mov_b64 exec, s[72:73]")

def grid_poll(pfx):
    R, SH = opt.brep, opt.bsh
    lsh = SH.bit_length() - 1
    I("s_mov_b64 s[72:73], exec")
    I(f"s_mov_b64 exec, {(1 << SH) - 1}")
    I(f"s_lshr_b32 s45, s2, {lsh}")
    I(f"s_and_b32 s45, s45, {R-1}")
    I(f"s_lshl_b32 s45, s45, {7+lsh}")
    I(f"s_add_u32 s45, s45, {WS_SYNC}")
    I(f"v_lshlrev_b32 v116, 7, v{V_LANE}")
    I("v_add_u32 v116, s45, v116")
    I(f"s_mov_b32 s46, {opt.spin}")
    L(f"{pfx}_POLL")
    I("global_load_dword v118, v116, s[6:7] sc1")
    I("s_waitcnt vmcnt(0)")
    for l in range(SH):
        I(f"v_readlane_b32 s{12+(l&3)}, v118, {l}")
        if l == 1: I("s_add_u32 s11, s12, s13")
        elif l > 1: I(f"s_add_u32 s11, s11, s{12+(l&3)}")
    if SH == 1: I("s_mov_b32 s11, s12")
    I("s_cmp_ge_u32 s11, 256")
    I(f"s_cbranch_scc1 {pfx}_POLLED")
    if opt.slp: I(f"s_sleep {opt.slp}")
    I("s_sub_u32 s46, s46, 1")
    I("s_cmp_eq_u32 s46, 0")
    I(f"s_cbranch_scc0 {pfx}_POLL")
    L(f"{pfx}_POLLED")
    I("s_mov_b64 exec, s[72:73]")

def release_gate(tag):
    lab, lab2 = uid("RG"), uid("RH")
    I(f"s_cmp_eq_u32 s47, 0")
    I(f"s_cbranch_scc1 {lab}")
    I("s_cmp_lg_u32 s10, 0")
    I(f"s_cbranch_scc1 {lab2}")
    I(f"s_call_b64 s[{S_RET}:{S_RET+1}], GPOLL")
    L(lab2)
    I("s_barrier")
    stamp(8, 124)
    L(lab)

def gen_k2():
    name = "sgc_prop_kernel"
    kernel_begin(name)
    I("s_cmp_ge_u32 s2, 256")
    I("s_cbranch_scc1 K2_END")
    if opt.stamps: I("s_memrealtime s[86:87]")
    I("s_load_dwordx2 s[6:7], s[0:1], 56")
    I("s_load_dwordx2 s[4:5], s[0:1], 0")
    I("s_load_dwordx4 s[32:35], s[0:1], 32")
    I("s_and_b32 s8, s2, 7")
    I("s_lshl_b32 s8, s8, 5")
    I("s_lshr_b32 s9, s2, 3")
    I("s_add_u32 s8, s8, s9")
    I("v_readfirstlane_b32 s10, v0")
    I(f"v_and_b32 v{V_LANE}, 63, v0")
    I(f"v_lshrrev_b32 v52, 4, v{V_LANE}")
    I("s_lshr_b32 s10, s10, 6")
    I("s_lshl_b32 s11, s10, 2")
    I("v_add_u32 v52, s11, v52")
    I("s_lshl_b32 s11, s8, 2")
    I("v_lshl_add_u32 v53, v52, 10, s11")
    for r in range(4):
        I(f"s_mov_b32 s{36+r}, {r*65536}")
    I("s_waitcnt lgkmcnt(0)")
    stamp_init(1, 6, 124); stamp(0, 124, 86)
    srd(16, 6, 7, NCH * 1024, WS_SEG)
    SG = lambda r: 56 + r
    for r in range(4):
        I(f"buffer_load_dword v{SG(r)}, v53, s[16:19], s{36+r} offen")
    ntouch = 0
    if opt.tlb:
        srd(20, 6, 7, NCH * RECP, WS_RECP)
        I(f"v_lshlrev_b32 v44, 20, v{V_LANE}")
        I(f"buffer_load_dword v{V_PFD}, v44, s[20:23], 0 offen sc1")
        srd(96, 6, 7, NCH * RECH, WS_RECH)
        I(f"buffer_load_dword v{V_PFD}, v44, s[96:99], 0 offen sc1")
        ntouch = 2
        if opt.tlb >= 2:
            srd(24, 4, 5, TBL_BYTES)
            I(f"buffer_load_dword v{V_PFD}, v44, s[24:27], 0 offen")
            ntouch = 3
    I(f"s_mov_b32 s14, {RECH}")
    I("v_mul_u32_u24 v54, s14, v52")
    I(f"v_and_b32 v55, 15, v{V_LANE}")
    srd(20, 6, 7, NCH * RECP, WS_RECP)
    srd(96, 6, 7, NCH * RECH, WS_RECH)
    for r in range(4):
        I(f"s_mov_b32 s{40+r}, {r*64*RECP}")
    nb, nc = opt.pf2b, opt.pf2c
    def init_block():
        I("v_lshlrev_b32 v108, 4, v0")
        I(f"v_mov_b32 v112, {SAFE}")
        I("v_mov_b32 v113, v112")
        I("v_mov_b32 v114, v112")
        I("v_mov_b32 v115, v112")
        I(f"v_add_u32 v109, {L_LN}, v108")
        I("ds_write_b128 v109, v[112:115]")
        I("v_mov_b32 v116, 0")
        I("v_mov_b32 v117, 0")
        I("v_mov_b32 v118, 0")
        I("v_mov_b32 v119, 0")
        I(f"v_cmp_gt_u32 vcc, {LS_CAP//16}, v0")
        I("s_and_saveexec_b64 s[12:13], vcc")
        I(f"v_add_u32 v109, {L_LS}, v108")
        I("ds_write_b128 v109, v[112:115]")
        I("s_mov_b64 exec, s[12:13]")
        I("v_cmp_gt_u32 vcc, 32, v0")
        I("s_and_saveexec_b64 s[12:13], vcc")
        I("ds_write_b128 v108, v[116:119]")
        I("s_mov_b64 exec, s[12:13]")
        I(f"v_cmp_gt_u32 vcc, {(K2_ZERO_END-L_CNT)//16}, v0")
        I("s_and_saveexec_b64 s[12:13], vcc")
        I(f"ds_write_b128 v108, v[116:119] offset:{L_CNT}")
        I("s_mov_b64 exec, s[12:13]")
        srd(24, 4, 5, TBL_BYTES)
        srd(28, 6, 7, TBL_BYTES, WS_H1)
        if nb: pf_setup(48, nb, opt.pf1 * 32 * PFU)
        if nc: pf_setup(7, nc, (opt.pf1 + nb) * 32 * PFU)
        hop_consts()
    if not opt.lateinit: init_block()
    SM = lambda t, r: 46 + (t * 4 + r) * 2
    VOFF = lambda r: 60 + r
    VR = lambda t, r: 64 + (t * 4 + r) * 2
    VK = lambda t, r: 88 + t * 4 + r
    VP = lambda t, r: 100 + (t * 4 + r) * 2
    ONE = 40
    VOFP = lambda r: 44 + r
    for r in range(4):
        I(f"s_mov_b32 s{36+r}, {r*64*RECH}")
    I(f"s_waitcnt vmcnt({ntouch})")
    stamp(1, 124)
    I("s_mov_b64 s[70:71], 0")
    I("s_mov_b64 s[72:73], exec")
    for r in range(4):
        I(f"s_mov_b32 s{36+r}, {r*64*RECH}")
    IX = lambda r: 100 + r
    EN = lambda r: 104 + r
    for r in range(4):
        I(f"v_and_b32 v{IX(r)}, 0xffff, v{SG(r)}")
        I(f"v_lshrrev_b32 v{EN(r)}, 16, v{SG(r)}")
        I(f"v_add_u32 v{IX(r)}, v{IX(r)}, v55")
        I(f"v_lshl_add_u32 v{VOFF(r)}, v{IX(r)}, 1, v54")
        I(f"v_cmp_lt_u32 s[{SM(0,r)}:{SM(0,r)+1}], v{IX(r)}, v{EN(r)}")
        I(f"v_add_u32 v41, 16, v{IX(r)}")
        I(f"s_mov_b64 exec, s[{SM(0,r)}:{SM(0,r)+1}]")
        lab = uid("K2_SK")
        I(f"s_cbranch_execz {lab}")
        I(f"buffer_load_ushort v{VR(0,r)+1}, v{VOFF(r)}, s[96:99], s{36+r} offen" + FL[opt.ld2])
        L(lab)
        I("s_mov_b64 exec, s[72:73]")
        I(f"v_cmp_lt_u32 s[{SM(1,r)}:{SM(1,r)+1}], v41, v{EN(r)}")
    for r in range(4):
        lab = uid("K2_SK")
        I(f"s_mov_b64 exec, s[{SM(1,r)}:{SM(1,r)+1}]")
        I(f"s_cbranch_execz {lab}")
        I(f"buffer_load_ushort v{VR(1,r)+1}, v{VOFF(r)}, s[96:99], s{36+r} offen offset:32" + FL[opt.ld2])
        L(lab)
    I("s_mov_b64 exec, s[72:73]")
    for r in range(4):
        I(f"v_add_u32 v42, 32, v{IX(r)}")
        I(f"v_cmp_lt_u32 s[{SM(2,r)}:{SM(2,r)+1}], v42, v{EN(r)}")
        I(f"v_add_u32 v43, 48, v{IX(r)}")
        I(f"v_cmp_lt_u32 vcc, v43, v{EN(r)}")
        I(f"v_lshlrev_b32 v{VOFP(r)}, 1, v{VOFF(r)}")
        I("s_or_b64 s[70:71], s[70:71], vcc")
    I(f"s_or_b64 s[74:75], s[{SM(2,0)}:{SM(2,0)+1}], s[{SM(2,1)}:{SM(2,1)+1}]")
    I(f"s_or_b64 s[74:75], s[74:75], s[{SM(2,2)}:{SM(2,2)+1}]")
    I(f"s_or_b64 s[74:75], s[74:75], s[{SM(2,3)}:{SM(2,3)+1}]")
    I("s_cselect_b32 s83, 1, 0")
    I("s_cbranch_scc0 K2_NT3A")
    for r in range(4):
        lab = uid("K2_SK")
        I(f"s_mov_b64 exec, s[{SM(2,r)}:{SM(2,r)+1}]")
        I(f"s_cbranch_execz {lab}")
        I(f"buffer_load_ushort v{VR(2,r)+1}, v{VOFF(r)}, s[96:99], s{36+r} offen offset:64" + FL[opt.ld2])
        I(f"buffer_load_dword v{VR(2,r)}, v{VOFP(r)}, s[20:23], s{40+r} offen offset:128" + FL[opt.ld2])
        L(lab)
    I("s_mov_b64 exec, s[72:73]")
    L("K2_NT3A")
    I("s_mov_b64 exec, s[72:73]")
    if opt.lateinit: init_block()
    I(f"v_mov_b32 v{ONE}, 1")
    I(f"v_mov_b32 v11, 32")
    I("s_waitcnt lgkmcnt(0)")
    if opt.payafter:
        I("s_barrier")
    for t in range(2):
        for r in range(4):
            I(f"buffer_load_dword v{VR(t,r)}, v{VOFP(r)}, s[20:23], s{40+r} offen" + (f" offset:{64*t}" if t else "") + FL[opt.ld2])
    if not opt.payafter:
        I("s_barrier")
    I("s_waitcnt vmcnt(8)")
    stamp(2, 124)
    for t in range(3):
        if t == 2:
            I("s_cmp_eq_u32 s83, 0")
            I("s_cbranch_scc1 K2_NT3B")
        for r in range(4):
            lab = uid("K2_SC")
            I(f"s_mov_b64 exec, s[{SM(t,r)}:{SM(t,r)+1}]")
            I(f"s_cbranch_execz {lab}")
            I(f"ds_add_rtn_u32 v{VK(t,r)}, v{VR(t,r)+1}, v11 offset:{L_CNT}")
            L(lab)
    L("K2_NT3B")
    I("s_mov_b64 exec, s[72:73]")
    I("s_cmp_eq_u64 s[70:71], 0")
    I("s_cbranch_scc1 K2_NOH")
    I(f"v_mov_b32 v41, {L_HEAVY}")
    I(f"ds_write_b32 v41, v{ONE}")
    L("K2_NOH")
    I("s_waitcnt lgkmcnt(0)")
    I("s_barrier")
    stamp(3, 124)
    I("s_cmp_ge_u32 s10, 4")
    I("s_cbranch_scc1 K2_NOSORT0")
    C = lambda q: 100 + q
    KY, R2, SL, TT, ST, NI = 44, 45, 46, 47, 48, 49
    A, B, Cc, Dd = 116, 117, 118, 119
    I("s_lshl_b32 s12, s10, 6")
    I(f"v_add_u32 v{NI}, s12, v{V_LANE}")
    I(f"v_lshlrev_b32 v{A}, 4, v{NI}")
    I(f"ds_read_b128 v[{C(0)}:{C(3)}], v{A} offset:{L_CNT}")
    I("s_movk_i32 s12, 208")
    I(f"v_cmp_gt_u32 s[74:75], s12, v{NI}")
    I(f"v_lshlrev_b32 v{B}, 2, v{V_LANE}")
    I("s_movk_i32 s76, 0xc0")
    I("s_waitcnt lgkmcnt(0)")
    I(f"v_add_u32 v{TT}, v{C(0)}, v{C(1)}")
    I(f"v_add3_u32 v{TT}, v{TT}, v{C(2)}, v{C(3)}")
    I(f"v_lshrrev_b32 v{TT}, 5, v{TT}")
    I(f"v_min_u32 v{KY}, 63, v{TT}")
    I(f"v_lshlrev_b32 v{KY}, 2, v{KY}")
    I("s_mov_b64 exec, s[74:75]")
    I(f"ds_add_rtn_u32 v{R2}, v{KY}, v{ONE} offset:{L_H2}")
    I("s_mov_b64 exec, s[72:73]")
    I("s_waitcnt lgkmcnt(0)")
    I("s_barrier")
    I(f"ds_read_b32 v{Cc}, v{B} offset:{L_H2}")
    I("s_waitcnt lgkmcnt(0)")
    I(f"v_mov_b32 v{Dd}, v{Cc}")
    wave_scan(Dd)
    I(f"v_sub_u32 v{Dd}, v{Dd}, v{Cc}")
    I("s_nop 0")
    I(f"ds_bpermute_b32 v{SL}, v{KY}, v{Dd}")
    I("s_waitcnt lgkmcnt(0)")
    I(f"v_add_u32 v{R2}, v{R2}, v{SL}")
    I(f"v_cmp_le_u32 s[12:13], s76, v{R2}")
    I(f"v_lshrrev_b32 v{SL}, 4, v{R2}")
    I(f"v_lshrrev_b32 v{Cc}, 3, v{R2}")
    I(f"v_subrev_u32 v{Cc}, 12, v{Cc}")
    I(f"v_mov_b32 v{ST}, 2")
    I(f"v_cndmask_b32_e64 v{SL}, v{SL}, v{Cc}, s[12:13]")
    I(f"v_cndmask_b32_e64 v{ST}, v{ST}, 1, s[12:13]")
    I(f"v_lshlrev_b32 v{SL}, 2, v{SL}")
    I("s_mov_b64 exec, s[74:75]")
    I(f"ds_max_u32 v{SL}, v{TT} offset:{L_WM}")
    I(f"ds_write_b8 v{R2}, v{NI} offset:{L_ORD}")
    I("s_mov_b64 exec, s[72:73]")
    I(f"v_lshlrev_b32 v{KY}, 3, v{ST}")
    I(f"v_subrev_u32 v{KY}, 1, v{KY}")
    I(f"v_and_b32 v{KY}, v{KY}, v{R2}")
    I(f"v_add_u32 v{TT}, v{C(0)}, v{C(1)}")
    I(f"v_add_u32 v{R2}, v{TT}, v{C(2)}")
    I("s_waitcnt lgkmcnt(0)")
    I("s_barrier")
    I(f"ds_read_b32 v{Cc}, v{B} offset:{L_WM}")
    I(f"v_cmp_gt_u32 vcc, 12, v{V_LANE}")
    I("s_waitcnt lgkmcnt(0)")
    I(f"v_add_u32 v{Dd}, 1, v{Cc}")
    I(f"v_lshrrev_b32 v{Dd}, 1, v{Dd}")
    I(f"v_cndmask_b32 v{Cc}, v{Dd}, v{Cc}, vcc")
    I(f"v_lshlrev_b32 v{Dd}, 6, v{Cc}")
    I(f"v_mov_b32 v120, v{Dd}")
    wave_scan(120, 16)
    I("s_nop 1")
    I("v_readlane_b32 s76, v120, 11")
    I("v_readlane_b32 s15, v120, 15")
    I(f"v_sub_u32 v120, v120, v{Dd}")
    I(f"v_add_u32 v121, {L_LN}, v120")
    I(f"s_sub_u32 s14, {L_LS}, s76")
    I("v_add_u32 v120, s14, v120")
    I("v_cndmask_b32 v120, v120, v121, vcc")
    I("s_nop 0")
    I(f"ds_bpermute_b32 v{SL}, v{SL}, v120")
    I("s_cmp_lg_u32 s10, 0")
    I("s_cbranch_scc1 K2_NOHDR")
    I(f"v_cmp_gt_u32 vcc, 16, v{V_LANE}")
    I("s_and_saveexec_b64 s[12:13], vcc")
    I(f"ds_write_b32 v{B}, v120 offset:{L_WB}")
    I(f"ds_write_b32 v{B}, v{Cc} offset:{L_SU}")
    I("s_mov_b64 exec, s[12:13]")
    I("s_sub_u32 s15, s15, s76")
    I(f"s_cmp_gt_u32 s76, {LN_CAP}")
    I("s_cbranch_scc1 K2_CAPBAD")
    I(f"s_cmp_le_u32 s15, {LS_CAP}")
    I("s_cbranch_scc1 K2_NOHDR")
    L("K2_CAPBAD")
    I(f"v_mov_b32 v41, {L_HEAVY}")
    I(f"ds_write_b32 v41, v{ONE}")
    L("K2_NOHDR")
    I("s_waitcnt lgkmcnt(0)")
    I(f"v_lshl_add_u32 v{C(3)}, v{KY}, 2, v{SL}")
    I(f"v_mad_u32_u24 v{C(1)}, v{C(0)}, v{ST}, v{C(3)}")
    I(f"v_mov_b32 v{C(0)}, v{C(3)}")
    I(f"v_mad_u32_u24 v{C(2)}, v{TT}, v{ST}, v{C(0)}")
    I(f"v_mad_u32_u24 v{C(3)}, v{R2}, v{ST}, v{C(0)}")
    I("s_mov_b64 exec, s[74:75]")
    I(f"ds_write_b128 v{A}, v[{C(0)}:{C(3)}] offset:{L_NBQ}")
    I("s_mov_b64 exec, s[72:73]")
    I("s_waitcnt vmcnt(0) lgkmcnt(0)")
    I("s_branch K2_NOSORT")
    L("K2_NOSORT0")
    I("s_waitcnt vmcnt(0)")
    if nb:
        lab = uid("PFX")
        I(f"s_cmp_lt_u32 s10, {16 - nb}")
        I(f"s_cbranch_scc1 {lab}")
        I(f"s_mov_b32 s15, {(16 - nb) * PFU}")
        I(f"v_subrev_u32 v48, s15, v48")
        I(f"buffer_load_dword v{V_PFD}, v48, s[24:27], 0 offen")
        L(lab)
    I("s_barrier")
    I("s_barrier")
    L("K2_NOSORT")
    I("s_barrier")
    stamp(4, 124)
    I(f"v_mov_b32 v41, {L_HEAVY}")
    I("ds_read_b32 v41, v41")
    VP1 = lambda t, r: 100 + t * 4 + r
    for t in range(3):
        if t == 2:
            I("s_cmp_eq_u32 s83, 0")
            I("s_cbranch_scc1 K2_NT3C")
        for r in range(4):
            lab = uid("K2_SP")
            I(f"s_mov_b64 exec, s[{SM(t,r)}:{SM(t,r)+1}]")
            I(f"s_cbranch_execz {lab}")
            I(f"ds_read_b32 v{VP1(t,r)}, v{VR(t,r)+1} offset:{L_NBQ}")
            L(lab)
    L("K2_NT3C")
    I("s_mov_b64 exec, s[72:73]")
    I(f"s_lshl_b32 s45, s10, 2")
    I(f"v_mov_b32 v{V_A0}, s45")
    I(f"ds_read_b32 v{V_PTRI}, v{V_A0} offset:{L_SU}")
    I(f"ds_read_b32 v{V_PTRC}, v{V_A0} offset:{L_WB}")
    I(f"v_lshrrev_b32 v{V_NB}, 2, v{V_G4}")
    I(f"s_lshl_b32 s45, s10, 4")
    I(f"s_lshl_b32 s14, s10, 3")
    I(f"s_add_u32 s14, s14, 96")
    I(f"s_cmp_lt_u32 s10, 12")
    I(f"s_cselect_b32 s45, s45, s14")
    I(f"v_add_u32 v{V_NA}, s45, v{V_NB}")
    I(f"v_add_u32 v{V_NB}, 8, v{V_NA}")
    I(f"ds_read_u8 v{V_NA}, v{V_NA} offset:{L_ORD}")
    I(f"ds_read_u8 v{V_NB}, v{V_NB} offset:{L_ORD}")
    I("s_waitcnt lgkmcnt(0)")
    I("v_readfirstlane_b32 s77, v41")
    I(f"v_readfirstlane_b32 s{S_T}, v{V_PTRI}")
    I(f"v_add_u32 v{V_PTRC}, v{V_PTRC}, v{V_G4}")
    if opt.stamps: stamp(12, 124)
    I("s_cmp_lg_u32 s77, 0")
    I("s_cbranch_scc1 K2_NOPLACE")
    for t in range(3):
        if t == 2:
            I("s_cmp_eq_u32 s83, 0")
            I("s_cbranch_scc1 K2_NT3D")
        for r in range(4):
            lab = uid("K2_SW")
            I(f"s_mov_b64 exec, s[{SM(t,r)}:{SM(t,r)+1}]")
            I(f"s_cbranch_execz {lab}")
            I(f"v_mad_u32_u16 v{VP1(t,r)}, v{VK(t,r)}, v{VP1(t,r)}, v{VP1(t,r)} op_sel:[0,1,0,0]")
            I(f"ds_write_b32 v{VP1(t,r)}, v{VR(t,r)}")
            L(lab)
    L("K2_NT3D")
    I("s_mov_b64 exec, s[72:73]")
    L("K2_NOPLACE")
    I("s_waitcnt lgkmcnt(0)")
    if opt.stamps: stamp(13, 124)
    I("s_barrier")
    stamp(5, 124)
    if nc: pf_issue(7, V_PFD, 24, nc, 10)
    S_PH, S_SCR = 47, 83
    I(f"s_mov_b32 s{S_PH}, 0")
    I(f"s_cmp_lt_u32 s10, {NWORK}")
    I("s_cbranch_scc1 K2_KEEP")
    I("s_cmp_eq_u32 s77, 0")
    I("s_cbranch_scc1 K2_END")
    L("K2_KEEP")
    srd(16, 32, 33, 8192)
    I("v_lshlrev_b32 v110, 4, v0")
    I("buffer_load_dwordx4 v[112:115], v110, s[16:19], 0 offen")
    L("K2_PHASE")
    I("s_cmp_eq_u32 s77, 0")
    I("s_cbranch_scc1 K2_FAST")
    release_gate("v")
    heavy_path("K2H", 24, 6, 20, 96, 8, 10, K2_ACC, 16)
    heavy_read_acc(K2_ACC, 10)
    I("s_cmp_lt_u32 s10, 13")
    I("s_cbranch_scc1 K2_DONE")
    I(f"s_cmp_lg_u32 s{S_PH}, 0")
    I("s_cbranch_scc1 K2_END")
    I(f"v_mov_b32 v{V_NA}, 0xff")
    I(f"v_mov_b32 v{V_NB}, 0xff")
    I("s_branch K2_DONE")
    L("K2_FAST")
    I(f"s_cmp_eq_u32 s{S_PH}, 0")
    I("s_cbranch_scc1 K2_HOPIN0")
    hop_header(10, 41)
    I("s_branch K2_HOPIN")
    L("K2_HOPIN0")
    I("s_cmp_lt_u32 s10, 12")
    I("s_cbranch_scc1 K2_HOPIN")
    I(f"v_mov_b32 v{V_NB}, 0xff")
    L("K2_HOPIN")
    hop_wave("K2S", 24, 10, release_gate)
    split_fix("K2S", 10)
    L("K2_DONE")
    I(f"s_cmp_lg_u32 s{S_PH}, 0")
    I("s_cbranch_scc1 K2_GEMM")
    stamp(6, 124)
    I("s_lshl_b32 s45, s8, 7")
    for vn, va, t0, ad in ((V_NA, V_ACC, V_T, V_A0), (V_NB, V_ACC2, V_RC, V_A1)):
        for i in range(4):
            I(f"v_cvt_pk_bf16_f32 v{t0+i}, v{va+2*i}, v{va+2*i+1}")
        I(f"v_lshlrev_b32 v{ad}, 15, v{vn}")
        I(f"v_add3_u32 v{ad}, v{ad}, s45, v{V_F16}")
        I(f"buffer_store_dwordx4 v[{t0}:{t0+3}], v{ad}, s[28:31], 0 offen" + FL[opt.st2])
    E_SW, E_AB0, E_AB1, E_AW, E_BP, E_KB = 104, 105, 106, 107, 108, 109
    WF = 72
    I("v_cmp_gt_u32 vcc, 0x200, v0")
    I("s_and_saveexec_b64 s[72:73], vcc")
    I(f"ds_write_b128 v110, v[112:115] offset:{L_WL}")
    I("s_mov_b64 exec, s[72:73]")
    I(f"s_lshl_b32 s{S_SCR}, s10, 11")
    I(f"s_add_u32 s{S_SCR}, s{S_SCR}, {L_SCR}")
    I(f"v_lshlrev_b32 v60, 2, v{V_G4}")
    I(f"v_xor_b32 v61, v60, v{V_F16}")
    I(f"v_lshlrev_b32 v60, 3, v60")
    I(f"v_add3_u32 v{E_SW}, v60, v61, s{S_SCR}")
    I(f"v_and_b32 v60, 15, v{V_LANE}")
    I(f"v_lshrrev_b32 v{E_KB}, 4, v{V_LANE}")
    I(f"v_and_b32 v61, 7, v60")
    I(f"v_lshlrev_b32 v{E_BP}, 5, v61")
    I(f"v_xor_b32 v62, v{E_KB}, v61")
    I(f"v_lshlrev_b32 v62, 4, v62")
    I(f"v_lshlrev_b32 v63, 7, v60")
    I(f"v_add3_u32 v{E_AB0}, v63, s{S_SCR}, v62")
    I(f"v_xor_b32 v62, 64, v62")
    I(f"v_add3_u32 v{E_AB1}, v63, s{S_SCR}, v62")
    I(f"v_lshrrev_b32 v62, 2, v60")
    I(f"v_lshl_add_u32 v62, v{E_KB}, 3, v62")
    I(f"v_lshlrev_b32 v62, 7, v62")
    I(f"v_and_b32 v63, 3, v{V_LANE}")
    I(f"v_lshl_add_u32 v{E_AW}, v63, 4, v62")
    I(f"v_cmp_gt_u32 s[74:75], 8, v60")
    I(f"v_lshlrev_b32 v{E_KB}, 4, v{E_KB}")
    for i in range(8):
        I(f"v_mov_b32 v{V_ACC+i}, 0")
        I(f"v_mov_b32 v{V_ACC2+i}, 0")
    srd(24, 6, 7, TBL_BYTES, WS_H1)
    I("s_waitcnt vmcnt(0) lgkmcnt(0)")
    srd(28, 34, 35, TBL_BYTES)
    stamp(7, 124)
    if opt.own == 2:
        I(f"buffer_load_dword v{V_PFD}, v{V_A0}, s[24:27], 0 offen")
        I(f"buffer_load_dword v{V_PFD}, v{V_A1}, s[24:27], 0 offen")
    I("s_barrier")
    I("s_cmp_lg_u32 s10, 0")
    I("s_cbranch_scc1 K2_NOPOLL")
    grid_arrive()
    L("K2_NOPOLL")
    if opt.own == 1:
        I(f"buffer_load_dword v{V_PFD}, v{V_A0}, s[24:27], 0 offen")
        I(f"buffer_load_dword v{V_PFD}, v{V_A1}, s[24:27], 0 offen")
    for t in range(4):
        for s in range(2):
            for hh in range(2):
                off = L_WL + s * 4096 + hh * 512 + (t >> 1) * 64 + (t & 1) * 8
                d = WF + (t * 2 + s) * 4 + 2 * hh
                I(f"ds_read_b64_tr_b16 v[{d}:{d+1}], v{E_AW} offset:{off}")
    I(f"s_mov_b32 s{S_PH}, 1")
    I("s_branch K2_PHASE")
    L("K2_GEMM")
    stamp(9, 124)
    E_OUT = E_AW
    I(f"ds_bpermute_b32 v110, v{E_BP}, v{V_NA}")
    I(f"ds_bpermute_b32 v111, v{E_BP}, v{V_NB}")
    for va, t0, off in ((V_ACC, V_T, 0), (V_ACC2, V_RC, 1024)):
        for i in range(4):
            I(f"v_cvt_pk_bf16_f32 v{t0+i}, v{va+2*i}, v{va+2*i+1}")
        I(f"ds_write_b128 v{E_SW}, v[{t0}:{t0+3}] offset:{off}")
    B0, B1 = 40, 44
    I(f"ds_read_b128 v[{B0}:{B0+3}], v{E_AB0}")
    I(f"ds_read_b128 v[{B1}:{B1+3}], v{E_AB1}")
    DD = 56
    I("s_lshl_b32 s45, s8, 7")
    I("s_waitcnt lgkmcnt(1)")
    I(f"v_cndmask_b32_e64 v110, v111, v110, s[74:75]")
    for t in range(4):
        a = WF + (t * 2) * 4
        I(f"v_mfma_f32_16x16x32_bf16 v[{DD+4*t}:{DD+4*t+3}], v[{a}:{a+3}], v[{B0}:{B0+3}], 0")
    I(f"v_lshlrev_b32 v110, 15, v110")
    I("s_waitcnt lgkmcnt(0)")
    for t in range(4):
        a = WF + (t * 2 + 1) * 4
        I(f"v_mfma_f32_16x16x32_bf16 v[{DD+4*t}:{DD+4*t+3}], v[{a}:{a+3}], v[{B1}:{B1+3}], v[{DD+4*t}:{DD+4*t+3}]")
    I(f"v_add3_u32 v{E_OUT}, v110, s45, v{E_KB}")
    O = 48
    I("s_nop 4")
    for half in range(2):
        for k in range(2):
            t = half * 2 + k
            if t == 3: I("s_nop 1")
            I(f"v_cvt_pk_bf16_f32 v{O+half*4+2*k}, v{DD+4*t}, v{DD+4*t+1}")
            I(f"v_cvt_pk_bf16_f32 v{O+half*4+2*k+1}, v{DD+4*t+2}, v{DD+4*t+3}")
        I(f"buffer_store_dwordx4 v[{O+half*4}:{O+half*4+3}], v{E_OUT}, s[28:31], 0 offen" + (" offset:64" if half else "") + FL[opt.st3])
    stamp(10, 124)
    if opt.stamps:
        I("s_waitcnt vmcnt(0)")
        stamp(11, 124)
    L("K2_END")
    I("s_endpgm")
    hop_subs("K2S")
    L("GPOLL")
    grid_poll("G2")
    I(f"s_setpc_b64 s[{S_RET}:{S_RET+1}]")
    I("s_endpgm")
    L("K2_CODE_END")
    return name, 128, 102

HEADER = f"""; Kernarg layout for this problem (64 bytes, ptrs only, base s[0:1]):
; @launch kernel=sgc_part_kernel grid=(256,1,1) block=(K1BLK,1,1) lds={K1_LDS}
; @launch kernel=sgc_prop_kernel grid=(256,1,1) block=(1024,1,1) lds=K2LDS
.amdgcn_target "amdgcn-amd-amdhsa--gfx950"
.text"""

def main():
    for a in sys.argv[2:]:
        k, v = a.split("=")
        assert hasattr(opt, k), k
        setattr(opt, k, int(v))
    h = HEADER.replace("K2LDS", str(K2_LDS)).replace("K1BLK", ("896" if opt.cpf else "832") if opt.k1v == 1 else "448")
    emit(h)
    ks = [gen_k1(), gen_k2()]
    emit('.section .rodata,"a"')
    emit(".p2align 6")
    for (n, v, s) in ks:
        kernel_desc(n, v, s)
        emit(".p2align 6")
    open(sys.argv[1], "w").write("\n".join(out) + "\n")

main()
```

```python
import sys

N = 50000
E = 850000
CH = 3328
NCH = 256
RECP = CH * 4
RECH = CH * 2
WS_SEG = 0
WS_RECP = 0x40000
WS_RECH = 0x380000
WS_IMG = 0x6C0000
WS_H1 = 0xC00000
WS_SYNC = 0x600000
TBL_BYTES = N * 128
SAFE = 0x0000FFFF

class Opt:
    D = 4
    R = 8
    skew = 0
    pf1 = 0
    pf2b = 4
    pf2c = 0
    pf3 = 2
    pf3c = 0
    stamps = 0
    st1 = 1
    st2 = 1
    st2i = 1
    st3 = 1
    dbg = 0
    rst = 0
    nbar = 6
    pfs = 0
    pfsr = 2
    pfs3 = 0
    ld1 = 3
    ld2 = 0
    ld3 = 0
    skip3 = 0
    k1v = 1
    ldg = 1
    spin = 16000000
    brep = 16
    pfpos = 1
    poll2 = 0
    own = 0
    cpf = 0
    cpfall = 0
    cpfn = 2
    lateinit = 0
    payafter = 1
    tlb = 0
    bsh = 4
    slp = 6
    smalllds = 0
    k3w = 16

opt = Opt()
out = []
def emit(s=""): out.append(s)
def I(s): out.append("    " + s)
def L(s): out.append(s + ":")
_uid = [0]
def uid(p):
    _uid[0] += 1
    return f"{p}_{_uid[0]}"

FL = ['', ' sc1', ' sc0 sc1', ' nt', ' sc0']
def srd(s, lo, hi, size, add=0):
    if add:
        I(f"s_add_u32 s{s}, s{lo}, {add}")
        I(f"s_addc_u32 s{s+1}, s{hi}, 0")
        I(f"s_and_b32 s{s+1}, s{s+1}, 0xffff")
    else:
        I(f"s_mov_b32 s{s}, s{lo}")
        I(f"s_and_b32 s{s+1}, s{hi}, 0xffff")
    I(f"s_mov_b32 s{s+2}, {size}")
    I(f"s_mov_b32 s{s+3}, 0x20000")

def wave_scan(v, n=64):
    for sh in (1, 2, 4, 8):
        I("s_nop 1")
        I(f"v_add_u32_dpp v{v}, v{v}, v{v} row_shr:{sh} row_mask:0xf bank_mask:0xf")
    if n > 16:
        I("s_nop 1")
        I(f"v_add_u32_dpp v{v}, v{v}, v{v} row_bcast:15 row_mask:0xa bank_mask:0xf")
        I("s_nop 1")
        I(f"v_add_u32_dpp v{v}, v{v}, v{v} row_bcast:31 row_mask:0xc bank_mask:0xf")

STAMP_OFF = 0x2000000
def stamp_init(kidx, ws_lo, vbase):
    if not opt.stamps: return
    I(f"v_lshrrev_b32 v{vbase}, 6, v0")
    I(f"s_lshl_b32 s92, s2, 4")
    I(f"s_add_u32 s92, s92, {kidx*256*16}")
    I(f"v_add_u32 v{vbase}, s92, v{vbase}")
    I(f"v_lshlrev_b32 v{vbase}, 7, v{vbase}")
    I(f"v_add_u32 v{vbase}, {STAMP_OFF}, v{vbase}")
    I(f"s_mov_b32 s94, s{ws_lo}")
    I(f"s_mov_b32 s95, s{ws_lo+1}")
def stamp(j, vbase, pre=None):
    if not opt.stamps: return
    if pre is None:
        I("s_memrealtime s[90:91]")
        I("s_waitcnt lgkmcnt(0)")
    else:
        I(f"s_mov_b32 s90, s{pre}")
        I(f"s_mov_b32 s91, s{pre+1}")
    I("s_mov_b64 s[88:89], exec")
    I("s_mov_b64 exec, 1")
    I(f"v_mov_b32 v{vbase+2}, s90")
    I(f"v_mov_b32 v{vbase+3}, s91")
    I(f"global_store_dwordx2 v{vbase}, v[{vbase+2}:{vbase+3}], s[94:95] offset:{8*j}")
    I("s_mov_b64 exec, s[88:89]")

def kernel_begin(name):
    emit(f".globl {name}")
    emit(".p2align 8")
    emit(f".type {name},@function")
    L(name)

def kernel_desc(name, vgpr, sgpr):
    acc = (vgpr + 3) // 4 * 4
    emit(f".amdhsa_kernel {name}")
    emit(f"  .amdhsa_next_free_vgpr {vgpr}")
    emit(f"  .amdhsa_next_free_sgpr {sgpr}")
    emit(f"  .amdhsa_accum_offset {acc}")
    emit("  .amdhsa_group_segment_fixed_size 0")
    emit("  .amdhsa_kernarg_size 64")
    emit("  .amdhsa_user_sgpr_count 2")
    emit("  .amdhsa_user_sgpr_kernarg_segment_ptr 1")
    emit("  .amdhsa_system_sgpr_workgroup_id_x 1")
    emit(".end_amdhsa_kernel")

PFU = 8192
def pf_setup(vaddr, n, base_bytes):
    I("s_lshr_b32 s15, s2, 3")
    I(f"s_mul_i32 s15, s15, {n*PFU}")
    if base_bytes: I(f"s_add_u32 s15, s15, {base_bytes}")
    I(f"v_lshlrev_b32 v{vaddr}, 7, v0")
    I(f"v_add_u32 v{vaddr}, s15, v{vaddr}")
def pf_issue(vaddr, vdst, tbl, n, sW, nw=16):
    rounds = (n + nw - 1) // nw
    for i in range(rounds):
        cnt = min(nw, n - nw * i)
        lab = uid("PF")
        if cnt < nw:
            I(f"s_cmp_ge_u32 s{sW}, {cnt}")
            I(f"s_cbranch_scc1 {lab}")
        I(f"s_mov_b32 s15, {i*nw*PFU}")
        I(f"buffer_load_dword v{vdst}, v{vaddr}, s[{tbl}:{tbl+3}], s15 offen")
        L(lab)

def pf_stream(tbl, sW, nunits, base_bytes, per_round, vaddr, nrounds_max):
    I("s_lshr_b32 s15, s2, 3")
    I(f"s_mul_i32 s15, s15, {nunits*PFU}")
    I(f"s_add_u32 s15, s15, {base_bytes}")
    I(f"s_sub_u32 s14, s{sW}, {NWORK}")
    I(f"s_mul_i32 s14, s14, {PFU}")
    I("s_add_u32 s15, s15, s14")
    I(f"v_lshlrev_b32 v{vaddr}, 7, v{V_LANE}")
    I(f"v_add_u32 v{vaddr}, s15, v{vaddr}")
    k = 0
    nsteps = (nunits + 1) // 2
    rnd = 0
    while k < nsteps:
        for _ in range(per_round):
            if k >= nsteps: break
            I(f"s_mov_b32 s15, {k*2*PFU}")
            I(f"buffer_load_dword v{V_PFD}, v{vaddr}, s[{tbl}:{tbl+3}], s15 offen")
            k += 1
        rnd += 1
        if k < nsteps and rnd <= nrounds_max:
            I("s_barrier")

K1_HIST = 0
K1_PRE = 1024
K1_STP = 2048
K1_STH = K1_STP + RECP
K1_LDS = K1_STH + RECH

def gen_k1():
    name = "sgc_part_kernel"
    V = opt.k1v
    NT = 832 // V
    kernel_begin(name)
    I("s_cmp_ge_u32 s2, 256")
    I("s_cbranch_scc1 K1_END")
    if opt.cpf:
        I("v_readfirstlane_b32 s15, v0")
        I("s_lshr_b32 s15, s15, 6")
        I("s_cmp_lt_u32 s15, 13")
        I("s_cbranch_scc1 K1_MAIN")
        I(f"s_cmp_ge_u32 s2, {opt.cpf}")
        I("s_cbranch_scc1 K1_END")
        I("s_getpc_b64 s[48:49]")
        L("CPF_PC")
        if opt.cpfall:
            I("s_sub_u32 s48, s48, CPF_PC - sgc_part_kernel")
            I("s_subb_u32 s49, s49, 0")
            I("v_and_b32 v90, 63, v0")
            I("v_lshlrev_b32 v90, 7, v90")
            I("v_cmp_gt_u32 vcc, K2_CODE_END - sgc_part_kernel, v90")
            I("s_and_saveexec_b64 s[12:13], vcc")
            I("global_load_dword v91, v90, s[48:49]")
            I("v_add_u32 v90, 8192, v90")
            I("v_cmp_gt_u32 vcc, K2_CODE_END - sgc_part_kernel, v90")
        else:
            I("s_add_u32 s48, s48, sgc_prop_kernel - CPF_PC")
            I("s_addc_u32 s49, s49, 0")
            I("v_and_b32 v90, 63, v0")
            I("v_lshlrev_b32 v90, 7, v90")
            I("v_cmp_gt_u32 vcc, K2_CODE_END - sgc_prop_kernel, v90")
        I("s_and_saveexec_b64 s[12:13], vcc")
        I("s_cbranch_execz K1_END")
        I("global_load_dword v91, v90, s[48:49]")
        I("s_endpgm")
        L("K1_MAIN")
    if opt.stamps: I("s_memrealtime s[86:87]")
    I("s_load_dwordx4 s[4:7], s[0:1], 8")
    I("s_load_dwordx2 s[8:9], s[0:1], 24")
    I("s_load_dwordx2 s[10:11], s[0:1], 56")
    I(f"s_mul_i32 s3, s2, {CH}")
    I("v_lshl_add_u32 v1, v0, 2, s3")
    I("v_lshlrev_b32 v2, 2, v1")
    I("v_lshlrev_b32 v3, 1, v1")
    I("v_mov_b32 v4, 0")
    I("v_lshlrev_b32 v5, 2, v0")
    I("v_cmp_gt_u32 vcc, 0x100, v0")
    I("s_and_saveexec_b64 s[12:13], vcc")
    I(f"ds_write_b32 v5, v4 offset:{K1_HIST}")
    I("s_mov_b64 exec, s[12:13]")
    I("v_readfirstlane_b32 s15, v0")
    I("s_waitcnt lgkmcnt(0)")
    stamp_init(0, 10, 124); stamp(0, 124, 86)
    srd(16, 6, 7, E * 4)
    D = lambda g, i: 8 + 16 * g + i
    S = lambda g, i: 12 + 16 * g + i
    NR = lambda g, i: 16 + 16 * g + i
    HA = lambda g, i: 40 + 4 * g + i
    RK = lambda g, i: 48 + 4 * g + i
    PL = lambda g, i: 56 + 4 * g + i
    HI = lambda g, i: 64 + 4 * g + i
    for g in range(V):
        I(f"s_mov_b32 s{40+g}, {g*NT*16}")
        I(f"buffer_load_dwordx4 v[{D(g,0)}:{D(g,3)}], v2, s[16:19], s{40+g} offen" + FL[opt.ld1])
    srd(20, 4, 5, E * 4)
    srd(24, 8, 9, E * 2)
    for g in range(V):
        I(f"s_mov_b32 s{42+g}, {g*NT*8}")
        I(f"buffer_load_dwordx4 v[{S(g,0)}:{S(g,3)}], v2, s[20:23], s{40+g} offen" + FL[opt.ld1])
        I(f"buffer_load_dwordx2 v[{NR(g,0)}:{NR(g,1)}], v3, s[24:27], s{42+g} offen" + FL[opt.ld1])
    I("s_lshr_b32 s46, s15, 6")
    I("s_or_b32 s14, s2, s46")
    I("s_cmp_lg_u32 s14, 0")
    I("s_cbranch_scc1 K1_NOZ")
    I("v_lshlrev_b32 v7, 7, v0")
    I(f"v_add_u32 v7, {WS_SYNC}, v7")
    I("global_store_dword v7, v4, s[10:11] sc1")
    I("s_waitcnt vmcnt(0)")
    L("K1_NOZ")
    npf = 0
    if opt.pf1:
        I("s_load_dwordx2 s[48:49], s[0:1], 0")
        I("s_lshr_b32 s15, s2, 3")
        I(f"s_mul_i32 s15, s15, {opt.pf1*PFU}")
        I(f"s_cmp_lt_u32 s46, {opt.pf1}")
        I("s_cselect_b32 s15, s15, 0x40000000")
        I("v_lshlrev_b32 v90, 7, v0")
        I("v_add_u32 v90, s15, v90")
        I("s_waitcnt lgkmcnt(0)")
        srd(64, 48, 49, TBL_BYTES)
        I("buffer_load_dword v91, v90, s[64:67], 0 offen")
        npf = 1
    srd(28, 10, 11, NCH * 1024, WS_SEG)
    srd(32, 10, 11, NCH * RECP, WS_RECP)
    srd(52, 10, 11, NCH * RECH, WS_RECH)
    I("s_mov_b32 s36, 0xffff0000")
    I("s_mov_b32 s37, 21474")
    I("s_mov_b64 s[12:13], exec")
    I(f"v_cmp_gt_u32 s[56:57], {NT if NT <= 64 else 's14'}, v0") if False else None
    I(f"s_mov_b32 s14, {NT}")
    I("v_cmp_gt_u32 s[56:57], s14, v0")
    for g in range(V):
        I(f"s_mov_b32 s14, {E - g*NT*4}")
        I(f"v_cmp_gt_u32 s[{58+2*g}:{59+2*g}], s14, v1")
        I(f"s_and_b64 s[{58+2*g}:{59+2*g}], s[{58+2*g}:{59+2*g}], s[56:57]")
    I("v_mov_b32 v6, 1")
    I("s_barrier")
    for g in range(V):
        I(f"s_waitcnt vmcnt({(V - 1 - g) + 2*V + npf})")
        if g == 0: stamp(1, 124)
        I(f"s_mov_b64 exec, s[{58+2*g}:{59+2*g}]")
        for i in range(4):
            I(f"v_and_b32 v{HA(g,i)}, 0xff, v{D(g,i)}")
            I(f"v_lshlrev_b32 v{HA(g,i)}, 2, v{HA(g,i)}")
        for i in range(4):
            I(f"ds_add_rtn_u32 v{RK(g,i)}, v{HA(g,i)}, v6 offset:{K1_HIST}")
    I("s_mov_b64 exec, s[12:13]")
    for g in range(V):
        I(f"s_waitcnt vmcnt({2*(V-1-g) + npf})")
        I(f"v_lshl_or_b32 v{PL(g,0)}, v{NR(g,0)}, 16, v{S(g,0)}")
        I(f"v_and_or_b32 v{PL(g,1)}, v{NR(g,0)}, s36, v{S(g,1)}")
        I(f"v_lshl_or_b32 v{PL(g,2)}, v{NR(g,1)}, 16, v{S(g,2)}")
        I(f"v_and_or_b32 v{PL(g,3)}, v{NR(g,1)}, s36, v{S(g,3)}")
        for i in range(4):
            I(f"v_mul_u32_u24 v7, s37, v{S(g,i)}")
            I("v_lshrrev_b32 v7, 26, v7")
            I("v_and_b32 v7, 12, v7")
            I(f"v_lshrrev_b32 v{HI(g,i)}, 8, v{D(g,i)}")
            I(f"v_lshl_or_b32 v{HI(g,i)}, v{HI(g,i)}, 4, v7")
    I("s_waitcnt lgkmcnt(0)")
    I("s_barrier")
    I("s_cmp_lg_u32 s46, 0")
    I("s_cbranch_scc1 K1_NOSCAN")
    I("v_lshlrev_b32 v5, 4, v0")
    I(f"ds_read_b128 v[72:75], v5 offset:{K1_HIST}")
    I("s_waitcnt lgkmcnt(0)")
    I("v_add_u32 v76, v72, v73")
    I("v_add_u32 v77, v76, v74")
    I("v_add_u32 v78, v77, v75")
    I("v_mov_b32 v79, v78")
    wave_scan(79)
    I("v_sub_u32 v80, v79, v78")
    I("v_add_u32 v81, v80, v72")
    I("v_add_u32 v82, v80, v76")
    I("v_add_u32 v83, v80, v77")
    I(f"ds_write_b128 v5, v[80:83] offset:{K1_PRE}")
    I("v_lshl_or_b32 v72, v81, 16, v80")
    I("v_lshl_or_b32 v73, v82, 16, v81")
    I("v_lshl_or_b32 v74, v83, 16, v82")
    I("v_lshl_or_b32 v75, v79, 16, v83")
    I("s_lshl_b32 s37, s2, 10")
    I("buffer_store_dwordx4 v[72:75], v5, s[28:31], s37 offen" + FL[opt.st1])
    I("s_waitcnt lgkmcnt(0)")
    L("K1_NOSCAN")
    I("s_barrier")
    for g in range(V):
        I(f"s_mov_b64 exec, s[{58+2*g}:{59+2*g}]")
        for i in range(4):
            I(f"ds_read_b32 v{HA(g,i)}, v{HA(g,i)} offset:{K1_PRE}")
    for g in range(V):
        I(f"s_mov_b64 exec, s[{58+2*g}:{59+2*g}]")
        I(f"s_waitcnt lgkmcnt({4*(V-1-g) if g < V-1 else 0})" if False else "s_waitcnt lgkmcnt(0)")
        for i in range(4):
            I(f"v_add_u32 v{HA(g,i)}, v{HA(g,i)}, v{RK(g,i)}")
            I(f"v_lshlrev_b32 v{RK(g,i)}, 2, v{HA(g,i)}")
            I(f"v_lshlrev_b32 v{HA(g,i)}, 1, v{HA(g,i)}")
            I(f"ds_write_b32 v{RK(g,i)}, v{PL(g,i)} offset:{K1_STP}")
            I(f"ds_write_b16 v{HA(g,i)}, v{HI(g,i)} offset:{K1_STH}")
    I("s_mov_b64 exec, s[12:13]")
    I("s_waitcnt lgkmcnt(0)")
    I("s_barrier")
    I("v_lshlrev_b32 v5, 4, v0")
    I(f"s_mul_i32 s37, s2, {RECP}")
    I(f"s_mul_i32 s42, s2, {RECH}")
    I("s_mov_b64 exec, s[56:57]")
    for g in range(V):
        I(f"ds_read_b128 v[{8+4*g}:{11+4*g}], v5 offset:{K1_STP + g*NT*16}")
    if V == 2:
        I(f"ds_read_b128 v[16:19], v5 offset:{K1_STH}")
    else:
        I(f"s_mov_b32 s14, {RECH//16}")
        I("v_cmp_gt_u32 vcc, s14, v0")
        I("s_mov_b64 exec, vcc")
        I(f"ds_read_b128 v[16:19], v5 offset:{K1_STH}")
        I("s_mov_b64 exec, s[56:57]")
    I("s_cbranch_execz K1_FIN")
    for g in range(V):
        I(f"s_waitcnt lgkmcnt({V - g})")
        if g: I(f"s_add_u32 s37, s37, {NT*16}")
        I(f"buffer_store_dwordx4 v[{8+4*g}:{11+4*g}], v5, s[32:35], s37 offen" + FL[opt.st1])
    I("s_waitcnt lgkmcnt(0)")
    if V == 1:
        I("s_mov_b64 exec, vcc")
        I("s_cbranch_execz K1_FIN")
    I("buffer_store_dwordx4 v[16:19], v5, s[52:55], s42 offen" + FL[opt.st1])
    L("K1_FIN")
    I("s_mov_b64 exec, s[12:13]")
    stamp(2, 124)
    if opt.stamps:
        I("s_waitcnt vmcnt(0)")
        stamp(3, 124)
    L("K1_END")
    I("s_endpgm")
    return name, (128 if opt.stamps else 96), (102 if opt.stamps else 72)

L_SU = 0x000
L_WB = 0x040
L_ORD = 0x120
L_HEAVY = 0x1F0
L_LN = 0x20000
LN_CAP = 0x4000
L_LS = 0x10000
LS_CAP = 0x1000
L_CNT = 0x4000
L_H2 = 0x5000
L_WM = 0x5200
K2_ZERO_END = 0x5400
L_NBQ = 0x5400
L_WL = 0x6400
L_SCR = 0x8400
K2_ACC = 0xF400
ACC_BYTES = 208 * 256
K2_LDS = L_LN + LN_CAP
assert K2_ACC + ACC_BYTES <= L_LN
NWORK = 14

V_LANE = 1
V_G4 = 2
V_F16 = 3
V_SELA = 4
V_SELB = 5
V_PTRC = 6
V_PTRI = 7
V_NA = 8
V_NB = 9
V_A0 = 10
V_A1 = 11
V_ACC = 12
V_ACC2 = 20
V_T = 28
V_RC = 32
V_RI = 36
V_DATA = 40
S_T, S_R, S_PACE, S_DR, S_REM = 78, 79, 80, 81, 82
S_NB = 76
S_RET = 84
S_128 = 44
V_PFD = 125

def hop_consts():
    I(f"v_lshrrev_b32 v{V_G4}, 3, v{V_LANE}")
    I(f"v_lshlrev_b32 v{V_G4}, 2, v{V_G4}")
    I(f"v_and_b32 v{V_F16}, 7, v{V_LANE}")
    I(f"v_lshlrev_b32 v{V_F16}, 4, v{V_F16}")
    I(f"v_and_b32 v{V_PTRC}, 3, v{V_LANE}")
    I(f"v_mov_b32 v{V_SELA}, 0x0c0c0c0c")
    I(f"v_mov_b32 v{V_SELB}, 0x0c0c0c0c")
    I(f"v_mov_b32 v{V_A0}, 0x0c0c0302")
    I(f"v_mov_b32 v{V_A1}, 0x03020c0c")
    for val, sel, lit in ((0, V_SELA, V_A0), (1, V_SELA, V_A1), (2, V_SELB, V_A0), (3, V_SELB, V_A1)):
        I(f"v_cmp_eq_u32 vcc, {val}, v{V_PTRC}")
        I("s_nop 1")
        I(f"v_cndmask_b32 v{sel}, v{sel}, v{lit}, vcc")
    I(f"s_mov_b32 s{S_128}, 128")
    for i in range(8):
        I(f"v_mov_b32 v{V_ACC+i}, 0")
        I(f"v_mov_b32 v{V_ACC2+i}, 0")

def rd2(dst, ptr, unit):
    o = unit * 16
    assert o + 8 <= 255
    I(f"ds_read2_b32 v[{dst}:{dst+1}], v{ptr} offset0:{o} offset1:{o+8}")

def perms(p):
    rc = V_RC + 2 * p
    I(f"v_perm_b32 v{V_T+0}, v{rc}, v{rc}, v{V_SELA}")
    I(f"v_perm_b32 v{V_T+1}, v{rc}, v{rc}, v{V_SELB}")
    I(f"v_perm_b32 v{V_T+2}, v{rc+1}, v{rc+1}, v{V_SELA}")
    I(f"v_perm_b32 v{V_T+3}, v{rc+1}, v{rc+1}, v{V_SELB}")

def mfmas(r):
    d = V_DATA + 8 * r
    a, b = V_ACC, V_ACC2
    I(f"v_mfma_f32_4x4x4_16b_bf16 v[{a}:{a+3}], v[{V_T}:{V_T+1}], v[{d}:{d+1}], v[{a}:{a+3}]")
    I(f"v_mfma_f32_4x4x4_16b_bf16 v[{a+4}:{a+7}], v[{V_T}:{V_T+1}], v[{d+2}:{d+3}], v[{a+4}:{a+7}]")
    I(f"v_mfma_f32_4x4x4_16b_bf16 v[{b}:{b+3}], v[{V_T+2}:{V_T+3}], v[{d+4}:{d+5}], v[{b}:{b+3}]")
    I(f"v_mfma_f32_4x4x4_16b_bf16 v[{b+4}:{b+7}], v[{V_T+2}:{V_T+3}], v[{d+6}:{d+7}], v[{b+4}:{b+7}]")

def pace_check(pfx):
    if opt.R <= 1: return
    lab = uid(pfx + "_PC")
    I(f"s_add_u32 s{S_PACE}, s{S_PACE}, s{S_R}")
    I(f"s_cmp_lt_u32 s{S_PACE}, s{S_T}")
    I(f"s_cbranch_scc1 {lab}")
    I(f"s_call_b64 s[{S_RET}:{S_RET+1}], {pfx}_BS")
    L(lab)

def hop_subs(pfx):
    if opt.R <= 1: return
    L(f"{pfx}_BF")
    I(f"s_cmp_eq_u32 s{S_NB}, 0")
    I(f"s_cbranch_scc1 {pfx}_BR")
    I(f"s_sub_u32 s{S_NB}, s{S_NB}, 1")
    I("s_barrier")
    I(f"s_branch {pfx}_BF")
    L(f"{pfx}_BS")
    I(f"s_cmp_eq_u32 s{S_NB}, 0")
    I(f"s_cbranch_scc1 {pfx}_BR")
    I(f"s_sub_u32 s{S_NB}, s{S_NB}, 1")
    I("s_barrier")
    if opt.rst:
        I("s_memrealtime s[98:99]")
        I("s_waitcnt lgkmcnt(0)")
        for k in range(7, 0, -1): I(f"s_mov_b32 s{60+k}, s{59+k}")
        I("s_mov_b32 s60, s98")
    I(f"s_sub_u32 s{S_PACE}, s{S_PACE}, s{S_T}")
    I(f"s_cmp_ge_u32 s{S_PACE}, s{S_T}")
    I(f"s_cbranch_scc1 {pfx}_BS")
    L(f"{pfx}_BR")
    I(f"s_setpc_b64 s[{S_RET}:{S_RET+1}]")

def hop_wave(pfx, tbl, sW, gate=None):
    D = opt.D
    I(f"s_min_u32 s{S_T}, s{S_T}, 0x100")
    I(f"s_mov_b32 s{S_DR}, s{S_T}")
    I(f"s_mov_b32 s{S_PACE}, 0")
    I(f"s_mov_b32 s{S_R}, {opt.R}")
    I(f"s_mov_b32 s{S_NB}, {min(opt.nbar, opt.R - 1)}")
    if opt.skew:
        I(f"s_cmp_lt_u32 s{sW}, 8")
        I(f"s_cselect_b32 s{S_R}, {opt.R - opt.skew}, s{S_R}")
        I(f"s_cmp_lt_u32 s{sW}, 4")
        I(f"s_cselect_b32 s{S_R}, {opt.R - 2*opt.skew}, s{S_R}")
    for r in range(D):
        rd2(V_DATA + 8 * r, V_PTRC, r)
    rd2(V_RC, V_PTRC, 0)
    I(f"v_add_u32 v{V_PTRI}, {D*64}, v{V_PTRC}")
    I("s_waitcnt lgkmcnt(0)")
    rd2(V_RI, V_PTRI, 0)
    if gate: gate("h")
    I(f"s_cmp_eq_u32 s{S_T}, 0")
    I(f"s_cbranch_scc1 {pfx}_FIN")
    for r in range(D):
        d = V_DATA + 8 * r
        if r > 0:
            I(f"s_cmp_le_u32 s{S_T}, {r}")
            I(f"s_cbranch_scc1 {pfx}_DR0")
            pace_check(pfx)
        I(f"v_mad_u32_u16 v{V_A0}, v{d}, s{S_128}, v{V_F16}")
        I(f"v_mad_u32_u16 v{V_A1}, v{d+1}, s{S_128}, v{V_F16}")
        I(f"buffer_load_dwordx4 v[{d}:{d+3}], v{V_A0}, s[{tbl}:{tbl+3}], 0 offen" + FL[opt.ldg])
        I(f"buffer_load_dwordx4 v[{d+4}:{d+7}], v{V_A1}, s[{tbl}:{tbl+3}], 0 offen" + FL[opt.ldg])
    I(f"s_sub_u32 s{S_REM}, s{S_T}, {D}")
    I(f"s_mov_b32 s{S_DR}, {D}")
    I(f"s_cmp_eq_u32 s{S_REM}, 0")
    I(f"s_cbranch_scc1 {pfx}_DR0")
    L(f"{pfx}_MAIN")
    for r in range(D):
        p = r & 1
        d = V_DATA + 8 * r
        I("s_waitcnt lgkmcnt(0)")
        rd2(V_RC + 2 * (p ^ 1), V_PTRC, r + 1)
        rd2(V_RI + 2 * (p ^ 1), V_PTRI, r + 1)
        perms(p)
        ri = V_RI + 2 * p
        I(f"v_mad_u32_u16 v{V_A0}, v{ri}, s{S_128}, v{V_F16}")
        I(f"v_mad_u32_u16 v{V_A1}, v{ri+1}, s{S_128}, v{V_F16}")
        I(f"s_waitcnt vmcnt({2*(D-1)})")
        mfmas(r)
        pace_check(pfx)
        I(f"buffer_load_dwordx4 v[{d}:{d+3}], v{V_A0}, s[{tbl}:{tbl+3}], 0 offen" + FL[opt.ldg])
        I(f"buffer_load_dwordx4 v[{d+4}:{d+7}], v{V_A1}, s[{tbl}:{tbl+3}], 0 offen" + FL[opt.ldg])
        if r == D - 1:
            I(f"v_add_u32 v{V_PTRC}, {D*64}, v{V_PTRC}")
            I(f"v_add_u32 v{V_PTRI}, {D*64}, v{V_PTRI}")
        I(f"s_sub_u32 s{S_REM}, s{S_REM}, 1")
        I(f"s_cmp_eq_u32 s{S_REM}, 0")
        if r == D - 1:
            I(f"s_cbranch_scc0 {pfx}_MAIN")
        else:
            I(f"s_cbranch_scc1 {pfx}_DR{r+1}")
    for q in range(2 * D - 1):
        r = q % D
        p = q & 1
        if q < D:
            L(f"{pfx}_DR{q}")
            if opt.R > 1:
                lab = uid(pfx + "_DX")
                I(f"s_cmp_eq_u32 s{S_NB}, 0")
                I(f"s_cbranch_scc1 {lab}")
                I(f"s_call_b64 s[{S_RET}:{S_RET+1}], {pfx}_BF")
                L(lab)
        I("s_waitcnt lgkmcnt(0)")
        if q + 1 <= 2 * D - 2:
            rd2(V_RC + 2 * (p ^ 1), V_PTRC, q + 1)
        perms(p)
        I("s_waitcnt vmcnt(0)")
        I(f"s_sub_u32 s{S_DR}, s{S_DR}, 1")
        mfmas(r)
        if q < 2 * D - 2:
            I(f"s_cmp_eq_u32 s{S_DR}, 0")
            I(f"s_cbranch_scc1 {pfx}_FIN")
    L(f"{pfx}_FIN")
    if opt.R > 1:
        lab = uid(pfx + "_DY")
        I(f"s_cmp_eq_u32 s{S_NB}, 0")
        I(f"s_cbranch_scc1 {lab}")
        I(f"s_call_b64 s[{S_RET}:{S_RET+1}], {pfx}_BF")
        L(lab)
    if opt.rst and opt.stamps:
        for k in range(7):
            I(f"s_mov_b32 s86, s{66-k}")
            I(f"s_mov_b32 s87, s99")
            stamp(9 + k, 124, 86)
    I("s_nop 4")

def node_pos(sW, heavy):
    I(f"v_lshrrev_b32 v{V_NB}, 2, v{V_G4}")
    I(f"s_lshl_b32 s45, s{sW}, 4")
    if not heavy:
        I(f"s_lshl_b32 s46, s{sW}, 3")
        I(f"s_add_u32 s46, s46, 96")
        I(f"s_cmp_lt_u32 s{sW}, 12")
        I(f"s_cselect_b32 s45, s45, s46")
    I(f"v_add_u32 v{V_NA}, s45, v{V_NB}")
    I(f"v_add_u32 v{V_NB}, 8, v{V_NA}")

def hop_header(sW, vflag):
    I(f"s_lshl_b32 s45, s{sW}, 2")
    I(f"v_mov_b32 v{V_A0}, s45")
    I(f"v_mov_b32 v{vflag}, {L_HEAVY}")
    I(f"ds_read_b32 v{vflag}, v{vflag}")
    I(f"ds_read_b32 v{V_A1}, v{V_A0} offset:{L_SU}")
    I(f"ds_read_b32 v{V_PTRC}, v{V_A0} offset:{L_WB}")
    node_pos(sW, False)
    I(f"ds_read_u8 v{V_NA}, v{V_NA} offset:{L_ORD}")
    I(f"ds_read_u8 v{V_NB}, v{V_NB} offset:{L_ORD}")
    I("s_waitcnt lgkmcnt(0)")
    I(f"v_readfirstlane_b32 s77, v{vflag}")
    I(f"v_readfirstlane_b32 s{S_T}, v{V_A1}")
    I(f"v_add_u32 v{V_PTRC}, v{V_PTRC}, v{V_G4}")
    lab = uid("HH")
    I(f"s_cmp_lt_u32 s{sW}, 12")
    I(f"s_cbranch_scc1 {lab}")
    I(f"v_mov_b32 v{V_NB}, 0xff")
    L(lab)

def split_fix(pfx, sW):
    lab = uid(pfx + "_SF")
    I(f"s_cmp_lt_u32 s{sW}, 12")
    I(f"s_cbranch_scc1 {lab}")
    for i in range(8):
        I(f"v_add_f32 v{V_ACC+i}, v{V_ACC+i}, v{V_ACC2+i}")
    L(lab)

def heavy_path(pfx, tbl, seg_lo_hi, rec_srd, rech_srd, sB, sW, acc_base, nwaves):
    I("v_mov_b32 v40, 0")
    I("v_mov_b32 v41, 0")
    I("v_mov_b32 v42, 0")
    I("v_mov_b32 v43, 0")
    I("v_lshlrev_b32 v44, 4, v0")
    I(f"v_add_u32 v44, {acc_base}, v44")
    n16 = ACC_BYTES // 16
    for i in range(3):
        I(f"ds_write_b128 v44, v[40:43] offset:{i*16384}")
    I(f"v_cmp_gt_u32 vcc, {n16 - 3072}, v0")
    I("s_and_saveexec_b64 s[60:61], vcc")
    I(f"ds_write_b128 v44, v[40:43] offset:{3*16384}")
    I("s_mov_b64 exec, s[60:61]")
    I("s_waitcnt lgkmcnt(0)")
    I("s_barrier")
    I(f"s_mov_b32 s62, s{sW}")
    I(f"v_lshrrev_b32 v45, 3, v{V_LANE}")
    I(f"s_lshl_b32 s63, s{sB}, 2")
    L(f"{pfx}_HC")
    I("s_lshl_b32 s64, s62, 10")
    I("s_add_u32 s64, s64, s63")
    I(f"s_add_u32 s66, s{seg_lo_hi}, s64")
    I(f"s_addc_u32 s67, s{seg_lo_hi+1}, 0")
    I("s_load_dword s68, s[66:67], 0")
    I(f"s_mul_i32 s69, s62, {RECP}")
    I(f"s_mul_i32 s65, s62, {RECH}")
    I("s_waitcnt lgkmcnt(0)")
    I("s_and_b32 s70, s68, 0xffff")
    I("s_lshr_b32 s71, s68, 16")
    L(f"{pfx}_HI")
    I("s_cmp_ge_u32 s70, s71")
    I(f"s_cbranch_scc1 {pfx}_HN")
    I("v_add_u32 v46, s70, v45")
    I("v_cmp_gt_u32 vcc, s71, v46")
    I("s_and_saveexec_b64 s[60:61], vcc")
    I("v_lshlrev_b32 v47, 2, v46")
    I(f"buffer_load_dword v48, v47, s[{rec_srd}:{rec_srd+3}], s69 offen")
    I("v_lshlrev_b32 v47, 1, v46")
    I(f"buffer_load_ushort v49, v47, s[{rech_srd}:{rech_srd+3}], s65 offen")
    I("s_waitcnt vmcnt(0)")
    I("v_and_b32 v50, 0xffff, v48")
    I("v_lshlrev_b32 v50, 7, v50")
    I(f"v_add_u32 v50, v50, v{V_F16}")
    I(f"buffer_load_dwordx4 v[52:55], v50, s[{tbl}:{tbl+3}], 0 offen" + FL[opt.ldg])
    I("v_and_b32 v51, 0xffff0000, v48")
    I("v_lshrrev_b32 v56, 4, v49")
    I("v_lshlrev_b32 v56, 8, v56")
    I(f"v_lshlrev_b32 v57, 1, v{V_F16}")
    I("v_add_u32 v56, v56, v57")
    I(f"v_add_u32 v56, {acc_base}, v56")
    I("s_waitcnt vmcnt(0)")
    for i in range(4):
        I(f"v_lshlrev_b32 v58, 16, v{52+i}")
        I(f"v_and_b32 v59, 0xffff0000, v{52+i}")
        I("v_mul_f32 v58, v58, v51")
        I("v_mul_f32 v59, v59, v51")
        I(f"ds_add_f32 v56, v58 offset:{8*i}")
        I(f"ds_add_f32 v56, v59 offset:{8*i + 4}")
    I("s_mov_b64 exec, s[60:61]")
    I("s_add_u32 s70, s70, 8")
    I(f"s_branch {pfx}_HI")
    L(f"{pfx}_HN")
    I(f"s_add_u32 s62, s62, {nwaves}")
    I("s_cmp_lt_u32 s62, 256")
    I(f"s_cbranch_scc1 {pfx}_HC")
    I("s_waitcnt lgkmcnt(0)")
    I("s_barrier")

def heavy_read_acc(acc_base, sW):
    node_pos(sW, True)
    for vn, va in ((V_NA, V_ACC), (V_NB, V_ACC2)):
        I(f"v_lshlrev_b32 v{V_A0}, 8, v{vn}")
        I(f"v_lshlrev_b32 v{V_A1}, 1, v{V_F16}")
        I(f"v_add_u32 v{V_A0}, v{V_A0}, v{V_A1}")
        I(f"v_add_u32 v{V_A0}, {acc_base}, v{V_A0}")
        I(f"ds_read_b128 v[{va}:{va+3}], v{V_A0}")
        I(f"ds_read_b128 v[{va+4}:{va+7}], v{V_A0} offset:16")
    I("s_waitcnt lgkmcnt(0)")


def grid_arrive():
    R, SH = opt.brep, opt.bsh
    assert R * SH <= 64
    lsh = SH.bit_length() - 1
    I(f"s_and_b32 s45, s2, {SH-1}")
    I("s_lshl_b32 s45, s45, 7")
    I(f"s_add_u32 s45, s45, {WS_SYNC}")
    I(f"v_lshlrev_b32 v116, {7+lsh}, v{V_LANE}")
    I("v_add_u32 v116, s45, v116")
    I("v_mov_b32 v117, 1")
    I("s_mov_b64 s[72:73], exec")
    I(f"s_mov_b64 exec, {hex((1 << R) - 1)}")
    I("global_atomic_add v116, v117, s[6:7] sc1")
    I("s_mov_b64 exec, s[72:73]")

def grid_poll(pfx):
    R, SH = opt.brep, opt.bsh
    lsh = SH.bit_length() - 1
    NR = 2 if opt.poll2 else 1
    I("s_mov_b64 s[72:73], exec")
    I(f"s_mov_b64 exec, {(1 << (SH * NR)) - 1}")
    I(f"s_lshr_b32 s45, s2, {lsh}")
    I(f"s_and_b32 s45, s45, {R-1}")
    I(f"v_lshrrev_b32 v116, {lsh}, v{V_LANE}")
    I(f"v_mul_u32_u24 v116, {R//2}, v116")
    I(f"v_add_u32 v116, s45, v116")
    I(f"v_and_b32 v116, {R-1}, v116")
    I(f"v_lshlrev_b32 v116, {lsh}, v116")
    I(f"v_and_b32 v117, {SH-1}, v{V_LANE}")
    I(f"v_add_u32 v116, v116, v117")
    I(f"v_lshlrev_b32 v116, 7, v116")
    I(f"v_add_u32 v116, {WS_SYNC}, v116")
    I(f"s_mov_b32 s46, {opt.spin}")
    L(f"{pfx}_POLL")
    I("global_load_dword v118, v116, s[6:7] sc1")
    I("s_waitcnt vmcnt(0)")
    for k in range(NR):
        for l in range(SH):
            I(f"v_readlane_b32 s{12+(l&3)}, v118, {k*SH+l}")
            if l == 1: I("s_add_u32 s11, s12, s13")
            elif l > 1: I(f"s_add_u32 s11, s11, s{12+(l&3)}")
        if SH == 1: I("s_mov_b32 s11, s12")
        I("s_cmp_ge_u32 s11, 256")
        I(f"s_cbranch_scc1 {pfx}_POLLED")
    if opt.slp: I(f"s_sleep {opt.slp}")
    I("s_sub_u32 s46, s46, 1")
    I("s_cmp_eq_u32 s46, 0")
    I(f"s_cbranch_scc0 {pfx}_POLL")
    L(f"{pfx}_POLLED")
    I("s_mov_b64 exec, s[72:73]")

def release_gate(tag):
    lab, lab2 = uid("RG"), uid("RH")
    I(f"s_cmp_eq_u32 s47, 0")
    I(f"s_cbranch_scc1 {lab}")
    I("s_cmp_lg_u32 s10, 0")
    I(f"s_cbranch_scc1 {lab2}")
    I(f"s_call_b64 s[{S_RET}:{S_RET+1}], GPOLL")
    L(lab2)
    I("s_barrier")
    stamp(8, 124)
    L(lab)

def gen_k2():
    name = "sgc_prop_kernel"
    kernel_begin(name)
    I("s_cmp_ge_u32 s2, 256")
    I("s_cbranch_scc1 K2_END")
    if opt.stamps: I("s_memrealtime s[86:87]")
    I("s_load_dwordx2 s[6:7], s[0:1], 56")
    I("s_load_dwordx2 s[4:5], s[0:1], 0")
    I("s_load_dwordx4 s[32:35], s[0:1], 32")
    I("s_and_b32 s8, s2, 7")
    I("s_lshl_b32 s8, s8, 5")
    I("s_lshr_b32 s9, s2, 3")
    I("s_add_u32 s8, s8, s9")
    I("v_readfirstlane_b32 s10, v0")
    I(f"v_and_b32 v{V_LANE}, 63, v0")
    I(f"v_lshrrev_b32 v52, 4, v{V_LANE}")
    I("s_lshr_b32 s10, s10, 6")
    I("s_lshl_b32 s11, s10, 2")
    I("v_add_u32 v52, s11, v52")
    I("s_lshl_b32 s11, s8, 2")
    I("v_lshl_add_u32 v53, v52, 10, s11")
    for r in range(4):
        I(f"s_mov_b32 s{36+r}, {r*65536}")
    I("s_waitcnt lgkmcnt(0)")
    stamp_init(1, 6, 124); stamp(0, 124, 86)
    srd(16, 6, 7, NCH * 1024, WS_SEG)
    SG = lambda r: 56 + r
    for r in range(4):
        I(f"buffer_load_dword v{SG(r)}, v53, s[16:19], s{36+r} offen")
    ntouch = 0
    if opt.tlb:
        srd(20, 6, 7, NCH * RECP, WS_RECP)
        I(f"v_lshlrev_b32 v44, 20, v{V_LANE}")
        I(f"buffer_load_dword v{V_PFD}, v44, s[20:23], 0 offen sc1")
        srd(96, 6, 7, NCH * RECH, WS_RECH)
        I(f"buffer_load_dword v{V_PFD}, v44, s[96:99], 0 offen sc1")
        ntouch = 2
        if opt.tlb >= 2:
            srd(24, 4, 5, TBL_BYTES)
            I(f"buffer_load_dword v{V_PFD}, v44, s[24:27], 0 offen")
            ntouch = 3
    I(f"s_mov_b32 s14, {RECH}")
    I("v_mul_u32_u24 v54, s14, v52")
    I(f"v_and_b32 v55, 15, v{V_LANE}")
    srd(20, 6, 7, NCH * RECP, WS_RECP)
    srd(96, 6, 7, NCH * RECH, WS_RECH)
    for r in range(4):
        I(f"s_mov_b32 s{40+r}, {r*64*RECP}")
    nb, nc = opt.pf2b, opt.pf2c
    def init_block():
        I("v_lshlrev_b32 v108, 4, v0")
        I(f"v_mov_b32 v112, {SAFE}")
        I("v_mov_b32 v113, v112")
        I("v_mov_b32 v114, v112")
        I("v_mov_b32 v115, v112")
        I(f"v_add_u32 v109, {L_LN}, v108")
        I("ds_write_b128 v109, v[112:115]")
        I("v_mov_b32 v116, 0")
        I("v_mov_b32 v117, 0")
        I("v_mov_b32 v118, 0")
        I("v_mov_b32 v119, 0")
        I(f"v_cmp_gt_u32 vcc, {LS_CAP//16}, v0")
        I("s_and_saveexec_b64 s[12:13], vcc")
        I(f"v_add_u32 v109, {L_LS}, v108")
        I("ds_write_b128 v109, v[112:115]")
        I("s_mov_b64 exec, s[12:13]")
        I("v_cmp_gt_u32 vcc, 32, v0")
        I("s_and_saveexec_b64 s[12:13], vcc")
        I("ds_write_b128 v108, v[116:119]")
        I("s_mov_b64 exec, s[12:13]")
        I(f"v_cmp_gt_u32 vcc, {(K2_ZERO_END-L_CNT)//16}, v0")
        I("s_and_saveexec_b64 s[12:13], vcc")
        I(f"ds_write_b128 v108, v[116:119] offset:{L_CNT}")
        I("s_mov_b64 exec, s[12:13]")
        srd(24, 4, 5, TBL_BYTES)
        srd(28, 6, 7, TBL_BYTES, WS_H1)
        if nb: pf_setup(48, nb, opt.pf1 * 32 * PFU)
        if nc: pf_setup(7, nc, (opt.pf1 + nb) * 32 * PFU)
        hop_consts()
    if not opt.lateinit: init_block()
    SM = lambda t, r: 46 + (t * 4 + r) * 2
    VOFF = lambda r: 60 + r
    VR = lambda t, r: 64 + (t * 4 + r) * 2
    VK = lambda t, r: 88 + t * 4 + r
    VP = lambda t, r: 100 + (t * 4 + r) * 2
    ONE = 40
    VOFP = lambda r: 44 + r
    for r in range(4):
        I(f"s_mov_b32 s{36+r}, {r*64*RECH}")
    I(f"s_waitcnt vmcnt({ntouch})")
    stamp(1, 124)
    I("s_mov_b64 s[70:71], 0")
    I("s_mov_b64 s[72:73], exec")
    for r in range(4):
        I(f"s_mov_b32 s{36+r}, {r*64*RECH}")
    IX = lambda r: 100 + r
    EN = lambda r: 104 + r
    for r in range(4):
        I(f"v_and_b32 v{IX(r)}, 0xffff, v{SG(r)}")
        I(f"v_lshrrev_b32 v{EN(r)}, 16, v{SG(r)}")
        I(f"v_add_u32 v{IX(r)}, v{IX(r)}, v55")
        I(f"v_lshl_add_u32 v{VOFF(r)}, v{IX(r)}, 1, v54")
        I(f"v_cmp_lt_u32 s[{SM(0,r)}:{SM(0,r)+1}], v{IX(r)}, v{EN(r)}")
        I(f"v_add_u32 v41, 16, v{IX(r)}")
        I(f"s_mov_b64 exec, s[{SM(0,r)}:{SM(0,r)+1}]")
        lab = uid("K2_SK")
        I(f"s_cbranch_execz {lab}")
        I(f"buffer_load_ushort v{VR(0,r)+1}, v{VOFF(r)}, s[96:99], s{36+r} offen" + FL[opt.ld2])
        L(lab)
        I("s_mov_b64 exec, s[72:73]")
        I(f"v_cmp_lt_u32 s[{SM(1,r)}:{SM(1,r)+1}], v41, v{EN(r)}")
    for r in range(4):
        lab = uid("K2_SK")
        I(f"s_mov_b64 exec, s[{SM(1,r)}:{SM(1,r)+1}]")
        I(f"s_cbranch_execz {lab}")
        I(f"buffer_load_ushort v{VR(1,r)+1}, v{VOFF(r)}, s[96:99], s{36+r} offen offset:32" + FL[opt.ld2])
        L(lab)
    I("s_mov_b64 exec, s[72:73]")
    for r in range(4):
        I(f"v_add_u32 v42, 32, v{IX(r)}")
        I(f"v_cmp_lt_u32 s[{SM(2,r)}:{SM(2,r)+1}], v42, v{EN(r)}")
        I(f"v_add_u32 v43, 48, v{IX(r)}")
        I(f"v_cmp_lt_u32 vcc, v43, v{EN(r)}")
        I(f"v_lshlrev_b32 v{VOFP(r)}, 1, v{VOFF(r)}")
        I("s_or_b64 s[70:71], s[70:71], vcc")
    I(f"s_or_b64 s[74:75], s[{SM(2,0)}:{SM(2,0)+1}], s[{SM(2,1)}:{SM(2,1)+1}]")
    I(f"s_or_b64 s[74:75], s[74:75], s[{SM(2,2)}:{SM(2,2)+1}]")
    I(f"s_or_b64 s[74:75], s[74:75], s[{SM(2,3)}:{SM(2,3)+1}]")
    I("s_cselect_b32 s83, 1, 0")
    I("s_cbranch_scc0 K2_NT3A")
    for r in range(4):
        lab = uid("K2_SK")
        I(f"s_mov_b64 exec, s[{SM(2,r)}:{SM(2,r)+1}]")
        I(f"s_cbranch_execz {lab}")
        I(f"buffer_load_ushort v{VR(2,r)+1}, v{VOFF(r)}, s[96:99], s{36+r} offen offset:64" + FL[opt.ld2])
        I(f"buffer_load_dword v{VR(2,r)}, v{VOFP(r)}, s[20:23], s{40+r} offen offset:128" + FL[opt.ld2])
        L(lab)
    I("s_mov_b64 exec, s[72:73]")
    L("K2_NT3A")
    I("s_mov_b64 exec, s[72:73]")
    if opt.lateinit: init_block()
    I(f"v_mov_b32 v{ONE}, 1")
    I(f"v_mov_b32 v11, 32")
    I("s_waitcnt lgkmcnt(0)")
    if opt.payafter:
        I("s_barrier")
    for t in range(2):
        for r in range(4):
            I(f"buffer_load_dword v{VR(t,r)}, v{VOFP(r)}, s[20:23], s{40+r} offen" + (f" offset:{64*t}" if t else "") + FL[opt.ld2])
    if not opt.payafter:
        I("s_barrier")
    I("s_waitcnt vmcnt(8)")
    stamp(2, 124)
    for t in range(3):
        if t == 2:
            I("s_cmp_eq_u32 s83, 0")
            I("s_cbranch_scc1 K2_NT3B")
        for r in range(4):
            lab = uid("K2_SC")
            I(f"s_mov_b64 exec, s[{SM(t,r)}:{SM(t,r)+1}]")
            I(f"s_cbranch_execz {lab}")
            I(f"ds_add_rtn_u32 v{VK(t,r)}, v{VR(t,r)+1}, v11 offset:{L_CNT}")
            L(lab)
    L("K2_NT3B")
    I("s_mov_b64 exec, s[72:73]")
    I("s_cmp_eq_u64 s[70:71], 0")
    I("s_cbranch_scc1 K2_NOH")
    I(f"v_mov_b32 v41, {L_HEAVY}")
    I(f"ds_write_b32 v41, v{ONE}")
    L("K2_NOH")
    I("s_waitcnt lgkmcnt(0)")
    I("s_barrier")
    stamp(3, 124)
    I("s_cmp_ge_u32 s10, 4")
    I("s_cbranch_scc1 K2_NOSORT0")
    C = lambda q: 100 + q
    KY, R2, SL, TT, ST, NI = 44, 45, 46, 47, 48, 49
    A, B, Cc, Dd = 116, 117, 118, 119
    I("s_lshl_b32 s12, s10, 6")
    I(f"v_add_u32 v{NI}, s12, v{V_LANE}")
    I(f"v_lshlrev_b32 v{A}, 4, v{NI}")
    I(f"ds_read_b128 v[{C(0)}:{C(3)}], v{A} offset:{L_CNT}")
    I("s_movk_i32 s12, 208")
    I(f"v_cmp_gt_u32 s[74:75], s12, v{NI}")
    I(f"v_lshlrev_b32 v{B}, 2, v{V_LANE}")
    I("s_movk_i32 s76, 0xc0")
    I("s_waitcnt lgkmcnt(0)")
    I(f"v_add_u32 v{TT}, v{C(0)}, v{C(1)}")
    I(f"v_add3_u32 v{TT}, v{TT}, v{C(2)}, v{C(3)}")
    I(f"v_lshrrev_b32 v{TT}, 5, v{TT}")
    I(f"v_min_u32 v{KY}, 63, v{TT}")
    I(f"v_lshlrev_b32 v{KY}, 2, v{KY}")
    I("s_mov_b64 exec, s[74:75]")
    I(f"ds_add_rtn_u32 v{R2}, v{KY}, v{ONE} offset:{L_H2}")
    I("s_mov_b64 exec, s[72:73]")
    I("s_waitcnt lgkmcnt(0)")
    I("s_barrier")
    I(f"ds_read_b32 v{Cc}, v{B} offset:{L_H2}")
    I("s_waitcnt lgkmcnt(0)")
    I(f"v_mov_b32 v{Dd}, v{Cc}")
    wave_scan(Dd)
    I(f"v_sub_u32 v{Dd}, v{Dd}, v{Cc}")
    I("s_nop 0")
    I(f"ds_bpermute_b32 v{SL}, v{KY}, v{Dd}")
    I("s_waitcnt lgkmcnt(0)")
    I(f"v_add_u32 v{R2}, v{R2}, v{SL}")
    I(f"v_cmp_le_u32 s[12:13], s76, v{R2}")
    I(f"v_lshrrev_b32 v{SL}, 4, v{R2}")
    I(f"v_lshrrev_b32 v{Cc}, 3, v{R2}")
    I(f"v_subrev_u32 v{Cc}, 12, v{Cc}")
    I(f"v_mov_b32 v{ST}, 2")
    I(f"v_cndmask_b32_e64 v{SL}, v{SL}, v{Cc}, s[12:13]")
    I(f"v_cndmask_b32_e64 v{ST}, v{ST}, 1, s[12:13]")
    I(f"v_lshlrev_b32 v{SL}, 2, v{SL}")
    I("s_mov_b64 exec, s[74:75]")
    I(f"ds_max_u32 v{SL}, v{TT} offset:{L_WM}")
    I(f"ds_write_b8 v{R2}, v{NI} offset:{L_ORD}")
    I("s_mov_b64 exec, s[72:73]")
    I(f"v_lshlrev_b32 v{KY}, 3, v{ST}")
    I(f"v_subrev_u32 v{KY}, 1, v{KY}")
    I(f"v_and_b32 v{KY}, v{KY}, v{R2}")
    I(f"v_add_u32 v{TT}, v{C(0)}, v{C(1)}")
    I(f"v_add_u32 v{R2}, v{TT}, v{C(2)}")
    I("s_waitcnt lgkmcnt(0)")
    I("s_barrier")
    I(f"ds_read_b32 v{Cc}, v{B} offset:{L_WM}")
    I(f"v_cmp_gt_u32 vcc, 12, v{V_LANE}")
    I("s_waitcnt lgkmcnt(0)")
    I(f"v_add_u32 v{Dd}, 1, v{Cc}")
    I(f"v_lshrrev_b32 v{Dd}, 1, v{Dd}")
    I(f"v_cndmask_b32 v{Cc}, v{Dd}, v{Cc}, vcc")
    I(f"v_lshlrev_b32 v{Dd}, 6, v{Cc}")
    I(f"v_mov_b32 v120, v{Dd}")
    wave_scan(120, 16)
    I("s_nop 1")
    I("v_readlane_b32 s76, v120, 11")
    I("v_readlane_b32 s15, v120, 15")
    I(f"v_sub_u32 v120, v120, v{Dd}")
    I(f"v_add_u32 v121, {L_LN}, v120")
    I(f"s_sub_u32 s14, {L_LS}, s76")
    I("v_add_u32 v120, s14, v120")
    I("v_cndmask_b32 v120, v120, v121, vcc")
    I("s_nop 0")
    I(f"ds_bpermute_b32 v{SL}, v{SL}, v120")
    I("s_cmp_lg_u32 s10, 0")
    I("s_cbranch_scc1 K2_NOHDR")
    I(f"v_cmp_gt_u32 vcc, 16, v{V_LANE}")
    I("s_and_saveexec_b64 s[12:13], vcc")
    I(f"ds_write_b32 v{B}, v120 offset:{L_WB}")
    I(f"ds_write_b32 v{B}, v{Cc} offset:{L_SU}")
    I("s_mov_b64 exec, s[12:13]")
    I("s_sub_u32 s15, s15, s76")
    I(f"s_cmp_gt_u32 s76, {LN_CAP}")
    I("s_cbranch_scc1 K2_CAPBAD")
    I(f"s_cmp_le_u32 s15, {LS_CAP}")
    I("s_cbranch_scc1 K2_NOHDR")
    L("K2_CAPBAD")
    I(f"v_mov_b32 v41, {L_HEAVY}")
    I(f"ds_write_b32 v41, v{ONE}")
    L("K2_NOHDR")
    I("s_waitcnt lgkmcnt(0)")
    I(f"v_lshl_add_u32 v{C(3)}, v{KY}, 2, v{SL}")
    I(f"v_mad_u32_u24 v{C(1)}, v{C(0)}, v{ST}, v{C(3)}")
    I(f"v_mov_b32 v{C(0)}, v{C(3)}")
    I(f"v_mad_u32_u24 v{C(2)}, v{TT}, v{ST}, v{C(0)}")
    I(f"v_mad_u32_u24 v{C(3)}, v{R2}, v{ST}, v{C(0)}")
    I("s_mov_b64 exec, s[74:75]")
    I(f"ds_write_b128 v{A}, v[{C(0)}:{C(3)}] offset:{L_NBQ}")
    I("s_mov_b64 exec, s[72:73]")
    I("s_waitcnt vmcnt(0) lgkmcnt(0)")
    I("s_branch K2_NOSORT")
    L("K2_NOSORT0")
    I("s_waitcnt vmcnt(0)")
    if nb:
        lab = uid("PFX")
        I(f"s_cmp_lt_u32 s10, {16 - nb}")
        I(f"s_cbranch_scc1 {lab}")
        I(f"s_mov_b32 s15, {(16 - nb) * PFU}")
        I(f"v_subrev_u32 v48, s15, v48")
        I(f"buffer_load_dword v{V_PFD}, v48, s[24:27], 0 offen")
        L(lab)
    I("s_barrier")
    I("s_barrier")
    L("K2_NOSORT")
    I("s_barrier")
    stamp(4, 124)
    I(f"v_mov_b32 v41, {L_HEAVY}")
    I("ds_read_b32 v41, v41")
    VP1 = lambda t, r: 100 + t * 4 + r
    for t in range(3):
        if t == 2:
            I("s_cmp_eq_u32 s83, 0")
            I("s_cbranch_scc1 K2_NT3C")
        for r in range(4):
            lab = uid("K2_SP")
            I(f"s_mov_b64 exec, s[{SM(t,r)}:{SM(t,r)+1}]")
            I(f"s_cbranch_execz {lab}")
            I(f"ds_read_b32 v{VP1(t,r)}, v{VR(t,r)+1} offset:{L_NBQ}")
            L(lab)
    L("K2_NT3C")
    I("s_mov_b64 exec, s[72:73]")
    I(f"s_lshl_b32 s45, s10, 2")
    I(f"v_mov_b32 v{V_A0}, s45")
    I(f"ds_read_b32 v{V_PTRI}, v{V_A0} offset:{L_SU}")
    I(f"ds_read_b32 v{V_PTRC}, v{V_A0} offset:{L_WB}")
    I(f"v_lshrrev_b32 v{V_NB}, 2, v{V_G4}")
    I(f"s_lshl_b32 s45, s10, 4")
    I(f"s_lshl_b32 s14, s10, 3")
    I(f"s_add_u32 s14, s14, 96")
    I(f"s_cmp_lt_u32 s10, 12")
    I(f"s_cselect_b32 s45, s45, s14")
    I(f"v_add_u32 v{V_NA}, s45, v{V_NB}")
    I(f"v_add_u32 v{V_NB}, 8, v{V_NA}")
    I(f"ds_read_u8 v{V_NA}, v{V_NA} offset:{L_ORD}")
    I(f"ds_read_u8 v{V_NB}, v{V_NB} offset:{L_ORD}")
    I("s_waitcnt lgkmcnt(0)")
    I("v_readfirstlane_b32 s77, v41")
    I(f"v_readfirstlane_b32 s{S_T}, v{V_PTRI}")
    I(f"v_add_u32 v{V_PTRC}, v{V_PTRC}, v{V_G4}")
    if opt.stamps: stamp(12, 124)
    I("s_cmp_lg_u32 s77, 0")
    I("s_cbranch_scc1 K2_NOPLACE")
    for t in range(3):
        if t == 2:
            I("s_cmp_eq_u32 s83, 0")
            I("s_cbranch_scc1 K2_NT3D")
        for r in range(4):
            lab = uid("K2_SW")
            I(f"s_mov_b64 exec, s[{SM(t,r)}:{SM(t,r)+1}]")
            I(f"s_cbranch_execz {lab}")
            I(f"v_mad_u32_u16 v{VP1(t,r)}, v{VK(t,r)}, v{VP1(t,r)}, v{VP1(t,r)} op_sel:[0,1,0,0]")
            I(f"ds_write_b32 v{VP1(t,r)}, v{VR(t,r)}")
            L(lab)
    L("K2_NT3D")
    I("s_mov_b64 exec, s[72:73]")
    L("K2_NOPLACE")
    I("s_waitcnt lgkmcnt(0)")
    if opt.stamps: stamp(13, 124)
    I("s_barrier")
    stamp(5, 124)
    if nc: pf_issue(7, V_PFD, 24, nc, 10)
    S_PH, S_SCR = 47, 83
    I(f"s_mov_b32 s{S_PH}, 0")
    I(f"s_cmp_lt_u32 s10, {NWORK}")
    I("s_cbranch_scc1 K2_KEEP")
    I("s_cmp_eq_u32 s77, 0")
    I("s_cbranch_scc1 K2_END")
    L("K2_KEEP")
    srd(16, 32, 33, 8192)
    I("v_lshlrev_b32 v110, 4, v0")
    I("buffer_load_dwordx4 v[112:115], v110, s[16:19], 0 offen")
    L("K2_PHASE")
    I("s_cmp_eq_u32 s77, 0")
    I("s_cbranch_scc1 K2_FAST")
    release_gate("v")
    heavy_path("K2H", 24, 6, 20, 96, 8, 10, K2_ACC, 16)
    heavy_read_acc(K2_ACC, 10)
    I("s_cmp_lt_u32 s10, 13")
    I("s_cbranch_scc1 K2_DONE")
    I(f"s_cmp_lg_u32 s{S_PH}, 0")
    I("s_cbranch_scc1 K2_END")
    I(f"v_mov_b32 v{V_NA}, 0xff")
    I(f"v_mov_b32 v{V_NB}, 0xff")
    I("s_branch K2_DONE")
    L("K2_FAST")
    I(f"s_cmp_eq_u32 s{S_PH}, 0")
    I("s_cbranch_scc1 K2_HOPIN0")
    hop_header(10, 41)
    I("s_branch K2_HOPIN")
    L("K2_HOPIN0")
    I("s_cmp_lt_u32 s10, 12")
    I("s_cbranch_scc1 K2_HOPIN")
    I(f"v_mov_b32 v{V_NB}, 0xff")
    L("K2_HOPIN")
    hop_wave("K2S", 24, 10, release_gate)
    split_fix("K2S", 10)
    L("K2_DONE")
    I(f"s_cmp_lg_u32 s{S_PH}, 0")
    I("s_cbranch_scc1 K2_GEMM")
    stamp(6, 124)
    I("s_lshl_b32 s45, s8, 7")
    for vn, va, t0, ad in ((V_NA, V_ACC, V_T, V_A0), (V_NB, V_ACC2, V_RC, V_A1)):
        for i in range(4):
            I(f"v_cvt_pk_bf16_f32 v{t0+i}, v{va+2*i}, v{va+2*i+1}")
        I(f"v_lshlrev_b32 v{ad}, 15, v{vn}")
        I(f"v_add3_u32 v{ad}, v{ad}, s45, v{V_F16}")
        I(f"buffer_store_dwordx4 v[{t0}:{t0+3}], v{ad}, s[28:31], 0 offen" + FL[opt.st2])
    E_SW, E_AB0, E_AB1, E_AW, E_BP, E_KB = 104, 105, 106, 107, 108, 109
    WF = 72
    I("v_cmp_gt_u32 vcc, 0x200, v0")
    I("s_and_saveexec_b64 s[72:73], vcc")
    I(f"ds_write_b128 v110, v[112:115] offset:{L_WL}")
    I("s_mov_b64 exec, s[72:73]")
    I(f"s_lshl_b32 s{S_SCR}, s10, 11")
    I(f"s_add_u32 s{S_SCR}, s{S_SCR}, {L_SCR}")
    I(f"v_lshlrev_b32 v60, 2, v{V_G4}")
    I(f"v_xor_b32 v61, v60, v{V_F16}")
    I(f"v_lshlrev_b32 v60, 3, v60")
    I(f"v_add3_u32 v{E_SW}, v60, v61, s{S_SCR}")
    I(f"v_and_b32 v60, 15, v{V_LANE}")
    I(f"v_lshrrev_b32 v{E_KB}, 4, v{V_LANE}")
    I(f"v_and_b32 v61, 7, v60")
    I(f"v_lshlrev_b32 v{E_BP}, 5, v61")
    I(f"v_xor_b32 v62, v{E_KB}, v61")
    I(f"v_lshlrev_b32 v62, 4, v62")
    I(f"v_lshlrev_b32 v63, 7, v60")
    I(f"v_add3_u32 v{E_AB0}, v63, s{S_SCR}, v62")
    I(f"v_xor_b32 v62, 64, v62")
    I(f"v_add3_u32 v{E_AB1}, v63, s{S_SCR}, v62")
    I(f"v_lshrrev_b32 v62, 2, v60")
    I(f"v_lshl_add_u32 v62, v{E_KB}, 3, v62")
    I(f"v_lshlrev_b32 v62, 7, v62")
    I(f"v_and_b32 v63, 3, v{V_LANE}")
    I(f"v_lshl_add_u32 v{E_AW}, v63, 4, v62")
    I(f"v_cmp_gt_u32 s[74:75], 8, v60")
    I(f"v_lshlrev_b32 v{E_KB}, 4, v{E_KB}")
    for i in range(8):
        I(f"v_mov_b32 v{V_ACC+i}, 0")
        I(f"v_mov_b32 v{V_ACC2+i}, 0")
    srd(24, 6, 7, TBL_BYTES, WS_H1)
    I("s_waitcnt vmcnt(0) lgkmcnt(0)")
    srd(28, 34, 35, TBL_BYTES)
    stamp(7, 124)
    if opt.own == 2:
        I(f"buffer_load_dword v{V_PFD}, v{V_A0}, s[24:27], 0 offen")
        I(f"buffer_load_dword v{V_PFD}, v{V_A1}, s[24:27], 0 offen")
    I("s_barrier")
    I("s_cmp_lg_u32 s10, 0")
    I("s_cbranch_scc1 K2_NOPOLL")
    grid_arrive()
    L("K2_NOPOLL")
    if opt.own == 1:
        I(f"buffer_load_dword v{V_PFD}, v{V_A0}, s[24:27], 0 offen")
        I(f"buffer_load_dword v{V_PFD}, v{V_A1}, s[24:27], 0 offen")
    for t in range(4):
        for s in range(2):
            for hh in range(2):
                off = L_WL + s * 4096 + hh * 512 + (t >> 1) * 64 + (t & 1) * 8
                d = WF + (t * 2 + s) * 4 + 2 * hh
                I(f"ds_read_b64_tr_b16 v[{d}:{d+1}], v{E_AW} offset:{off}")
    I(f"s_mov_b32 s{S_PH}, 1")
    I("s_branch K2_PHASE")
    L("K2_GEMM")
    stamp(9, 124)
    E_OUT = E_AW
    I(f"ds_bpermute_b32 v110, v{E_BP}, v{V_NA}")
    I(f"ds_bpermute_b32 v111, v{E_BP}, v{V_NB}")
    for va, t0, off in ((V_ACC, V_T, 0), (V_ACC2, V_RC, 1024)):
        for i in range(4):
            I(f"v_cvt_pk_bf16_f32 v{t0+i}, v{va+2*i}, v{va+2*i+1}")
        I(f"ds_write_b128 v{E_SW}, v[{t0}:{t0+3}] offset:{off}")
    B0, B1 = 40, 44
    I(f"ds_read_b128 v[{B0}:{B0+3}], v{E_AB0}")
    I(f"ds_read_b128 v[{B1}:{B1+3}], v{E_AB1}")
    DD = 56
    I("s_lshl_b32 s45, s8, 7")
    I("s_waitcnt lgkmcnt(1)")
    I(f"v_cndmask_b32_e64 v110, v111, v110, s[74:75]")
    for t in range(4):
        a = WF + (t * 2) * 4
        I(f"v_mfma_f32_16x16x32_bf16 v[{DD+4*t}:{DD+4*t+3}], v[{a}:{a+3}], v[{B0}:{B0+3}], 0")
    I(f"v_lshlrev_b32 v110, 15, v110")
    I("s_waitcnt lgkmcnt(0)")
    for t in range(4):
        a = WF + (t * 2 + 1) * 4
        I(f"v_mfma_f32_16x16x32_bf16 v[{DD+4*t}:{DD+4*t+3}], v[{a}:{a+3}], v[{B1}:{B1+3}], v[{DD+4*t}:{DD+4*t+3}]")
    I(f"v_add3_u32 v{E_OUT}, v110, s45, v{E_KB}")
    O = 48
    I("s_nop 4")
    for half in range(2):
        for k in range(2):
            t = half * 2 + k
            if t == 3: I("s_nop 1")
            I(f"v_cvt_pk_bf16_f32 v{O+half*4+2*k}, v{DD+4*t}, v{DD+4*t+1}")
            I(f"v_cvt_pk_bf16_f32 v{O+half*4+2*k+1}, v{DD+4*t+2}, v{DD+4*t+3}")
        I(f"buffer_store_dwordx4 v[{O+half*4}:{O+half*4+3}], v{E_OUT}, s[28:31], 0 offen" + (" offset:64" if half else "") + FL[opt.st3])
    stamp(10, 124)
    if opt.stamps:
        I("s_waitcnt vmcnt(0)")
        stamp(11, 124)
    L("K2_END")
    I("s_endpgm")
    hop_subs("K2S")
    L("GPOLL")
    grid_poll("G2")
    I(f"s_setpc_b64 s[{S_RET}:{S_RET+1}]")
    I("s_endpgm")
    L("K2_CODE_END")
    return name, 128, 102

HEADER = f"""; Kernarg layout for this problem (64 bytes, ptrs only, base s[0:1]):
; @launch kernel=sgc_part_kernel grid=(256,1,1) block=(K1BLK,1,1) lds={K1_LDS}
; @launch kernel=sgc_prop_kernel grid=(256,1,1) block=(1024,1,1) lds=K2LDS
.amdgcn_target "amdgcn-amd-amdhsa--gfx950"
.text"""

def main():
    for a in sys.argv[2:]:
        k, v = a.split("=")
        assert hasattr(opt, k), k
        setattr(opt, k, int(v))
    h = HEADER.replace("K2LDS", str(K2_LDS)).replace("K1BLK", ("896" if opt.cpf else "832") if opt.k1v == 1 else "448")
    emit(h)
    ks = [gen_k1(), gen_k2()]
    emit('.section .rodata,"a"')
    emit(".p2align 6")
    for (n, v, s) in ks:
        kernel_desc(n, v, s)
        emit(".p2align 6")
    open(sys.argv[1], "w").write("\n".join(out) + "\n")

main()
```

```python
import sys

N = 50000
E = 850000
CH = 3328
NCH = 256
RECP = CH * 4
RECH = CH * 2
WS_SEG = 0
WS_RECP = 0x40000
WS_RECH = 0x380000
WS_IMG = 0x6C0000
WS_H1 = 0xC00000
WS_SYNC = 0x600000
TBL_BYTES = N * 128
SAFE = 0x0000FFFF

class Opt:
    D = 4
    R = 8
    skew = 0
    pf1 = 0
    pf2b = 4
    pf2c = 0
    pf3 = 2
    pf3c = 0
    stamps = 0
    st1 = 1
    st2 = 1
    st2i = 1
    st3 = 1
    dbg = 0
    rst = 0
    nbar = 6
    pfs = 0
    pfsr = 2
    pfs3 = 0
    ld1 = 3
    ld2 = 0
    ld3 = 0
    skip3 = 0
    k1v = 1
    ldg = 1
    spin = 16000000
    brep = 16
    pfpos = 1
    poll2 = 0
    own = 0
    cpf = 0
    tlb2 = 0
    tlb2off = 1048576
    cpfall = 0
    cpfn = 2
    lateinit = 0
    payafter = 1
    tlb = 0
    bsh = 4
    slp = 6
    smalllds = 0
    k3w = 16

opt = Opt()
out = []
def emit(s=""): out.append(s)
def I(s): out.append("    " + s)
def L(s): out.append(s + ":")
_uid = [0]
def uid(p):
    _uid[0] += 1
    return f"{p}_{_uid[0]}"

FL = ['', ' sc1', ' sc0 sc1', ' nt', ' sc0']
def srd(s, lo, hi, size, add=0):
    if add:
        I(f"s_add_u32 s{s}, s{lo}, {add}")
        I(f"s_addc_u32 s{s+1}, s{hi}, 0")
        I(f"s_and_b32 s{s+1}, s{s+1}, 0xffff")
    else:
        I(f"s_mov_b32 s{s}, s{lo}")
        I(f"s_and_b32 s{s+1}, s{hi}, 0xffff")
    I(f"s_mov_b32 s{s+2}, {size}")
    I(f"s_mov_b32 s{s+3}, 0x20000")

def wave_scan(v, n=64):
    for sh in (1, 2, 4, 8):
        I("s_nop 1")
        I(f"v_add_u32_dpp v{v}, v{v}, v{v} row_shr:{sh} row_mask:0xf bank_mask:0xf")
    if n > 16:
        I("s_nop 1")
        I(f"v_add_u32_dpp v{v}, v{v}, v{v} row_bcast:15 row_mask:0xa bank_mask:0xf")
        I("s_nop 1")
        I(f"v_add_u32_dpp v{v}, v{v}, v{v} row_bcast:31 row_mask:0xc bank_mask:0xf")

STAMP_OFF = 0x2000000
def stamp_init(kidx, ws_lo, vbase):
    if not opt.stamps: return
    I(f"v_lshrrev_b32 v{vbase}, 6, v0")
    I(f"s_lshl_b32 s92, s2, 4")
    I(f"s_add_u32 s92, s92, {kidx*256*16}")
    I(f"v_add_u32 v{vbase}, s92, v{vbase}")
    I(f"v_lshlrev_b32 v{vbase}, 7, v{vbase}")
    I(f"v_add_u32 v{vbase}, {STAMP_OFF}, v{vbase}")
    I(f"s_mov_b32 s94, s{ws_lo}")
    I(f"s_mov_b32 s95, s{ws_lo+1}")
def stamp(j, vbase, pre=None):
    if not opt.stamps: return
    if pre is None:
        I("s_memrealtime s[90:91]")
        I("s_waitcnt lgkmcnt(0)")
    else:
        I(f"s_mov_b32 s90, s{pre}")
        I(f"s_mov_b32 s91, s{pre+1}")
    I("s_mov_b64 s[88:89], exec")
    I("s_mov_b64 exec, 1")
    I(f"v_mov_b32 v{vbase+2}, s90")
    I(f"v_mov_b32 v{vbase+3}, s91")
    I(f"global_store_dwordx2 v{vbase}, v[{vbase+2}:{vbase+3}], s[94:95] offset:{8*j}")
    I("s_mov_b64 exec, s[88:89]")

def kernel_begin(name):
    emit(f".globl {name}")
    emit(".p2align 8")
    emit(f".type {name},@function")
    L(name)

def kernel_desc(name, vgpr, sgpr):
    acc = (vgpr + 3) // 4 * 4
    emit(f".amdhsa_kernel {name}")
    emit(f"  .amdhsa_next_free_vgpr {vgpr}")
    emit(f"  .amdhsa_next_free_sgpr {sgpr}")
    emit(f"  .amdhsa_accum_offset {acc}")
    emit("  .amdhsa_group_segment_fixed_size 0")
    emit("  .amdhsa_kernarg_size 64")
    emit("  .amdhsa_user_sgpr_count 2")
    emit("  .amdhsa_user_sgpr_kernarg_segment_ptr 1")
    emit("  .amdhsa_system_sgpr_workgroup_id_x 1")
    emit(".end_amdhsa_kernel")

PFU = 8192
def pf_setup(vaddr, n, base_bytes):
    I("s_lshr_b32 s15, s2, 3")
    I(f"s_mul_i32 s15, s15, {n*PFU}")
    if base_bytes: I(f"s_add_u32 s15, s15, {base_bytes}")
    I(f"v_lshlrev_b32 v{vaddr}, 7, v0")
    I(f"v_add_u32 v{vaddr}, s15, v{vaddr}")
def pf_issue(vaddr, vdst, tbl, n, sW, nw=16):
    rounds = (n + nw - 1) // nw
    for i in range(rounds):
        cnt = min(nw, n - nw * i)
        lab = uid("PF")
        if cnt < nw:
            I(f"s_cmp_ge_u32 s{sW}, {cnt}")
            I(f"s_cbranch_scc1 {lab}")
        I(f"s_mov_b32 s15, {i*nw*PFU}")
        I(f"buffer_load_dword v{vdst}, v{vaddr}, s[{tbl}:{tbl+3}], s15 offen")
        L(lab)

def pf_stream(tbl, sW, nunits, base_bytes, per_round, vaddr, nrounds_max):
    I("s_lshr_b32 s15, s2, 3")
    I(f"s_mul_i32 s15, s15, {nunits*PFU}")
    I(f"s_add_u32 s15, s15, {base_bytes}")
    I(f"s_sub_u32 s14, s{sW}, {NWORK}")
    I(f"s_mul_i32 s14, s14, {PFU}")
    I("s_add_u32 s15, s15, s14")
    I(f"v_lshlrev_b32 v{vaddr}, 7, v{V_LANE}")
    I(f"v_add_u32 v{vaddr}, s15, v{vaddr}")
    k = 0
    nsteps = (nunits + 1) // 2
    rnd = 0
    while k < nsteps:
        for _ in range(per_round):
            if k >= nsteps: break
            I(f"s_mov_b32 s15, {k*2*PFU}")
            I(f"buffer_load_dword v{V_PFD}, v{vaddr}, s[{tbl}:{tbl+3}], s15 offen")
            k += 1
        rnd += 1
        if k < nsteps and rnd <= nrounds_max:
            I("s_barrier")

K1_HIST = 0
K1_PRE = 1024
K1_STP = 2048
K1_STH = K1_STP + RECP
K1_LDS = K1_STH + RECH

def gen_k1():
    name = "sgc_part_kernel"
    V = opt.k1v
    NT = 832 // V
    kernel_begin(name)
    I("s_cmp_ge_u32 s2, 256")
    I("s_cbranch_scc1 K1_END")
    if opt.cpf:
        I("v_readfirstlane_b32 s15, v0")
        I("s_lshr_b32 s15, s15, 6")
        I("s_cmp_lt_u32 s15, 13")
        I("s_cbranch_scc1 K1_MAIN")
        I(f"s_cmp_ge_u32 s2, {opt.cpf}")
        I("s_cbranch_scc1 K1_END")
        I("s_getpc_b64 s[48:49]")
        L("CPF_PC")
        if opt.cpfall:
            I("s_sub_u32 s48, s48, CPF_PC - sgc_part_kernel")
            I("s_subb_u32 s49, s49, 0")
            I("v_and_b32 v90, 63, v0")
            I("v_lshlrev_b32 v90, 7, v90")
            I("v_cmp_gt_u32 vcc, K2_CODE_END - sgc_part_kernel, v90")
            I("s_and_saveexec_b64 s[12:13], vcc")
            I("global_load_dword v91, v90, s[48:49]")
            I("v_add_u32 v90, 8192, v90")
            I("v_cmp_gt_u32 vcc, K2_CODE_END - sgc_part_kernel, v90")
        else:
            I("s_add_u32 s48, s48, sgc_prop_kernel - CPF_PC")
            I("s_addc_u32 s49, s49, 0")
            I("v_and_b32 v90, 63, v0")
            I("v_lshlrev_b32 v90, 7, v90")
            I("v_cmp_gt_u32 vcc, K2_CODE_END - sgc_prop_kernel, v90")
        I("s_and_saveexec_b64 s[12:13], vcc")
        I("s_cbranch_execz K1_END")
        I("global_load_dword v91, v90, s[48:49]")
        I("s_endpgm")
        L("K1_MAIN")
    if opt.stamps: I("s_memrealtime s[86:87]")
    I("s_load_dwordx4 s[4:7], s[0:1], 8")
    I("s_load_dwordx2 s[8:9], s[0:1], 24")
    I("s_load_dwordx2 s[10:11], s[0:1], 56")
    I(f"s_mul_i32 s3, s2, {CH}")
    I("v_lshl_add_u32 v1, v0, 2, s3")
    I("v_lshlrev_b32 v2, 2, v1")
    I("v_lshlrev_b32 v3, 1, v1")
    I("v_mov_b32 v4, 0")
    I("v_lshlrev_b32 v5, 2, v0")
    I("v_cmp_gt_u32 vcc, 0x100, v0")
    I("s_and_saveexec_b64 s[12:13], vcc")
    I(f"ds_write_b32 v5, v4 offset:{K1_HIST}")
    I("s_mov_b64 exec, s[12:13]")
    I("v_readfirstlane_b32 s15, v0")
    I("s_waitcnt lgkmcnt(0)")
    stamp_init(0, 10, 124); stamp(0, 124, 86)
    srd(16, 6, 7, E * 4)
    D = lambda g, i: 8 + 16 * g + i
    S = lambda g, i: 12 + 16 * g + i
    NR = lambda g, i: 16 + 16 * g + i
    HA = lambda g, i: 40 + 4 * g + i
    RK = lambda g, i: 48 + 4 * g + i
    PL = lambda g, i: 56 + 4 * g + i
    HI = lambda g, i: 64 + 4 * g + i
    for g in range(V):
        I(f"s_mov_b32 s{40+g}, {g*NT*16}")
        I(f"buffer_load_dwordx4 v[{D(g,0)}:{D(g,3)}], v2, s[16:19], s{40+g} offen" + FL[opt.ld1])
    srd(20, 4, 5, E * 4)
    srd(24, 8, 9, E * 2)
    for g in range(V):
        I(f"s_mov_b32 s{42+g}, {g*NT*8}")
        I(f"buffer_load_dwordx4 v[{S(g,0)}:{S(g,3)}], v2, s[20:23], s{40+g} offen" + FL[opt.ld1])
        I(f"buffer_load_dwordx2 v[{NR(g,0)}:{NR(g,1)}], v3, s[24:27], s{42+g} offen" + FL[opt.ld1])
    I("s_lshr_b32 s46, s15, 6")
    I("s_or_b32 s14, s2, s46")
    I("s_cmp_lg_u32 s14, 0")
    I("s_cbranch_scc1 K1_NOZ")
    I("v_lshlrev_b32 v7, 7, v0")
    I(f"v_add_u32 v7, {WS_SYNC}, v7")
    I("global_store_dword v7, v4, s[10:11] sc1")
    I("s_waitcnt vmcnt(0)")
    L("K1_NOZ")
    npf = 0
    if opt.pf1:
        I("s_load_dwordx2 s[48:49], s[0:1], 0")
        I("s_lshr_b32 s15, s2, 3")
        I(f"s_mul_i32 s15, s15, {opt.pf1*PFU}")
        I(f"s_cmp_lt_u32 s46, {opt.pf1}")
        I("s_cselect_b32 s15, s15, 0x40000000")
        I("v_lshlrev_b32 v90, 7, v0")
        I("v_add_u32 v90, s15, v90")
        I("s_waitcnt lgkmcnt(0)")
        srd(64, 48, 49, TBL_BYTES)
        I("buffer_load_dword v91, v90, s[64:67], 0 offen")
        npf = 1
    srd(28, 10, 11, NCH * 1024, WS_SEG)
    srd(32, 10, 11, NCH * RECP, WS_RECP)
    srd(52, 10, 11, NCH * RECH, WS_RECH)
    I("s_mov_b32 s36, 0xffff0000")
    I("s_mov_b32 s37, 21474")
    I("s_mov_b64 s[12:13], exec")
    I(f"v_cmp_gt_u32 s[56:57], {NT if NT <= 64 else 's14'}, v0") if False else None
    I(f"s_mov_b32 s14, {NT}")
    I("v_cmp_gt_u32 s[56:57], s14, v0")
    for g in range(V):
        I(f"s_mov_b32 s14, {E - g*NT*4}")
        I(f"v_cmp_gt_u32 s[{58+2*g}:{59+2*g}], s14, v1")
        I(f"s_and_b64 s[{58+2*g}:{59+2*g}], s[{58+2*g}:{59+2*g}], s[56:57]")
    I("v_mov_b32 v6, 1")
    I("s_barrier")
    for g in range(V):
        I(f"s_waitcnt vmcnt({(V - 1 - g) + 2*V + npf})")
        if g == 0: stamp(1, 124)
        I(f"s_mov_b64 exec, s[{58+2*g}:{59+2*g}]")
        for i in range(4):
            I(f"v_and_b32 v{HA(g,i)}, 0xff, v{D(g,i)}")
            I(f"v_lshlrev_b32 v{HA(g,i)}, 2, v{HA(g,i)}")
        for i in range(4):
            I(f"ds_add_rtn_u32 v{RK(g,i)}, v{HA(g,i)}, v6 offset:{K1_HIST}")
    I("s_mov_b64 exec, s[12:13]")
    for g in range(V):
        I(f"s_waitcnt vmcnt({2*(V-1-g) + npf})")
        I(f"v_lshl_or_b32 v{PL(g,0)}, v{NR(g,0)}, 16, v{S(g,0)}")
        I(f"v_and_or_b32 v{PL(g,1)}, v{NR(g,0)}, s36, v{S(g,1)}")
        I(f"v_lshl_or_b32 v{PL(g,2)}, v{NR(g,1)}, 16, v{S(g,2)}")
        I(f"v_and_or_b32 v{PL(g,3)}, v{NR(g,1)}, s36, v{S(g,3)}")
        for i in range(4):
            I(f"v_mul_u32_u24 v7, s37, v{S(g,i)}")
            I("v_lshrrev_b32 v7, 26, v7")
            I("v_and_b32 v7, 12, v7")
            I(f"v_lshrrev_b32 v{HI(g,i)}, 8, v{D(g,i)}")
            I(f"v_lshl_or_b32 v{HI(g,i)}, v{HI(g,i)}, 4, v7")
    I("s_waitcnt lgkmcnt(0)")
    I("s_barrier")
    I("s_cmp_lg_u32 s46, 0")
    I("s_cbranch_scc1 K1_NOSCAN")
    I("v_lshlrev_b32 v5, 4, v0")
    I(f"ds_read_b128 v[72:75], v5 offset:{K1_HIST}")
    I("s_waitcnt lgkmcnt(0)")
    I("v_add_u32 v76, v72, v73")
    I("v_add_u32 v77, v76, v74")
    I("v_add_u32 v78, v77, v75")
    I("v_mov_b32 v79, v78")
    wave_scan(79)
    I("v_sub_u32 v80, v79, v78")
    I("v_add_u32 v81, v80, v72")
    I("v_add_u32 v82, v80, v76")
    I("v_add_u32 v83, v80, v77")
    I(f"ds_write_b128 v5, v[80:83] offset:{K1_PRE}")
    I("v_lshl_or_b32 v72, v81, 16, v80")
    I("v_lshl_or_b32 v73, v82, 16, v81")
    I("v_lshl_or_b32 v74, v83, 16, v82")
    I("v_lshl_or_b32 v75, v79, 16, v83")
    I("s_lshl_b32 s37, s2, 10")
    I("buffer_store_dwordx4 v[72:75], v5, s[28:31], s37 offen" + FL[opt.st1])
    I("s_waitcnt lgkmcnt(0)")
    L("K1_NOSCAN")
    I("s_barrier")
    for g in range(V):
        I(f"s_mov_b64 exec, s[{58+2*g}:{59+2*g}]")
        for i in range(4):
            I(f"ds_read_b32 v{HA(g,i)}, v{HA(g,i)} offset:{K1_PRE}")
    for g in range(V):
        I(f"s_mov_b64 exec, s[{58+2*g}:{59+2*g}]")
        I(f"s_waitcnt lgkmcnt({4*(V-1-g) if g < V-1 else 0})" if False else "s_waitcnt lgkmcnt(0)")
        for i in range(4):
            I(f"v_add_u32 v{HA(g,i)}, v{HA(g,i)}, v{RK(g,i)}")
            I(f"v_lshlrev_b32 v{RK(g,i)}, 2, v{HA(g,i)}")
            I(f"v_lshlrev_b32 v{HA(g,i)}, 1, v{HA(g,i)}")
            I(f"ds_write_b32 v{RK(g,i)}, v{PL(g,i)} offset:{K1_STP}")
            I(f"ds_write_b16 v{HA(g,i)}, v{HI(g,i)} offset:{K1_STH}")
    I("s_mov_b64 exec, s[12:13]")
    I("s_waitcnt lgkmcnt(0)")
    I("s_barrier")
    I("v_lshlrev_b32 v5, 4, v0")
    I(f"s_mul_i32 s37, s2, {RECP}")
    I(f"s_mul_i32 s42, s2, {RECH}")
    I("s_mov_b64 exec, s[56:57]")
    for g in range(V):
        I(f"ds_read_b128 v[{8+4*g}:{11+4*g}], v5 offset:{K1_STP + g*NT*16}")
    if V == 2:
        I(f"ds_read_b128 v[16:19], v5 offset:{K1_STH}")
    else:
        I(f"s_mov_b32 s14, {RECH//16}")
        I("v_cmp_gt_u32 vcc, s14, v0")
        I("s_mov_b64 exec, vcc")
        I(f"ds_read_b128 v[16:19], v5 offset:{K1_STH}")
        I("s_mov_b64 exec, s[56:57]")
    I("s_cbranch_execz K1_FIN")
    for g in range(V):
        I(f"s_waitcnt lgkmcnt({V - g})")
        if g: I(f"s_add_u32 s37, s37, {NT*16}")
        I(f"buffer_store_dwordx4 v[{8+4*g}:{11+4*g}], v5, s[32:35], s37 offen" + FL[opt.st1])
    I("s_waitcnt lgkmcnt(0)")
    if V == 1:
        I("s_mov_b64 exec, vcc")
        I("s_cbranch_execz K1_FIN")
    I("buffer_store_dwordx4 v[16:19], v5, s[52:55], s42 offen" + FL[opt.st1])
    L("K1_FIN")
    I("s_mov_b64 exec, s[12:13]")
    stamp(2, 124)
    if opt.stamps:
        I("s_waitcnt vmcnt(0)")
        stamp(3, 124)
    L("K1_END")
    I("s_endpgm")
    return name, (128 if opt.stamps else 96), (102 if opt.stamps else 72)

L_SU = 0x000
L_WB = 0x040
L_ORD = 0x120
L_HEAVY = 0x1F0
L_LN = 0x20000
LN_CAP = 0x4000
L_LS = 0x10000
LS_CAP = 0x1000
L_CNT = 0x4000
L_H2 = 0x5000
L_WM = 0x5200
K2_ZERO_END = 0x5400
L_NBQ = 0x5400
L_WL = 0x6400
L_SCR = 0x8400
K2_ACC = 0xF400
ACC_BYTES = 208 * 256
K2_LDS = L_LN + LN_CAP
assert K2_ACC + ACC_BYTES <= L_LN
NWORK = 14

V_LANE = 1
V_G4 = 2
V_F16 = 3
V_SELA = 4
V_SELB = 5
V_PTRC = 6
V_PTRI = 7
V_NA = 8
V_NB = 9
V_A0 = 10
V_A1 = 11
V_ACC = 12
V_ACC2 = 20
V_T = 28
V_RC = 32
V_RI = 36
V_DATA = 40
S_T, S_R, S_PACE, S_DR, S_REM = 78, 79, 80, 81, 82
S_NB = 76
S_RET = 84
S_128 = 44
V_PFD = 125

def hop_consts():
    I(f"v_lshrrev_b32 v{V_G4}, 3, v{V_LANE}")
    I(f"v_lshlrev_b32 v{V_G4}, 2, v{V_G4}")
    I(f"v_and_b32 v{V_F16}, 7, v{V_LANE}")
    I(f"v_lshlrev_b32 v{V_F16}, 4, v{V_F16}")
    I(f"v_and_b32 v{V_PTRC}, 3, v{V_LANE}")
    I(f"v_mov_b32 v{V_SELA}, 0x0c0c0c0c")
    I(f"v_mov_b32 v{V_SELB}, 0x0c0c0c0c")
    I(f"v_mov_b32 v{V_A0}, 0x0c0c0302")
    I(f"v_mov_b32 v{V_A1}, 0x03020c0c")
    for val, sel, lit in ((0, V_SELA, V_A0), (1, V_SELA, V_A1), (2, V_SELB, V_A0), (3, V_SELB, V_A1)):
        I(f"v_cmp_eq_u32 vcc, {val}, v{V_PTRC}")
        I("s_nop 1")
        I(f"v_cndmask_b32 v{sel}, v{sel}, v{lit}, vcc")
    I(f"s_mov_b32 s{S_128}, 128")
    for i in range(8):
        I(f"v_mov_b32 v{V_ACC+i}, 0")
        I(f"v_mov_b32 v{V_ACC2+i}, 0")

def rd2(dst, ptr, unit):
    o = unit * 16
    assert o + 8 <= 255
    I(f"ds_read2_b32 v[{dst}:{dst+1}], v{ptr} offset0:{o} offset1:{o+8}")

def perms(p):
    rc = V_RC + 2 * p
    I(f"v_perm_b32 v{V_T+0}, v{rc}, v{rc}, v{V_SELA}")
    I(f"v_perm_b32 v{V_T+1}, v{rc}, v{rc}, v{V_SELB}")
    I(f"v_perm_b32 v{V_T+2}, v{rc+1}, v{rc+1}, v{V_SELA}")
    I(f"v_perm_b32 v{V_T+3}, v{rc+1}, v{rc+1}, v{V_SELB}")

def mfmas(r):
    d = V_DATA + 8 * r
    a, b = V_ACC, V_ACC2
    I(f"v_mfma_f32_4x4x4_16b_bf16 v[{a}:{a+3}], v[{V_T}:{V_T+1}], v[{d}:{d+1}], v[{a}:{a+3}]")
    I(f"v_mfma_f32_4x4x4_16b_bf16 v[{a+4}:{a+7}], v[{V_T}:{V_T+1}], v[{d+2}:{d+3}], v[{a+4}:{a+7}]")
    I(f"v_mfma_f32_4x4x4_16b_bf16 v[{b}:{b+3}], v[{V_T+2}:{V_T+3}], v[{d+4}:{d+5}], v[{b}:{b+3}]")
    I(f"v_mfma_f32_4x4x4_16b_bf16 v[{b+4}:{b+7}], v[{V_T+2}:{V_T+3}], v[{d+6}:{d+7}], v[{b+4}:{b+7}]")

def pace_check(pfx):
    if opt.R <= 1: return
    lab = uid(pfx + "_PC")
    I(f"s_add_u32 s{S_PACE}, s{S_PACE}, s{S_R}")
    I(f"s_cmp_lt_u32 s{S_PACE}, s{S_T}")
    I(f"s_cbranch_scc1 {lab}")
    I(f"s_call_b64 s[{S_RET}:{S_RET+1}], {pfx}_BS")
    L(lab)

def hop_subs(pfx):
    if opt.R <= 1: return
    L(f"{pfx}_BF")
    I(f"s_cmp_eq_u32 s{S_NB}, 0")
    I(f"s_cbranch_scc1 {pfx}_BR")
    I(f"s_sub_u32 s{S_NB}, s{S_NB}, 1")
    I("s_barrier")
    I(f"s_branch {pfx}_BF")
    L(f"{pfx}_BS")
    I(f"s_cmp_eq_u32 s{S_NB}, 0")
    I(f"s_cbranch_scc1 {pfx}_BR")
    I(f"s_sub_u32 s{S_NB}, s{S_NB}, 1")
    I("s_barrier")
    if opt.rst:
        I("s_memrealtime s[98:99]")
        I("s_waitcnt lgkmcnt(0)")
        for k in range(7, 0, -1): I(f"s_mov_b32 s{60+k}, s{59+k}")
        I("s_mov_b32 s60, s98")
    I(f"s_sub_u32 s{S_PACE}, s{S_PACE}, s{S_T}")
    I(f"s_cmp_ge_u32 s{S_PACE}, s{S_T}")
    I(f"s_cbranch_scc1 {pfx}_BS")
    L(f"{pfx}_BR")
    I(f"s_setpc_b64 s[{S_RET}:{S_RET+1}]")

def hop_wave(pfx, tbl, sW, gate=None):
    D = opt.D
    I(f"s_min_u32 s{S_T}, s{S_T}, 0x100")
    I(f"s_mov_b32 s{S_DR}, s{S_T}")
    I(f"s_mov_b32 s{S_PACE}, 0")
    I(f"s_mov_b32 s{S_R}, {opt.R}")
    I(f"s_mov_b32 s{S_NB}, {min(opt.nbar, opt.R - 1)}")
    if opt.skew:
        I(f"s_cmp_lt_u32 s{sW}, 8")
        I(f"s_cselect_b32 s{S_R}, {opt.R - opt.skew}, s{S_R}")
        I(f"s_cmp_lt_u32 s{sW}, 4")
        I(f"s_cselect_b32 s{S_R}, {opt.R - 2*opt.skew}, s{S_R}")
    for r in range(D):
        rd2(V_DATA + 8 * r, V_PTRC, r)
    rd2(V_RC, V_PTRC, 0)
    I(f"v_add_u32 v{V_PTRI}, {D*64}, v{V_PTRC}")
    I("s_waitcnt lgkmcnt(0)")
    rd2(V_RI, V_PTRI, 0)
    if gate: gate("h")
    I(f"s_cmp_eq_u32 s{S_T}, 0")
    I(f"s_cbranch_scc1 {pfx}_FIN")
    for r in range(D):
        d = V_DATA + 8 * r
        if r > 0:
            I(f"s_cmp_le_u32 s{S_T}, {r}")
            I(f"s_cbranch_scc1 {pfx}_DR0")
            pace_check(pfx)
        I(f"v_mad_u32_u16 v{V_A0}, v{d}, s{S_128}, v{V_F16}")
        I(f"v_mad_u32_u16 v{V_A1}, v{d+1}, s{S_128}, v{V_F16}")
        I(f"buffer_load_dwordx4 v[{d}:{d+3}], v{V_A0}, s[{tbl}:{tbl+3}], 0 offen" + FL[opt.ldg])
        I(f"buffer_load_dwordx4 v[{d+4}:{d+7}], v{V_A1}, s[{tbl}:{tbl+3}], 0 offen" + FL[opt.ldg])
    I(f"s_sub_u32 s{S_REM}, s{S_T}, {D}")
    I(f"s_mov_b32 s{S_DR}, {D}")
    I(f"s_cmp_eq_u32 s{S_REM}, 0")
    I(f"s_cbranch_scc1 {pfx}_DR0")
    L(f"{pfx}_MAIN")
    for r in range(D):
        p = r & 1
        d = V_DATA + 8 * r
        I("s_waitcnt lgkmcnt(0)")
        rd2(V_RC + 2 * (p ^ 1), V_PTRC, r + 1)
        rd2(V_RI + 2 * (p ^ 1), V_PTRI, r + 1)
        perms(p)
        ri = V_RI + 2 * p
        I(f"v_mad_u32_u16 v{V_A0}, v{ri}, s{S_128}, v{V_F16}")
        I(f"v_mad_u32_u16 v{V_A1}, v{ri+1}, s{S_128}, v{V_F16}")
        I(f"s_waitcnt vmcnt({2*(D-1)})")
        mfmas(r)
        pace_check(pfx)
        I(f"buffer_load_dwordx4 v[{d}:{d+3}], v{V_A0}, s[{tbl}:{tbl+3}], 0 offen" + FL[opt.ldg])
        I(f"buffer_load_dwordx4 v[{d+4}:{d+7}], v{V_A1}, s[{tbl}:{tbl+3}], 0 offen" + FL[opt.ldg])
        if r == D - 1:
            I(f"v_add_u32 v{V_PTRC}, {D*64}, v{V_PTRC}")
            I(f"v_add_u32 v{V_PTRI}, {D*64}, v{V_PTRI}")
        I(f"s_sub_u32 s{S_REM}, s{S_REM}, 1")
        I(f"s_cmp_eq_u32 s{S_REM}, 0")
        if r == D - 1:
            I(f"s_cbranch_scc0 {pfx}_MAIN")
        else:
            I(f"s_cbranch_scc1 {pfx}_DR{r+1}")
    for q in range(2 * D - 1):
        r = q % D
        p = q & 1
        if q < D:
            L(f"{pfx}_DR{q}")
            if opt.R > 1:
                lab = uid(pfx + "_DX")
                I(f"s_cmp_eq_u32 s{S_NB}, 0")
                I(f"s_cbranch_scc1 {lab}")
                I(f"s_call_b64 s[{S_RET}:{S_RET+1}], {pfx}_BF")
                L(lab)
        I("s_waitcnt lgkmcnt(0)")
        if q + 1 <= 2 * D - 2:
            rd2(V_RC + 2 * (p ^ 1), V_PTRC, q + 1)
        perms(p)
        I("s_waitcnt vmcnt(0)")
        I(f"s_sub_u32 s{S_DR}, s{S_DR}, 1")
        mfmas(r)
        if q < 2 * D - 2:
            I(f"s_cmp_eq_u32 s{S_DR}, 0")
            I(f"s_cbranch_scc1 {pfx}_FIN")
    L(f"{pfx}_FIN")
    if opt.R > 1:
        lab = uid(pfx + "_DY")
        I(f"s_cmp_eq_u32 s{S_NB}, 0")
        I(f"s_cbranch_scc1 {lab}")
        I(f"s_call_b64 s[{S_RET}:{S_RET+1}], {pfx}_BF")
        L(lab)
    if opt.rst and opt.stamps:
        for k in range(7):
            I(f"s_mov_b32 s86, s{66-k}")
            I(f"s_mov_b32 s87, s99")
            stamp(9 + k, 124, 86)
    I("s_nop 4")

def node_pos(sW, heavy):
    I(f"v_lshrrev_b32 v{V_NB}, 2, v{V_G4}")
    I(f"s_lshl_b32 s45, s{sW}, 4")
    if not heavy:
        I(f"s_lshl_b32 s46, s{sW}, 3")
        I(f"s_add_u32 s46, s46, 96")
        I(f"s_cmp_lt_u32 s{sW}, 12")
        I(f"s_cselect_b32 s45, s45, s46")
    I(f"v_add_u32 v{V_NA}, s45, v{V_NB}")
    I(f"v_add_u32 v{V_NB}, 8, v{V_NA}")

def hop_header(sW, vflag):
    I(f"s_lshl_b32 s45, s{sW}, 2")
    I(f"v_mov_b32 v{V_A0}, s45")
    I(f"v_mov_b32 v{vflag}, {L_HEAVY}")
    I(f"ds_read_b32 v{vflag}, v{vflag}")
    I(f"ds_read_b32 v{V_A1}, v{V_A0} offset:{L_SU}")
    I(f"ds_read_b32 v{V_PTRC}, v{V_A0} offset:{L_WB}")
    node_pos(sW, False)
    I(f"ds_read_u8 v{V_NA}, v{V_NA} offset:{L_ORD}")
    I(f"ds_read_u8 v{V_NB}, v{V_NB} offset:{L_ORD}")
    I("s_waitcnt lgkmcnt(0)")
    I(f"v_readfirstlane_b32 s77, v{vflag}")
    I(f"v_readfirstlane_b32 s{S_T}, v{V_A1}")
    I(f"v_add_u32 v{V_PTRC}, v{V_PTRC}, v{V_G4}")
    lab = uid("HH")
    I(f"s_cmp_lt_u32 s{sW}, 12")
    I(f"s_cbranch_scc1 {lab}")
    I(f"v_mov_b32 v{V_NB}, 0xff")
    L(lab)

def split_fix(pfx, sW):
    lab = uid(pfx + "_SF")
    I(f"s_cmp_lt_u32 s{sW}, 12")
    I(f"s_cbranch_scc1 {lab}")
    for i in range(8):
        I(f"v_add_f32 v{V_ACC+i}, v{V_ACC+i}, v{V_ACC2+i}")
    L(lab)

def heavy_path(pfx, tbl, seg_lo_hi, rec_srd, rech_srd, sB, sW, acc_base, nwaves):
    I("v_mov_b32 v40, 0")
    I("v_mov_b32 v41, 0")
    I("v_mov_b32 v42, 0")
    I("v_mov_b32 v43, 0")
    I("v_lshlrev_b32 v44, 4, v0")
    I(f"v_add_u32 v44, {acc_base}, v44")
    n16 = ACC_BYTES // 16
    for i in range(3):
        I(f"ds_write_b128 v44, v[40:43] offset:{i*16384}")
    I(f"v_cmp_gt_u32 vcc, {n16 - 3072}, v0")
    I("s_and_saveexec_b64 s[60:61], vcc")
    I(f"ds_write_b128 v44, v[40:43] offset:{3*16384}")
    I("s_mov_b64 exec, s[60:61]")
    I("s_waitcnt lgkmcnt(0)")
    I("s_barrier")
    I(f"s_mov_b32 s62, s{sW}")
    I(f"v_lshrrev_b32 v45, 3, v{V_LANE}")
    I(f"s_lshl_b32 s63, s{sB}, 2")
    L(f"{pfx}_HC")
    I("s_lshl_b32 s64, s62, 10")
    I("s_add_u32 s64, s64, s63")
    I(f"s_add_u32 s66, s{seg_lo_hi}, s64")
    I(f"s_addc_u32 s67, s{seg_lo_hi+1}, 0")
    I("s_load_dword s68, s[66:67], 0")
    I(f"s_mul_i32 s69, s62, {RECP}")
    I(f"s_mul_i32 s65, s62, {RECH}")
    I("s_waitcnt lgkmcnt(0)")
    I("s_and_b32 s70, s68, 0xffff")
    I("s_lshr_b32 s71, s68, 16")
    L(f"{pfx}_HI")
    I("s_cmp_ge_u32 s70, s71")
    I(f"s_cbranch_scc1 {pfx}_HN")
    I("v_add_u32 v46, s70, v45")
    I("v_cmp_gt_u32 vcc, s71, v46")
    I("s_and_saveexec_b64 s[60:61], vcc")
    I("v_lshlrev_b32 v47, 2, v46")
    I(f"buffer_load_dword v48, v47, s[{rec_srd}:{rec_srd+3}], s69 offen")
    I("v_lshlrev_b32 v47, 1, v46")
    I(f"buffer_load_ushort v49, v47, s[{rech_srd}:{rech_srd+3}], s65 offen")
    I("s_waitcnt vmcnt(0)")
    I("v_and_b32 v50, 0xffff, v48")
    I("v_lshlrev_b32 v50, 7, v50")
    I(f"v_add_u32 v50, v50, v{V_F16}")
    I(f"buffer_load_dwordx4 v[52:55], v50, s[{tbl}:{tbl+3}], 0 offen" + FL[opt.ldg])
    I("v_and_b32 v51, 0xffff0000, v48")
    I("v_lshrrev_b32 v56, 4, v49")
    I("v_lshlrev_b32 v56, 8, v56")
    I(f"v_lshlrev_b32 v57, 1, v{V_F16}")
    I("v_add_u32 v56, v56, v57")
    I(f"v_add_u32 v56, {acc_base}, v56")
    I("s_waitcnt vmcnt(0)")
    for i in range(4):
        I(f"v_lshlrev_b32 v58, 16, v{52+i}")
        I(f"v_and_b32 v59, 0xffff0000, v{52+i}")
        I("v_mul_f32 v58, v58, v51")
        I("v_mul_f32 v59, v59, v51")
        I(f"ds_add_f32 v56, v58 offset:{8*i}")
        I(f"ds_add_f32 v56, v59 offset:{8*i + 4}")
    I("s_mov_b64 exec, s[60:61]")
    I("s_add_u32 s70, s70, 8")
    I(f"s_branch {pfx}_HI")
    L(f"{pfx}_HN")
    I(f"s_add_u32 s62, s62, {nwaves}")
    I("s_cmp_lt_u32 s62, 256")
    I(f"s_cbranch_scc1 {pfx}_HC")
    I("s_waitcnt lgkmcnt(0)")
    I("s_barrier")

def heavy_read_acc(acc_base, sW):
    node_pos(sW, True)
    for vn, va in ((V_NA, V_ACC), (V_NB, V_ACC2)):
        I(f"v_lshlrev_b32 v{V_A0}, 8, v{vn}")
        I(f"v_lshlrev_b32 v{V_A1}, 1, v{V_F16}")
        I(f"v_add_u32 v{V_A0}, v{V_A0}, v{V_A1}")
        I(f"v_add_u32 v{V_A0}, {acc_base}, v{V_A0}")
        I(f"ds_read_b128 v[{va}:{va+3}], v{V_A0}")
        I(f"ds_read_b128 v[{va+4}:{va+7}], v{V_A0} offset:16")
    I("s_waitcnt lgkmcnt(0)")


def grid_arrive():
    R, SH = opt.brep, opt.bsh
    assert R * SH <= 64
    lsh = SH.bit_length() - 1
    I(f"s_and_b32 s45, s2, {SH-1}")
    I("s_lshl_b32 s45, s45, 7")
    I(f"s_add_u32 s45, s45, {WS_SYNC}")
    I(f"v_lshlrev_b32 v116, {7+lsh}, v{V_LANE}")
    I("v_add_u32 v116, s45, v116")
    I("v_mov_b32 v117, 1")
    I("s_mov_b64 s[72:73], exec")
    I(f"s_mov_b64 exec, {hex((1 << R) - 1)}")
    I("global_atomic_add v116, v117, s[6:7] sc1")
    I("s_mov_b64 exec, s[72:73]")

def grid_poll(pfx):
    R, SH = opt.brep, opt.bsh
    lsh = SH.bit_length() - 1
    NR = 2 if opt.poll2 else 1
    I("s_mov_b64 s[72:73], exec")
    I(f"s_mov_b64 exec, {(1 << (SH * NR)) - 1}")
    I(f"s_lshr_b32 s45, s2, {lsh}")
    I(f"s_and_b32 s45, s45, {R-1}")
    I(f"v_lshrrev_b32 v116, {lsh}, v{V_LANE}")
    I(f"v_mul_u32_u24 v116, {R//2}, v116")
    I(f"v_add_u32 v116, s45, v116")
    I(f"v_and_b32 v116, {R-1}, v116")
    I(f"v_lshlrev_b32 v116, {lsh}, v116")
    I(f"v_and_b32 v117, {SH-1}, v{V_LANE}")
    I(f"v_add_u32 v116, v116, v117")
    I(f"v_lshlrev_b32 v116, 7, v116")
    I(f"v_add_u32 v116, {WS_SYNC}, v116")
    I(f"s_mov_b32 s46, {opt.spin}")
    L(f"{pfx}_POLL")
    I("global_load_dword v118, v116, s[6:7] sc1")
    I("s_waitcnt vmcnt(0)")
    for k in range(NR):
        for l in range(SH):
            I(f"v_readlane_b32 s{12+(l&3)}, v118, {k*SH+l}")
            if l == 1: I("s_add_u32 s11, s12, s13")
            elif l > 1: I(f"s_add_u32 s11, s11, s{12+(l&3)}")
        if SH == 1: I("s_mov_b32 s11, s12")
        I("s_cmp_ge_u32 s11, 256")
        I(f"s_cbranch_scc1 {pfx}_POLLED")
    if opt.slp: I(f"s_sleep {opt.slp}")
    I("s_sub_u32 s46, s46, 1")
    I("s_cmp_eq_u32 s46, 0")
    I(f"s_cbranch_scc0 {pfx}_POLL")
    L(f"{pfx}_POLLED")
    I("s_mov_b64 exec, s[72:73]")

def release_gate(tag):
    lab, lab2 = uid("RG"), uid("RH")
    I(f"s_cmp_eq_u32 s47, 0")
    I(f"s_cbranch_scc1 {lab}")
    I("s_cmp_lg_u32 s10, 0")
    I(f"s_cbranch_scc1 {lab2}")
    I(f"s_call_b64 s[{S_RET}:{S_RET+1}], GPOLL")
    L(lab2)
    I("s_barrier")
    stamp(8, 124)
    L(lab)

def gen_k2():
    name = "sgc_prop_kernel"
    kernel_begin(name)
    I("s_cmp_ge_u32 s2, 256")
    I("s_cbranch_scc1 K2_END")
    if opt.stamps: I("s_memrealtime s[86:87]")
    I("s_load_dwordx2 s[6:7], s[0:1], 56")
    I("s_load_dwordx2 s[4:5], s[0:1], 0")
    I("s_load_dwordx4 s[32:35], s[0:1], 32")
    I("s_and_b32 s8, s2, 7")
    I("s_lshl_b32 s8, s8, 5")
    I("s_lshr_b32 s9, s2, 3")
    I("s_add_u32 s8, s8, s9")
    I("v_readfirstlane_b32 s10, v0")
    I(f"v_and_b32 v{V_LANE}, 63, v0")
    I(f"v_lshrrev_b32 v52, 4, v{V_LANE}")
    I("s_lshr_b32 s10, s10, 6")
    I("s_lshl_b32 s11, s10, 2")
    I("v_add_u32 v52, s11, v52")
    I("s_lshl_b32 s11, s8, 2")
    I("v_lshl_add_u32 v53, v52, 10, s11")
    for r in range(4):
        I(f"s_mov_b32 s{36+r}, {r*65536}")
    I("s_waitcnt lgkmcnt(0)")
    stamp_init(1, 6, 124); stamp(0, 124, 86)
    srd(16, 6, 7, NCH * 1024, WS_SEG)
    SG = lambda r: 56 + r
    for r in range(4):
        I(f"buffer_load_dword v{SG(r)}, v53, s[16:19], s{36+r} offen")
    ntouch = 0
    if opt.tlb:
        srd(20, 6, 7, NCH * RECP, WS_RECP)
        I(f"v_lshlrev_b32 v44, 20, v{V_LANE}")
        I(f"buffer_load_dword v{V_PFD}, v44, s[20:23], 0 offen sc1")
        srd(96, 6, 7, NCH * RECH, WS_RECH)
        I(f"buffer_load_dword v{V_PFD}, v44, s[96:99], 0 offen sc1")
        ntouch = 2
        if opt.tlb >= 2:
            srd(24, 4, 5, TBL_BYTES)
            I(f"buffer_load_dword v{V_PFD}, v44, s[24:27], 0 offen")
            ntouch = 3
    I(f"s_mov_b32 s14, {RECH}")
    I("v_mul_u32_u24 v54, s14, v52")
    I(f"v_and_b32 v55, 15, v{V_LANE}")
    srd(20, 6, 7, NCH * RECP, WS_RECP)
    srd(96, 6, 7, NCH * RECH, WS_RECH)
    for r in range(4):
        I(f"s_mov_b32 s{40+r}, {r*64*RECP}")
    nb, nc = opt.pf2b, opt.pf2c
    def init_block():
        I("v_lshlrev_b32 v108, 4, v0")
        I(f"v_mov_b32 v112, {SAFE}")
        I("v_mov_b32 v113, v112")
        I("v_mov_b32 v114, v112")
        I("v_mov_b32 v115, v112")
        I(f"v_add_u32 v109, {L_LN}, v108")
        I("ds_write_b128 v109, v[112:115]")
        I("v_mov_b32 v116, 0")
        I("v_mov_b32 v117, 0")
        I("v_mov_b32 v118, 0")
        I("v_mov_b32 v119, 0")
        I(f"v_cmp_gt_u32 vcc, {LS_CAP//16}, v0")
        I("s_and_saveexec_b64 s[12:13], vcc")
        I(f"v_add_u32 v109, {L_LS}, v108")
        I("ds_write_b128 v109, v[112:115]")
        I("s_mov_b64 exec, s[12:13]")
        I("v_cmp_gt_u32 vcc, 32, v0")
        I("s_and_saveexec_b64 s[12:13], vcc")
        I("ds_write_b128 v108, v[116:119]")
        I("s_mov_b64 exec, s[12:13]")
        I(f"v_cmp_gt_u32 vcc, {(K2_ZERO_END-L_CNT)//16}, v0")
        I("s_and_saveexec_b64 s[12:13], vcc")
        I(f"ds_write_b128 v108, v[116:119] offset:{L_CNT}")
        I("s_mov_b64 exec, s[12:13]")
        srd(24, 4, 5, TBL_BYTES)
        srd(28, 6, 7, TBL_BYTES, WS_H1)
        if nb: pf_setup(48, nb, opt.pf1 * 32 * PFU)
        if nc: pf_setup(7, nc, (opt.pf1 + nb) * 32 * PFU)
        hop_consts()
    if not opt.lateinit: init_block()
    SM = lambda t, r: 46 + (t * 4 + r) * 2
    VOFF = lambda r: 60 + r
    VR = lambda t, r: 64 + (t * 4 + r) * 2
    VK = lambda t, r: 88 + t * 4 + r
    VP = lambda t, r: 100 + (t * 4 + r) * 2
    ONE = 40
    VOFP = lambda r: 44 + r
    for r in range(4):
        I(f"s_mov_b32 s{36+r}, {r*64*RECH}")
    I(f"s_waitcnt vmcnt({ntouch})")
    stamp(1, 124)
    I("s_mov_b64 s[70:71], 0")
    I("s_mov_b64 s[72:73], exec")
    for r in range(4):
        I(f"s_mov_b32 s{36+r}, {r*64*RECH}")
    IX = lambda r: 100 + r
    EN = lambda r: 104 + r
    for r in range(4):
        I(f"v_and_b32 v{IX(r)}, 0xffff, v{SG(r)}")
        I(f"v_lshrrev_b32 v{EN(r)}, 16, v{SG(r)}")
        I(f"v_add_u32 v{IX(r)}, v{IX(r)}, v55")
        I(f"v_lshl_add_u32 v{VOFF(r)}, v{IX(r)}, 1, v54")
        I(f"v_cmp_lt_u32 s[{SM(0,r)}:{SM(0,r)+1}], v{IX(r)}, v{EN(r)}")
        I(f"v_add_u32 v41, 16, v{IX(r)}")
        I(f"s_mov_b64 exec, s[{SM(0,r)}:{SM(0,r)+1}]")
        lab = uid("K2_SK")
        I(f"s_cbranch_execz {lab}")
        I(f"buffer_load_ushort v{VR(0,r)+1}, v{VOFF(r)}, s[96:99], s{36+r} offen" + FL[opt.ld2])
        L(lab)
        I("s_mov_b64 exec, s[72:73]")
        I(f"v_cmp_lt_u32 s[{SM(1,r)}:{SM(1,r)+1}], v41, v{EN(r)}")
    for r in range(4):
        lab = uid("K2_SK")
        I(f"s_mov_b64 exec, s[{SM(1,r)}:{SM(1,r)+1}]")
        I(f"s_cbranch_execz {lab}")
        I(f"buffer_load_ushort v{VR(1,r)+1}, v{VOFF(r)}, s[96:99], s{36+r} offen offset:32" + FL[opt.ld2])
        L(lab)
    I("s_mov_b64 exec, s[72:73]")
    for r in range(4):
        I(f"v_add_u32 v42, 32, v{IX(r)}")
        I(f"v_cmp_lt_u32 s[{SM(2,r)}:{SM(2,r)+1}], v42, v{EN(r)}")
        I(f"v_add_u32 v43, 48, v{IX(r)}")
        I(f"v_cmp_lt_u32 vcc, v43, v{EN(r)}")
        I(f"v_lshlrev_b32 v{VOFP(r)}, 1, v{VOFF(r)}")
        I("s_or_b64 s[70:71], s[70:71], vcc")
    I(f"s_or_b64 s[74:75], s[{SM(2,0)}:{SM(2,0)+1}], s[{SM(2,1)}:{SM(2,1)+1}]")
    I(f"s_or_b64 s[74:75], s[74:75], s[{SM(2,2)}:{SM(2,2)+1}]")
    I(f"s_or_b64 s[74:75], s[74:75], s[{SM(2,3)}:{SM(2,3)+1}]")
    I("s_cselect_b32 s83, 1, 0")
    I("s_cbranch_scc0 K2_NT3A")
    for r in range(4):
        lab = uid("K2_SK")
        I(f"s_mov_b64 exec, s[{SM(2,r)}:{SM(2,r)+1}]")
        I(f"s_cbranch_execz {lab}")
        I(f"buffer_load_ushort v{VR(2,r)+1}, v{VOFF(r)}, s[96:99], s{36+r} offen offset:64" + FL[opt.ld2])
        I(f"buffer_load_dword v{VR(2,r)}, v{VOFP(r)}, s[20:23], s{40+r} offen offset:128" + FL[opt.ld2])
        L(lab)
    I("s_mov_b64 exec, s[72:73]")
    L("K2_NT3A")
    I("s_mov_b64 exec, s[72:73]")
    if opt.lateinit: init_block()
    I(f"v_mov_b32 v{ONE}, 1")
    I(f"v_mov_b32 v11, 32")
    I("s_waitcnt lgkmcnt(0)")
    if opt.payafter:
        I("s_barrier")
    for t in range(2):
        for r in range(4):
            I(f"buffer_load_dword v{VR(t,r)}, v{VOFP(r)}, s[20:23], s{40+r} offen" + (f" offset:{64*t}" if t else "") + FL[opt.ld2])
    if not opt.payafter:
        I("s_barrier")
    I("s_waitcnt vmcnt(8)")
    stamp(2, 124)
    for t in range(3):
        if t == 2:
            I("s_cmp_eq_u32 s83, 0")
            I("s_cbranch_scc1 K2_NT3B")
        for r in range(4):
            lab = uid("K2_SC")
            I(f"s_mov_b64 exec, s[{SM(t,r)}:{SM(t,r)+1}]")
            I(f"s_cbranch_execz {lab}")
            I(f"ds_add_rtn_u32 v{VK(t,r)}, v{VR(t,r)+1}, v11 offset:{L_CNT}")
            L(lab)
    L("K2_NT3B")
    I("s_mov_b64 exec, s[72:73]")
    I("s_cmp_eq_u64 s[70:71], 0")
    I("s_cbranch_scc1 K2_NOH")
    I(f"v_mov_b32 v41, {L_HEAVY}")
    I(f"ds_write_b32 v41, v{ONE}")
    L("K2_NOH")
    I("s_waitcnt lgkmcnt(0)")
    I("s_barrier")
    stamp(3, 124)
    I("s_cmp_ge_u32 s10, 4")
    I("s_cbranch_scc1 K2_NOSORT0")
    C = lambda q: 100 + q
    KY, R2, SL, TT, ST, NI = 44, 45, 46, 47, 48, 49
    A, B, Cc, Dd = 116, 117, 118, 119
    I("s_lshl_b32 s12, s10, 6")
    I(f"v_add_u32 v{NI}, s12, v{V_LANE}")
    I(f"v_lshlrev_b32 v{A}, 4, v{NI}")
    I(f"ds_read_b128 v[{C(0)}:{C(3)}], v{A} offset:{L_CNT}")
    I("s_movk_i32 s12, 208")
    I(f"v_cmp_gt_u32 s[74:75], s12, v{NI}")
    I(f"v_lshlrev_b32 v{B}, 2, v{V_LANE}")
    I("s_movk_i32 s76, 0xc0")
    I("s_waitcnt lgkmcnt(0)")
    I(f"v_add_u32 v{TT}, v{C(0)}, v{C(1)}")
    I(f"v_add3_u32 v{TT}, v{TT}, v{C(2)}, v{C(3)}")
    I(f"v_lshrrev_b32 v{TT}, 5, v{TT}")
    I(f"v_min_u32 v{KY}, 63, v{TT}")
    I(f"v_lshlrev_b32 v{KY}, 2, v{KY}")
    I("s_mov_b64 exec, s[74:75]")
    I(f"ds_add_rtn_u32 v{R2}, v{KY}, v{ONE} offset:{L_H2}")
    I("s_mov_b64 exec, s[72:73]")
    I("s_waitcnt lgkmcnt(0)")
    I("s_barrier")
    I(f"ds_read_b32 v{Cc}, v{B} offset:{L_H2}")
    I("s_waitcnt lgkmcnt(0)")
    I(f"v_mov_b32 v{Dd}, v{Cc}")
    wave_scan(Dd)
    I(f"v_sub_u32 v{Dd}, v{Dd}, v{Cc}")
    I("s_nop 0")
    I(f"ds_bpermute_b32 v{SL}, v{KY}, v{Dd}")
    I("s_waitcnt lgkmcnt(0)")
    I(f"v_add_u32 v{R2}, v{R2}, v{SL}")
    I(f"v_cmp_le_u32 s[12:13], s76, v{R2}")
    I(f"v_lshrrev_b32 v{SL}, 4, v{R2}")
    I(f"v_lshrrev_b32 v{Cc}, 3, v{R2}")
    I(f"v_subrev_u32 v{Cc}, 12, v{Cc}")
    I(f"v_mov_b32 v{ST}, 2")
    I(f"v_cndmask_b32_e64 v{SL}, v{SL}, v{Cc}, s[12:13]")
    I(f"v_cndmask_b32_e64 v{ST}, v{ST}, 1, s[12:13]")
    I(f"v_lshlrev_b32 v{SL}, 2, v{SL}")
    I("s_mov_b64 exec, s[74:75]")
    I(f"ds_max_u32 v{SL}, v{TT} offset:{L_WM}")
    I(f"ds_write_b8 v{R2}, v{NI} offset:{L_ORD}")
    I("s_mov_b64 exec, s[72:73]")
    I(f"v_lshlrev_b32 v{KY}, 3, v{ST}")
    I(f"v_subrev_u32 v{KY}, 1, v{KY}")
    I(f"v_and_b32 v{KY}, v{KY}, v{R2}")
    I(f"v_add_u32 v{TT}, v{C(0)}, v{C(1)}")
    I(f"v_add_u32 v{R2}, v{TT}, v{C(2)}")
    I("s_waitcnt lgkmcnt(0)")
    I("s_barrier")
    I(f"ds_read_b32 v{Cc}, v{B} offset:{L_WM}")
    I(f"v_cmp_gt_u32 vcc, 12, v{V_LANE}")
    I("s_waitcnt lgkmcnt(0)")
    I(f"v_add_u32 v{Dd}, 1, v{Cc}")
    I(f"v_lshrrev_b32 v{Dd}, 1, v{Dd}")
    I(f"v_cndmask_b32 v{Cc}, v{Dd}, v{Cc}, vcc")
    I(f"v_lshlrev_b32 v{Dd}, 6, v{Cc}")
    I(f"v_mov_b32 v120, v{Dd}")
    wave_scan(120, 16)
    I("s_nop 1")
    I("v_readlane_b32 s76, v120, 11")
    I("v_readlane_b32 s15, v120, 15")
    I(f"v_sub_u32 v120, v120, v{Dd}")
    I(f"v_add_u32 v121, {L_LN}, v120")
    I(f"s_sub_u32 s14, {L_LS}, s76")
    I("v_add_u32 v120, s14, v120")
    I("v_cndmask_b32 v120, v120, v121, vcc")
    I("s_nop 0")
    I(f"ds_bpermute_b32 v{SL}, v{SL}, v120")
    I("s_cmp_lg_u32 s10, 0")
    I("s_cbranch_scc1 K2_NOHDR")
    I(f"v_cmp_gt_u32 vcc, 16, v{V_LANE}")
    I("s_and_saveexec_b64 s[12:13], vcc")
    I(f"ds_write_b32 v{B}, v120 offset:{L_WB}")
    I(f"ds_write_b32 v{B}, v{Cc} offset:{L_SU}")
    I("s_mov_b64 exec, s[12:13]")
    I("s_sub_u32 s15, s15, s76")
    I(f"s_cmp_gt_u32 s76, {LN_CAP}")
    I("s_cbranch_scc1 K2_CAPBAD")
    I(f"s_cmp_le_u32 s15, {LS_CAP}")
    I("s_cbranch_scc1 K2_NOHDR")
    L("K2_CAPBAD")
    I(f"v_mov_b32 v41, {L_HEAVY}")
    I(f"ds_write_b32 v41, v{ONE}")
    L("K2_NOHDR")
    I("s_waitcnt lgkmcnt(0)")
    I(f"v_lshl_add_u32 v{C(3)}, v{KY}, 2, v{SL}")
    I(f"v_mad_u32_u24 v{C(1)}, v{C(0)}, v{ST}, v{C(3)}")
    I(f"v_mov_b32 v{C(0)}, v{C(3)}")
    I(f"v_mad_u32_u24 v{C(2)}, v{TT}, v{ST}, v{C(0)}")
    I(f"v_mad_u32_u24 v{C(3)}, v{R2}, v{ST}, v{C(0)}")
    I("s_mov_b64 exec, s[74:75]")
    I(f"ds_write_b128 v{A}, v[{C(0)}:{C(3)}] offset:{L_NBQ}")
    I("s_mov_b64 exec, s[72:73]")
    I("s_waitcnt vmcnt(0) lgkmcnt(0)")
    I("s_branch K2_NOSORT")
    L("K2_NOSORT0")
    I("s_waitcnt vmcnt(0)")
    if nb:
        lab = uid("PFX")
        I(f"s_cmp_lt_u32 s10, {16 - nb}")
        I(f"s_cbranch_scc1 {lab}")
        I(f"s_mov_b32 s15, {(16 - nb) * PFU}")
        I(f"v_subrev_u32 v48, s15, v48")
        I(f"buffer_load_dword v{V_PFD}, v48, s[24:27], 0 offen")
        L(lab)
    if opt.tlb2:
        lab = uid("TLB")
        I("s_cmp_lg_u32 s10, 11")
        I(f"s_cbranch_scc1 {lab}")
        I(f"v_lshlrev_b32 v44, 21, v{V_LANE}")
        I(f"v_add_u32 v44, {opt.tlb2off}, v44")
        I(f"buffer_load_dword v{V_PFD}, v44, s[24:27], 0 offen")
        if opt.tlb2 >= 2:
            srd(88, 34, 35, TBL_BYTES)
            I(f"buffer_load_dword v{V_PFD}, v44, s[88:91], 0 offen")
        L(lab)
    I("s_barrier")
    I("s_barrier")
    L("K2_NOSORT")
    I("s_barrier")
    stamp(4, 124)
    I(f"v_mov_b32 v41, {L_HEAVY}")
    I("ds_read_b32 v41, v41")
    VP1 = lambda t, r: 100 + t * 4 + r
    for t in range(3):
        if t == 2:
            I("s_cmp_eq_u32 s83, 0")
            I("s_cbranch_scc1 K2_NT3C")
        for r in range(4):
            lab = uid("K2_SP")
            I(f"s_mov_b64 exec, s[{SM(t,r)}:{SM(t,r)+1}]")
            I(f"s_cbranch_execz {lab}")
            I(f"ds_read_b32 v{VP1(t,r)}, v{VR(t,r)+1} offset:{L_NBQ}")
            L(lab)
    L("K2_NT3C")
    I("s_mov_b64 exec, s[72:73]")
    I(f"s_lshl_b32 s45, s10, 2")
    I(f"v_mov_b32 v{V_A0}, s45")
    I(f"ds_read_b32 v{V_PTRI}, v{V_A0} offset:{L_SU}")
    I(f"ds_read_b32 v{V_PTRC}, v{V_A0} offset:{L_WB}")
    I(f"v_lshrrev_b32 v{V_NB}, 2, v{V_G4}")
    I(f"s_lshl_b32 s45, s10, 4")
    I(f"s_lshl_b32 s14, s10, 3")
    I(f"s_add_u32 s14, s14, 96")
    I(f"s_cmp_lt_u32 s10, 12")
    I(f"s_cselect_b32 s45, s45, s14")
    I(f"v_add_u32 v{V_NA}, s45, v{V_NB}")
    I(f"v_add_u32 v{V_NB}, 8, v{V_NA}")
    I(f"ds_read_u8 v{V_NA}, v{V_NA} offset:{L_ORD}")
    I(f"ds_read_u8 v{V_NB}, v{V_NB} offset:{L_ORD}")
    I("s_waitcnt lgkmcnt(0)")
    I("v_readfirstlane_b32 s77, v41")
    I(f"v_readfirstlane_b32 s{S_T}, v{V_PTRI}")
    I(f"v_add_u32 v{V_PTRC}, v{V_PTRC}, v{V_G4}")
    if opt.stamps: stamp(12, 124)
    I("s_cmp_lg_u32 s77, 0")
    I("s_cbranch_scc1 K2_NOPLACE")
    for t in range(3):
        if t == 2:
            I("s_cmp_eq_u32 s83, 0")
            I("s_cbranch_scc1 K2_NT3D")
        for r in range(4):
            lab = uid("K2_SW")
            I(f"s_mov_b64 exec, s[{SM(t,r)}:{SM(t,r)+1}]")
            I(f"s_cbranch_execz {lab}")
            I(f"v_mad_u32_u16 v{VP1(t,r)}, v{VK(t,r)}, v{VP1(t,r)}, v{VP1(t,r)} op_sel:[0,1,0,0]")
            I(f"ds_write_b32 v{VP1(t,r)}, v{VR(t,r)}")
            L(lab)
    L("K2_NT3D")
    I("s_mov_b64 exec, s[72:73]")
    L("K2_NOPLACE")
    I("s_waitcnt lgkmcnt(0)")
    if opt.stamps: stamp(13, 124)
    I("s_barrier")
    stamp(5, 124)
    if nc: pf_issue(7, V_PFD, 24, nc, 10)
    S_PH, S_SCR = 47, 83
    I(f"s_mov_b32 s{S_PH}, 0")
    I(f"s_cmp_lt_u32 s10, {NWORK}")
    I("s_cbranch_scc1 K2_KEEP")
    I("s_cmp_eq_u32 s77, 0")
    I("s_cbranch_scc1 K2_END")
    L("K2_KEEP")
    srd(16, 32, 33, 8192)
    I("v_lshlrev_b32 v110, 4, v0")
    I("buffer_load_dwordx4 v[112:115], v110, s[16:19], 0 offen")
    L("K2_PHASE")
    I("s_cmp_eq_u32 s77, 0")
    I("s_cbranch_scc1 K2_FAST")
    release_gate("v")
    heavy_path("K2H", 24, 6, 20, 96, 8, 10, K2_ACC, 16)
    heavy_read_acc(K2_ACC, 10)
    I("s_cmp_lt_u32 s10, 13")
    I("s_cbranch_scc1 K2_DONE")
    I(f"s_cmp_lg_u32 s{S_PH}, 0")
    I("s_cbranch_scc1 K2_END")
    I(f"v_mov_b32 v{V_NA}, 0xff")
    I(f"v_mov_b32 v{V_NB}, 0xff")
    I("s_branch K2_DONE")
    L("K2_FAST")
    I(f"s_cmp_eq_u32 s{S_PH}, 0")
    I("s_cbranch_scc1 K2_HOPIN0")
    hop_header(10, 41)
    I("s_branch K2_HOPIN")
    L("K2_HOPIN0")
    I("s_cmp_lt_u32 s10, 12")
    I("s_cbranch_scc1 K2_HOPIN")
    I(f"v_mov_b32 v{V_NB}, 0xff")
    L("K2_HOPIN")
    hop_wave("K2S", 24, 10, release_gate)
    split_fix("K2S", 10)
    L("K2_DONE")
    I(f"s_cmp_lg_u32 s{S_PH}, 0")
    I("s_cbranch_scc1 K2_GEMM")
    stamp(6, 124)
    I("s_lshl_b32 s45, s8, 7")
    for vn, va, t0, ad in ((V_NA, V_ACC, V_T, V_A0), (V_NB, V_ACC2, V_RC, V_A1)):
        for i in range(4):
            I(f"v_cvt_pk_bf16_f32 v{t0+i}, v{va+2*i}, v{va+2*i+1}")
        I(f"v_lshlrev_b32 v{ad}, 15, v{vn}")
        I(f"v_add3_u32 v{ad}, v{ad}, s45, v{V_F16}")
        I(f"buffer_store_dwordx4 v[{t0}:{t0+3}], v{ad}, s[28:31], 0 offen" + FL[opt.st2])
    E_SW, E_AB0, E_AB1, E_AW, E_BP, E_KB = 104, 105, 106, 107, 108, 109
    WF = 72
    I("v_cmp_gt_u32 vcc, 0x200, v0")
    I("s_and_saveexec_b64 s[72:73], vcc")
    I(f"ds_write_b128 v110, v[112:115] offset:{L_WL}")
    I("s_mov_b64 exec, s[72:73]")
    I(f"s_lshl_b32 s{S_SCR}, s10, 11")
    I(f"s_add_u32 s{S_SCR}, s{S_SCR}, {L_SCR}")
    I(f"v_lshlrev_b32 v60, 2, v{V_G4}")
    I(f"v_xor_b32 v61, v60, v{V_F16}")
    I(f"v_lshlrev_b32 v60, 3, v60")
    I(f"v_add3_u32 v{E_SW}, v60, v61, s{S_SCR}")
    I(f"v_and_b32 v60, 15, v{V_LANE}")
    I(f"v_lshrrev_b32 v{E_KB}, 4, v{V_LANE}")
    I(f"v_and_b32 v61, 7, v60")
    I(f"v_lshlrev_b32 v{E_BP}, 5, v61")
    I(f"v_xor_b32 v62, v{E_KB}, v61")
    I(f"v_lshlrev_b32 v62, 4, v62")
    I(f"v_lshlrev_b32 v63, 7, v60")
    I(f"v_add3_u32 v{E_AB0}, v63, s{S_SCR}, v62")
    I(f"v_xor_b32 v62, 64, v62")
    I(f"v_add3_u32 v{E_AB1}, v63, s{S_SCR}, v62")
    I(f"v_lshrrev_b32 v62, 2, v60")
    I(f"v_lshl_add_u32 v62, v{E_KB}, 3, v62")
    I(f"v_lshlrev_b32 v62, 7, v62")
    I(f"v_and_b32 v63, 3, v{V_LANE}")
    I(f"v_lshl_add_u32 v{E_AW}, v63, 4, v62")
    I(f"v_cmp_gt_u32 s[74:75], 8, v60")
    I(f"v_lshlrev_b32 v{E_KB}, 4, v{E_KB}")
    for i in range(8):
        I(f"v_mov_b32 v{V_ACC+i}, 0")
        I(f"v_mov_b32 v{V_ACC2+i}, 0")
    srd(24, 6, 7, TBL_BYTES, WS_H1)
    I("s_waitcnt vmcnt(0) lgkmcnt(0)")
    srd(28, 34, 35, TBL_BYTES)
    stamp(7, 124)
    if opt.own == 2:
        I(f"buffer_load_dword v{V_PFD}, v{V_A0}, s[24:27], 0 offen")
        I(f"buffer_load_dword v{V_PFD}, v{V_A1}, s[24:27], 0 offen")
    I("s_barrier")
    I("s_cmp_lg_u32 s10, 0")
    I("s_cbranch_scc1 K2_NOPOLL")
    grid_arrive()
    L("K2_NOPOLL")
    if opt.own == 1:
        I(f"buffer_load_dword v{V_PFD}, v{V_A0}, s[24:27], 0 offen")
        I(f"buffer_load_dword v{V_PFD}, v{V_A1}, s[24:27], 0 offen")
    for t in range(4):
        for s in range(2):
            for hh in range(2):
                off = L_WL + s * 4096 + hh * 512 + (t >> 1) * 64 + (t & 1) * 8
                d = WF + (t * 2 + s) * 4 + 2 * hh
                I(f"ds_read_b64_tr_b16 v[{d}:{d+1}], v{E_AW} offset:{off}")
    I(f"s_mov_b32 s{S_PH}, 1")
    I("s_branch K2_PHASE")
    L("K2_GEMM")
    stamp(9, 124)
    E_OUT = E_AW
    I(f"ds_bpermute_b32 v110, v{E_BP}, v{V_NA}")
    I(f"ds_bpermute_b32 v111, v{E_BP}, v{V_NB}")
    for va, t0, off in ((V_ACC, V_T, 0), (V_ACC2, V_RC, 1024)):
        for i in range(4):
            I(f"v_cvt_pk_bf16_f32 v{t0+i}, v{va+2*i}, v{va+2*i+1}")
        I(f"ds_write_b128 v{E_SW}, v[{t0}:{t0+3}] offset:{off}")
    B0, B1 = 40, 44
    I(f"ds_read_b128 v[{B0}:{B0+3}], v{E_AB0}")
    I(f"ds_read_b128 v[{B1}:{B1+3}], v{E_AB1}")
    DD = 56
    I("s_lshl_b32 s45, s8, 7")
    I("s_waitcnt lgkmcnt(1)")
    I(f"v_cndmask_b32_e64 v110, v111, v110, s[74:75]")
    for t in range(4):
        a = WF + (t * 2) * 4
        I(f"v_mfma_f32_16x16x32_bf16 v[{DD+4*t}:{DD+4*t+3}], v[{a}:{a+3}], v[{B0}:{B0+3}], 0")
    I(f"v_lshlrev_b32 v110, 15, v110")
    I("s_waitcnt lgkmcnt(0)")
    for t in range(4):
        a = WF + (t * 2 + 1) * 4
        I(f"v_mfma_f32_16x16x32_bf16 v[{DD+4*t}:{DD+4*t+3}], v[{a}:{a+3}], v[{B1}:{B1+3}], v[{DD+4*t}:{DD+4*t+3}]")
    I(f"v_add3_u32 v{E_OUT}, v110, s45, v{E_KB}")
    O = 48
    I("s_nop 4")
    for half in range(2):
        for k in range(2):
            t = half * 2 + k
            if t == 3: I("s_nop 1")
            I(f"v_cvt_pk_bf16_f32 v{O+half*4+2*k}, v{DD+4*t}, v{DD+4*t+1}")
            I(f"v_cvt_pk_bf16_f32 v{O+half*4+2*k+1}, v{DD+4*t+2}, v{DD+4*t+3}")
        I(f"buffer_store_dwordx4 v[{O+half*4}:{O+half*4+3}], v{E_OUT}, s[28:31], 0 offen" + (" offset:64" if half else "") + FL[opt.st3])
    stamp(10, 124)
    if opt.stamps:
        I("s_waitcnt vmcnt(0)")
        stamp(11, 124)
    L("K2_END")
    I("s_endpgm")
    hop_subs("K2S")
    L("GPOLL")
    grid_poll("G2")
    I(f"s_setpc_b64 s[{S_RET}:{S_RET+1}]")
    I("s_endpgm")
    L("K2_CODE_END")
    return name, 128, 102

HEADER = f"""; Kernarg layout for this problem (64 bytes, ptrs only, base s[0:1]):
; @launch kernel=sgc_part_kernel grid=(256,1,1) block=(K1BLK,1,1) lds={K1_LDS}
; @launch kernel=sgc_prop_kernel grid=(256,1,1) block=(1024,1,1) lds=K2LDS
.amdgcn_target "amdgcn-amd-amdhsa--gfx950"
.text"""

def main():
    for a in sys.argv[2:]:
        k, v = a.split("=")
        assert hasattr(opt, k), k
        setattr(opt, k, int(v))
    h = HEADER.replace("K2LDS", str(K2_LDS)).replace("K1BLK", ("896" if opt.cpf else "832") if opt.k1v == 1 else "448")
    emit(h)
    ks = [gen_k1(), gen_k2()]
    emit('.section .rodata,"a"')
    emit(".p2align 6")
    for (n, v, s) in ks:
        kernel_desc(n, v, s)
        emit(".p2align 6")
    open(sys.argv[1], "w").write("\n".join(out) + "\n")

main()
```

```python
import sys

N = 50000
E = 850000
CH = 3328
NCH = 256
RECP = CH * 4
RECH = CH * 2
WS_SEG = 0
WS_RECH = 0x40000
WS_RECP = 0x200400
WS_IMG = 0x6C0000
WS_H1 = 0xC00000
WS_SYNC = 0x1E0000
TBL_BYTES = N * 128
SAFE = 0x0000FFFF

class Opt:
    D = 4
    R = 8
    skew = 0
    pf1 = 0
    pf2b = 4
    pf2c = 0
    pf3 = 2
    pf3c = 0
    stamps = 0
    st1 = 1
    st2 = 1
    st2i = 1
    st3 = 1
    dbg = 0
    rst = 0
    nbar = 6
    pfs = 0
    pfsr = 2
    pfs3 = 0
    ld1 = 3
    ld2 = 0
    ld3 = 0
    skip3 = 0
    k1v = 1
    ldg = 1
    spin = 16000000
    brep = 16
    pfpos = 1
    poll2 = 0
    own = 0
    cpf = 0
    tlb2 = 0
    tlb1 = 0
    t1 = 0
    tlb2off = 1048576
    cpfall = 0
    cpfn = 2
    lateinit = 0
    payafter = 1
    tlb = 0
    bsh = 4
    slp = 6
    smalllds = 0
    k3w = 16

opt = Opt()
out = []
def emit(s=""): out.append(s)
def I(s): out.append("    " + s)
def L(s): out.append(s + ":")
_uid = [0]
def uid(p):
    _uid[0] += 1
    return f"{p}_{_uid[0]}"

FL = ['', ' sc1', ' sc0 sc1', ' nt', ' sc0']
def srd(s, lo, hi, size, add=0):
    if add:
        I(f"s_add_u32 s{s}, s{lo}, {add}")
        I(f"s_addc_u32 s{s+1}, s{hi}, 0")
        I(f"s_and_b32 s{s+1}, s{s+1}, 0xffff")
    else:
        I(f"s_mov_b32 s{s}, s{lo}")
        I(f"s_and_b32 s{s+1}, s{hi}, 0xffff")
    I(f"s_mov_b32 s{s+2}, {size}")
    I(f"s_mov_b32 s{s+3}, 0x20000")

def wave_scan(v, n=64):
    for sh in (1, 2, 4, 8):
        I("s_nop 1")
        I(f"v_add_u32_dpp v{v}, v{v}, v{v} row_shr:{sh} row_mask:0xf bank_mask:0xf")
    if n > 16:
        I("s_nop 1")
        I(f"v_add_u32_dpp v{v}, v{v}, v{v} row_bcast:15 row_mask:0xa bank_mask:0xf")
        I("s_nop 1")
        I(f"v_add_u32_dpp v{v}, v{v}, v{v} row_bcast:31 row_mask:0xc bank_mask:0xf")

STAMP_OFF = 0x2000000
def stamp_init(kidx, ws_lo, vbase):
    if not opt.stamps: return
    I(f"v_lshrrev_b32 v{vbase}, 6, v0")
    I(f"s_lshl_b32 s92, s2, 4")
    I(f"s_add_u32 s92, s92, {kidx*256*16}")
    I(f"v_add_u32 v{vbase}, s92, v{vbase}")
    I(f"v_lshlrev_b32 v{vbase}, 7, v{vbase}")
    I(f"v_add_u32 v{vbase}, {STAMP_OFF}, v{vbase}")
    I(f"s_mov_b32 s94, s{ws_lo}")
    I(f"s_mov_b32 s95, s{ws_lo+1}")
def stamp(j, vbase, pre=None):
    if not opt.stamps: return
    if pre is None:
        I("s_memrealtime s[90:91]")
        I("s_waitcnt lgkmcnt(0)")
    else:
        I(f"s_mov_b32 s90, s{pre}")
        I(f"s_mov_b32 s91, s{pre+1}")
    I("s_mov_b64 s[88:89], exec")
    I("s_mov_b64 exec, 1")
    I(f"v_mov_b32 v{vbase+2}, s90")
    I(f"v_mov_b32 v{vbase+3}, s91")
    I(f"global_store_dwordx2 v{vbase}, v[{vbase+2}:{vbase+3}], s[94:95] offset:{8*j}")
    I("s_mov_b64 exec, s[88:89]")

def kernel_begin(name):
    emit(f".globl {name}")
    emit(".p2align 8")
    emit(f".type {name},@function")
    L(name)

def kernel_desc(name, vgpr, sgpr):
    acc = (vgpr + 3) // 4 * 4
    emit(f".amdhsa_kernel {name}")
    emit(f"  .amdhsa_next_free_vgpr {vgpr}")
    emit(f"  .amdhsa_next_free_sgpr {sgpr}")
    emit(f"  .amdhsa_accum_offset {acc}")
    emit("  .amdhsa_group_segment_fixed_size 0")
    emit("  .amdhsa_kernarg_size 64")
    emit("  .amdhsa_user_sgpr_count 2")
    emit("  .amdhsa_user_sgpr_kernarg_segment_ptr 1")
    emit("  .amdhsa_system_sgpr_workgroup_id_x 1")
    emit(".end_amdhsa_kernel")

PFU = 8192
def pf_setup(vaddr, n, base_bytes):
    I("s_lshr_b32 s15, s2, 3")
    I(f"s_mul_i32 s15, s15, {n*PFU}")
    if base_bytes: I(f"s_add_u32 s15, s15, {base_bytes}")
    I(f"v_lshlrev_b32 v{vaddr}, 7, v0")
    I(f"v_add_u32 v{vaddr}, s15, v{vaddr}")
def pf_issue(vaddr, vdst, tbl, n, sW, nw=16):
    rounds = (n + nw - 1) // nw
    for i in range(rounds):
        cnt = min(nw, n - nw * i)
        lab = uid("PF")
        if cnt < nw:
            I(f"s_cmp_ge_u32 s{sW}, {cnt}")
            I(f"s_cbranch_scc1 {lab}")
        I(f"s_mov_b32 s15, {i*nw*PFU}")
        I(f"buffer_load_dword v{vdst}, v{vaddr}, s[{tbl}:{tbl+3}], s15 offen")
        L(lab)

def pf_stream(tbl, sW, nunits, base_bytes, per_round, vaddr, nrounds_max):
    I("s_lshr_b32 s15, s2, 3")
    I(f"s_mul_i32 s15, s15, {nunits*PFU}")
    I(f"s_add_u32 s15, s15, {base_bytes}")
    I(f"s_sub_u32 s14, s{sW}, {NWORK}")
    I(f"s_mul_i32 s14, s14, {PFU}")
    I("s_add_u32 s15, s15, s14")
    I(f"v_lshlrev_b32 v{vaddr}, 7, v{V_LANE}")
    I(f"v_add_u32 v{vaddr}, s15, v{vaddr}")
    k = 0
    nsteps = (nunits + 1) // 2
    rnd = 0
    while k < nsteps:
        for _ in range(per_round):
            if k >= nsteps: break
            I(f"s_mov_b32 s15, {k*2*PFU}")
            I(f"buffer_load_dword v{V_PFD}, v{vaddr}, s[{tbl}:{tbl+3}], s15 offen")
            k += 1
        rnd += 1
        if k < nsteps and rnd <= nrounds_max:
            I("s_barrier")

K1_HIST = 0
K1_PRE = 1024
K1_STP = 2048
K1_STH = K1_STP + RECP
K1_LDS = K1_STH + RECH

def gen_k1():
    name = "sgc_part_kernel"
    V = opt.k1v
    NT = 832 // V
    kernel_begin(name)
    I("s_cmp_ge_u32 s2, 256")
    I("s_cbranch_scc1 K1_END")
    if opt.cpf:
        I("v_readfirstlane_b32 s15, v0")
        I("s_lshr_b32 s15, s15, 6")
        I("s_cmp_lt_u32 s15, 13")
        I("s_cbranch_scc1 K1_MAIN")
        if opt.tlb1:
            I("s_load_dwordx2 s[10:11], s[0:1], 56")
            I("v_and_b32 v92, 63, v0")
            I("v_lshlrev_b32 v92, 21, v92")
            I("v_add_u32 v92, 0x1f0000, v92")
            I("v_and_b32 v93, 63, v0")
            I("v_cmp_eq_u32 vcc, 1, v93")
            I("v_mov_b32 v93, 0x200000")
            I("s_nop 0")
            I("v_cndmask_b32 v92, v92, v93, vcc")
            I("s_mov_b64 s[12:13], exec")
            I("s_mov_b64 exec, 7")
            I("s_waitcnt lgkmcnt(0)")
            I("global_load_dword v93, v92, s[10:11]")
            I("s_mov_b64 exec, s[12:13]")
        I(f"s_cmp_ge_u32 s2, {opt.cpf}")
        I("s_cbranch_scc1 K1_END")
        I("s_getpc_b64 s[48:49]")
        L("CPF_PC")
        if opt.cpfall:
            I("s_sub_u32 s48, s48, CPF_PC - sgc_part_kernel")
            I("s_subb_u32 s49, s49, 0")
            I("v_and_b32 v90, 63, v0")
            I("v_lshlrev_b32 v90, 7, v90")
            I("v_cmp_gt_u32 vcc, K2_CODE_END - sgc_part_kernel, v90")
            I("s_and_saveexec_b64 s[12:13], vcc")
            I("global_load_dword v91, v90, s[48:49]")
            I("v_add_u32 v90, 8192, v90")
            I("v_cmp_gt_u32 vcc, K2_CODE_END - sgc_part_kernel, v90")
        else:
            I("s_add_u32 s48, s48, sgc_prop_kernel - CPF_PC")
            I("s_addc_u32 s49, s49, 0")
            I("v_and_b32 v90, 63, v0")
            I("v_lshlrev_b32 v90, 7, v90")
            I("v_cmp_gt_u32 vcc, K2_CODE_END - sgc_prop_kernel, v90")
        I("s_and_saveexec_b64 s[12:13], vcc")
        I("s_cbranch_execz K1_END")
        I("global_load_dword v91, v90, s[48:49]")
        I("s_endpgm")
        L("K1_MAIN")
    if opt.stamps: I("s_memrealtime s[86:87]")
    I("s_load_dwordx4 s[4:7], s[0:1], 8")
    I("s_load_dwordx2 s[8:9], s[0:1], 24")
    I("s_load_dwordx2 s[10:11], s[0:1], 56")
    I(f"s_mul_i32 s3, s2, {CH}")
    I("v_lshl_add_u32 v1, v0, 2, s3")
    I("v_lshlrev_b32 v2, 2, v1")
    I("v_lshlrev_b32 v3, 1, v1")
    I("v_mov_b32 v4, 0")
    I("v_lshlrev_b32 v5, 2, v0")
    I("v_cmp_gt_u32 vcc, 0x100, v0")
    I("s_and_saveexec_b64 s[12:13], vcc")
    I(f"ds_write_b32 v5, v4 offset:{K1_HIST}")
    I("s_mov_b64 exec, s[12:13]")
    I("v_readfirstlane_b32 s15, v0")
    I("s_waitcnt lgkmcnt(0)")
    stamp_init(0, 10, 124); stamp(0, 124, 86)
    if opt.t1:
        I("v_and_b32 v92, 63, v0")
        I("v_mov_b32 v94, s6")
        I("v_mov_b32 v95, s7")
        for ln, lo, hi in ((1, 4, 5), (2, 8, 9), (3, 10, 11), (4, 10, 11), (5, 10, 11)):
            I(f"v_cmp_eq_u32 vcc, {ln}, v92")
            I(f"v_mov_b32 v96, s{lo}")
            I(f"v_mov_b32 v97, s{hi}")
            I(f"v_cndmask_b32 v94, v94, v96, vcc")
            I(f"v_cndmask_b32 v95, v95, v97, vcc")
        I(f"s_lshl_b32 s14, s3, 2")
        I("v_mov_b32 v96, s14")
        I(f"s_lshl_b32 s14, s3, 1")
        for ln, val in ((2, "s14"), (3, "0x1f0000"), (4, "0x200000"), (5, "0x5f0000")):
            I(f"v_cmp_eq_u32 vcc, {ln}, v92")
            I(f"v_mov_b32 v97x, {val}".replace("v97x", "v93"))
            I("s_nop 0")
            I(f"v_cndmask_b32 v96, v96, v93, vcc")
        I("v_add_co_u32 v94, vcc, v94, v96")
        I("v_addc_co_u32 v95, vcc, 0, v95, vcc")
        I("s_mov_b64 s[12:13], exec")
        I("s_mov_b64 exec, 63")
        I("global_load_dword v93, v[94:95], off")
        I("s_mov_b64 exec, s[12:13]")
    srd(16, 6, 7, E * 4)
    D = lambda g, i: 8 + 16 * g + i
    S = lambda g, i: 12 + 16 * g + i
    NR = lambda g, i: 16 + 16 * g + i
    HA = lambda g, i: 40 + 4 * g + i
    RK = lambda g, i: 48 + 4 * g + i
    PL = lambda g, i: 56 + 4 * g + i
    HI = lambda g, i: 64 + 4 * g + i
    for g in range(V):
        I(f"s_mov_b32 s{40+g}, {g*NT*16}")
        I(f"buffer_load_dwordx4 v[{D(g,0)}:{D(g,3)}], v2, s[16:19], s{40+g} offen" + FL[opt.ld1])
    srd(20, 4, 5, E * 4)
    srd(24, 8, 9, E * 2)
    for g in range(V):
        I(f"s_mov_b32 s{42+g}, {g*NT*8}")
        I(f"buffer_load_dwordx4 v[{S(g,0)}:{S(g,3)}], v2, s[20:23], s{40+g} offen" + FL[opt.ld1])
        I(f"buffer_load_dwordx2 v[{NR(g,0)}:{NR(g,1)}], v3, s[24:27], s{42+g} offen" + FL[opt.ld1])
    I("s_lshr_b32 s46, s15, 6")
    I("s_or_b32 s14, s2, s46")
    I("s_cmp_lg_u32 s14, 0")
    I("s_cbranch_scc1 K1_NOZ")
    I("v_lshlrev_b32 v7, 7, v0")
    I(f"v_add_u32 v7, {WS_SYNC}, v7")
    I("global_store_dword v7, v4, s[10:11] sc1")
    I("s_waitcnt vmcnt(0)")
    L("K1_NOZ")
    npf = 0
    if opt.pf1:
        I("s_load_dwordx2 s[48:49], s[0:1], 0")
        I("s_lshr_b32 s15, s2, 3")
        I(f"s_mul_i32 s15, s15, {opt.pf1*PFU}")
        I(f"s_cmp_lt_u32 s46, {opt.pf1}")
        I("s_cselect_b32 s15, s15, 0x40000000")
        I("v_lshlrev_b32 v90, 7, v0")
        I("v_add_u32 v90, s15, v90")
        I("s_waitcnt lgkmcnt(0)")
        srd(64, 48, 49, TBL_BYTES)
        I("buffer_load_dword v91, v90, s[64:67], 0 offen")
        npf = 1
    srd(28, 10, 11, NCH * 1024, WS_SEG)
    srd(32, 10, 11, NCH * RECP, WS_RECP)
    srd(52, 10, 11, NCH * RECH, WS_RECH)
    I("s_mov_b32 s36, 0xffff0000")
    I("s_mov_b32 s37, 21474")
    I("s_mov_b64 s[12:13], exec")
    I(f"v_cmp_gt_u32 s[56:57], {NT if NT <= 64 else 's14'}, v0") if False else None
    I(f"s_mov_b32 s14, {NT}")
    I("v_cmp_gt_u32 s[56:57], s14, v0")
    for g in range(V):
        I(f"s_mov_b32 s14, {E - g*NT*4}")
        I(f"v_cmp_gt_u32 s[{58+2*g}:{59+2*g}], s14, v1")
        I(f"s_and_b64 s[{58+2*g}:{59+2*g}], s[{58+2*g}:{59+2*g}], s[56:57]")
    I("v_mov_b32 v6, 1")
    I("s_barrier")
    for g in range(V):
        I(f"s_waitcnt vmcnt({(V - 1 - g) + 2*V + npf})")
        if g == 0: stamp(1, 124)
        I(f"s_mov_b64 exec, s[{58+2*g}:{59+2*g}]")
        for i in range(4):
            I(f"v_and_b32 v{HA(g,i)}, 0xff, v{D(g,i)}")
            I(f"v_lshlrev_b32 v{HA(g,i)}, 2, v{HA(g,i)}")
        for i in range(4):
            I(f"ds_add_rtn_u32 v{RK(g,i)}, v{HA(g,i)}, v6 offset:{K1_HIST}")
    I("s_mov_b64 exec, s[12:13]")
    for g in range(V):
        I(f"s_waitcnt vmcnt({2*(V-1-g) + npf})")
        I(f"v_lshl_or_b32 v{PL(g,0)}, v{NR(g,0)}, 16, v{S(g,0)}")
        I(f"v_and_or_b32 v{PL(g,1)}, v{NR(g,0)}, s36, v{S(g,1)}")
        I(f"v_lshl_or_b32 v{PL(g,2)}, v{NR(g,1)}, 16, v{S(g,2)}")
        I(f"v_and_or_b32 v{PL(g,3)}, v{NR(g,1)}, s36, v{S(g,3)}")
        for i in range(4):
            I(f"v_mul_u32_u24 v7, s37, v{S(g,i)}")
            I("v_lshrrev_b32 v7, 26, v7")
            I("v_and_b32 v7, 12, v7")
            I(f"v_lshrrev_b32 v{HI(g,i)}, 8, v{D(g,i)}")
            I(f"v_lshl_or_b32 v{HI(g,i)}, v{HI(g,i)}, 4, v7")
    I("s_waitcnt lgkmcnt(0)")
    I("s_barrier")
    I("s_cmp_lg_u32 s46, 0")
    I("s_cbranch_scc1 K1_NOSCAN")
    I("v_lshlrev_b32 v5, 4, v0")
    I(f"ds_read_b128 v[72:75], v5 offset:{K1_HIST}")
    I("s_waitcnt lgkmcnt(0)")
    I("v_add_u32 v76, v72, v73")
    I("v_add_u32 v77, v76, v74")
    I("v_add_u32 v78, v77, v75")
    I("v_mov_b32 v79, v78")
    wave_scan(79)
    I("v_sub_u32 v80, v79, v78")
    I("v_add_u32 v81, v80, v72")
    I("v_add_u32 v82, v80, v76")
    I("v_add_u32 v83, v80, v77")
    I(f"ds_write_b128 v5, v[80:83] offset:{K1_PRE}")
    I("v_lshl_or_b32 v72, v81, 16, v80")
    I("v_lshl_or_b32 v73, v82, 16, v81")
    I("v_lshl_or_b32 v74, v83, 16, v82")
    I("v_lshl_or_b32 v75, v79, 16, v83")
    I("s_lshl_b32 s37, s2, 10")
    I("buffer_store_dwordx4 v[72:75], v5, s[28:31], s37 offen" + FL[opt.st1])
    I("s_waitcnt lgkmcnt(0)")
    L("K1_NOSCAN")
    I("s_barrier")
    for g in range(V):
        I(f"s_mov_b64 exec, s[{58+2*g}:{59+2*g}]")
        for i in range(4):
            I(f"ds_read_b32 v{HA(g,i)}, v{HA(g,i)} offset:{K1_PRE}")
    for g in range(V):
        I(f"s_mov_b64 exec, s[{58+2*g}:{59+2*g}]")
        I(f"s_waitcnt lgkmcnt({4*(V-1-g) if g < V-1 else 0})" if False else "s_waitcnt lgkmcnt(0)")
        for i in range(4):
            I(f"v_add_u32 v{HA(g,i)}, v{HA(g,i)}, v{RK(g,i)}")
            I(f"v_lshlrev_b32 v{RK(g,i)}, 2, v{HA(g,i)}")
            I(f"v_lshlrev_b32 v{HA(g,i)}, 1, v{HA(g,i)}")
            I(f"ds_write_b32 v{RK(g,i)}, v{PL(g,i)} offset:{K1_STP}")
            I(f"ds_write_b16 v{HA(g,i)}, v{HI(g,i)} offset:{K1_STH}")
    I("s_mov_b64 exec, s[12:13]")
    I("s_waitcnt lgkmcnt(0)")
    I("s_barrier")
    I("v_lshlrev_b32 v5, 4, v0")
    I(f"s_mul_i32 s37, s2, {RECP}")
    I(f"s_mul_i32 s42, s2, {RECH}")
    I("s_mov_b64 exec, s[56:57]")
    for g in range(V):
        I(f"ds_read_b128 v[{8+4*g}:{11+4*g}], v5 offset:{K1_STP + g*NT*16}")
    if V == 2:
        I(f"ds_read_b128 v[16:19], v5 offset:{K1_STH}")
    else:
        I(f"s_mov_b32 s14, {RECH//16}")
        I("v_cmp_gt_u32 vcc, s14, v0")
        I("s_mov_b64 exec, vcc")
        I(f"ds_read_b128 v[16:19], v5 offset:{K1_STH}")
        I("s_mov_b64 exec, s[56:57]")
    I("s_cbranch_execz K1_FIN")
    for g in range(V):
        I(f"s_waitcnt lgkmcnt({V - g})")
        if g: I(f"s_add_u32 s37, s37, {NT*16}")
        I(f"buffer_store_dwordx4 v[{8+4*g}:{11+4*g}], v5, s[32:35], s37 offen" + FL[opt.st1])
    I("s_waitcnt lgkmcnt(0)")
    if V == 1:
        I("s_mov_b64 exec, vcc")
        I("s_cbranch_execz K1_FIN")
    I("buffer_store_dwordx4 v[16:19], v5, s[52:55], s42 offen" + FL[opt.st1])
    L("K1_FIN")
    I("s_mov_b64 exec, s[12:13]")
    stamp(2, 124)
    if opt.stamps:
        I("s_waitcnt vmcnt(0)")
        stamp(3, 124)
    L("K1_END")
    I("s_endpgm")
    return name, (128 if opt.stamps else 104), (102 if opt.stamps else 72)

L_SU = 0x000
L_WB = 0x040
L_ORD = 0x120
L_HEAVY = 0x1F0
L_LN = 0x20000
LN_CAP = 0x4000
L_LS = 0x10000
LS_CAP = 0x1000
L_CNT = 0x4000
L_H2 = 0x5000
L_WM = 0x5200
K2_ZERO_END = 0x5400
L_NBQ = 0x5400
L_WL = 0x6400
L_SCR = 0x8400
K2_ACC = 0xF400
ACC_BYTES = 208 * 256
K2_LDS = L_LN + LN_CAP
assert K2_ACC + ACC_BYTES <= L_LN
NWORK = 14

V_LANE = 1
V_G4 = 2
V_F16 = 3
V_SELA = 4
V_SELB = 5
V_PTRC = 6
V_PTRI = 7
V_NA = 8
V_NB = 9
V_A0 = 10
V_A1 = 11
V_ACC = 12
V_ACC2 = 20
V_T = 28
V_RC = 32
V_RI = 36
V_DATA = 40
S_T, S_R, S_PACE, S_DR, S_REM = 78, 79, 80, 81, 82
S_NB = 76
S_RET = 84
S_128 = 44
V_PFD = 125

def hop_consts():
    I(f"v_lshrrev_b32 v{V_G4}, 3, v{V_LANE}")
    I(f"v_lshlrev_b32 v{V_G4}, 2, v{V_G4}")
    I(f"v_and_b32 v{V_F16}, 7, v{V_LANE}")
    I(f"v_lshlrev_b32 v{V_F16}, 4, v{V_F16}")
    I(f"v_and_b32 v{V_PTRC}, 3, v{V_LANE}")
    I(f"v_mov_b32 v{V_SELA}, 0x0c0c0c0c")
    I(f"v_mov_b32 v{V_SELB}, 0x0c0c0c0c")
    I(f"v_mov_b32 v{V_A0}, 0x0c0c0302")
    I(f"v_mov_b32 v{V_A1}, 0x03020c0c")
    for val, sel, lit in ((0, V_SELA, V_A0), (1, V_SELA, V_A1), (2, V_SELB, V_A0), (3, V_SELB, V_A1)):
        I(f"v_cmp_eq_u32 vcc, {val}, v{V_PTRC}")
        I("s_nop 1")
        I(f"v_cndmask_b32 v{sel}, v{sel}, v{lit}, vcc")
    I(f"s_mov_b32 s{S_128}, 128")
    for i in range(8):
        I(f"v_mov_b32 v{V_ACC+i}, 0")
        I(f"v_mov_b32 v{V_ACC2+i}, 0")

def rd2(dst, ptr, unit):
    o = unit * 16
    assert o + 8 <= 255
    I(f"ds_read2_b32 v[{dst}:{dst+1}], v{ptr} offset0:{o} offset1:{o+8}")

def perms(p):
    rc = V_RC + 2 * p
    I(f"v_perm_b32 v{V_T+0}, v{rc}, v{rc}, v{V_SELA}")
    I(f"v_perm_b32 v{V_T+1}, v{rc}, v{rc}, v{V_SELB}")
    I(f"v_perm_b32 v{V_T+2}, v{rc+1}, v{rc+1}, v{V_SELA}")
    I(f"v_perm_b32 v{V_T+3}, v{rc+1}, v{rc+1}, v{V_SELB}")

def mfmas(r):
    d = V_DATA + 8 * r
    a, b = V_ACC, V_ACC2
    I(f"v_mfma_f32_4x4x4_16b_bf16 v[{a}:{a+3}], v[{V_T}:{V_T+1}], v[{d}:{d+1}], v[{a}:{a+3}]")
    I(f"v_mfma_f32_4x4x4_16b_bf16 v[{a+4}:{a+7}], v[{V_T}:{V_T+1}], v[{d+2}:{d+3}], v[{a+4}:{a+7}]")
    I(f"v_mfma_f32_4x4x4_16b_bf16 v[{b}:{b+3}], v[{V_T+2}:{V_T+3}], v[{d+4}:{d+5}], v[{b}:{b+3}]")
    I(f"v_mfma_f32_4x4x4_16b_bf16 v[{b+4}:{b+7}], v[{V_T+2}:{V_T+3}], v[{d+6}:{d+7}], v[{b+4}:{b+7}]")

def pace_check(pfx):
    if opt.R <= 1: return
    lab = uid(pfx + "_PC")
    I(f"s_add_u32 s{S_PACE}, s{S_PACE}, s{S_R}")
    I(f"s_cmp_lt_u32 s{S_PACE}, s{S_T}")
    I(f"s_cbranch_scc1 {lab}")
    I(f"s_call_b64 s[{S_RET}:{S_RET+1}], {pfx}_BS")
    L(lab)

def hop_subs(pfx):
    if opt.R <= 1: return
    L(f"{pfx}_BF")
    I(f"s_cmp_eq_u32 s{S_NB}, 0")
    I(f"s_cbranch_scc1 {pfx}_BR")
    I(f"s_sub_u32 s{S_NB}, s{S_NB}, 1")
    I("s_barrier")
    I(f"s_branch {pfx}_BF")
    L(f"{pfx}_BS")
    I(f"s_cmp_eq_u32 s{S_NB}, 0")
    I(f"s_cbranch_scc1 {pfx}_BR")
    I(f"s_sub_u32 s{S_NB}, s{S_NB}, 1")
    I("s_barrier")
    if opt.rst:
        I("s_memrealtime s[98:99]")
        I("s_waitcnt lgkmcnt(0)")
        for k in range(7, 0, -1): I(f"s_mov_b32 s{60+k}, s{59+k}")
        I("s_mov_b32 s60, s98")
    I(f"s_sub_u32 s{S_PACE}, s{S_PACE}, s{S_T}")
    I(f"s_cmp_ge_u32 s{S_PACE}, s{S_T}")
    I(f"s_cbranch_scc1 {pfx}_BS")
    L(f"{pfx}_BR")
    I(f"s_setpc_b64 s[{S_RET}:{S_RET+1}]")

def hop_wave(pfx, tbl, sW, gate=None):
    D = opt.D
    I(f"s_min_u32 s{S_T}, s{S_T}, 0x100")
    I(f"s_mov_b32 s{S_DR}, s{S_T}")
    I(f"s_mov_b32 s{S_PACE}, 0")
    I(f"s_mov_b32 s{S_R}, {opt.R}")
    I(f"s_mov_b32 s{S_NB}, {min(opt.nbar, opt.R - 1)}")
    if opt.skew:
        I(f"s_cmp_lt_u32 s{sW}, 8")
        I(f"s_cselect_b32 s{S_R}, {opt.R - opt.skew}, s{S_R}")
        I(f"s_cmp_lt_u32 s{sW}, 4")
        I(f"s_cselect_b32 s{S_R}, {opt.R - 2*opt.skew}, s{S_R}")
    for r in range(D):
        rd2(V_DATA + 8 * r, V_PTRC, r)
    rd2(V_RC, V_PTRC, 0)
    I(f"v_add_u32 v{V_PTRI}, {D*64}, v{V_PTRC}")
    I("s_waitcnt lgkmcnt(0)")
    rd2(V_RI, V_PTRI, 0)
    if gate: gate("h")
    I(f"s_cmp_eq_u32 s{S_T}, 0")
    I(f"s_cbranch_scc1 {pfx}_FIN")
    for r in range(D):
        d = V_DATA + 8 * r
        if r > 0:
            I(f"s_cmp_le_u32 s{S_T}, {r}")
            I(f"s_cbranch_scc1 {pfx}_DR0")
            pace_check(pfx)
        I(f"v_mad_u32_u16 v{V_A0}, v{d}, s{S_128}, v{V_F16}")
        I(f"v_mad_u32_u16 v{V_A1}, v{d+1}, s{S_128}, v{V_F16}")
        I(f"buffer_load_dwordx4 v[{d}:{d+3}], v{V_A0}, s[{tbl}:{tbl+3}], 0 offen" + FL[opt.ldg])
        I(f"buffer_load_dwordx4 v[{d+4}:{d+7}], v{V_A1}, s[{tbl}:{tbl+3}], 0 offen" + FL[opt.ldg])
    I(f"s_sub_u32 s{S_REM}, s{S_T}, {D}")
    I(f"s_mov_b32 s{S_DR}, {D}")
    I(f"s_cmp_eq_u32 s{S_REM}, 0")
    I(f"s_cbranch_scc1 {pfx}_DR0")
    L(f"{pfx}_MAIN")
    for r in range(D):
        p = r & 1
        d = V_DATA + 8 * r
        I("s_waitcnt lgkmcnt(0)")
        rd2(V_RC + 2 * (p ^ 1), V_PTRC, r + 1)
        rd2(V_RI + 2 * (p ^ 1), V_PTRI, r + 1)
        perms(p)
        ri = V_RI + 2 * p
        I(f"v_mad_u32_u16 v{V_A0}, v{ri}, s{S_128}, v{V_F16}")
        I(f"v_mad_u32_u16 v{V_A1}, v{ri+1}, s{S_128}, v{V_F16}")
        I(f"s_waitcnt vmcnt({2*(D-1)})")
        mfmas(r)
        pace_check(pfx)
        I(f"buffer_load_dwordx4 v[{d}:{d+3}], v{V_A0}, s[{tbl}:{tbl+3}], 0 offen" + FL[opt.ldg])
        I(f"buffer_load_dwordx4 v[{d+4}:{d+7}], v{V_A1}, s[{tbl}:{tbl+3}], 0 offen" + FL[opt.ldg])
        if r == D - 1:
            I(f"v_add_u32 v{V_PTRC}, {D*64}, v{V_PTRC}")
            I(f"v_add_u32 v{V_PTRI}, {D*64}, v{V_PTRI}")
        I(f"s_sub_u32 s{S_REM}, s{S_REM}, 1")
        I(f"s_cmp_eq_u32 s{S_REM}, 0")
        if r == D - 1:
            I(f"s_cbranch_scc0 {pfx}_MAIN")
        else:
            I(f"s_cbranch_scc1 {pfx}_DR{r+1}")
    for q in range(2 * D - 1):
        r = q % D
        p = q & 1
        if q < D:
            L(f"{pfx}_DR{q}")
            if opt.R > 1:
                lab = uid(pfx + "_DX")
                I(f"s_cmp_eq_u32 s{S_NB}, 0")
                I(f"s_cbranch_scc1 {lab}")
                I(f"s_call_b64 s[{S_RET}:{S_RET+1}], {pfx}_BF")
                L(lab)
        I("s_waitcnt lgkmcnt(0)")
        if q + 1 <= 2 * D - 2:
            rd2(V_RC + 2 * (p ^ 1), V_PTRC, q + 1)
        perms(p)
        I("s_waitcnt vmcnt(0)")
        I(f"s_sub_u32 s{S_DR}, s{S_DR}, 1")
        mfmas(r)
        if q < 2 * D - 2:
            I(f"s_cmp_eq_u32 s{S_DR}, 0")
            I(f"s_cbranch_scc1 {pfx}_FIN")
    L(f"{pfx}_FIN")
    if opt.R > 1:
        lab = uid(pfx + "_DY")
        I(f"s_cmp_eq_u32 s{S_NB}, 0")
        I(f"s_cbranch_scc1 {lab}")
        I(f"s_call_b64 s[{S_RET}:{S_RET+1}], {pfx}_BF")
        L(lab)
    if opt.rst and opt.stamps:
        for k in range(7):
            I(f"s_mov_b32 s86, s{66-k}")
            I(f"s_mov_b32 s87, s99")
            stamp(9 + k, 124, 86)
    I("s_nop 4")

def node_pos(sW, heavy):
    I(f"v_lshrrev_b32 v{V_NB}, 2, v{V_G4}")
    I(f"s_lshl_b32 s45, s{sW}, 4")
    if not heavy:
        I(f"s_lshl_b32 s46, s{sW}, 3")
        I(f"s_add_u32 s46, s46, 96")
        I(f"s_cmp_lt_u32 s{sW}, 12")
        I(f"s_cselect_b32 s45, s45, s46")
    I(f"v_add_u32 v{V_NA}, s45, v{V_NB}")
    I(f"v_add_u32 v{V_NB}, 8, v{V_NA}")

def hop_header(sW, vflag):
    I(f"s_lshl_b32 s45, s{sW}, 2")
    I(f"v_mov_b32 v{V_A0}, s45")
    I(f"v_mov_b32 v{vflag}, {L_HEAVY}")
    I(f"ds_read_b32 v{vflag}, v{vflag}")
    I(f"ds_read_b32 v{V_A1}, v{V_A0} offset:{L_SU}")
    I(f"ds_read_b32 v{V_PTRC}, v{V_A0} offset:{L_WB}")
    node_pos(sW, False)
    I(f"ds_read_u8 v{V_NA}, v{V_NA} offset:{L_ORD}")
    I(f"ds_read_u8 v{V_NB}, v{V_NB} offset:{L_ORD}")
    I("s_waitcnt lgkmcnt(0)")
    I(f"v_readfirstlane_b32 s77, v{vflag}")
    I(f"v_readfirstlane_b32 s{S_T}, v{V_A1}")
    I(f"v_add_u32 v{V_PTRC}, v{V_PTRC}, v{V_G4}")
    lab = uid("HH")
    I(f"s_cmp_lt_u32 s{sW}, 12")
    I(f"s_cbranch_scc1 {lab}")
    I(f"v_mov_b32 v{V_NB}, 0xff")
    L(lab)

def split_fix(pfx, sW):
    lab = uid(pfx + "_SF")
    I(f"s_cmp_lt_u32 s{sW}, 12")
    I(f"s_cbranch_scc1 {lab}")
    for i in range(8):
        I(f"v_add_f32 v{V_ACC+i}, v{V_ACC+i}, v{V_ACC2+i}")
    L(lab)

def heavy_path(pfx, tbl, seg_lo_hi, rec_srd, rech_srd, sB, sW, acc_base, nwaves):
    I("v_mov_b32 v40, 0")
    I("v_mov_b32 v41, 0")
    I("v_mov_b32 v42, 0")
    I("v_mov_b32 v43, 0")
    I("v_lshlrev_b32 v44, 4, v0")
    I(f"v_add_u32 v44, {acc_base}, v44")
    n16 = ACC_BYTES // 16
    for i in range(3):
        I(f"ds_write_b128 v44, v[40:43] offset:{i*16384}")
    I(f"v_cmp_gt_u32 vcc, {n16 - 3072}, v0")
    I("s_and_saveexec_b64 s[60:61], vcc")
    I(f"ds_write_b128 v44, v[40:43] offset:{3*16384}")
    I("s_mov_b64 exec, s[60:61]")
    I("s_waitcnt lgkmcnt(0)")
    I("s_barrier")
    I(f"s_mov_b32 s62, s{sW}")
    I(f"v_lshrrev_b32 v45, 3, v{V_LANE}")
    I(f"s_lshl_b32 s63, s{sB}, 2")
    L(f"{pfx}_HC")
    I("s_lshl_b32 s64, s62, 10")
    I("s_add_u32 s64, s64, s63")
    I(f"s_add_u32 s66, s{seg_lo_hi}, s64")
    I(f"s_addc_u32 s67, s{seg_lo_hi+1}, 0")
    I("s_load_dword s68, s[66:67], 0")
    I(f"s_mul_i32 s69, s62, {RECP}")
    I(f"s_mul_i32 s65, s62, {RECH}")
    I("s_waitcnt lgkmcnt(0)")
    I("s_and_b32 s70, s68, 0xffff")
    I("s_lshr_b32 s71, s68, 16")
    L(f"{pfx}_HI")
    I("s_cmp_ge_u32 s70, s71")
    I(f"s_cbranch_scc1 {pfx}_HN")
    I("v_add_u32 v46, s70, v45")
    I("v_cmp_gt_u32 vcc, s71, v46")
    I("s_and_saveexec_b64 s[60:61], vcc")
    I("v_lshlrev_b32 v47, 2, v46")
    I(f"buffer_load_dword v48, v47, s[{rec_srd}:{rec_srd+3}], s69 offen")
    I("v_lshlrev_b32 v47, 1, v46")
    I(f"buffer_load_ushort v49, v47, s[{rech_srd}:{rech_srd+3}], s65 offen")
    I("s_waitcnt vmcnt(0)")
    I("v_and_b32 v50, 0xffff, v48")
    I("v_lshlrev_b32 v50, 7, v50")
    I(f"v_add_u32 v50, v50, v{V_F16}")
    I(f"buffer_load_dwordx4 v[52:55], v50, s[{tbl}:{tbl+3}], 0 offen" + FL[opt.ldg])
    I("v_and_b32 v51, 0xffff0000, v48")
    I("v_lshrrev_b32 v56, 4, v49")
    I("v_lshlrev_b32 v56, 8, v56")
    I(f"v_lshlrev_b32 v57, 1, v{V_F16}")
    I("v_add_u32 v56, v56, v57")
    I(f"v_add_u32 v56, {acc_base}, v56")
    I("s_waitcnt vmcnt(0)")
    for i in range(4):
        I(f"v_lshlrev_b32 v58, 16, v{52+i}")
        I(f"v_and_b32 v59, 0xffff0000, v{52+i}")
        I("v_mul_f32 v58, v58, v51")
        I("v_mul_f32 v59, v59, v51")
        I(f"ds_add_f32 v56, v58 offset:{8*i}")
        I(f"ds_add_f32 v56, v59 offset:{8*i + 4}")
    I("s_mov_b64 exec, s[60:61]")
    I("s_add_u32 s70, s70, 8")
    I(f"s_branch {pfx}_HI")
    L(f"{pfx}_HN")
    I(f"s_add_u32 s62, s62, {nwaves}")
    I("s_cmp_lt_u32 s62, 256")
    I(f"s_cbranch_scc1 {pfx}_HC")
    I("s_waitcnt lgkmcnt(0)")
    I("s_barrier")

def heavy_read_acc(acc_base, sW):
    node_pos(sW, True)
    for vn, va in ((V_NA, V_ACC), (V_NB, V_ACC2)):
        I(f"v_lshlrev_b32 v{V_A0}, 8, v{vn}")
        I(f"v_lshlrev_b32 v{V_A1}, 1, v{V_F16}")
        I(f"v_add_u32 v{V_A0}, v{V_A0}, v{V_A1}")
        I(f"v_add_u32 v{V_A0}, {acc_base}, v{V_A0}")
        I(f"ds_read_b128 v[{va}:{va+3}], v{V_A0}")
        I(f"ds_read_b128 v[{va+4}:{va+7}], v{V_A0} offset:16")
    I("s_waitcnt lgkmcnt(0)")


def grid_arrive():
    R, SH = opt.brep, opt.bsh
    assert R * SH <= 64
    lsh = SH.bit_length() - 1
    I(f"s_and_b32 s45, s2, {SH-1}")
    I("s_lshl_b32 s45, s45, 7")
    I(f"s_add_u32 s45, s45, {WS_SYNC}")
    I(f"v_lshlrev_b32 v116, {7+lsh}, v{V_LANE}")
    I("v_add_u32 v116, s45, v116")
    I("v_mov_b32 v117, 1")
    I("s_mov_b64 s[72:73], exec")
    I(f"s_mov_b64 exec, {hex((1 << R) - 1)}")
    I("global_atomic_add v116, v117, s[6:7] sc1")
    I("s_mov_b64 exec, s[72:73]")

def grid_poll(pfx):
    R, SH = opt.brep, opt.bsh
    lsh = SH.bit_length() - 1
    NR = 2 if opt.poll2 else 1
    I("s_mov_b64 s[72:73], exec")
    I(f"s_mov_b64 exec, {(1 << (SH * NR)) - 1}")
    I(f"s_lshr_b32 s45, s2, {lsh}")
    I(f"s_and_b32 s45, s45, {R-1}")
    I(f"v_lshrrev_b32 v116, {lsh}, v{V_LANE}")
    I(f"v_mul_u32_u24 v116, {R//2}, v116")
    I(f"v_add_u32 v116, s45, v116")
    I(f"v_and_b32 v116, {R-1}, v116")
    I(f"v_lshlrev_b32 v116, {lsh}, v116")
    I(f"v_and_b32 v117, {SH-1}, v{V_LANE}")
    I(f"v_add_u32 v116, v116, v117")
    I(f"v_lshlrev_b32 v116, 7, v116")
    I(f"v_add_u32 v116, {WS_SYNC}, v116")
    I(f"s_mov_b32 s46, {opt.spin}")
    L(f"{pfx}_POLL")
    I("global_load_dword v118, v116, s[6:7] sc1")
    I("s_waitcnt vmcnt(0)")
    for k in range(NR):
        for l in range(SH):
            I(f"v_readlane_b32 s{12+(l&3)}, v118, {k*SH+l}")
            if l == 1: I("s_add_u32 s11, s12, s13")
            elif l > 1: I(f"s_add_u32 s11, s11, s{12+(l&3)}")
        if SH == 1: I("s_mov_b32 s11, s12")
        I("s_cmp_ge_u32 s11, 256")
        I(f"s_cbranch_scc1 {pfx}_POLLED")
    if opt.slp: I(f"s_sleep {opt.slp}")
    I("s_sub_u32 s46, s46, 1")
    I("s_cmp_eq_u32 s46, 0")
    I(f"s_cbranch_scc0 {pfx}_POLL")
    L(f"{pfx}_POLLED")
    I("s_mov_b64 exec, s[72:73]")

def release_gate(tag):
    lab, lab2 = uid("RG"), uid("RH")
    I(f"s_cmp_eq_u32 s47, 0")
    I(f"s_cbranch_scc1 {lab}")
    I("s_cmp_lg_u32 s10, 0")
    I(f"s_cbranch_scc1 {lab2}")
    I(f"s_call_b64 s[{S_RET}:{S_RET+1}], GPOLL")
    L(lab2)
    I("s_barrier")
    stamp(8, 124)
    L(lab)

def gen_k2():
    name = "sgc_prop_kernel"
    kernel_begin(name)
    I("s_cmp_ge_u32 s2, 256")
    I("s_cbranch_scc1 K2_END")
    if opt.stamps: I("s_memrealtime s[86:87]")
    I("s_load_dwordx2 s[6:7], s[0:1], 56")
    I("s_load_dwordx2 s[4:5], s[0:1], 0")
    I("s_load_dwordx4 s[32:35], s[0:1], 32")
    I("s_and_b32 s8, s2, 7")
    I("s_lshl_b32 s8, s8, 5")
    I("s_lshr_b32 s9, s2, 3")
    I("s_add_u32 s8, s8, s9")
    I("v_readfirstlane_b32 s10, v0")
    I(f"v_and_b32 v{V_LANE}, 63, v0")
    I(f"v_lshrrev_b32 v52, 4, v{V_LANE}")
    I("s_lshr_b32 s10, s10, 6")
    I("s_lshl_b32 s11, s10, 2")
    I("v_add_u32 v52, s11, v52")
    I("s_lshl_b32 s11, s8, 2")
    I("v_lshl_add_u32 v53, v52, 10, s11")
    for r in range(4):
        I(f"s_mov_b32 s{36+r}, {r*65536}")
    I("s_waitcnt lgkmcnt(0)")
    stamp_init(1, 6, 124); stamp(0, 124, 86)
    srd(16, 6, 7, NCH * 1024, WS_SEG)
    SG = lambda r: 56 + r
    for r in range(4):
        I(f"buffer_load_dword v{SG(r)}, v53, s[16:19], s{36+r} offen")
    ntouch = 0
    if opt.tlb:
        srd(20, 6, 7, NCH * RECP, WS_RECP)
        I(f"v_lshlrev_b32 v44, 20, v{V_LANE}")
        I(f"buffer_load_dword v{V_PFD}, v44, s[20:23], 0 offen sc1")
        srd(96, 6, 7, NCH * RECH, WS_RECH)
        I(f"buffer_load_dword v{V_PFD}, v44, s[96:99], 0 offen sc1")
        ntouch = 2
        if opt.tlb >= 2:
            srd(24, 4, 5, TBL_BYTES)
            I(f"buffer_load_dword v{V_PFD}, v44, s[24:27], 0 offen")
            ntouch = 3
    I(f"s_mov_b32 s14, {RECH}")
    I("v_mul_u32_u24 v54, s14, v52")
    I(f"v_and_b32 v55, 15, v{V_LANE}")
    srd(20, 6, 7, NCH * RECP, WS_RECP)
    srd(96, 6, 7, NCH * RECH, WS_RECH)
    for r in range(4):
        I(f"s_mov_b32 s{40+r}, {r*64*RECP}")
    nb, nc = opt.pf2b, opt.pf2c
    def init_block():
        I("v_lshlrev_b32 v108, 4, v0")
        I(f"v_mov_b32 v112, {SAFE}")
        I("v_mov_b32 v113, v112")
        I("v_mov_b32 v114, v112")
        I("v_mov_b32 v115, v112")
        I(f"v_add_u32 v109, {L_LN}, v108")
        I("ds_write_b128 v109, v[112:115]")
        I("v_mov_b32 v116, 0")
        I("v_mov_b32 v117, 0")
        I("v_mov_b32 v118, 0")
        I("v_mov_b32 v119, 0")
        I(f"v_cmp_gt_u32 vcc, {LS_CAP//16}, v0")
        I("s_and_saveexec_b64 s[12:13], vcc")
        I(f"v_add_u32 v109, {L_LS}, v108")
        I("ds_write_b128 v109, v[112:115]")
        I("s_mov_b64 exec, s[12:13]")
        I("v_cmp_gt_u32 vcc, 32, v0")
        I("s_and_saveexec_b64 s[12:13], vcc")
        I("ds_write_b128 v108, v[116:119]")
        I("s_mov_b64 exec, s[12:13]")
        I(f"v_cmp_gt_u32 vcc, {(K2_ZERO_END-L_CNT)//16}, v0")
        I("s_and_saveexec_b64 s[12:13], vcc")
        I(f"ds_write_b128 v108, v[116:119] offset:{L_CNT}")
        I("s_mov_b64 exec, s[12:13]")
        srd(24, 4, 5, TBL_BYTES)
        srd(28, 6, 7, TBL_BYTES, WS_H1)
        if nb: pf_setup(48, nb, opt.pf1 * 32 * PFU)
        if nc: pf_setup(7, nc, (opt.pf1 + nb) * 32 * PFU)
        hop_consts()
    if not opt.lateinit: init_block()
    SM = lambda t, r: 46 + (t * 4 + r) * 2
    VOFF = lambda r: 60 + r
    VR = lambda t, r: 64 + (t * 4 + r) * 2
    VK = lambda t, r: 88 + t * 4 + r
    VP = lambda t, r: 100 + (t * 4 + r) * 2
    ONE = 40
    VOFP = lambda r: 44 + r
    for r in range(4):
        I(f"s_mov_b32 s{36+r}, {r*64*RECH}")
    I(f"s_waitcnt vmcnt({ntouch})")
    stamp(1, 124)
    I("s_mov_b64 s[70:71], 0")
    I("s_mov_b64 s[72:73], exec")
    for r in range(4):
        I(f"s_mov_b32 s{36+r}, {r*64*RECH}")
    IX = lambda r: 100 + r
    EN = lambda r: 104 + r
    for r in range(4):
        I(f"v_and_b32 v{IX(r)}, 0xffff, v{SG(r)}")
        I(f"v_lshrrev_b32 v{EN(r)}, 16, v{SG(r)}")
        I(f"v_add_u32 v{IX(r)}, v{IX(r)}, v55")
        I(f"v_lshl_add_u32 v{VOFF(r)}, v{IX(r)}, 1, v54")
        I(f"v_cmp_lt_u32 s[{SM(0,r)}:{SM(0,r)+1}], v{IX(r)}, v{EN(r)}")
        I(f"v_add_u32 v41, 16, v{IX(r)}")
        I(f"s_mov_b64 exec, s[{SM(0,r)}:{SM(0,r)+1}]")
        lab = uid("K2_SK")
        I(f"s_cbranch_execz {lab}")
        I(f"buffer_load_ushort v{VR(0,r)+1}, v{VOFF(r)}, s[96:99], s{36+r} offen" + FL[opt.ld2])
        L(lab)
        I("s_mov_b64 exec, s[72:73]")
        I(f"v_cmp_lt_u32 s[{SM(1,r)}:{SM(1,r)+1}], v41, v{EN(r)}")
    for r in range(4):
        lab = uid("K2_SK")
        I(f"s_mov_b64 exec, s[{SM(1,r)}:{SM(1,r)+1}]")
        I(f"s_cbranch_execz {lab}")
        I(f"buffer_load_ushort v{VR(1,r)+1}, v{VOFF(r)}, s[96:99], s{36+r} offen offset:32" + FL[opt.ld2])
        L(lab)
    I("s_mov_b64 exec, s[72:73]")
    for r in range(4):
        I(f"v_add_u32 v42, 32, v{IX(r)}")
        I(f"v_cmp_lt_u32 s[{SM(2,r)}:{SM(2,r)+1}], v42, v{EN(r)}")
        I(f"v_add_u32 v43, 48, v{IX(r)}")
        I(f"v_cmp_lt_u32 vcc, v43, v{EN(r)}")
        I(f"v_lshlrev_b32 v{VOFP(r)}, 1, v{VOFF(r)}")
        I("s_or_b64 s[70:71], s[70:71], vcc")
    I(f"s_or_b64 s[74:75], s[{SM(2,0)}:{SM(2,0)+1}], s[{SM(2,1)}:{SM(2,1)+1}]")
    I(f"s_or_b64 s[74:75], s[74:75], s[{SM(2,2)}:{SM(2,2)+1}]")
    I(f"s_or_b64 s[74:75], s[74:75], s[{SM(2,3)}:{SM(2,3)+1}]")
    I("s_cselect_b32 s83, 1, 0")
    I("s_cbranch_scc0 K2_NT3A")
    for r in range(4):
        lab = uid("K2_SK")
        I(f"s_mov_b64 exec, s[{SM(2,r)}:{SM(2,r)+1}]")
        I(f"s_cbranch_execz {lab}")
        I(f"buffer_load_ushort v{VR(2,r)+1}, v{VOFF(r)}, s[96:99], s{36+r} offen offset:64" + FL[opt.ld2])
        I(f"buffer_load_dword v{VR(2,r)}, v{VOFP(r)}, s[20:23], s{40+r} offen offset:128" + FL[opt.ld2])
        L(lab)
    I("s_mov_b64 exec, s[72:73]")
    L("K2_NT3A")
    I("s_mov_b64 exec, s[72:73]")
    if opt.lateinit: init_block()
    I(f"v_mov_b32 v{ONE}, 1")
    I(f"v_mov_b32 v11, 32")
    I("s_waitcnt lgkmcnt(0)")
    if opt.payafter:
        I("s_barrier")
    for t in range(2):
        for r in range(4):
            I(f"buffer_load_dword v{VR(t,r)}, v{VOFP(r)}, s[20:23], s{40+r} offen" + (f" offset:{64*t}" if t else "") + FL[opt.ld2])
    if not opt.payafter:
        I("s_barrier")
    I("s_waitcnt vmcnt(8)")
    stamp(2, 124)
    for t in range(3):
        if t == 2:
            I("s_cmp_eq_u32 s83, 0")
            I("s_cbranch_scc1 K2_NT3B")
        for r in range(4):
            lab = uid("K2_SC")
            I(f"s_mov_b64 exec, s[{SM(t,r)}:{SM(t,r)+1}]")
            I(f"s_cbranch_execz {lab}")
            I(f"ds_add_rtn_u32 v{VK(t,r)}, v{VR(t,r)+1}, v11 offset:{L_CNT}")
            L(lab)
    L("K2_NT3B")
    I("s_mov_b64 exec, s[72:73]")
    I("s_cmp_eq_u64 s[70:71], 0")
    I("s_cbranch_scc1 K2_NOH")
    I(f"v_mov_b32 v41, {L_HEAVY}")
    I(f"ds_write_b32 v41, v{ONE}")
    L("K2_NOH")
    I("s_waitcnt lgkmcnt(0)")
    I("s_barrier")
    stamp(3, 124)
    I("s_cmp_ge_u32 s10, 4")
    I("s_cbranch_scc1 K2_NOSORT0")
    C = lambda q: 100 + q
    KY, R2, SL, TT, ST, NI = 44, 45, 46, 47, 48, 49
    A, B, Cc, Dd = 116, 117, 118, 119
    I("s_lshl_b32 s12, s10, 6")
    I(f"v_add_u32 v{NI}, s12, v{V_LANE}")
    I(f"v_lshlrev_b32 v{A}, 4, v{NI}")
    I(f"ds_read_b128 v[{C(0)}:{C(3)}], v{A} offset:{L_CNT}")
    I("s_movk_i32 s12, 208")
    I(f"v_cmp_gt_u32 s[74:75], s12, v{NI}")
    I(f"v_lshlrev_b32 v{B}, 2, v{V_LANE}")
    I("s_movk_i32 s76, 0xc0")
    I("s_waitcnt lgkmcnt(0)")
    I(f"v_add_u32 v{TT}, v{C(0)}, v{C(1)}")
    I(f"v_add3_u32 v{TT}, v{TT}, v{C(2)}, v{C(3)}")
    I(f"v_lshrrev_b32 v{TT}, 5, v{TT}")
    I(f"v_min_u32 v{KY}, 63, v{TT}")
    I(f"v_lshlrev_b32 v{KY}, 2, v{KY}")
    I("s_mov_b64 exec, s[74:75]")
    I(f"ds_add_rtn_u32 v{R2}, v{KY}, v{ONE} offset:{L_H2}")
    I("s_mov_b64 exec, s[72:73]")
    I("s_waitcnt lgkmcnt(0)")
    I("s_barrier")
    I(f"ds_read_b32 v{Cc}, v{B} offset:{L_H2}")
    I("s_waitcnt lgkmcnt(0)")
    I(f"v_mov_b32 v{Dd}, v{Cc}")
    wave_scan(Dd)
    I(f"v_sub_u32 v{Dd}, v{Dd}, v{Cc}")
    I("s_nop 0")
    I(f"ds_bpermute_b32 v{SL}, v{KY}, v{Dd}")
    I("s_waitcnt lgkmcnt(0)")
    I(f"v_add_u32 v{R2}, v{R2}, v{SL}")
    I(f"v_cmp_le_u32 s[12:13], s76, v{R2}")
    I(f"v_lshrrev_b32 v{SL}, 4, v{R2}")
    I(f"v_lshrrev_b32 v{Cc}, 3, v{R2}")
    I(f"v_subrev_u32 v{Cc}, 12, v{Cc}")
    I(f"v_mov_b32 v{ST}, 2")
    I(f"v_cndmask_b32_e64 v{SL}, v{SL}, v{Cc}, s[12:13]")
    I(f"v_cndmask_b32_e64 v{ST}, v{ST}, 1, s[12:13]")
    I(f"v_lshlrev_b32 v{SL}, 2, v{SL}")
    I("s_mov_b64 exec, s[74:75]")
    I(f"ds_max_u32 v{SL}, v{TT} offset:{L_WM}")
    I(f"ds_write_b8 v{R2}, v{NI} offset:{L_ORD}")
    I("s_mov_b64 exec, s[72:73]")
    I(f"v_lshlrev_b32 v{KY}, 3, v{ST}")
    I(f"v_subrev_u32 v{KY}, 1, v{KY}")
    I(f"v_and_b32 v{KY}, v{KY}, v{R2}")
    I(f"v_add_u32 v{TT}, v{C(0)}, v{C(1)}")
    I(f"v_add_u32 v{R2}, v{TT}, v{C(2)}")
    I("s_waitcnt lgkmcnt(0)")
    I("s_barrier")
    I(f"ds_read_b32 v{Cc}, v{B} offset:{L_WM}")
    I(f"v_cmp_gt_u32 vcc, 12, v{V_LANE}")
    I("s_waitcnt lgkmcnt(0)")
    I(f"v_add_u32 v{Dd}, 1, v{Cc}")
    I(f"v_lshrrev_b32 v{Dd}, 1, v{Dd}")
    I(f"v_cndmask_b32 v{Cc}, v{Dd}, v{Cc}, vcc")
    I(f"v_lshlrev_b32 v{Dd}, 6, v{Cc}")
    I(f"v_mov_b32 v120, v{Dd}")
    wave_scan(120, 16)
    I("s_nop 1")
    I("v_readlane_b32 s76, v120, 11")
    I("v_readlane_b32 s15, v120, 15")
    I(f"v_sub_u32 v120, v120, v{Dd}")
    I(f"v_add_u32 v121, {L_LN}, v120")
    I(f"s_sub_u32 s14, {L_LS}, s76")
    I("v_add_u32 v120, s14, v120")
    I("v_cndmask_b32 v120, v120, v121, vcc")
    I("s_nop 0")
    I(f"ds_bpermute_b32 v{SL}, v{SL}, v120")
    I("s_cmp_lg_u32 s10, 0")
    I("s_cbranch_scc1 K2_NOHDR")
    I(f"v_cmp_gt_u32 vcc, 16, v{V_LANE}")
    I("s_and_saveexec_b64 s[12:13], vcc")
    I(f"ds_write_b32 v{B}, v120 offset:{L_WB}")
    I(f"ds_write_b32 v{B}, v{Cc} offset:{L_SU}")
    I("s_mov_b64 exec, s[12:13]")
    I("s_sub_u32 s15, s15, s76")
    I(f"s_cmp_gt_u32 s76, {LN_CAP}")
    I("s_cbranch_scc1 K2_CAPBAD")
    I(f"s_cmp_le_u32 s15, {LS_CAP}")
    I("s_cbranch_scc1 K2_NOHDR")
    L("K2_CAPBAD")
    I(f"v_mov_b32 v41, {L_HEAVY}")
    I(f"ds_write_b32 v41, v{ONE}")
    L("K2_NOHDR")
    I("s_waitcnt lgkmcnt(0)")
    I(f"v_lshl_add_u32 v{C(3)}, v{KY}, 2, v{SL}")
    I(f"v_mad_u32_u24 v{C(1)}, v{C(0)}, v{ST}, v{C(3)}")
    I(f"v_mov_b32 v{C(0)}, v{C(3)}")
    I(f"v_mad_u32_u24 v{C(2)}, v{TT}, v{ST}, v{C(0)}")
    I(f"v_mad_u32_u24 v{C(3)}, v{R2}, v{ST}, v{C(0)}")
    I("s_mov_b64 exec, s[74:75]")
    I(f"ds_write_b128 v{A}, v[{C(0)}:{C(3)}] offset:{L_NBQ}")
    I("s_mov_b64 exec, s[72:73]")
    I("s_waitcnt vmcnt(0) lgkmcnt(0)")
    I("s_branch K2_NOSORT")
    L("K2_NOSORT0")
    I("s_waitcnt vmcnt(0)")
    if nb:
        lab = uid("PFX")
        I(f"s_cmp_lt_u32 s10, {16 - nb}")
        I(f"s_cbranch_scc1 {lab}")
        I(f"s_mov_b32 s15, {(16 - nb) * PFU}")
        I(f"v_subrev_u32 v48, s15, v48")
        I(f"buffer_load_dword v{V_PFD}, v48, s[24:27], 0 offen")
        L(lab)
    if opt.tlb2:
        lab = uid("TLB")
        I("s_cmp_lg_u32 s10, 11")
        I(f"s_cbranch_scc1 {lab}")
        I(f"v_lshlrev_b32 v44, 21, v{V_LANE}")
        I(f"v_add_u32 v44, {opt.tlb2off}, v44")
        I(f"buffer_load_dword v{V_PFD}, v44, s[24:27], 0 offen")
        if opt.tlb2 >= 3:
            I(f"v_lshlrev_b32 v45, 21, v{V_LANE}")
            I("s_lshl_b32 s15, s8, 7")
            I("v_add_u32 v45, s15, v45")
            I(f"buffer_load_dword v{V_PFD}, v45, s[28:31], 0 offen sc1")
        if opt.tlb2 >= 2:
            srd(88, 34, 35, TBL_BYTES)
            I(f"buffer_load_dword v{V_PFD}, v44, s[88:91], 0 offen")
        L(lab)
    I("s_barrier")
    I("s_barrier")
    L("K2_NOSORT")
    I("s_barrier")
    stamp(4, 124)
    I(f"v_mov_b32 v41, {L_HEAVY}")
    I("ds_read_b32 v41, v41")
    VP1 = lambda t, r: 100 + t * 4 + r
    for t in range(3):
        if t == 2:
            I("s_cmp_eq_u32 s83, 0")
            I("s_cbranch_scc1 K2_NT3C")
        for r in range(4):
            lab = uid("K2_SP")
            I(f"s_mov_b64 exec, s[{SM(t,r)}:{SM(t,r)+1}]")
            I(f"s_cbranch_execz {lab}")
            I(f"ds_read_b32 v{VP1(t,r)}, v{VR(t,r)+1} offset:{L_NBQ}")
            L(lab)
    L("K2_NT3C")
    I("s_mov_b64 exec, s[72:73]")
    I(f"s_lshl_b32 s45, s10, 2")
    I(f"v_mov_b32 v{V_A0}, s45")
    I(f"ds_read_b32 v{V_PTRI}, v{V_A0} offset:{L_SU}")
    I(f"ds_read_b32 v{V_PTRC}, v{V_A0} offset:{L_WB}")
    I(f"v_lshrrev_b32 v{V_NB}, 2, v{V_G4}")
    I(f"s_lshl_b32 s45, s10, 4")
    I(f"s_lshl_b32 s14, s10, 3")
    I(f"s_add_u32 s14, s14, 96")
    I(f"s_cmp_lt_u32 s10, 12")
    I(f"s_cselect_b32 s45, s45, s14")
    I(f"v_add_u32 v{V_NA}, s45, v{V_NB}")
    I(f"v_add_u32 v{V_NB}, 8, v{V_NA}")
    I(f"ds_read_u8 v{V_NA}, v{V_NA} offset:{L_ORD}")
    I(f"ds_read_u8 v{V_NB}, v{V_NB} offset:{L_ORD}")
    I("s_waitcnt lgkmcnt(0)")
    I("v_readfirstlane_b32 s77, v41")
    I(f"v_readfirstlane_b32 s{S_T}, v{V_PTRI}")
    I(f"v_add_u32 v{V_PTRC}, v{V_PTRC}, v{V_G4}")
    if opt.stamps: stamp(12, 124)
    I("s_cmp_lg_u32 s77, 0")
    I("s_cbranch_scc1 K2_NOPLACE")
    for t in range(3):
        if t == 2:
            I("s_cmp_eq_u32 s83, 0")
            I("s_cbranch_scc1 K2_NT3D")
        for r in range(4):
            lab = uid("K2_SW")
            I(f"s_mov_b64 exec, s[{SM(t,r)}:{SM(t,r)+1}]")
            I(f"s_cbranch_execz {lab}")
            I(f"v_mad_u32_u16 v{VP1(t,r)}, v{VK(t,r)}, v{VP1(t,r)}, v{VP1(t,r)} op_sel:[0,1,0,0]")
            I(f"ds_write_b32 v{VP1(t,r)}, v{VR(t,r)}")
            L(lab)
    L("K2_NT3D")
    I("s_mov_b64 exec, s[72:73]")
    L("K2_NOPLACE")
    I("s_waitcnt lgkmcnt(0)")
    if opt.stamps: stamp(13, 124)
    I("s_barrier")
    stamp(5, 124)
    if nc: pf_issue(7, V_PFD, 24, nc, 10)
    S_PH, S_SCR = 47, 83
    I(f"s_mov_b32 s{S_PH}, 0")
    I(f"s_cmp_lt_u32 s10, {NWORK}")
    I("s_cbranch_scc1 K2_KEEP")
    I("s_cmp_eq_u32 s77, 0")
    I("s_cbranch_scc1 K2_END")
    L("K2_KEEP")
    srd(16, 32, 33, 8192)
    I("v_lshlrev_b32 v110, 4, v0")
    I("buffer_load_dwordx4 v[112:115], v110, s[16:19], 0 offen")
    L("K2_PHASE")
    I("s_cmp_eq_u32 s77, 0")
    I("s_cbranch_scc1 K2_FAST")
    release_gate("v")
    heavy_path("K2H", 24, 6, 20, 96, 8, 10, K2_ACC, 16)
    heavy_read_acc(K2_ACC, 10)
    I("s_cmp_lt_u32 s10, 13")
    I("s_cbranch_scc1 K2_DONE")
    I(f"s_cmp_lg_u32 s{S_PH}, 0")
    I("s_cbranch_scc1 K2_END")
    I(f"v_mov_b32 v{V_NA}, 0xff")
    I(f"v_mov_b32 v{V_NB}, 0xff")
    I("s_branch K2_DONE")
    L("K2_FAST")
    I(f"s_cmp_eq_u32 s{S_PH}, 0")
    I("s_cbranch_scc1 K2_HOPIN0")
    hop_header(10, 41)
    I("s_branch K2_HOPIN")
    L("K2_HOPIN0")
    I("s_cmp_lt_u32 s10, 12")
    I("s_cbranch_scc1 K2_HOPIN")
    I(f"v_mov_b32 v{V_NB}, 0xff")
    L("K2_HOPIN")
    hop_wave("K2S", 24, 10, release_gate)
    split_fix("K2S", 10)
    L("K2_DONE")
    I(f"s_cmp_lg_u32 s{S_PH}, 0")
    I("s_cbranch_scc1 K2_GEMM")
    stamp(6, 124)
    I("s_lshl_b32 s45, s8, 7")
    for vn, va, t0, ad in ((V_NA, V_ACC, V_T, V_A0), (V_NB, V_ACC2, V_RC, V_A1)):
        for i in range(4):
            I(f"v_cvt_pk_bf16_f32 v{t0+i}, v{va+2*i}, v{va+2*i+1}")
        I(f"v_lshlrev_b32 v{ad}, 15, v{vn}")
        I(f"v_add3_u32 v{ad}, v{ad}, s45, v{V_F16}")
        I(f"buffer_store_dwordx4 v[{t0}:{t0+3}], v{ad}, s[28:31], 0 offen" + FL[opt.st2])
    E_SW, E_AB0, E_AB1, E_AW, E_BP, E_KB = 104, 105, 106, 107, 108, 109
    WF = 72
    I("v_cmp_gt_u32 vcc, 0x200, v0")
    I("s_and_saveexec_b64 s[72:73], vcc")
    I(f"ds_write_b128 v110, v[112:115] offset:{L_WL}")
    I("s_mov_b64 exec, s[72:73]")
    I(f"s_lshl_b32 s{S_SCR}, s10, 11")
    I(f"s_add_u32 s{S_SCR}, s{S_SCR}, {L_SCR}")
    I(f"v_lshlrev_b32 v60, 2, v{V_G4}")
    I(f"v_xor_b32 v61, v60, v{V_F16}")
    I(f"v_lshlrev_b32 v60, 3, v60")
    I(f"v_add3_u32 v{E_SW}, v60, v61, s{S_SCR}")
    I(f"v_and_b32 v60, 15, v{V_LANE}")
    I(f"v_lshrrev_b32 v{E_KB}, 4, v{V_LANE}")
    I(f"v_and_b32 v61, 7, v60")
    I(f"v_lshlrev_b32 v{E_BP}, 5, v61")
    I(f"v_xor_b32 v62, v{E_KB}, v61")
    I(f"v_lshlrev_b32 v62, 4, v62")
    I(f"v_lshlrev_b32 v63, 7, v60")
    I(f"v_add3_u32 v{E_AB0}, v63, s{S_SCR}, v62")
    I(f"v_xor_b32 v62, 64, v62")
    I(f"v_add3_u32 v{E_AB1}, v63, s{S_SCR}, v62")
    I(f"v_lshrrev_b32 v62, 2, v60")
    I(f"v_lshl_add_u32 v62, v{E_KB}, 3, v62")
    I(f"v_lshlrev_b32 v62, 7, v62")
    I(f"v_and_b32 v63, 3, v{V_LANE}")
    I(f"v_lshl_add_u32 v{E_AW}, v63, 4, v62")
    I(f"v_cmp_gt_u32 s[74:75], 8, v60")
    I(f"v_lshlrev_b32 v{E_KB}, 4, v{E_KB}")
    for i in range(8):
        I(f"v_mov_b32 v{V_ACC+i}, 0")
        I(f"v_mov_b32 v{V_ACC2+i}, 0")
    srd(24, 6, 7, TBL_BYTES, WS_H1)
    I("s_waitcnt vmcnt(0) lgkmcnt(0)")
    srd(28, 34, 35, TBL_BYTES)
    stamp(7, 124)
    if opt.own == 2:
        I(f"buffer_load_dword v{V_PFD}, v{V_A0}, s[24:27], 0 offen")
        I(f"buffer_load_dword v{V_PFD}, v{V_A1}, s[24:27], 0 offen")
    I("s_barrier")
    I("s_cmp_lg_u32 s10, 0")
    I("s_cbranch_scc1 K2_NOPOLL")
    grid_arrive()
    L("K2_NOPOLL")
    if opt.own == 1:
        I(f"buffer_load_dword v{V_PFD}, v{V_A0}, s[24:27], 0 offen")
        I(f"buffer_load_dword v{V_PFD}, v{V_A1}, s[24:27], 0 offen")
    for t in range(4):
        for s in range(2):
            for hh in range(2):
                off = L_WL + s * 4096 + hh * 512 + (t >> 1) * 64 + (t & 1) * 8
                d = WF + (t * 2 + s) * 4 + 2 * hh
                I(f"ds_read_b64_tr_b16 v[{d}:{d+1}], v{E_AW} offset:{off}")
    I(f"s_mov_b32 s{S_PH}, 1")
    I("s_branch K2_PHASE")
    L("K2_GEMM")
    stamp(9, 124)
    E_OUT = E_AW
    I(f"ds_bpermute_b32 v110, v{E_BP}, v{V_NA}")
    I(f"ds_bpermute_b32 v111, v{E_BP}, v{V_NB}")
    for va, t0, off in ((V_ACC, V_T, 0), (V_ACC2, V_RC, 1024)):
        for i in range(4):
            I(f"v_cvt_pk_bf16_f32 v{t0+i}, v{va+2*i}, v{va+2*i+1}")
        I(f"ds_write_b128 v{E_SW}, v[{t0}:{t0+3}] offset:{off}")
    B0, B1 = 40, 44
    I(f"ds_read_b128 v[{B0}:{B0+3}], v{E_AB0}")
    I(f"ds_read_b128 v[{B1}:{B1+3}], v{E_AB1}")
    DD = 56
    I("s_lshl_b32 s45, s8, 7")
    I("s_waitcnt lgkmcnt(1)")
    I(f"v_cndmask_b32_e64 v110, v111, v110, s[74:75]")
    for t in range(4):
        a = WF + (t * 2) * 4
        I(f"v_mfma_f32_16x16x32_bf16 v[{DD+4*t}:{DD+4*t+3}], v[{a}:{a+3}], v[{B0}:{B0+3}], 0")
    I(f"v_lshlrev_b32 v110, 15, v110")
    I("s_waitcnt lgkmcnt(0)")
    for t in range(4):
        a = WF + (t * 2 + 1) * 4
        I(f"v_mfma_f32_16x16x32_bf16 v[{DD+4*t}:{DD+4*t+3}], v[{a}:{a+3}], v[{B1}:{B1+3}], v[{DD+4*t}:{DD+4*t+3}]")
    I(f"v_add3_u32 v{E_OUT}, v110, s45, v{E_KB}")
    O = 48
    I("s_nop 4")
    for half in range(2):
        for k in range(2):
            t = half * 2 + k
            if t == 3: I("s_nop 1")
            I(f"v_cvt_pk_bf16_f32 v{O+half*4+2*k}, v{DD+4*t}, v{DD+4*t+1}")
            I(f"v_cvt_pk_bf16_f32 v{O+half*4+2*k+1}, v{DD+4*t+2}, v{DD+4*t+3}")
        I(f"buffer_store_dwordx4 v[{O+half*4}:{O+half*4+3}], v{E_OUT}, s[28:31], 0 offen" + (" offset:64" if half else "") + FL[opt.st3])
    stamp(10, 124)
    if opt.stamps:
        I("s_waitcnt vmcnt(0)")
        stamp(11, 124)
    L("K2_END")
    I("s_endpgm")
    hop_subs("K2S")
    L("GPOLL")
    grid_poll("G2")
    I(f"s_setpc_b64 s[{S_RET}:{S_RET+1}]")
    I("s_endpgm")
    L("K2_CODE_END")
    return name, 128, 102

HEADER = f"""; Kernarg layout for this problem (64 bytes, ptrs only, base s[0:1]):
; @launch kernel=sgc_part_kernel grid=(256,1,1) block=(K1BLK,1,1) lds={K1_LDS}
; @launch kernel=sgc_prop_kernel grid=(256,1,1) block=(1024,1,1) lds=K2LDS
.amdgcn_target "amdgcn-amd-amdhsa--gfx950"
.text"""

def main():
    for a in sys.argv[2:]:
        k, v = a.split("=")
        assert hasattr(opt, k), k
        setattr(opt, k, int(v))
    h = HEADER.replace("K2LDS", str(K2_LDS)).replace("K1BLK", ("896" if opt.cpf else "832") if opt.k1v == 1 else "448")
    emit(h)
    ks = [gen_k1(), gen_k2()]
    emit('.section .rodata,"a"')
    emit(".p2align 6")
    for (n, v, s) in ks:
        kernel_desc(n, v, s)
        emit(".p2align 6")
    open(sys.argv[1], "w").write("\n".join(out) + "\n")

main()
```

```python
import sys

N = 50000
E = 850000
CH = 3328
NCH = 256
RECP = CH * 4
RECH = CH * 2
WS_SEG = 0
WS_RECH = 0x40000
WS_RECP = 0x200400
WS_IMG = 0x6C0000
WS_H1 = 0xC00000
WS_SYNC = 0x1E0000
TBL_BYTES = N * 128
SAFE = 0x0000FFFF

class Opt:
    D = 4
    R = 8
    skew = 0
    pf1 = 0
    pf2b = 4
    pf2c = 0
    pf3 = 2
    pf3c = 0
    stamps = 0
    st1 = 1
    st2 = 1
    st2i = 1
    st3 = 1
    dbg = 0
    rst = 0
    nbar = 6
    pfs = 0
    pfsr = 2
    pfs3 = 0
    ld1 = 3
    ld2 = 0
    ld3 = 0
    skip3 = 0
    k1v = 1
    ldg = 1
    spin = 16000000
    brep = 16
    pfpos = 1
    poll2 = 0
    own = 0
    cpf = 0
    tlb2 = 0
    tlb1 = 0
    dbgx = 0
    t1 = 0
    tlb2off = 1048576
    cpfall = 0
    cpfn = 2
    lateinit = 0
    payafter = 1
    tlb = 0
    bsh = 4
    slp = 6
    smalllds = 0
    k3w = 16

opt = Opt()
out = []
def emit(s=""): out.append(s)
def I(s): out.append("    " + s)
def L(s): out.append(s + ":")
_uid = [0]
def uid(p):
    _uid[0] += 1
    return f"{p}_{_uid[0]}"

FL = ['', ' sc1', ' sc0 sc1', ' nt', ' sc0']
def srd(s, lo, hi, size, add=0):
    if add:
        I(f"s_add_u32 s{s}, s{lo}, {add}")
        I(f"s_addc_u32 s{s+1}, s{hi}, 0")
        I(f"s_and_b32 s{s+1}, s{s+1}, 0xffff")
    else:
        I(f"s_mov_b32 s{s}, s{lo}")
        I(f"s_and_b32 s{s+1}, s{hi}, 0xffff")
    I(f"s_mov_b32 s{s+2}, {size}")
    I(f"s_mov_b32 s{s+3}, 0x20000")

def wave_scan(v, n=64):
    for sh in (1, 2, 4, 8):
        I("s_nop 1")
        I(f"v_add_u32_dpp v{v}, v{v}, v{v} row_shr:{sh} row_mask:0xf bank_mask:0xf")
    if n > 16:
        I("s_nop 1")
        I(f"v_add_u32_dpp v{v}, v{v}, v{v} row_bcast:15 row_mask:0xa bank_mask:0xf")
        I("s_nop 1")
        I(f"v_add_u32_dpp v{v}, v{v}, v{v} row_bcast:31 row_mask:0xc bank_mask:0xf")

STAMP_OFF = 0x2000000
def stamp_init(kidx, ws_lo, vbase):
    if not opt.stamps: return
    I(f"v_lshrrev_b32 v{vbase}, 6, v0")
    I(f"s_lshl_b32 s92, s2, 4")
    I(f"s_add_u32 s92, s92, {kidx*256*16}")
    I(f"v_add_u32 v{vbase}, s92, v{vbase}")
    I(f"v_lshlrev_b32 v{vbase}, 7, v{vbase}")
    I(f"v_add_u32 v{vbase}, {STAMP_OFF}, v{vbase}")
    I(f"s_mov_b32 s94, s{ws_lo}")
    I(f"s_mov_b32 s95, s{ws_lo+1}")
_cur = [1]
def dstamp(j):
    I("s_memrealtime s[90:91]")
    I("s_waitcnt lgkmcnt(0)")
    I(f"v_writelane_b32 v127, s90, {j}")
def stamp(j, vbase, pre=None):
    if opt.dbg:
        if j <= 11 and pre is None: dstamp(j + (0 if _cur[0] == 2 else 12))
        return
    if not opt.stamps: return
    if pre is None:
        I("s_memrealtime s[90:91]")
        I("s_waitcnt lgkmcnt(0)")
    else:
        I(f"s_mov_b32 s90, s{pre}")
        I(f"s_mov_b32 s91, s{pre+1}")
    I("s_mov_b64 s[88:89], exec")
    I("s_mov_b64 exec, 1")
    I(f"v_mov_b32 v{vbase+2}, s90")
    I(f"v_mov_b32 v{vbase+3}, s91")
    I(f"global_store_dwordx2 v{vbase}, v[{vbase+2}:{vbase+3}], s[94:95] offset:{8*j}")
    I("s_mov_b64 exec, s[88:89]")

def kernel_begin(name):
    emit(f".globl {name}")
    emit(".p2align 8")
    emit(f".type {name},@function")
    L(name)

def kernel_desc(name, vgpr, sgpr):
    acc = (vgpr + 3) // 4 * 4
    emit(f".amdhsa_kernel {name}")
    emit(f"  .amdhsa_next_free_vgpr {vgpr}")
    emit(f"  .amdhsa_next_free_sgpr {sgpr}")
    emit(f"  .amdhsa_accum_offset {acc}")
    emit("  .amdhsa_group_segment_fixed_size 0")
    emit("  .amdhsa_kernarg_size 64")
    emit("  .amdhsa_user_sgpr_count 2")
    emit("  .amdhsa_user_sgpr_kernarg_segment_ptr 1")
    emit("  .amdhsa_system_sgpr_workgroup_id_x 1")
    emit(".end_amdhsa_kernel")

PFU = 8192
def pf_setup(vaddr, n, base_bytes):
    I("s_lshr_b32 s15, s2, 3")
    I(f"s_mul_i32 s15, s15, {n*PFU}")
    if base_bytes: I(f"s_add_u32 s15, s15, {base_bytes}")
    I(f"v_lshlrev_b32 v{vaddr}, 7, v0")
    I(f"v_add_u32 v{vaddr}, s15, v{vaddr}")
def pf_issue(vaddr, vdst, tbl, n, sW, nw=16):
    rounds = (n + nw - 1) // nw
    for i in range(rounds):
        cnt = min(nw, n - nw * i)
        lab = uid("PF")
        if cnt < nw:
            I(f"s_cmp_ge_u32 s{sW}, {cnt}")
            I(f"s_cbranch_scc1 {lab}")
        I(f"s_mov_b32 s15, {i*nw*PFU}")
        I(f"buffer_load_dword v{vdst}, v{vaddr}, s[{tbl}:{tbl+3}], s15 offen")
        L(lab)

def pf_stream(tbl, sW, nunits, base_bytes, per_round, vaddr, nrounds_max):
    I("s_lshr_b32 s15, s2, 3")
    I(f"s_mul_i32 s15, s15, {nunits*PFU}")
    I(f"s_add_u32 s15, s15, {base_bytes}")
    I(f"s_sub_u32 s14, s{sW}, {NWORK}")
    I(f"s_mul_i32 s14, s14, {PFU}")
    I("s_add_u32 s15, s15, s14")
    I(f"v_lshlrev_b32 v{vaddr}, 7, v{V_LANE}")
    I(f"v_add_u32 v{vaddr}, s15, v{vaddr}")
    k = 0
    nsteps = (nunits + 1) // 2
    rnd = 0
    while k < nsteps:
        for _ in range(per_round):
            if k >= nsteps: break
            I(f"s_mov_b32 s15, {k*2*PFU}")
            I(f"buffer_load_dword v{V_PFD}, v{vaddr}, s[{tbl}:{tbl+3}], s15 offen")
            k += 1
        rnd += 1
        if k < nsteps and rnd <= nrounds_max:
            I("s_barrier")

K1_HIST = 0
K1_PRE = 1024
K1_STP = 2048
K1_STH = K1_STP + RECP
K1_LDS = K1_STH + RECH

def gen_k1():
    name = "sgc_part_kernel"
    V = opt.k1v
    NT = 832 // V
    kernel_begin(name)
    I("s_cmp_ge_u32 s2, 256")
    I("s_cbranch_scc1 K1_END")
    if opt.cpf:
        I("v_readfirstlane_b32 s15, v0")
        I("s_lshr_b32 s15, s15, 6")
        I("s_cmp_lt_u32 s15, 13")
        I("s_cbranch_scc1 K1_MAIN")
        if opt.tlb1:
            I("s_load_dwordx2 s[10:11], s[0:1], 56")
            I("v_and_b32 v92, 63, v0")
            I("v_lshlrev_b32 v92, 21, v92")
            I("v_add_u32 v92, 0x1f0000, v92")
            I("v_and_b32 v93, 63, v0")
            I("v_cmp_eq_u32 vcc, 1, v93")
            I("v_mov_b32 v93, 0x200000")
            I("s_nop 0")
            I("v_cndmask_b32 v92, v92, v93, vcc")
            I("s_mov_b64 s[12:13], exec")
            I("s_mov_b64 exec, 7")
            I("s_waitcnt lgkmcnt(0)")
            I("global_load_dword v93, v92, s[10:11]")
            I("s_mov_b64 exec, s[12:13]")
        I(f"s_cmp_ge_u32 s2, {opt.cpf}")
        I("s_cbranch_scc1 K1_END")
        I("s_getpc_b64 s[48:49]")
        L("CPF_PC")
        if opt.cpfall:
            I("s_sub_u32 s48, s48, CPF_PC - sgc_part_kernel")
            I("s_subb_u32 s49, s49, 0")
            I("v_and_b32 v90, 63, v0")
            I("v_lshlrev_b32 v90, 7, v90")
            I("v_cmp_gt_u32 vcc, K2_CODE_END - sgc_part_kernel, v90")
            I("s_and_saveexec_b64 s[12:13], vcc")
            I("global_load_dword v91, v90, s[48:49]")
            I("v_add_u32 v90, 8192, v90")
            I("v_cmp_gt_u32 vcc, K2_CODE_END - sgc_part_kernel, v90")
        else:
            I("s_add_u32 s48, s48, sgc_prop_kernel - CPF_PC")
            I("s_addc_u32 s49, s49, 0")
            I("v_and_b32 v90, 63, v0")
            I("v_lshlrev_b32 v90, 7, v90")
            I("v_cmp_gt_u32 vcc, K2_CODE_END - sgc_prop_kernel, v90")
        I("s_and_saveexec_b64 s[12:13], vcc")
        I("s_cbranch_execz K1_END")
        I("global_load_dword v91, v90, s[48:49]")
        I("s_endpgm")
        L("K1_MAIN")
    if opt.stamps: I("s_memrealtime s[86:87]")
    I("s_load_dwordx4 s[4:7], s[0:1], 8")
    I("s_load_dwordx2 s[8:9], s[0:1], 24")
    I("s_load_dwordx2 s[10:11], s[0:1], 56")
    I(f"s_mul_i32 s3, s2, {CH}")
    I("v_lshl_add_u32 v1, v0, 2, s3")
    I("v_lshlrev_b32 v2, 2, v1")
    I("v_lshlrev_b32 v3, 1, v1")
    I("v_mov_b32 v4, 0")
    I("v_lshlrev_b32 v5, 2, v0")
    I("v_cmp_gt_u32 vcc, 0x100, v0")
    I("s_and_saveexec_b64 s[12:13], vcc")
    I(f"ds_write_b32 v5, v4 offset:{K1_HIST}")
    I("s_mov_b64 exec, s[12:13]")
    I("v_readfirstlane_b32 s15, v0")
    I("s_waitcnt lgkmcnt(0)")
    if opt.dbg:
        I("v_mov_b32 v127, 0")
        dstamp(12)
    stamp_init(0, 10, 124); stamp(0, 124, 86)
    if opt.t1:
        I("v_and_b32 v92, 63, v0")
        I("v_mov_b32 v94, s6")
        I("v_mov_b32 v95, s7")
        for ln, lo, hi in ((1, 4, 5), (2, 8, 9), (3, 10, 11), (4, 10, 11), (5, 10, 11)):
            I(f"v_cmp_eq_u32 vcc, {ln}, v92")
            I(f"v_mov_b32 v96, s{lo}")
            I(f"v_mov_b32 v97, s{hi}")
            I(f"v_cndmask_b32 v94, v94, v96, vcc")
            I(f"v_cndmask_b32 v95, v95, v97, vcc")
        I(f"s_lshl_b32 s14, s3, 2")
        I("v_mov_b32 v96, s14")
        I(f"s_lshl_b32 s14, s3, 1")
        for ln, val in ((2, "s14"), (3, "0x1f0000"), (4, "0x200000"), (5, "0x5f0000")):
            I(f"v_cmp_eq_u32 vcc, {ln}, v92")
            I(f"v_mov_b32 v97x, {val}".replace("v97x", "v93"))
            I("s_nop 0")
            I(f"v_cndmask_b32 v96, v96, v93, vcc")
        I("v_add_co_u32 v94, vcc, v94, v96")
        I("v_addc_co_u32 v95, vcc, 0, v95, vcc")
        I("s_mov_b64 s[12:13], exec")
        I("s_mov_b64 exec, 63")
        I("global_load_dword v93, v[94:95], off")
        I("s_mov_b64 exec, s[12:13]")
    srd(16, 6, 7, E * 4)
    D = lambda g, i: 8 + 16 * g + i
    S = lambda g, i: 12 + 16 * g + i
    NR = lambda g, i: 16 + 16 * g + i
    HA = lambda g, i: 40 + 4 * g + i
    RK = lambda g, i: 48 + 4 * g + i
    PL = lambda g, i: 56 + 4 * g + i
    HI = lambda g, i: 64 + 4 * g + i
    for g in range(V):
        I(f"s_mov_b32 s{40+g}, {g*NT*16}")
        I(f"buffer_load_dwordx4 v[{D(g,0)}:{D(g,3)}], v2, s[16:19], s{40+g} offen" + FL[opt.ld1])
    srd(20, 4, 5, E * 4)
    srd(24, 8, 9, E * 2)
    for g in range(V):
        I(f"s_mov_b32 s{42+g}, {g*NT*8}")
        I(f"buffer_load_dwordx4 v[{S(g,0)}:{S(g,3)}], v2, s[20:23], s{40+g} offen" + FL[opt.ld1])
        I(f"buffer_load_dwordx2 v[{NR(g,0)}:{NR(g,1)}], v3, s[24:27], s{42+g} offen" + FL[opt.ld1])
    I("s_lshr_b32 s46, s15, 6")
    I("s_or_b32 s14, s2, s46")
    I("s_cmp_lg_u32 s14, 0")
    I("s_cbranch_scc1 K1_NOZ")
    I("v_lshlrev_b32 v7, 7, v0")
    I(f"v_add_u32 v7, {WS_SYNC}, v7")
    I("global_store_dword v7, v4, s[10:11] sc1")
    I("s_waitcnt vmcnt(0)")
    L("K1_NOZ")
    npf = 0
    if opt.pf1:
        I("s_load_dwordx2 s[48:49], s[0:1], 0")
        I("s_lshr_b32 s15, s2, 3")
        I(f"s_mul_i32 s15, s15, {opt.pf1*PFU}")
        I(f"s_cmp_lt_u32 s46, {opt.pf1}")
        I("s_cselect_b32 s15, s15, 0x40000000")
        I("v_lshlrev_b32 v90, 7, v0")
        I("v_add_u32 v90, s15, v90")
        I("s_waitcnt lgkmcnt(0)")
        srd(64, 48, 49, TBL_BYTES)
        I("buffer_load_dword v91, v90, s[64:67], 0 offen")
        npf = 1
    srd(28, 10, 11, NCH * 1024, WS_SEG)
    srd(32, 10, 11, NCH * RECP, WS_RECP)
    srd(52, 10, 11, NCH * RECH, WS_RECH)
    I("s_mov_b32 s36, 0xffff0000")
    I("s_mov_b32 s37, 21474")
    I("s_mov_b64 s[12:13], exec")
    I(f"v_cmp_gt_u32 s[56:57], {NT if NT <= 64 else 's14'}, v0") if False else None
    I(f"s_mov_b32 s14, {NT}")
    I("v_cmp_gt_u32 s[56:57], s14, v0")
    for g in range(V):
        I(f"s_mov_b32 s14, {E - g*NT*4}")
        I(f"v_cmp_gt_u32 s[{58+2*g}:{59+2*g}], s14, v1")
        I(f"s_and_b64 s[{58+2*g}:{59+2*g}], s[{58+2*g}:{59+2*g}], s[56:57]")
    I("v_mov_b32 v6, 1")
    I("s_barrier")
    for g in range(V):
        I(f"s_waitcnt vmcnt({(V - 1 - g) + 2*V + npf})")
        if g == 0: stamp(1, 124)
        I(f"s_mov_b64 exec, s[{58+2*g}:{59+2*g}]")
        for i in range(4):
            I(f"v_and_b32 v{HA(g,i)}, 0xff, v{D(g,i)}")
            I(f"v_lshlrev_b32 v{HA(g,i)}, 2, v{HA(g,i)}")
        for i in range(4):
            I(f"ds_add_rtn_u32 v{RK(g,i)}, v{HA(g,i)}, v6 offset:{K1_HIST}")
    I("s_mov_b64 exec, s[12:13]")
    for g in range(V):
        I(f"s_waitcnt vmcnt({2*(V-1-g) + npf})")
        I(f"v_lshl_or_b32 v{PL(g,0)}, v{NR(g,0)}, 16, v{S(g,0)}")
        I(f"v_and_or_b32 v{PL(g,1)}, v{NR(g,0)}, s36, v{S(g,1)}")
        I(f"v_lshl_or_b32 v{PL(g,2)}, v{NR(g,1)}, 16, v{S(g,2)}")
        I(f"v_and_or_b32 v{PL(g,3)}, v{NR(g,1)}, s36, v{S(g,3)}")
        for i in range(4):
            I(f"v_mul_u32_u24 v7, s37, v{S(g,i)}")
            I("v_lshrrev_b32 v7, 26, v7")
            I("v_and_b32 v7, 12, v7")
            I(f"v_lshrrev_b32 v{HI(g,i)}, 8, v{D(g,i)}")
            I(f"v_lshl_or_b32 v{HI(g,i)}, v{HI(g,i)}, 4, v7")
    I("s_waitcnt lgkmcnt(0)")
    I("s_barrier")
    I("s_cmp_lg_u32 s46, 0")
    I("s_cbranch_scc1 K1_NOSCAN")
    I("v_lshlrev_b32 v5, 4, v0")
    I(f"ds_read_b128 v[72:75], v5 offset:{K1_HIST}")
    I("s_waitcnt lgkmcnt(0)")
    I("v_add_u32 v76, v72, v73")
    I("v_add_u32 v77, v76, v74")
    I("v_add_u32 v78, v77, v75")
    I("v_mov_b32 v79, v78")
    wave_scan(79)
    I("v_sub_u32 v80, v79, v78")
    I("v_add_u32 v81, v80, v72")
    I("v_add_u32 v82, v80, v76")
    I("v_add_u32 v83, v80, v77")
    I(f"ds_write_b128 v5, v[80:83] offset:{K1_PRE}")
    I("v_lshl_or_b32 v72, v81, 16, v80")
    I("v_lshl_or_b32 v73, v82, 16, v81")
    I("v_lshl_or_b32 v74, v83, 16, v82")
    I("v_lshl_or_b32 v75, v79, 16, v83")
    I("s_lshl_b32 s37, s2, 10")
    I("buffer_store_dwordx4 v[72:75], v5, s[28:31], s37 offen" + FL[opt.st1])
    I("s_waitcnt lgkmcnt(0)")
    L("K1_NOSCAN")
    I("s_barrier")
    for g in range(V):
        I(f"s_mov_b64 exec, s[{58+2*g}:{59+2*g}]")
        for i in range(4):
            I(f"ds_read_b32 v{HA(g,i)}, v{HA(g,i)} offset:{K1_PRE}")
    for g in range(V):
        I(f"s_mov_b64 exec, s[{58+2*g}:{59+2*g}]")
        I(f"s_waitcnt lgkmcnt({4*(V-1-g) if g < V-1 else 0})" if False else "s_waitcnt lgkmcnt(0)")
        for i in range(4):
            I(f"v_add_u32 v{HA(g,i)}, v{HA(g,i)}, v{RK(g,i)}")
            I(f"v_lshlrev_b32 v{RK(g,i)}, 2, v{HA(g,i)}")
            I(f"v_lshlrev_b32 v{HA(g,i)}, 1, v{HA(g,i)}")
            I(f"ds_write_b32 v{RK(g,i)}, v{PL(g,i)} offset:{K1_STP}")
            I(f"ds_write_b16 v{HA(g,i)}, v{HI(g,i)} offset:{K1_STH}")
    I("s_mov_b64 exec, s[12:13]")
    I("s_waitcnt lgkmcnt(0)")
    I("s_barrier")
    I("v_lshlrev_b32 v5, 4, v0")
    I(f"s_mul_i32 s37, s2, {RECP}")
    I(f"s_mul_i32 s42, s2, {RECH}")
    I("s_mov_b64 exec, s[56:57]")
    for g in range(V):
        I(f"ds_read_b128 v[{8+4*g}:{11+4*g}], v5 offset:{K1_STP + g*NT*16}")
    if V == 2:
        I(f"ds_read_b128 v[16:19], v5 offset:{K1_STH}")
    else:
        I(f"s_mov_b32 s14, {RECH//16}")
        I("v_cmp_gt_u32 vcc, s14, v0")
        I("s_mov_b64 exec, vcc")
        I(f"ds_read_b128 v[16:19], v5 offset:{K1_STH}")
        I("s_mov_b64 exec, s[56:57]")
    I("s_cbranch_execz K1_FIN")
    for g in range(V):
        I(f"s_waitcnt lgkmcnt({V - g})")
        if g: I(f"s_add_u32 s37, s37, {NT*16}")
        I(f"buffer_store_dwordx4 v[{8+4*g}:{11+4*g}], v5, s[32:35], s37 offen" + FL[opt.st1])
    I("s_waitcnt lgkmcnt(0)")
    if V == 1:
        I("s_mov_b64 exec, vcc")
        I("s_cbranch_execz K1_FIN")
    I("buffer_store_dwordx4 v[16:19], v5, s[52:55], s42 offen" + FL[opt.st1])
    L("K1_FIN")
    I("s_mov_b64 exec, s[12:13]")
    stamp(2, 124)
    if opt.stamps:
        I("s_waitcnt vmcnt(0)")
        stamp(3, 124)
    if opt.dbg:
        I("s_waitcnt vmcnt(0)")
        dstamp(15)
        lab = uid("DBG")
        I("s_or_b32 s14, s2, s46")
        I("s_cmp_lg_u32 s14, 0")
        I(f"s_cbranch_scc1 {lab}")
        I("v_lshlrev_b32 v126, 2, v0")
        I("v_add_u32 v126, 0x3000000, v126")
        I("global_store_dword v126, v127, s[10:11] sc1")
        L(lab)
    L("K1_END")
    I("s_endpgm")
    return name, (128 if (opt.stamps or opt.dbg) else 104), (102 if (opt.stamps or opt.dbg) else 72)

L_SU = 0x000
L_WB = 0x040
L_ORD = 0x120
L_HEAVY = 0x1F0
L_LN = 0x20000
LN_CAP = 0x4000
L_LS = 0x10000
LS_CAP = 0x1000
L_CNT = 0x4000
L_H2 = 0x5000
L_WM = 0x5200
K2_ZERO_END = 0x5400
L_NBQ = 0x5400
L_WL = 0x6400
L_SCR = 0x8400
K2_ACC = 0xF400
ACC_BYTES = 208 * 256
K2_LDS = L_LN + LN_CAP
assert K2_ACC + ACC_BYTES <= L_LN
NWORK = 14

V_LANE = 1
V_G4 = 2
V_F16 = 3
V_SELA = 4
V_SELB = 5
V_PTRC = 6
V_PTRI = 7
V_NA = 8
V_NB = 9
V_A0 = 10
V_A1 = 11
V_ACC = 12
V_ACC2 = 20
V_T = 28
V_RC = 32
V_RI = 36
V_DATA = 40
S_T, S_R, S_PACE, S_DR, S_REM = 78, 79, 80, 81, 82
S_NB = 76
S_RET = 84
S_128 = 44
V_PFD = 125

def hop_consts():
    I(f"v_lshrrev_b32 v{V_G4}, 3, v{V_LANE}")
    I(f"v_lshlrev_b32 v{V_G4}, 2, v{V_G4}")
    I(f"v_and_b32 v{V_F16}, 7, v{V_LANE}")
    I(f"v_lshlrev_b32 v{V_F16}, 4, v{V_F16}")
    I(f"v_and_b32 v{V_PTRC}, 3, v{V_LANE}")
    I(f"v_mov_b32 v{V_SELA}, 0x0c0c0c0c")
    I(f"v_mov_b32 v{V_SELB}, 0x0c0c0c0c")
    I(f"v_mov_b32 v{V_A0}, 0x0c0c0302")
    I(f"v_mov_b32 v{V_A1}, 0x03020c0c")
    for val, sel, lit in ((0, V_SELA, V_A0), (1, V_SELA, V_A1), (2, V_SELB, V_A0), (3, V_SELB, V_A1)):
        I(f"v_cmp_eq_u32 vcc, {val}, v{V_PTRC}")
        I("s_nop 1")
        I(f"v_cndmask_b32 v{sel}, v{sel}, v{lit}, vcc")
    I(f"s_mov_b32 s{S_128}, 128")
    for i in range(8):
        I(f"v_mov_b32 v{V_ACC+i}, 0")
        I(f"v_mov_b32 v{V_ACC2+i}, 0")

def rd2(dst, ptr, unit):
    o = unit * 16
    assert o + 8 <= 255
    I(f"ds_read2_b32 v[{dst}:{dst+1}], v{ptr} offset0:{o} offset1:{o+8}")

def perms(p):
    rc = V_RC + 2 * p
    I(f"v_perm_b32 v{V_T+0}, v{rc}, v{rc}, v{V_SELA}")
    I(f"v_perm_b32 v{V_T+1}, v{rc}, v{rc}, v{V_SELB}")
    I(f"v_perm_b32 v{V_T+2}, v{rc+1}, v{rc+1}, v{V_SELA}")
    I(f"v_perm_b32 v{V_T+3}, v{rc+1}, v{rc+1}, v{V_SELB}")

def mfmas(r):
    d = V_DATA + 8 * r
    a, b = V_ACC, V_ACC2
    I(f"v_mfma_f32_4x4x4_16b_bf16 v[{a}:{a+3}], v[{V_T}:{V_T+1}], v[{d}:{d+1}], v[{a}:{a+3}]")
    I(f"v_mfma_f32_4x4x4_16b_bf16 v[{a+4}:{a+7}], v[{V_T}:{V_T+1}], v[{d+2}:{d+3}], v[{a+4}:{a+7}]")
    I(f"v_mfma_f32_4x4x4_16b_bf16 v[{b}:{b+3}], v[{V_T+2}:{V_T+3}], v[{d+4}:{d+5}], v[{b}:{b+3}]")
    I(f"v_mfma_f32_4x4x4_16b_bf16 v[{b+4}:{b+7}], v[{V_T+2}:{V_T+3}], v[{d+6}:{d+7}], v[{b+4}:{b+7}]")

def pace_check(pfx):
    if opt.R <= 1: return
    lab = uid(pfx + "_PC")
    I(f"s_add_u32 s{S_PACE}, s{S_PACE}, s{S_R}")
    I(f"s_cmp_lt_u32 s{S_PACE}, s{S_T}")
    I(f"s_cbranch_scc1 {lab}")
    I(f"s_call_b64 s[{S_RET}:{S_RET+1}], {pfx}_BS")
    L(lab)

def hop_subs(pfx):
    if opt.R <= 1: return
    L(f"{pfx}_BF")
    I(f"s_cmp_eq_u32 s{S_NB}, 0")
    I(f"s_cbranch_scc1 {pfx}_BR")
    I(f"s_sub_u32 s{S_NB}, s{S_NB}, 1")
    I("s_barrier")
    I(f"s_branch {pfx}_BF")
    L(f"{pfx}_BS")
    I(f"s_cmp_eq_u32 s{S_NB}, 0")
    I(f"s_cbranch_scc1 {pfx}_BR")
    I(f"s_sub_u32 s{S_NB}, s{S_NB}, 1")
    I("s_barrier")
    if opt.rst:
        I("s_memrealtime s[98:99]")
        I("s_waitcnt lgkmcnt(0)")
        for k in range(7, 0, -1): I(f"s_mov_b32 s{60+k}, s{59+k}")
        I("s_mov_b32 s60, s98")
    I(f"s_sub_u32 s{S_PACE}, s{S_PACE}, s{S_T}")
    I(f"s_cmp_ge_u32 s{S_PACE}, s{S_T}")
    I(f"s_cbranch_scc1 {pfx}_BS")
    L(f"{pfx}_BR")
    I(f"s_setpc_b64 s[{S_RET}:{S_RET+1}]")

def hop_wave(pfx, tbl, sW, gate=None):
    D = opt.D
    I(f"s_min_u32 s{S_T}, s{S_T}, 0x100")
    I(f"s_mov_b32 s{S_DR}, s{S_T}")
    I(f"s_mov_b32 s{S_PACE}, 0")
    I(f"s_mov_b32 s{S_R}, {opt.R}")
    I(f"s_mov_b32 s{S_NB}, {min(opt.nbar, opt.R - 1)}")
    if opt.skew:
        I(f"s_cmp_lt_u32 s{sW}, 8")
        I(f"s_cselect_b32 s{S_R}, {opt.R - opt.skew}, s{S_R}")
        I(f"s_cmp_lt_u32 s{sW}, 4")
        I(f"s_cselect_b32 s{S_R}, {opt.R - 2*opt.skew}, s{S_R}")
    for r in range(D):
        rd2(V_DATA + 8 * r, V_PTRC, r)
    rd2(V_RC, V_PTRC, 0)
    I(f"v_add_u32 v{V_PTRI}, {D*64}, v{V_PTRC}")
    I("s_waitcnt lgkmcnt(0)")
    rd2(V_RI, V_PTRI, 0)
    if gate: gate("h")
    I(f"s_cmp_eq_u32 s{S_T}, 0")
    I(f"s_cbranch_scc1 {pfx}_FIN")
    for r in range(D):
        d = V_DATA + 8 * r
        if r > 0:
            I(f"s_cmp_le_u32 s{S_T}, {r}")
            I(f"s_cbranch_scc1 {pfx}_DR0")
            pace_check(pfx)
        I(f"v_mad_u32_u16 v{V_A0}, v{d}, s{S_128}, v{V_F16}")
        I(f"v_mad_u32_u16 v{V_A1}, v{d+1}, s{S_128}, v{V_F16}")
        I(f"buffer_load_dwordx4 v[{d}:{d+3}], v{V_A0}, s[{tbl}:{tbl+3}], 0 offen" + FL[opt.ldg])
        I(f"buffer_load_dwordx4 v[{d+4}:{d+7}], v{V_A1}, s[{tbl}:{tbl+3}], 0 offen" + FL[opt.ldg])
    I(f"s_sub_u32 s{S_REM}, s{S_T}, {D}")
    I(f"s_mov_b32 s{S_DR}, {D}")
    I(f"s_cmp_eq_u32 s{S_REM}, 0")
    I(f"s_cbranch_scc1 {pfx}_DR0")
    L(f"{pfx}_MAIN")
    for r in range(D):
        p = r & 1
        d = V_DATA + 8 * r
        I("s_waitcnt lgkmcnt(0)")
        rd2(V_RC + 2 * (p ^ 1), V_PTRC, r + 1)
        rd2(V_RI + 2 * (p ^ 1), V_PTRI, r + 1)
        perms(p)
        ri = V_RI + 2 * p
        I(f"v_mad_u32_u16 v{V_A0}, v{ri}, s{S_128}, v{V_F16}")
        I(f"v_mad_u32_u16 v{V_A1}, v{ri+1}, s{S_128}, v{V_F16}")
        I(f"s_waitcnt vmcnt({2*(D-1)})")
        mfmas(r)
        pace_check(pfx)
        I(f"buffer_load_dwordx4 v[{d}:{d+3}], v{V_A0}, s[{tbl}:{tbl+3}], 0 offen" + FL[opt.ldg])
        I(f"buffer_load_dwordx4 v[{d+4}:{d+7}], v{V_A1}, s[{tbl}:{tbl+3}], 0 offen" + FL[opt.ldg])
        if r == D - 1:
            I(f"v_add_u32 v{V_PTRC}, {D*64}, v{V_PTRC}")
            I(f"v_add_u32 v{V_PTRI}, {D*64}, v{V_PTRI}")
        I(f"s_sub_u32 s{S_REM}, s{S_REM}, 1")
        I(f"s_cmp_eq_u32 s{S_REM}, 0")
        if r == D - 1:
            I(f"s_cbranch_scc0 {pfx}_MAIN")
        else:
            I(f"s_cbranch_scc1 {pfx}_DR{r+1}")
    for q in range(2 * D - 1):
        r = q % D
        p = q & 1
        if q < D:
            L(f"{pfx}_DR{q}")
            if opt.R > 1:
                lab = uid(pfx + "_DX")
                I(f"s_cmp_eq_u32 s{S_NB}, 0")
                I(f"s_cbranch_scc1 {lab}")
                I(f"s_call_b64 s[{S_RET}:{S_RET+1}], {pfx}_BF")
                L(lab)
        I("s_waitcnt lgkmcnt(0)")
        if q + 1 <= 2 * D - 2:
            rd2(V_RC + 2 * (p ^ 1), V_PTRC, q + 1)
        perms(p)
        I("s_waitcnt vmcnt(0)")
        I(f"s_sub_u32 s{S_DR}, s{S_DR}, 1")
        mfmas(r)
        if q < 2 * D - 2:
            I(f"s_cmp_eq_u32 s{S_DR}, 0")
            I(f"s_cbranch_scc1 {pfx}_FIN")
    L(f"{pfx}_FIN")
    if opt.R > 1:
        lab = uid(pfx + "_DY")
        I(f"s_cmp_eq_u32 s{S_NB}, 0")
        I(f"s_cbranch_scc1 {lab}")
        I(f"s_call_b64 s[{S_RET}:{S_RET+1}], {pfx}_BF")
        L(lab)
    if opt.rst and opt.stamps:
        for k in range(7):
            I(f"s_mov_b32 s86, s{66-k}")
            I(f"s_mov_b32 s87, s99")
            stamp(9 + k, 124, 86)
    I("s_nop 4")

def node_pos(sW, heavy):
    I(f"v_lshrrev_b32 v{V_NB}, 2, v{V_G4}")
    I(f"s_lshl_b32 s45, s{sW}, 4")
    if not heavy:
        I(f"s_lshl_b32 s46, s{sW}, 3")
        I(f"s_add_u32 s46, s46, 96")
        I(f"s_cmp_lt_u32 s{sW}, 12")
        I(f"s_cselect_b32 s45, s45, s46")
    I(f"v_add_u32 v{V_NA}, s45, v{V_NB}")
    I(f"v_add_u32 v{V_NB}, 8, v{V_NA}")

def hop_header(sW, vflag):
    I(f"s_lshl_b32 s45, s{sW}, 2")
    I(f"v_mov_b32 v{V_A0}, s45")
    I(f"v_mov_b32 v{vflag}, {L_HEAVY}")
    I(f"ds_read_b32 v{vflag}, v{vflag}")
    I(f"ds_read_b32 v{V_A1}, v{V_A0} offset:{L_SU}")
    I(f"ds_read_b32 v{V_PTRC}, v{V_A0} offset:{L_WB}")
    node_pos(sW, False)
    I(f"ds_read_u8 v{V_NA}, v{V_NA} offset:{L_ORD}")
    I(f"ds_read_u8 v{V_NB}, v{V_NB} offset:{L_ORD}")
    I("s_waitcnt lgkmcnt(0)")
    I(f"v_readfirstlane_b32 s77, v{vflag}")
    I(f"v_readfirstlane_b32 s{S_T}, v{V_A1}")
    I(f"v_add_u32 v{V_PTRC}, v{V_PTRC}, v{V_G4}")
    lab = uid("HH")
    I(f"s_cmp_lt_u32 s{sW}, 12")
    I(f"s_cbranch_scc1 {lab}")
    I(f"v_mov_b32 v{V_NB}, 0xff")
    L(lab)

def split_fix(pfx, sW):
    lab = uid(pfx + "_SF")
    I(f"s_cmp_lt_u32 s{sW}, 12")
    I(f"s_cbranch_scc1 {lab}")
    for i in range(8):
        I(f"v_add_f32 v{V_ACC+i}, v{V_ACC+i}, v{V_ACC2+i}")
    L(lab)

def heavy_path(pfx, tbl, seg_lo_hi, rec_srd, rech_srd, sB, sW, acc_base, nwaves):
    I("v_mov_b32 v40, 0")
    I("v_mov_b32 v41, 0")
    I("v_mov_b32 v42, 0")
    I("v_mov_b32 v43, 0")
    I("v_lshlrev_b32 v44, 4, v0")
    I(f"v_add_u32 v44, {acc_base}, v44")
    n16 = ACC_BYTES // 16
    for i in range(3):
        I(f"ds_write_b128 v44, v[40:43] offset:{i*16384}")
    I(f"v_cmp_gt_u32 vcc, {n16 - 3072}, v0")
    I("s_and_saveexec_b64 s[60:61], vcc")
    I(f"ds_write_b128 v44, v[40:43] offset:{3*16384}")
    I("s_mov_b64 exec, s[60:61]")
    I("s_waitcnt lgkmcnt(0)")
    I("s_barrier")
    I(f"s_mov_b32 s62, s{sW}")
    I(f"v_lshrrev_b32 v45, 3, v{V_LANE}")
    I(f"s_lshl_b32 s63, s{sB}, 2")
    L(f"{pfx}_HC")
    I("s_lshl_b32 s64, s62, 10")
    I("s_add_u32 s64, s64, s63")
    I(f"s_add_u32 s66, s{seg_lo_hi}, s64")
    I(f"s_addc_u32 s67, s{seg_lo_hi+1}, 0")
    I("s_load_dword s68, s[66:67], 0")
    I(f"s_mul_i32 s69, s62, {RECP}")
    I(f"s_mul_i32 s65, s62, {RECH}")
    I("s_waitcnt lgkmcnt(0)")
    I("s_and_b32 s70, s68, 0xffff")
    I("s_lshr_b32 s71, s68, 16")
    L(f"{pfx}_HI")
    I("s_cmp_ge_u32 s70, s71")
    I(f"s_cbranch_scc1 {pfx}_HN")
    I("v_add_u32 v46, s70, v45")
    I("v_cmp_gt_u32 vcc, s71, v46")
    I("s_and_saveexec_b64 s[60:61], vcc")
    I("v_lshlrev_b32 v47, 2, v46")
    I(f"buffer_load_dword v48, v47, s[{rec_srd}:{rec_srd+3}], s69 offen")
    I("v_lshlrev_b32 v47, 1, v46")
    I(f"buffer_load_ushort v49, v47, s[{rech_srd}:{rech_srd+3}], s65 offen")
    I("s_waitcnt vmcnt(0)")
    I("v_and_b32 v50, 0xffff, v48")
    I("v_lshlrev_b32 v50, 7, v50")
    I(f"v_add_u32 v50, v50, v{V_F16}")
    I(f"buffer_load_dwordx4 v[52:55], v50, s[{tbl}:{tbl+3}], 0 offen" + FL[opt.ldg])
    I("v_and_b32 v51, 0xffff0000, v48")
    I("v_lshrrev_b32 v56, 4, v49")
    I("v_lshlrev_b32 v56, 8, v56")
    I(f"v_lshlrev_b32 v57, 1, v{V_F16}")
    I("v_add_u32 v56, v56, v57")
    I(f"v_add_u32 v56, {acc_base}, v56")
    I("s_waitcnt vmcnt(0)")
    for i in range(4):
        I(f"v_lshlrev_b32 v58, 16, v{52+i}")
        I(f"v_and_b32 v59, 0xffff0000, v{52+i}")
        I("v_mul_f32 v58, v58, v51")
        I("v_mul_f32 v59, v59, v51")
        I(f"ds_add_f32 v56, v58 offset:{8*i}")
        I(f"ds_add_f32 v56, v59 offset:{8*i + 4}")
    I("s_mov_b64 exec, s[60:61]")
    I("s_add_u32 s70, s70, 8")
    I(f"s_branch {pfx}_HI")
    L(f"{pfx}_HN")
    I(f"s_add_u32 s62, s62, {nwaves}")
    I("s_cmp_lt_u32 s62, 256")
    I(f"s_cbranch_scc1 {pfx}_HC")
    I("s_waitcnt lgkmcnt(0)")
    I("s_barrier")

def heavy_read_acc(acc_base, sW):
    node_pos(sW, True)
    for vn, va in ((V_NA, V_ACC), (V_NB, V_ACC2)):
        I(f"v_lshlrev_b32 v{V_A0}, 8, v{vn}")
        I(f"v_lshlrev_b32 v{V_A1}, 1, v{V_F16}")
        I(f"v_add_u32 v{V_A0}, v{V_A0}, v{V_A1}")
        I(f"v_add_u32 v{V_A0}, {acc_base}, v{V_A0}")
        I(f"ds_read_b128 v[{va}:{va+3}], v{V_A0}")
        I(f"ds_read_b128 v[{va+4}:{va+7}], v{V_A0} offset:16")
    I("s_waitcnt lgkmcnt(0)")


def grid_arrive():
    R, SH = opt.brep, opt.bsh
    assert R * SH <= 64
    lsh = SH.bit_length() - 1
    I(f"s_and_b32 s45, s2, {SH-1}")
    I("s_lshl_b32 s45, s45, 7")
    I(f"s_add_u32 s45, s45, {WS_SYNC}")
    I(f"v_lshlrev_b32 v116, {7+lsh}, v{V_LANE}")
    I("v_add_u32 v116, s45, v116")
    I("v_mov_b32 v117, 1")
    I("s_mov_b64 s[72:73], exec")
    I(f"s_mov_b64 exec, {hex((1 << R) - 1)}")
    I("global_atomic_add v116, v117, s[6:7] sc1")
    I("s_mov_b64 exec, s[72:73]")

def grid_poll(pfx):
    R, SH = opt.brep, opt.bsh
    lsh = SH.bit_length() - 1
    NR = 2 if opt.poll2 else 1
    I("s_mov_b64 s[72:73], exec")
    I(f"s_mov_b64 exec, {(1 << (SH * NR)) - 1}")
    I(f"s_lshr_b32 s45, s2, {lsh}")
    I(f"s_and_b32 s45, s45, {R-1}")
    I(f"v_lshrrev_b32 v116, {lsh}, v{V_LANE}")
    I(f"v_mul_u32_u24 v116, {R//2}, v116")
    I(f"v_add_u32 v116, s45, v116")
    I(f"v_and_b32 v116, {R-1}, v116")
    I(f"v_lshlrev_b32 v116, {lsh}, v116")
    I(f"v_and_b32 v117, {SH-1}, v{V_LANE}")
    I(f"v_add_u32 v116, v116, v117")
    I(f"v_lshlrev_b32 v116, 7, v116")
    I(f"v_add_u32 v116, {WS_SYNC}, v116")
    I(f"s_mov_b32 s46, {opt.spin}")
    L(f"{pfx}_POLL")
    I("global_load_dword v118, v116, s[6:7] sc1")
    I("s_waitcnt vmcnt(0)")
    for k in range(NR):
        for l in range(SH):
            I(f"v_readlane_b32 s{12+(l&3)}, v118, {k*SH+l}")
            if l == 1: I("s_add_u32 s11, s12, s13")
            elif l > 1: I(f"s_add_u32 s11, s11, s{12+(l&3)}")
        if SH == 1: I("s_mov_b32 s11, s12")
        I("s_cmp_ge_u32 s11, 256")
        I(f"s_cbranch_scc1 {pfx}_POLLED")
    if opt.slp: I(f"s_sleep {opt.slp}")
    I("s_sub_u32 s46, s46, 1")
    I("s_cmp_eq_u32 s46, 0")
    I(f"s_cbranch_scc0 {pfx}_POLL")
    L(f"{pfx}_POLLED")
    I("s_mov_b64 exec, s[72:73]")

def release_gate(tag):
    lab, lab2 = uid("RG"), uid("RH")
    I(f"s_cmp_eq_u32 s47, 0")
    I(f"s_cbranch_scc1 {lab}")
    I("s_cmp_lg_u32 s10, 0")
    I(f"s_cbranch_scc1 {lab2}")
    I(f"s_call_b64 s[{S_RET}:{S_RET+1}], GPOLL")
    L(lab2)
    I("s_barrier")
    stamp(8, 124)
    L(lab)

def gen_k2():
    name = "sgc_prop_kernel"
    kernel_begin(name)
    I("s_cmp_ge_u32 s2, 256")
    I("s_cbranch_scc1 K2_END")
    if opt.stamps: I("s_memrealtime s[86:87]")
    I("s_load_dwordx2 s[6:7], s[0:1], 56")
    I("s_load_dwordx2 s[4:5], s[0:1], 0")
    I("s_load_dwordx4 s[32:35], s[0:1], 32")
    I("s_and_b32 s8, s2, 7")
    I("s_lshl_b32 s8, s8, 5")
    I("s_lshr_b32 s9, s2, 3")
    I("s_add_u32 s8, s8, s9")
    I("v_readfirstlane_b32 s10, v0")
    I(f"v_and_b32 v{V_LANE}, 63, v0")
    I(f"v_lshrrev_b32 v52, 4, v{V_LANE}")
    I("s_lshr_b32 s10, s10, 6")
    I("s_lshl_b32 s11, s10, 2")
    I("v_add_u32 v52, s11, v52")
    I("s_lshl_b32 s11, s8, 2")
    I("v_lshl_add_u32 v53, v52, 10, s11")
    for r in range(4):
        I(f"s_mov_b32 s{36+r}, {r*65536}")
    I("s_waitcnt lgkmcnt(0)")
    if opt.dbg:
        _cur[0] = 2
        I("v_mov_b32 v127, 0")
        dstamp(0)
    stamp_init(1, 6, 124); stamp(0, 124, 86)
    srd(16, 6, 7, NCH * 1024, WS_SEG)
    SG = lambda r: 56 + r
    for r in range(4):
        I(f"buffer_load_dword v{SG(r)}, v53, s[16:19], s{36+r} offen")
    ntouch = 0
    if opt.tlb:
        srd(20, 6, 7, NCH * RECP, WS_RECP)
        I(f"v_lshlrev_b32 v44, 20, v{V_LANE}")
        I(f"buffer_load_dword v{V_PFD}, v44, s[20:23], 0 offen sc1")
        srd(96, 6, 7, NCH * RECH, WS_RECH)
        I(f"buffer_load_dword v{V_PFD}, v44, s[96:99], 0 offen sc1")
        ntouch = 2
        if opt.tlb >= 2:
            srd(24, 4, 5, TBL_BYTES)
            I(f"buffer_load_dword v{V_PFD}, v44, s[24:27], 0 offen")
            ntouch = 3
    I(f"s_mov_b32 s14, {RECH}")
    I("v_mul_u32_u24 v54, s14, v52")
    I(f"v_and_b32 v55, 15, v{V_LANE}")
    srd(20, 6, 7, NCH * RECP, WS_RECP)
    srd(96, 6, 7, NCH * RECH, WS_RECH)
    for r in range(4):
        I(f"s_mov_b32 s{40+r}, {r*64*RECP}")
    nb, nc = opt.pf2b, opt.pf2c
    def init_block():
        I("v_lshlrev_b32 v108, 4, v0")
        I(f"v_mov_b32 v112, {SAFE}")
        I("v_mov_b32 v113, v112")
        I("v_mov_b32 v114, v112")
        I("v_mov_b32 v115, v112")
        I(f"v_add_u32 v109, {L_LN}, v108")
        I("ds_write_b128 v109, v[112:115]")
        I("v_mov_b32 v116, 0")
        I("v_mov_b32 v117, 0")
        I("v_mov_b32 v118, 0")
        I("v_mov_b32 v119, 0")
        I(f"v_cmp_gt_u32 vcc, {LS_CAP//16}, v0")
        I("s_and_saveexec_b64 s[12:13], vcc")
        I(f"v_add_u32 v109, {L_LS}, v108")
        I("ds_write_b128 v109, v[112:115]")
        I("s_mov_b64 exec, s[12:13]")
        I("v_cmp_gt_u32 vcc, 32, v0")
        I("s_and_saveexec_b64 s[12:13], vcc")
        I("ds_write_b128 v108, v[116:119]")
        I("s_mov_b64 exec, s[12:13]")
        I(f"v_cmp_gt_u32 vcc, {(K2_ZERO_END-L_CNT)//16}, v0")
        I("s_and_saveexec_b64 s[12:13], vcc")
        I(f"ds_write_b128 v108, v[116:119] offset:{L_CNT}")
        I("s_mov_b64 exec, s[12:13]")
        srd(24, 4, 5, TBL_BYTES)
        srd(28, 6, 7, TBL_BYTES, WS_H1)
        if nb: pf_setup(48, nb, opt.pf1 * 32 * PFU)
        if nc: pf_setup(7, nc, (opt.pf1 + nb) * 32 * PFU)
        hop_consts()
    if not opt.lateinit: init_block()
    SM = lambda t, r: 46 + (t * 4 + r) * 2
    VOFF = lambda r: 60 + r
    VR = lambda t, r: 64 + (t * 4 + r) * 2
    VK = lambda t, r: 88 + t * 4 + r
    VP = lambda t, r: 100 + (t * 4 + r) * 2
    ONE = 40
    VOFP = lambda r: 44 + r
    for r in range(4):
        I(f"s_mov_b32 s{36+r}, {r*64*RECH}")
    I(f"s_waitcnt vmcnt({ntouch})")
    stamp(1, 124)
    I("s_mov_b64 s[70:71], 0")
    I("s_mov_b64 s[72:73], exec")
    for r in range(4):
        I(f"s_mov_b32 s{36+r}, {r*64*RECH}")
    IX = lambda r: 100 + r
    EN = lambda r: 104 + r
    for r in range(4):
        I(f"v_and_b32 v{IX(r)}, 0xffff, v{SG(r)}")
        I(f"v_lshrrev_b32 v{EN(r)}, 16, v{SG(r)}")
        I(f"v_add_u32 v{IX(r)}, v{IX(r)}, v55")
        I(f"v_lshl_add_u32 v{VOFF(r)}, v{IX(r)}, 1, v54")
        I(f"v_cmp_lt_u32 s[{SM(0,r)}:{SM(0,r)+1}], v{IX(r)}, v{EN(r)}")
        I(f"v_add_u32 v41, 16, v{IX(r)}")
        I(f"s_mov_b64 exec, s[{SM(0,r)}:{SM(0,r)+1}]")
        lab = uid("K2_SK")
        I(f"s_cbranch_execz {lab}")
        I(f"buffer_load_ushort v{VR(0,r)+1}, v{VOFF(r)}, s[96:99], s{36+r} offen" + FL[opt.ld2])
        L(lab)
        I("s_mov_b64 exec, s[72:73]")
        I(f"v_cmp_lt_u32 s[{SM(1,r)}:{SM(1,r)+1}], v41, v{EN(r)}")
    for r in range(4):
        lab = uid("K2_SK")
        I(f"s_mov_b64 exec, s[{SM(1,r)}:{SM(1,r)+1}]")
        I(f"s_cbranch_execz {lab}")
        I(f"buffer_load_ushort v{VR(1,r)+1}, v{VOFF(r)}, s[96:99], s{36+r} offen offset:32" + FL[opt.ld2])
        L(lab)
    I("s_mov_b64 exec, s[72:73]")
    for r in range(4):
        I(f"v_add_u32 v42, 32, v{IX(r)}")
        I(f"v_cmp_lt_u32 s[{SM(2,r)}:{SM(2,r)+1}], v42, v{EN(r)}")
        I(f"v_add_u32 v43, 48, v{IX(r)}")
        I(f"v_cmp_lt_u32 vcc, v43, v{EN(r)}")
        I(f"v_lshlrev_b32 v{VOFP(r)}, 1, v{VOFF(r)}")
        I("s_or_b64 s[70:71], s[70:71], vcc")
    I(f"s_or_b64 s[74:75], s[{SM(2,0)}:{SM(2,0)+1}], s[{SM(2,1)}:{SM(2,1)+1}]")
    I(f"s_or_b64 s[74:75], s[74:75], s[{SM(2,2)}:{SM(2,2)+1}]")
    I(f"s_or_b64 s[74:75], s[74:75], s[{SM(2,3)}:{SM(2,3)+1}]")
    I("s_cselect_b32 s83, 1, 0")
    I("s_cbranch_scc0 K2_NT3A")
    for r in range(4):
        lab = uid("K2_SK")
        I(f"s_mov_b64 exec, s[{SM(2,r)}:{SM(2,r)+1}]")
        I(f"s_cbranch_execz {lab}")
        I(f"buffer_load_ushort v{VR(2,r)+1}, v{VOFF(r)}, s[96:99], s{36+r} offen offset:64" + FL[opt.ld2])
        I(f"buffer_load_dword v{VR(2,r)}, v{VOFP(r)}, s[20:23], s{40+r} offen offset:128" + FL[opt.ld2])
        L(lab)
    I("s_mov_b64 exec, s[72:73]")
    L("K2_NT3A")
    I("s_mov_b64 exec, s[72:73]")
    if opt.lateinit: init_block()
    I(f"v_mov_b32 v{ONE}, 1")
    I(f"v_mov_b32 v11, 32")
    I("s_waitcnt lgkmcnt(0)")
    if opt.payafter:
        I("s_barrier")
    for t in range(2):
        for r in range(4):
            I(f"buffer_load_dword v{VR(t,r)}, v{VOFP(r)}, s[20:23], s{40+r} offen" + (f" offset:{64*t}" if t else "") + FL[opt.ld2])
    if not opt.payafter:
        I("s_barrier")
    I("s_waitcnt vmcnt(8)")
    stamp(2, 124)
    for t in range(3):
        if t == 2:
            I("s_cmp_eq_u32 s83, 0")
            I("s_cbranch_scc1 K2_NT3B")
        for r in range(4):
            lab = uid("K2_SC")
            I(f"s_mov_b64 exec, s[{SM(t,r)}:{SM(t,r)+1}]")
            I(f"s_cbranch_execz {lab}")
            I(f"ds_add_rtn_u32 v{VK(t,r)}, v{VR(t,r)+1}, v11 offset:{L_CNT}")
            L(lab)
    L("K2_NT3B")
    I("s_mov_b64 exec, s[72:73]")
    I("s_cmp_eq_u64 s[70:71], 0")
    I("s_cbranch_scc1 K2_NOH")
    I(f"v_mov_b32 v41, {L_HEAVY}")
    I(f"ds_write_b32 v41, v{ONE}")
    L("K2_NOH")
    I("s_waitcnt lgkmcnt(0)")
    I("s_barrier")
    stamp(3, 124)
    I("s_cmp_ge_u32 s10, 4")
    I("s_cbranch_scc1 K2_NOSORT0")
    C = lambda q: 100 + q
    KY, R2, SL, TT, ST, NI = 44, 45, 46, 47, 48, 49
    A, B, Cc, Dd = 116, 117, 118, 119
    I("s_lshl_b32 s12, s10, 6")
    I(f"v_add_u32 v{NI}, s12, v{V_LANE}")
    I(f"v_lshlrev_b32 v{A}, 4, v{NI}")
    I(f"ds_read_b128 v[{C(0)}:{C(3)}], v{A} offset:{L_CNT}")
    I("s_movk_i32 s12, 208")
    I(f"v_cmp_gt_u32 s[74:75], s12, v{NI}")
    I(f"v_lshlrev_b32 v{B}, 2, v{V_LANE}")
    I("s_movk_i32 s76, 0xc0")
    I("s_waitcnt lgkmcnt(0)")
    I(f"v_add_u32 v{TT}, v{C(0)}, v{C(1)}")
    I(f"v_add3_u32 v{TT}, v{TT}, v{C(2)}, v{C(3)}")
    I(f"v_lshrrev_b32 v{TT}, 5, v{TT}")
    I(f"v_min_u32 v{KY}, 63, v{TT}")
    I(f"v_lshlrev_b32 v{KY}, 2, v{KY}")
    I("s_mov_b64 exec, s[74:75]")
    I(f"ds_add_rtn_u32 v{R2}, v{KY}, v{ONE} offset:{L_H2}")
    I("s_mov_b64 exec, s[72:73]")
    I("s_waitcnt lgkmcnt(0)")
    I("s_barrier")
    I(f"ds_read_b32 v{Cc}, v{B} offset:{L_H2}")
    I("s_waitcnt lgkmcnt(0)")
    I(f"v_mov_b32 v{Dd}, v{Cc}")
    wave_scan(Dd)
    I(f"v_sub_u32 v{Dd}, v{Dd}, v{Cc}")
    I("s_nop 0")
    I(f"ds_bpermute_b32 v{SL}, v{KY}, v{Dd}")
    I("s_waitcnt lgkmcnt(0)")
    I(f"v_add_u32 v{R2}, v{R2}, v{SL}")
    I(f"v_cmp_le_u32 s[12:13], s76, v{R2}")
    I(f"v_lshrrev_b32 v{SL}, 4, v{R2}")
    I(f"v_lshrrev_b32 v{Cc}, 3, v{R2}")
    I(f"v_subrev_u32 v{Cc}, 12, v{Cc}")
    I(f"v_mov_b32 v{ST}, 2")
    I(f"v_cndmask_b32_e64 v{SL}, v{SL}, v{Cc}, s[12:13]")
    I(f"v_cndmask_b32_e64 v{ST}, v{ST}, 1, s[12:13]")
    I(f"v_lshlrev_b32 v{SL}, 2, v{SL}")
    I("s_mov_b64 exec, s[74:75]")
    I(f"ds_max_u32 v{SL}, v{TT} offset:{L_WM}")
    I(f"ds_write_b8 v{R2}, v{NI} offset:{L_ORD}")
    I("s_mov_b64 exec, s[72:73]")
    I(f"v_lshlrev_b32 v{KY}, 3, v{ST}")
    I(f"v_subrev_u32 v{KY}, 1, v{KY}")
    I(f"v_and_b32 v{KY}, v{KY}, v{R2}")
    I(f"v_add_u32 v{TT}, v{C(0)}, v{C(1)}")
    I(f"v_add_u32 v{R2}, v{TT}, v{C(2)}")
    I("s_waitcnt lgkmcnt(0)")
    I("s_barrier")
    I(f"ds_read_b32 v{Cc}, v{B} offset:{L_WM}")
    I(f"v_cmp_gt_u32 vcc, 12, v{V_LANE}")
    I("s_waitcnt lgkmcnt(0)")
    I(f"v_add_u32 v{Dd}, 1, v{Cc}")
    I(f"v_lshrrev_b32 v{Dd}, 1, v{Dd}")
    I(f"v_cndmask_b32 v{Cc}, v{Dd}, v{Cc}, vcc")
    I(f"v_lshlrev_b32 v{Dd}, 6, v{Cc}")
    I(f"v_mov_b32 v120, v{Dd}")
    wave_scan(120, 16)
    I("s_nop 1")
    I("v_readlane_b32 s76, v120, 11")
    I("v_readlane_b32 s15, v120, 15")
    I(f"v_sub_u32 v120, v120, v{Dd}")
    I(f"v_add_u32 v121, {L_LN}, v120")
    I(f"s_sub_u32 s14, {L_LS}, s76")
    I("v_add_u32 v120, s14, v120")
    I("v_cndmask_b32 v120, v120, v121, vcc")
    I("s_nop 0")
    I(f"ds_bpermute_b32 v{SL}, v{SL}, v120")
    I("s_cmp_lg_u32 s10, 0")
    I("s_cbranch_scc1 K2_NOHDR")
    I(f"v_cmp_gt_u32 vcc, 16, v{V_LANE}")
    I("s_and_saveexec_b64 s[12:13], vcc")
    I(f"ds_write_b32 v{B}, v120 offset:{L_WB}")
    I(f"ds_write_b32 v{B}, v{Cc} offset:{L_SU}")
    I("s_mov_b64 exec, s[12:13]")
    I("s_sub_u32 s15, s15, s76")
    I(f"s_cmp_gt_u32 s76, {LN_CAP}")
    I("s_cbranch_scc1 K2_CAPBAD")
    I(f"s_cmp_le_u32 s15, {LS_CAP}")
    I("s_cbranch_scc1 K2_NOHDR")
    L("K2_CAPBAD")
    I(f"v_mov_b32 v41, {L_HEAVY}")
    I(f"ds_write_b32 v41, v{ONE}")
    L("K2_NOHDR")
    I("s_waitcnt lgkmcnt(0)")
    I(f"v_lshl_add_u32 v{C(3)}, v{KY}, 2, v{SL}")
    I(f"v_mad_u32_u24 v{C(1)}, v{C(0)}, v{ST}, v{C(3)}")
    I(f"v_mov_b32 v{C(0)}, v{C(3)}")
    I(f"v_mad_u32_u24 v{C(2)}, v{TT}, v{ST}, v{C(0)}")
    I(f"v_mad_u32_u24 v{C(3)}, v{R2}, v{ST}, v{C(0)}")
    I("s_mov_b64 exec, s[74:75]")
    I(f"ds_write_b128 v{A}, v[{C(0)}:{C(3)}] offset:{L_NBQ}")
    I("s_mov_b64 exec, s[72:73]")
    I("s_waitcnt vmcnt(0) lgkmcnt(0)")
    I("s_branch K2_NOSORT")
    L("K2_NOSORT0")
    I("s_waitcnt vmcnt(0)")
    if nb:
        lab = uid("PFX")
        I(f"s_cmp_lt_u32 s10, {16 - nb}")
        I(f"s_cbranch_scc1 {lab}")
        I(f"s_mov_b32 s15, {(16 - nb) * PFU}")
        I(f"v_subrev_u32 v48, s15, v48")
        I(f"buffer_load_dword v{V_PFD}, v48, s[24:27], 0 offen")
        L(lab)
    if opt.tlb2:
        lab = uid("TLB")
        I("s_cmp_lg_u32 s10, 11")
        I(f"s_cbranch_scc1 {lab}")
        I(f"v_lshlrev_b32 v44, 21, v{V_LANE}")
        I(f"v_add_u32 v44, {opt.tlb2off}, v44")
        I(f"buffer_load_dword v{V_PFD}, v44, s[24:27], 0 offen")
        if opt.tlb2 >= 3:
            I(f"v_lshlrev_b32 v45, 21, v{V_LANE}")
            I("s_lshl_b32 s15, s8, 7")
            I("v_add_u32 v45, s15, v45")
            I(f"buffer_load_dword v{V_PFD}, v45, s[28:31], 0 offen sc1")
        if opt.tlb2 >= 2:
            srd(88, 34, 35, TBL_BYTES)
            I(f"buffer_load_dword v{V_PFD}, v44, s[88:91], 0 offen")
        L(lab)
    I("s_barrier")
    I("s_barrier")
    L("K2_NOSORT")
    I("s_barrier")
    stamp(4, 124)
    I(f"v_mov_b32 v41, {L_HEAVY}")
    I("ds_read_b32 v41, v41")
    VP1 = lambda t, r: 100 + t * 4 + r
    for t in range(3):
        if t == 2:
            I("s_cmp_eq_u32 s83, 0")
            I("s_cbranch_scc1 K2_NT3C")
        for r in range(4):
            lab = uid("K2_SP")
            I(f"s_mov_b64 exec, s[{SM(t,r)}:{SM(t,r)+1}]")
            I(f"s_cbranch_execz {lab}")
            I(f"ds_read_b32 v{VP1(t,r)}, v{VR(t,r)+1} offset:{L_NBQ}")
            L(lab)
    L("K2_NT3C")
    I("s_mov_b64 exec, s[72:73]")
    I(f"s_lshl_b32 s45, s10, 2")
    I(f"v_mov_b32 v{V_A0}, s45")
    I(f"ds_read_b32 v{V_PTRI}, v{V_A0} offset:{L_SU}")
    I(f"ds_read_b32 v{V_PTRC}, v{V_A0} offset:{L_WB}")
    I(f"v_lshrrev_b32 v{V_NB}, 2, v{V_G4}")
    I(f"s_lshl_b32 s45, s10, 4")
    I(f"s_lshl_b32 s14, s10, 3")
    I(f"s_add_u32 s14, s14, 96")
    I(f"s_cmp_lt_u32 s10, 12")
    I(f"s_cselect_b32 s45, s45, s14")
    I(f"v_add_u32 v{V_NA}, s45, v{V_NB}")
    I(f"v_add_u32 v{V_NB}, 8, v{V_NA}")
    I(f"ds_read_u8 v{V_NA}, v{V_NA} offset:{L_ORD}")
    I(f"ds_read_u8 v{V_NB}, v{V_NB} offset:{L_ORD}")
    I("s_waitcnt lgkmcnt(0)")
    I("v_readfirstlane_b32 s77, v41")
    I(f"v_readfirstlane_b32 s{S_T}, v{V_PTRI}")
    I(f"v_add_u32 v{V_PTRC}, v{V_PTRC}, v{V_G4}")
    if opt.stamps: stamp(12, 124)
    I("s_cmp_lg_u32 s77, 0")
    I("s_cbranch_scc1 K2_NOPLACE")
    for t in range(3):
        if t == 2:
            I("s_cmp_eq_u32 s83, 0")
            I("s_cbranch_scc1 K2_NT3D")
        for r in range(4):
            lab = uid("K2_SW")
            I(f"s_mov_b64 exec, s[{SM(t,r)}:{SM(t,r)+1}]")
            I(f"s_cbranch_execz {lab}")
            I(f"v_mad_u32_u16 v{VP1(t,r)}, v{VK(t,r)}, v{VP1(t,r)}, v{VP1(t,r)} op_sel:[0,1,0,0]")
            I(f"ds_write_b32 v{VP1(t,r)}, v{VR(t,r)}")
            L(lab)
    L("K2_NT3D")
    I("s_mov_b64 exec, s[72:73]")
    L("K2_NOPLACE")
    I("s_waitcnt lgkmcnt(0)")
    if opt.stamps: stamp(13, 124)
    I("s_barrier")
    stamp(5, 124)
    if nc: pf_issue(7, V_PFD, 24, nc, 10)
    S_PH, S_SCR = 47, 83
    I(f"s_mov_b32 s{S_PH}, 0")
    I(f"s_cmp_lt_u32 s10, {NWORK}")
    I("s_cbranch_scc1 K2_KEEP")
    I("s_cmp_eq_u32 s77, 0")
    I("s_cbranch_scc1 K2_END")
    L("K2_KEEP")
    srd(16, 32, 33, 8192)
    I("v_lshlrev_b32 v110, 4, v0")
    I("buffer_load_dwordx4 v[112:115], v110, s[16:19], 0 offen")
    L("K2_PHASE")
    I("s_cmp_eq_u32 s77, 0")
    I("s_cbranch_scc1 K2_FAST")
    release_gate("v")
    heavy_path("K2H", 24, 6, 20, 96, 8, 10, K2_ACC, 16)
    heavy_read_acc(K2_ACC, 10)
    I("s_cmp_lt_u32 s10, 13")
    I("s_cbranch_scc1 K2_DONE")
    I(f"s_cmp_lg_u32 s{S_PH}, 0")
    I("s_cbranch_scc1 K2_END")
    I(f"v_mov_b32 v{V_NA}, 0xff")
    I(f"v_mov_b32 v{V_NB}, 0xff")
    I("s_branch K2_DONE")
    L("K2_FAST")
    I(f"s_cmp_eq_u32 s{S_PH}, 0")
    I("s_cbranch_scc1 K2_HOPIN0")
    hop_header(10, 41)
    I("s_branch K2_HOPIN")
    L("K2_HOPIN0")
    I("s_cmp_lt_u32 s10, 12")
    I("s_cbranch_scc1 K2_HOPIN")
    I(f"v_mov_b32 v{V_NB}, 0xff")
    L("K2_HOPIN")
    hop_wave("K2S", 24, 10, release_gate)
    split_fix("K2S", 10)
    L("K2_DONE")
    I(f"s_cmp_lg_u32 s{S_PH}, 0")
    I("s_cbranch_scc1 K2_GEMM")
    stamp(6, 124)
    I("s_lshl_b32 s45, s8, 7")
    for vn, va, t0, ad in ((V_NA, V_ACC, V_T, V_A0), (V_NB, V_ACC2, V_RC, V_A1)):
        for i in range(4):
            I(f"v_cvt_pk_bf16_f32 v{t0+i}, v{va+2*i}, v{va+2*i+1}")
        I(f"v_lshlrev_b32 v{ad}, 15, v{vn}")
        I(f"v_add3_u32 v{ad}, v{ad}, s45, v{V_F16}")
        I(f"buffer_store_dwordx4 v[{t0}:{t0+3}], v{ad}, s[28:31], 0 offen" + FL[opt.st2])
    E_SW, E_AB0, E_AB1, E_AW, E_BP, E_KB = 104, 105, 106, 107, 108, 109
    WF = 72
    I("v_cmp_gt_u32 vcc, 0x200, v0")
    I("s_and_saveexec_b64 s[72:73], vcc")
    I(f"ds_write_b128 v110, v[112:115] offset:{L_WL}")
    I("s_mov_b64 exec, s[72:73]")
    I(f"s_lshl_b32 s{S_SCR}, s10, 11")
    I(f"s_add_u32 s{S_SCR}, s{S_SCR}, {L_SCR}")
    I(f"v_lshlrev_b32 v60, 2, v{V_G4}")
    I(f"v_xor_b32 v61, v60, v{V_F16}")
    I(f"v_lshlrev_b32 v60, 3, v60")
    I(f"v_add3_u32 v{E_SW}, v60, v61, s{S_SCR}")
    I(f"v_and_b32 v60, 15, v{V_LANE}")
    I(f"v_lshrrev_b32 v{E_KB}, 4, v{V_LANE}")
    I(f"v_and_b32 v61, 7, v60")
    I(f"v_lshlrev_b32 v{E_BP}, 5, v61")
    I(f"v_xor_b32 v62, v{E_KB}, v61")
    I(f"v_lshlrev_b32 v62, 4, v62")
    I(f"v_lshlrev_b32 v63, 7, v60")
    I(f"v_add3_u32 v{E_AB0}, v63, s{S_SCR}, v62")
    I(f"v_xor_b32 v62, 64, v62")
    I(f"v_add3_u32 v{E_AB1}, v63, s{S_SCR}, v62")
    I(f"v_lshrrev_b32 v62, 2, v60")
    I(f"v_lshl_add_u32 v62, v{E_KB}, 3, v62")
    I(f"v_lshlrev_b32 v62, 7, v62")
    I(f"v_and_b32 v63, 3, v{V_LANE}")
    I(f"v_lshl_add_u32 v{E_AW}, v63, 4, v62")
    I(f"v_cmp_gt_u32 s[74:75], 8, v60")
    I(f"v_lshlrev_b32 v{E_KB}, 4, v{E_KB}")
    for i in range(8):
        I(f"v_mov_b32 v{V_ACC+i}, 0")
        I(f"v_mov_b32 v{V_ACC2+i}, 0")
    srd(24, 6, 7, TBL_BYTES, WS_H1)
    I("s_waitcnt vmcnt(0) lgkmcnt(0)")
    srd(28, 34, 35, TBL_BYTES)
    stamp(7, 124)
    if opt.own == 2:
        I(f"buffer_load_dword v{V_PFD}, v{V_A0}, s[24:27], 0 offen")
        I(f"buffer_load_dword v{V_PFD}, v{V_A1}, s[24:27], 0 offen")
    I("s_barrier")
    I("s_cmp_lg_u32 s10, 0")
    I("s_cbranch_scc1 K2_NOPOLL")
    grid_arrive()
    L("K2_NOPOLL")
    if opt.own == 1:
        I(f"buffer_load_dword v{V_PFD}, v{V_A0}, s[24:27], 0 offen")
        I(f"buffer_load_dword v{V_PFD}, v{V_A1}, s[24:27], 0 offen")
    for t in range(4):
        for s in range(2):
            for hh in range(2):
                off = L_WL + s * 4096 + hh * 512 + (t >> 1) * 64 + (t & 1) * 8
                d = WF + (t * 2 + s) * 4 + 2 * hh
                I(f"ds_read_b64_tr_b16 v[{d}:{d+1}], v{E_AW} offset:{off}")
    I(f"s_mov_b32 s{S_PH}, 1")
    I("s_branch K2_PHASE")
    L("K2_GEMM")
    stamp(9, 124)
    E_OUT = E_AW
    I(f"ds_bpermute_b32 v110, v{E_BP}, v{V_NA}")
    I(f"ds_bpermute_b32 v111, v{E_BP}, v{V_NB}")
    for va, t0, off in ((V_ACC, V_T, 0), (V_ACC2, V_RC, 1024)):
        for i in range(4):
            I(f"v_cvt_pk_bf16_f32 v{t0+i}, v{va+2*i}, v{va+2*i+1}")
        I(f"ds_write_b128 v{E_SW}, v[{t0}:{t0+3}] offset:{off}")
    B0, B1 = 40, 44
    I(f"ds_read_b128 v[{B0}:{B0+3}], v{E_AB0}")
    I(f"ds_read_b128 v[{B1}:{B1+3}], v{E_AB1}")
    DD = 56
    I("s_lshl_b32 s45, s8, 7")
    I("s_waitcnt lgkmcnt(1)")
    I(f"v_cndmask_b32_e64 v110, v111, v110, s[74:75]")
    for t in range(4):
        a = WF + (t * 2) * 4
        I(f"v_mfma_f32_16x16x32_bf16 v[{DD+4*t}:{DD+4*t+3}], v[{a}:{a+3}], v[{B0}:{B0+3}], 0")
    I(f"v_lshlrev_b32 v110, 15, v110")
    I("s_waitcnt lgkmcnt(0)")
    for t in range(4):
        a = WF + (t * 2 + 1) * 4
        I(f"v_mfma_f32_16x16x32_bf16 v[{DD+4*t}:{DD+4*t+3}], v[{a}:{a+3}], v[{B1}:{B1+3}], v[{DD+4*t}:{DD+4*t+3}]")
    I(f"v_add3_u32 v{E_OUT}, v110, s45, v{E_KB}")
    O = 48
    I("s_nop 4")
    for half in range(2):
        for k in range(2):
            t = half * 2 + k
            if t == 3: I("s_nop 1")
            I(f"v_cvt_pk_bf16_f32 v{O+half*4+2*k}, v{DD+4*t}, v{DD+4*t+1}")
            I(f"v_cvt_pk_bf16_f32 v{O+half*4+2*k+1}, v{DD+4*t+2}, v{DD+4*t+3}")
        I(f"buffer_store_dwordx4 v[{O+half*4}:{O+half*4+3}], v{E_OUT}, s[28:31], 0 offen" + (" offset:64" if half else "") + FL[opt.st3])
    stamp(10, 124)
    if opt.stamps:
        I("s_waitcnt vmcnt(0)")
        stamp(11, 124)
    if opt.dbg:
        I("s_waitcnt vmcnt(0)")
        dstamp(11)
        lab = uid("DBG")
        I("s_or_b32 s14, s2, s10")
        I("s_cmp_lg_u32 s14, 0")
        I(f"s_cbranch_scc1 {lab}")
        I("s_load_dwordx2 s[92:93], s[0:1], 48")
        I(f"v_lshlrev_b32 v126, 2, v{V_LANE}")
        I("v_add_u32 v125, 0x3000000, v126")
        I("global_load_dword v124, v125, s[6:7] sc1")
        I("s_waitcnt vmcnt(0) lgkmcnt(0)")
        I(f"v_cmp_le_u32 vcc, 12, v{V_LANE}")
        I("s_nop 1")
        I("v_cndmask_b32 v127, v127, v124, vcc")
        I("s_mov_b64 exec, 0xffff")
        I("global_store_dword v126, v127, s[92:93]")
        L(lab)
    L("K2_END")
    I("s_endpgm")
    hop_subs("K2S")
    L("GPOLL")
    grid_poll("G2")
    I(f"s_setpc_b64 s[{S_RET}:{S_RET+1}]")
    I("s_endpgm")
    L("K2_CODE_END")
    return name, 128, 102

HEADER = f"""; Kernarg layout for this problem (64 bytes, ptrs only, base s[0:1]):
; @launch kernel=sgc_part_kernel grid=(256,1,1) block=(K1BLK,1,1) lds={K1_LDS}
; @launch kernel=sgc_prop_kernel grid=(256,1,1) block=(1024,1,1) lds=K2LDS
.amdgcn_target "amdgcn-amd-amdhsa--gfx950"
.text"""

def main():
    for a in sys.argv[2:]:
        k, v = a.split("=")
        assert hasattr(opt, k), k
        setattr(opt, k, int(v))
    h = HEADER.replace("K2LDS", str(K2_LDS)).replace("K1BLK", ("896" if opt.cpf else "832") if opt.k1v == 1 else "448")
    emit(h)
    ks = [gen_k1(), gen_k2()]
    emit('.section .rodata,"a"')
    emit(".p2align 6")
    for (n, v, s) in ks:
        kernel_desc(n, v, s)
        emit(".p2align 6")
    open(sys.argv[1], "w").write("\n".join(out) + "\n")

main()
```

```python
import sys

N = 50000
E = 850000
CH = 3328
NCH = 256
RECP = CH * 4
RECH = CH * 2
WS_SEG = 0
WS_RECH = 0x40000
WS_RECP = 0x200400
WS_IMG = 0x6C0000
WS_H1 = 0xC00000
WS_SYNC = 0x1E0000
TBL_BYTES = N * 128
SAFE = 0x0000FFFF

class Opt:
    D = 4
    R = 8
    skew = 0
    pf1 = 0
    pf2b = 4
    pf2c = 0
    pf3 = 2
    pf3c = 0
    stamps = 0
    st1 = 1
    st2 = 1
    st2i = 1
    st3 = 1
    dbg = 0
    rst = 0
    nbar = 6
    pfs = 0
    pfsr = 2
    pfs3 = 0
    ld1 = 3
    ld2 = 0
    ld3 = 0
    skip3 = 0
    k1v = 1
    ldg = 1
    spin = 16000000
    brep = 16
    pfpos = 1
    poll2 = 0
    own = 0
    cpf = 0
    tlb2 = 0
    tlb1 = 0
    k1h = 0
    k1d = 0
    skipb = 0
    pollf = 1
    dbgx = 0
    t1 = 0
    tlb2off = 1048576
    cpfall = 0
    cpfn = 2
    lateinit = 0
    payafter = 1
    tlb = 0
    bsh = 4
    slp = 6
    smalllds = 0
    k3w = 16

opt = Opt()
out = []
def emit(s=""): out.append(s)
def I(s): out.append("    " + s)
def L(s): out.append(s + ":")
_uid = [0]
def uid(p):
    _uid[0] += 1
    return f"{p}_{_uid[0]}"

FL = ['', ' sc1', ' sc0 sc1', ' nt', ' sc0']
def srd(s, lo, hi, size, add=0):
    if add:
        I(f"s_add_u32 s{s}, s{lo}, {add}")
        I(f"s_addc_u32 s{s+1}, s{hi}, 0")
        I(f"s_and_b32 s{s+1}, s{s+1}, 0xffff")
    else:
        I(f"s_mov_b32 s{s}, s{lo}")
        I(f"s_and_b32 s{s+1}, s{hi}, 0xffff")
    I(f"s_mov_b32 s{s+2}, {size}")
    I(f"s_mov_b32 s{s+3}, 0x20000")

def wave_scan(v, n=64):
    for sh in (1, 2, 4, 8):
        I("s_nop 1")
        I(f"v_add_u32_dpp v{v}, v{v}, v{v} row_shr:{sh} row_mask:0xf bank_mask:0xf")
    if n > 16:
        I("s_nop 1")
        I(f"v_add_u32_dpp v{v}, v{v}, v{v} row_bcast:15 row_mask:0xa bank_mask:0xf")
        I("s_nop 1")
        I(f"v_add_u32_dpp v{v}, v{v}, v{v} row_bcast:31 row_mask:0xc bank_mask:0xf")

STAMP_OFF = 0x2000000
def stamp_init(kidx, ws_lo, vbase):
    if not opt.stamps: return
    I(f"v_lshrrev_b32 v{vbase}, 6, v0")
    I(f"s_lshl_b32 s92, s2, 4")
    I(f"s_add_u32 s92, s92, {kidx*256*16}")
    I(f"v_add_u32 v{vbase}, s92, v{vbase}")
    I(f"v_lshlrev_b32 v{vbase}, 7, v{vbase}")
    I(f"v_add_u32 v{vbase}, {STAMP_OFF}, v{vbase}")
    I(f"s_mov_b32 s94, s{ws_lo}")
    I(f"s_mov_b32 s95, s{ws_lo+1}")
_cur = [1]
def dstamp(j):
    I("s_memrealtime s[90:91]")
    I("s_waitcnt lgkmcnt(0)")
    I(f"v_writelane_b32 v127, s90, {j}")
def stamp(j, vbase, pre=None):
    if opt.dbg:
        if j <= 11 and pre is None: dstamp(j + (0 if _cur[0] == 2 else 12))
        return
    if not opt.stamps: return
    if pre is None:
        I("s_memrealtime s[90:91]")
        I("s_waitcnt lgkmcnt(0)")
    else:
        I(f"s_mov_b32 s90, s{pre}")
        I(f"s_mov_b32 s91, s{pre+1}")
    I("s_mov_b64 s[88:89], exec")
    I("s_mov_b64 exec, 1")
    I(f"v_mov_b32 v{vbase+2}, s90")
    I(f"v_mov_b32 v{vbase+3}, s91")
    I(f"global_store_dwordx2 v{vbase}, v[{vbase+2}:{vbase+3}], s[94:95] offset:{8*j}")
    I("s_mov_b64 exec, s[88:89]")

def kernel_begin(name):
    emit(f".globl {name}")
    emit(".p2align 8")
    emit(f".type {name},@function")
    L(name)

def kernel_desc(name, vgpr, sgpr):
    acc = (vgpr + 3) // 4 * 4
    emit(f".amdhsa_kernel {name}")
    emit(f"  .amdhsa_next_free_vgpr {vgpr}")
    emit(f"  .amdhsa_next_free_sgpr {sgpr}")
    emit(f"  .amdhsa_accum_offset {acc}")
    emit("  .amdhsa_group_segment_fixed_size 0")
    emit("  .amdhsa_kernarg_size 64")
    emit("  .amdhsa_user_sgpr_count 2")
    emit("  .amdhsa_user_sgpr_kernarg_segment_ptr 1")
    emit("  .amdhsa_system_sgpr_workgroup_id_x 1")
    emit(".end_amdhsa_kernel")

PFU = 8192
def pf_setup(vaddr, n, base_bytes):
    I("s_lshr_b32 s15, s2, 3")
    I(f"s_mul_i32 s15, s15, {n*PFU}")
    if base_bytes: I(f"s_add_u32 s15, s15, {base_bytes}")
    I(f"v_lshlrev_b32 v{vaddr}, 7, v0")
    I(f"v_add_u32 v{vaddr}, s15, v{vaddr}")
def pf_issue(vaddr, vdst, tbl, n, sW, nw=16):
    rounds = (n + nw - 1) // nw
    for i in range(rounds):
        cnt = min(nw, n - nw * i)
        lab = uid("PF")
        if cnt < nw:
            I(f"s_cmp_ge_u32 s{sW}, {cnt}")
            I(f"s_cbranch_scc1 {lab}")
        I(f"s_mov_b32 s15, {i*nw*PFU}")
        I(f"buffer_load_dword v{vdst}, v{vaddr}, s[{tbl}:{tbl+3}], s15 offen")
        L(lab)

def pf_stream(tbl, sW, nunits, base_bytes, per_round, vaddr, nrounds_max):
    I("s_lshr_b32 s15, s2, 3")
    I(f"s_mul_i32 s15, s15, {nunits*PFU}")
    I(f"s_add_u32 s15, s15, {base_bytes}")
    I(f"s_sub_u32 s14, s{sW}, {NWORK}")
    I(f"s_mul_i32 s14, s14, {PFU}")
    I("s_add_u32 s15, s15, s14")
    I(f"v_lshlrev_b32 v{vaddr}, 7, v{V_LANE}")
    I(f"v_add_u32 v{vaddr}, s15, v{vaddr}")
    k = 0
    nsteps = (nunits + 1) // 2
    rnd = 0
    while k < nsteps:
        for _ in range(per_round):
            if k >= nsteps: break
            I(f"s_mov_b32 s15, {k*2*PFU}")
            I(f"buffer_load_dword v{V_PFD}, v{vaddr}, s[{tbl}:{tbl+3}], s15 offen")
            k += 1
        rnd += 1
        if k < nsteps and rnd <= nrounds_max:
            I("s_barrier")

K1_HIST = 0
K1_PRE = 1024
K1_STP = 2048
K1_STH = K1_STP + RECP
K1_LDS = K1_STH + RECH

def gen_k1():
    if not opt.k1h: return gen_k1_old()
    name = "sgc_part_kernel"
    NT = 832
    kernel_begin(name)
    I("s_cmp_ge_u32 s2, 256")
    I("s_cbranch_scc1 K1_END")
    I("s_load_dwordx2 s[10:11], s[0:1], 56")
    I("v_readfirstlane_b32 s15, v0")
    I("s_lshr_b32 s46, s15, 6")
    I("s_cmp_lt_u32 s46, 13")
    I("s_cbranch_scc1 K1_MAIN")
    I("v_and_b32 v1, 63, v0")
    I("v_mov_b32 v4, 0")
    I("s_getpc_b64 s[48:49]")
    L("CPF_PC")
    I("s_add_u32 s48, s48, sgc_prop_kernel - CPF_PC")
    I("s_addc_u32 s49, s49, 0")
    I("v_lshlrev_b32 v7, 7, v1")
    I("s_mov_b64 s[12:13], exec")
    I(f"s_cmp_ge_u32 s2, {opt.cpf}")
    I("s_cbranch_scc1 K1_NOCPF")
    I("v_cmp_gt_u32 vcc, K2_CODE_END - sgc_prop_kernel, v7")
    I("s_and_b64 exec, exec, vcc")
    I("s_cbranch_execz K1_NOCPF0")
    I("global_load_dword v8, v7, s[48:49]")
    L("K1_NOCPF0")
    I("s_mov_b64 exec, s[12:13]")
    L("K1_NOCPF")
    I("s_waitcnt lgkmcnt(0)")
    I("s_cmp_lg_u32 s2, 0")
    I("s_cbranch_scc1 K1_NOZ")
    I(f"v_add_u32 v7, {WS_SYNC}, v7")
    I("global_store_dword v7, v4, s[10:11] sc1")
    L("K1_NOZ")
    srd(28, 10, 11, NCH * 1024, WS_SEG)
    I("v_lshlrev_b32 v5, 4, v1")
    I("s_lshl_b32 s37, s2, 10")
    I("s_barrier")
    I("s_barrier")
    I(f"ds_read_b128 v[72:75], v5 offset:{K1_HIST}")
    I("s_waitcnt lgkmcnt(0)")
    I("v_add_u32 v76, v72, v73")
    I("v_add_u32 v77, v76, v74")
    I("v_add_u32 v78, v77, v75")
    I("v_mov_b32 v79, v78")
    wave_scan(79)
    I("v_sub_u32 v80, v79, v78")
    I("v_add_u32 v81, v80, v72")
    I("v_add_u32 v82, v80, v76")
    I("v_add_u32 v83, v80, v77")
    I(f"ds_write_b128 v5, v[80:83] offset:{K1_PRE}")
    I("v_lshl_or_b32 v72, v81, 16, v80")
    I("v_lshl_or_b32 v73, v82, 16, v81")
    I("v_lshl_or_b32 v74, v83, 16, v82")
    I("v_lshl_or_b32 v75, v79, 16, v83")
    I("s_waitcnt lgkmcnt(0)")
    I("s_barrier")
    I("buffer_store_dwordx4 v[72:75], v5, s[28:31], s37 offen" + FL[opt.st1])
    I("s_endpgm")
    L("K1_MAIN")
    if opt.stamps: I("s_memrealtime s[86:87]")
    I("s_load_dwordx4 s[4:7], s[0:1], 8")
    I("s_load_dwordx2 s[8:9], s[0:1], 24")
    I(f"s_mul_i32 s3, s2, {CH}")
    I("v_lshl_add_u32 v1, v0, 2, s3")
    I("v_lshlrev_b32 v2, 2, v1")
    I("v_lshlrev_b32 v3, 1, v1")
    I("v_mov_b32 v4, 0")
    I("v_lshlrev_b32 v5, 2, v0")
    I("v_cmp_gt_u32 vcc, 0x100, v0")
    I("s_and_saveexec_b64 s[12:13], vcc")
    I(f"ds_write_b32 v5, v4 offset:{K1_HIST}")
    I("s_mov_b64 exec, s[12:13]")
    I("s_waitcnt lgkmcnt(0)")
    stamp_init(0, 10, 124); stamp(0, 124, 86)
    srd(16, 6, 7, E * 4)
    D = lambda i: 8 + i
    S = lambda i: 12 + i
    NR = lambda i: 16 + i
    HA = lambda i: 40 + i
    RK = lambda i: 48 + i
    PL = lambda i: 56 + i
    HI = lambda i: 64 + i
    I(f"buffer_load_dwordx4 v[{D(0)}:{D(3)}], v2, s[16:19], 0 offen" + FL[opt.ld1])
    srd(20, 4, 5, E * 4)
    srd(24, 8, 9, E * 2)
    if not opt.k1d:
        I(f"buffer_load_dwordx4 v[{S(0)}:{S(3)}], v2, s[20:23], 0 offen" + FL[opt.ld1])
        I(f"buffer_load_dwordx2 v[{NR(0)}:{NR(1)}], v3, s[24:27], 0 offen" + FL[opt.ld1])
    srd(32, 10, 11, NCH * RECP, WS_RECP)
    srd(52, 10, 11, NCH * RECH, WS_RECH)
    I("s_mov_b32 s36, 0xffff0000")
    I("s_mov_b32 s37, 21474")
    I("s_mov_b64 s[12:13], exec")
    I(f"s_mov_b32 s14, {E}")
    I("v_cmp_gt_u32 s[58:59], s14, v1")
    I("v_mov_b32 v6, 1")
    I("s_barrier")
    if opt.k1d:
        I(f"buffer_load_dwordx4 v[{S(0)}:{S(3)}], v2, s[20:23], 0 offen" + FL[opt.ld1])
        I(f"buffer_load_dwordx2 v[{NR(0)}:{NR(1)}], v3, s[24:27], 0 offen" + FL[opt.ld1])
    I("s_waitcnt vmcnt(2)")
    stamp(1, 124)
    I("s_mov_b64 exec, s[58:59]")
    for i in range(4):
        I(f"v_and_b32 v{HA(i)}, 0xff, v{D(i)}")
        I(f"v_lshlrev_b32 v{HA(i)}, 2, v{HA(i)}")
        I(f"ds_add_rtn_u32 v{RK(i)}, v{HA(i)}, v6 offset:{K1_HIST}")
    I("s_mov_b64 exec, s[12:13]")
    I("s_waitcnt lgkmcnt(0)")
    I("s_barrier")
    I("s_waitcnt vmcnt(0)")
    I(f"v_lshl_or_b32 v{PL(0)}, v{NR(0)}, 16, v{S(0)}")
    I(f"v_and_or_b32 v{PL(1)}, v{NR(0)}, s36, v{S(1)}")
    I(f"v_lshl_or_b32 v{PL(2)}, v{NR(1)}, 16, v{S(2)}")
    I(f"v_and_or_b32 v{PL(3)}, v{NR(1)}, s36, v{S(3)}")
    for i in range(4):
        I(f"v_mul_u32_u24 v7, s37, v{S(i)}")
        I("v_lshrrev_b32 v7, 26, v7")
        I("v_and_b32 v7, 12, v7")
        I(f"v_lshrrev_b32 v{HI(i)}, 8, v{D(i)}")
        I(f"v_lshl_or_b32 v{HI(i)}, v{HI(i)}, 4, v7")
    I("s_barrier")
    I("s_mov_b64 exec, s[58:59]")
    for i in range(4):
        I(f"ds_read_b32 v{HA(i)}, v{HA(i)} offset:{K1_PRE}")
    I("s_waitcnt lgkmcnt(0)")
    for i in range(4):
        I(f"v_add_u32 v{HA(i)}, v{HA(i)}, v{RK(i)}")
        I(f"v_lshlrev_b32 v{RK(i)}, 2, v{HA(i)}")
        I(f"v_lshlrev_b32 v{HA(i)}, 1, v{HA(i)}")
        I(f"ds_write_b32 v{RK(i)}, v{PL(i)} offset:{K1_STP}")
        I(f"ds_write_b16 v{HA(i)}, v{HI(i)} offset:{K1_STH}")
    I("s_mov_b64 exec, s[12:13]")
    I("v_lshlrev_b32 v5, 4, v0")
    I(f"s_mul_i32 s37, s2, {RECP}")
    I(f"s_mul_i32 s42, s2, {RECH}")
    I(f"s_mov_b32 s14, {RECH//16}")
    I("v_cmp_gt_u32 vcc, s14, v0")
    I("s_waitcnt lgkmcnt(0)")
    I("s_barrier")
    I(f"ds_read_b128 v[8:11], v5 offset:{K1_STP}")
    I("s_mov_b64 exec, vcc")
    I(f"ds_read_b128 v[16:19], v5 offset:{K1_STH}")
    I("s_mov_b64 exec, s[12:13]")
    I("s_waitcnt lgkmcnt(1)")
    I("buffer_store_dwordx4 v[8:11], v5, s[32:35], s37 offen" + FL[opt.st1])
    I("s_waitcnt lgkmcnt(0)")
    I("s_mov_b64 exec, vcc")
    I("s_cbranch_execz K1_FIN")
    I("buffer_store_dwordx4 v[16:19], v5, s[52:55], s42 offen" + FL[opt.st1])
    L("K1_FIN")
    I("s_mov_b64 exec, s[12:13]")
    stamp(2, 124)
    if opt.stamps:
        I("s_waitcnt vmcnt(0)")
        stamp(3, 124)
    L("K1_END")
    I("s_endpgm")
    return name, (128 if opt.stamps else 88), (102 if opt.stamps else 64)

def gen_k1_old():
    name = "sgc_part_kernel"
    V = opt.k1v
    NT = 832 // V
    kernel_begin(name)
    I("s_cmp_ge_u32 s2, 256")
    I("s_cbranch_scc1 K1_END")
    if opt.cpf:
        I("v_readfirstlane_b32 s15, v0")
        I("s_lshr_b32 s15, s15, 6")
        I("s_cmp_lt_u32 s15, 13")
        I("s_cbranch_scc1 K1_MAIN")
        if opt.tlb1:
            I("s_load_dwordx2 s[10:11], s[0:1], 56")
            I("v_and_b32 v92, 63, v0")
            I("v_lshlrev_b32 v92, 21, v92")
            I("v_add_u32 v92, 0x1f0000, v92")
            I("v_and_b32 v93, 63, v0")
            I("v_cmp_eq_u32 vcc, 1, v93")
            I("v_mov_b32 v93, 0x200000")
            I("s_nop 0")
            I("v_cndmask_b32 v92, v92, v93, vcc")
            I("s_mov_b64 s[12:13], exec")
            I("s_mov_b64 exec, 7")
            I("s_waitcnt lgkmcnt(0)")
            I("global_load_dword v93, v92, s[10:11]")
            I("s_mov_b64 exec, s[12:13]")
        I(f"s_cmp_ge_u32 s2, {opt.cpf}")
        I("s_cbranch_scc1 K1_END")
        I("s_getpc_b64 s[48:49]")
        L("CPF_PC")
        if opt.cpfall:
            I("s_sub_u32 s48, s48, CPF_PC - sgc_part_kernel")
            I("s_subb_u32 s49, s49, 0")
            I("v_and_b32 v90, 63, v0")
            I("v_lshlrev_b32 v90, 7, v90")
            I("v_cmp_gt_u32 vcc, K2_CODE_END - sgc_part_kernel, v90")
            I("s_and_saveexec_b64 s[12:13], vcc")
            I("global_load_dword v91, v90, s[48:49]")
            I("v_add_u32 v90, 8192, v90")
            I("v_cmp_gt_u32 vcc, K2_CODE_END - sgc_part_kernel, v90")
        else:
            I("s_add_u32 s48, s48, sgc_prop_kernel - CPF_PC")
            I("s_addc_u32 s49, s49, 0")
            I("v_and_b32 v90, 63, v0")
            I("v_lshlrev_b32 v90, 7, v90")
            I("v_cmp_gt_u32 vcc, K2_CODE_END - sgc_prop_kernel, v90")
        I("s_and_saveexec_b64 s[12:13], vcc")
        I("s_cbranch_execz K1_END")
        I("global_load_dword v91, v90, s[48:49]")
        I("s_endpgm")
        L("K1_MAIN")
    if opt.stamps: I("s_memrealtime s[86:87]")
    I("s_load_dwordx4 s[4:7], s[0:1], 8")
    I("s_load_dwordx2 s[8:9], s[0:1], 24")
    I("s_load_dwordx2 s[10:11], s[0:1], 56")
    I(f"s_mul_i32 s3, s2, {CH}")
    I("v_lshl_add_u32 v1, v0, 2, s3")
    I("v_lshlrev_b32 v2, 2, v1")
    I("v_lshlrev_b32 v3, 1, v1")
    I("v_mov_b32 v4, 0")
    I("v_lshlrev_b32 v5, 2, v0")
    I("v_cmp_gt_u32 vcc, 0x100, v0")
    I("s_and_saveexec_b64 s[12:13], vcc")
    I(f"ds_write_b32 v5, v4 offset:{K1_HIST}")
    I("s_mov_b64 exec, s[12:13]")
    I("v_readfirstlane_b32 s15, v0")
    I("s_waitcnt lgkmcnt(0)")
    if opt.dbg:
        I("v_mov_b32 v127, 0")
        dstamp(12)
    stamp_init(0, 10, 124); stamp(0, 124, 86)
    if opt.t1:
        I("v_and_b32 v92, 63, v0")
        I("v_mov_b32 v94, s6")
        I("v_mov_b32 v95, s7")
        for ln, lo, hi in ((1, 4, 5), (2, 8, 9), (3, 10, 11), (4, 10, 11), (5, 10, 11)):
            I(f"v_cmp_eq_u32 vcc, {ln}, v92")
            I(f"v_mov_b32 v96, s{lo}")
            I(f"v_mov_b32 v97, s{hi}")
            I(f"v_cndmask_b32 v94, v94, v96, vcc")
            I(f"v_cndmask_b32 v95, v95, v97, vcc")
        I(f"s_lshl_b32 s14, s3, 2")
        I("v_mov_b32 v96, s14")
        I(f"s_lshl_b32 s14, s3, 1")
        for ln, val in ((2, "s14"), (3, "0x1f0000"), (4, "0x200000"), (5, "0x5f0000")):
            I(f"v_cmp_eq_u32 vcc, {ln}, v92")
            I(f"v_mov_b32 v97x, {val}".replace("v97x", "v93"))
            I("s_nop 0")
            I(f"v_cndmask_b32 v96, v96, v93, vcc")
        I("v_add_co_u32 v94, vcc, v94, v96")
        I("v_addc_co_u32 v95, vcc, 0, v95, vcc")
        I("s_mov_b64 s[12:13], exec")
        I("s_mov_b64 exec, 63")
        I("global_load_dword v93, v[94:95], off")
        I("s_mov_b64 exec, s[12:13]")
    srd(16, 6, 7, E * 4)
    D = lambda g, i: 8 + 16 * g + i
    S = lambda g, i: 12 + 16 * g + i
    NR = lambda g, i: 16 + 16 * g + i
    HA = lambda g, i: 40 + 4 * g + i
    RK = lambda g, i: 48 + 4 * g + i
    PL = lambda g, i: 56 + 4 * g + i
    HI = lambda g, i: 64 + 4 * g + i
    for g in range(V):
        I(f"s_mov_b32 s{40+g}, {g*NT*16}")
        I(f"buffer_load_dwordx4 v[{D(g,0)}:{D(g,3)}], v2, s[16:19], s{40+g} offen" + FL[opt.ld1])
    srd(20, 4, 5, E * 4)
    srd(24, 8, 9, E * 2)
    for g in range(V):
        I(f"s_mov_b32 s{42+g}, {g*NT*8}")
        I(f"buffer_load_dwordx4 v[{S(g,0)}:{S(g,3)}], v2, s[20:23], s{40+g} offen" + FL[opt.ld1])
        I(f"buffer_load_dwordx2 v[{NR(g,0)}:{NR(g,1)}], v3, s[24:27], s{42+g} offen" + FL[opt.ld1])
    I("s_lshr_b32 s46, s15, 6")
    I("s_or_b32 s14, s2, s46")
    I("s_cmp_lg_u32 s14, 0")
    I("s_cbranch_scc1 K1_NOZ")
    I("v_lshlrev_b32 v7, 7, v0")
    I(f"v_add_u32 v7, {WS_SYNC}, v7")
    I("global_store_dword v7, v4, s[10:11] sc1")
    I("s_waitcnt vmcnt(0)")
    L("K1_NOZ")
    npf = 0
    if opt.pf1:
        I("s_load_dwordx2 s[48:49], s[0:1], 0")
        I("s_lshr_b32 s15, s2, 3")
        I(f"s_mul_i32 s15, s15, {opt.pf1*PFU}")
        I(f"s_cmp_lt_u32 s46, {opt.pf1}")
        I("s_cselect_b32 s15, s15, 0x40000000")
        I("v_lshlrev_b32 v90, 7, v0")
        I("v_add_u32 v90, s15, v90")
        I("s_waitcnt lgkmcnt(0)")
        srd(64, 48, 49, TBL_BYTES)
        I("buffer_load_dword v91, v90, s[64:67], 0 offen")
        npf = 1
    srd(28, 10, 11, NCH * 1024, WS_SEG)
    srd(32, 10, 11, NCH * RECP, WS_RECP)
    srd(52, 10, 11, NCH * RECH, WS_RECH)
    I("s_mov_b32 s36, 0xffff0000")
    I("s_mov_b32 s37, 21474")
    I("s_mov_b64 s[12:13], exec")
    I(f"v_cmp_gt_u32 s[56:57], {NT if NT <= 64 else 's14'}, v0") if False else None
    I(f"s_mov_b32 s14, {NT}")
    I("v_cmp_gt_u32 s[56:57], s14, v0")
    for g in range(V):
        I(f"s_mov_b32 s14, {E - g*NT*4}")
        I(f"v_cmp_gt_u32 s[{58+2*g}:{59+2*g}], s14, v1")
        I(f"s_and_b64 s[{58+2*g}:{59+2*g}], s[{58+2*g}:{59+2*g}], s[56:57]")
    I("v_mov_b32 v6, 1")
    I("s_barrier")
    for g in range(V):
        I(f"s_waitcnt vmcnt({(V - 1 - g) + 2*V + npf})")
        if g == 0: stamp(1, 124)
        I(f"s_mov_b64 exec, s[{58+2*g}:{59+2*g}]")
        for i in range(4):
            I(f"v_and_b32 v{HA(g,i)}, 0xff, v{D(g,i)}")
            I(f"v_lshlrev_b32 v{HA(g,i)}, 2, v{HA(g,i)}")
        for i in range(4):
            I(f"ds_add_rtn_u32 v{RK(g,i)}, v{HA(g,i)}, v6 offset:{K1_HIST}")
    I("s_mov_b64 exec, s[12:13]")
    for g in range(V):
        I(f"s_waitcnt vmcnt({2*(V-1-g) + npf})")
        I(f"v_lshl_or_b32 v{PL(g,0)}, v{NR(g,0)}, 16, v{S(g,0)}")
        I(f"v_and_or_b32 v{PL(g,1)}, v{NR(g,0)}, s36, v{S(g,1)}")
        I(f"v_lshl_or_b32 v{PL(g,2)}, v{NR(g,1)}, 16, v{S(g,2)}")
        I(f"v_and_or_b32 v{PL(g,3)}, v{NR(g,1)}, s36, v{S(g,3)}")
        for i in range(4):
            I(f"v_mul_u32_u24 v7, s37, v{S(g,i)}")
            I("v_lshrrev_b32 v7, 26, v7")
            I("v_and_b32 v7, 12, v7")
            I(f"v_lshrrev_b32 v{HI(g,i)}, 8, v{D(g,i)}")
            I(f"v_lshl_or_b32 v{HI(g,i)}, v{HI(g,i)}, 4, v7")
    I("s_waitcnt lgkmcnt(0)")
    I("s_barrier")
    I("s_cmp_lg_u32 s46, 0")
    I("s_cbranch_scc1 K1_NOSCAN")
    I("v_lshlrev_b32 v5, 4, v0")
    I(f"ds_read_b128 v[72:75], v5 offset:{K1_HIST}")
    I("s_waitcnt lgkmcnt(0)")
    I("v_add_u32 v76, v72, v73")
    I("v_add_u32 v77, v76, v74")
    I("v_add_u32 v78, v77, v75")
    I("v_mov_b32 v79, v78")
    wave_scan(79)
    I("v_sub_u32 v80, v79, v78")
    I("v_add_u32 v81, v80, v72")
    I("v_add_u32 v82, v80, v76")
    I("v_add_u32 v83, v80, v77")
    I(f"ds_write_b128 v5, v[80:83] offset:{K1_PRE}")
    I("v_lshl_or_b32 v72, v81, 16, v80")
    I("v_lshl_or_b32 v73, v82, 16, v81")
    I("v_lshl_or_b32 v74, v83, 16, v82")
    I("v_lshl_or_b32 v75, v79, 16, v83")
    I("s_lshl_b32 s37, s2, 10")
    I("buffer_store_dwordx4 v[72:75], v5, s[28:31], s37 offen" + FL[opt.st1])
    I("s_waitcnt lgkmcnt(0)")
    L("K1_NOSCAN")
    I("s_barrier")
    for g in range(V):
        I(f"s_mov_b64 exec, s[{58+2*g}:{59+2*g}]")
        for i in range(4):
            I(f"ds_read_b32 v{HA(g,i)}, v{HA(g,i)} offset:{K1_PRE}")
    for g in range(V):
        I(f"s_mov_b64 exec, s[{58+2*g}:{59+2*g}]")
        I(f"s_waitcnt lgkmcnt({4*(V-1-g) if g < V-1 else 0})" if False else "s_waitcnt lgkmcnt(0)")
        for i in range(4):
            I(f"v_add_u32 v{HA(g,i)}, v{HA(g,i)}, v{RK(g,i)}")
            I(f"v_lshlrev_b32 v{RK(g,i)}, 2, v{HA(g,i)}")
            I(f"v_lshlrev_b32 v{HA(g,i)}, 1, v{HA(g,i)}")
            I(f"ds_write_b32 v{RK(g,i)}, v{PL(g,i)} offset:{K1_STP}")
            I(f"ds_write_b16 v{HA(g,i)}, v{HI(g,i)} offset:{K1_STH}")
    I("s_mov_b64 exec, s[12:13]")
    I("s_waitcnt lgkmcnt(0)")
    I("s_barrier")
    I("v_lshlrev_b32 v5, 4, v0")
    I(f"s_mul_i32 s37, s2, {RECP}")
    I(f"s_mul_i32 s42, s2, {RECH}")
    I("s_mov_b64 exec, s[56:57]")
    for g in range(V):
        I(f"ds_read_b128 v[{8+4*g}:{11+4*g}], v5 offset:{K1_STP + g*NT*16}")
    if V == 2:
        I(f"ds_read_b128 v[16:19], v5 offset:{K1_STH}")
    else:
        I(f"s_mov_b32 s14, {RECH//16}")
        I("v_cmp_gt_u32 vcc, s14, v0")
        I("s_mov_b64 exec, vcc")
        I(f"ds_read_b128 v[16:19], v5 offset:{K1_STH}")
        I("s_mov_b64 exec, s[56:57]")
    I("s_cbranch_execz K1_FIN")
    for g in range(V):
        I(f"s_waitcnt lgkmcnt({V - g})")
        if g: I(f"s_add_u32 s37, s37, {NT*16}")
        I(f"buffer_store_dwordx4 v[{8+4*g}:{11+4*g}], v5, s[32:35], s37 offen" + FL[opt.st1])
    I("s_waitcnt lgkmcnt(0)")
    if V == 1:
        I("s_mov_b64 exec, vcc")
        I("s_cbranch_execz K1_FIN")
    I("buffer_store_dwordx4 v[16:19], v5, s[52:55], s42 offen" + FL[opt.st1])
    L("K1_FIN")
    I("s_mov_b64 exec, s[12:13]")
    stamp(2, 124)
    if opt.stamps:
        I("s_waitcnt vmcnt(0)")
        stamp(3, 124)
    if opt.dbg:
        I("s_waitcnt vmcnt(0)")
        dstamp(15)
        lab = uid("DBG")
        I("s_or_b32 s14, s2, s46")
        I("s_cmp_lg_u32 s14, 0")
        I(f"s_cbranch_scc1 {lab}")
        I("v_lshlrev_b32 v126, 2, v0")
        I("v_add_u32 v126, 0x3000000, v126")
        I("global_store_dword v126, v127, s[10:11] sc1")
        L(lab)
    L("K1_END")
    I("s_endpgm")
    return name, (128 if (opt.stamps or opt.dbg) else 104), (102 if (opt.stamps or opt.dbg) else 72)

L_SU = 0x000
L_WB = 0x040
L_ORD = 0x120
L_HEAVY = 0x1F0
L_LN = 0x20000
LN_CAP = 0x4000
L_LS = 0x10000
LS_CAP = 0x1000
L_CNT = 0x4000
L_H2 = 0x5000
L_WM = 0x5200
K2_ZERO_END = 0x5400
L_NBQ = 0x5400
L_WL = 0x6400
L_SCR = 0x8400
K2_ACC = 0xF400
ACC_BYTES = 208 * 256
K2_LDS = L_LN + LN_CAP
assert K2_ACC + ACC_BYTES <= L_LN
NWORK = 14

V_LANE = 1
V_G4 = 2
V_F16 = 3
V_SELA = 4
V_SELB = 5
V_PTRC = 6
V_PTRI = 7
V_NA = 8
V_NB = 9
V_A0 = 10
V_A1 = 11
V_ACC = 12
V_ACC2 = 20
V_T = 28
V_RC = 32
V_RI = 36
V_DATA = 40
S_T, S_R, S_PACE, S_DR, S_REM = 78, 79, 80, 81, 82
S_NB = 76
S_RET = 84
S_128 = 44
V_PFD = 125

def hop_consts():
    I(f"v_lshrrev_b32 v{V_G4}, 3, v{V_LANE}")
    I(f"v_lshlrev_b32 v{V_G4}, 2, v{V_G4}")
    I(f"v_and_b32 v{V_F16}, 7, v{V_LANE}")
    I(f"v_lshlrev_b32 v{V_F16}, 4, v{V_F16}")
    I(f"v_and_b32 v{V_PTRC}, 3, v{V_LANE}")
    I(f"v_mov_b32 v{V_SELA}, 0x0c0c0c0c")
    I(f"v_mov_b32 v{V_SELB}, 0x0c0c0c0c")
    I(f"v_mov_b32 v{V_A0}, 0x0c0c0302")
    I(f"v_mov_b32 v{V_A1}, 0x03020c0c")
    for val, sel, lit in ((0, V_SELA, V_A0), (1, V_SELA, V_A1), (2, V_SELB, V_A0), (3, V_SELB, V_A1)):
        I(f"v_cmp_eq_u32 vcc, {val}, v{V_PTRC}")
        I("s_nop 1")
        I(f"v_cndmask_b32 v{sel}, v{sel}, v{lit}, vcc")
    I(f"s_mov_b32 s{S_128}, 128")
    for i in range(8):
        I(f"v_mov_b32 v{V_ACC+i}, 0")
        I(f"v_mov_b32 v{V_ACC2+i}, 0")

def rd2(dst, ptr, unit):
    o = unit * 16
    assert o + 8 <= 255
    I(f"ds_read2_b32 v[{dst}:{dst+1}], v{ptr} offset0:{o} offset1:{o+8}")

def perms(p):
    rc = V_RC + 2 * p
    I(f"v_perm_b32 v{V_T+0}, v{rc}, v{rc}, v{V_SELA}")
    I(f"v_perm_b32 v{V_T+1}, v{rc}, v{rc}, v{V_SELB}")
    I(f"v_perm_b32 v{V_T+2}, v{rc+1}, v{rc+1}, v{V_SELA}")
    I(f"v_perm_b32 v{V_T+3}, v{rc+1}, v{rc+1}, v{V_SELB}")

def mfmas(r):
    d = V_DATA + 8 * r
    a, b = V_ACC, V_ACC2
    I(f"v_mfma_f32_4x4x4_16b_bf16 v[{a}:{a+3}], v[{V_T}:{V_T+1}], v[{d}:{d+1}], v[{a}:{a+3}]")
    I(f"v_mfma_f32_4x4x4_16b_bf16 v[{a+4}:{a+7}], v[{V_T}:{V_T+1}], v[{d+2}:{d+3}], v[{a+4}:{a+7}]")
    I(f"v_mfma_f32_4x4x4_16b_bf16 v[{b}:{b+3}], v[{V_T+2}:{V_T+3}], v[{d+4}:{d+5}], v[{b}:{b+3}]")
    I(f"v_mfma_f32_4x4x4_16b_bf16 v[{b+4}:{b+7}], v[{V_T+2}:{V_T+3}], v[{d+6}:{d+7}], v[{b+4}:{b+7}]")

def pace_check(pfx):
    if opt.R <= 1: return
    lab = uid(pfx + "_PC")
    I(f"s_add_u32 s{S_PACE}, s{S_PACE}, s{S_R}")
    I(f"s_cmp_lt_i32 s{S_PACE}, s{S_T}")
    I(f"s_cbranch_scc1 {lab}")
    I(f"s_call_b64 s[{S_RET}:{S_RET+1}], {pfx}_BS")
    L(lab)

def hop_subs(pfx):
    if opt.R <= 1: return
    L(f"{pfx}_BF")
    I(f"s_cmp_eq_u32 s{S_NB}, 0")
    I(f"s_cbranch_scc1 {pfx}_BR")
    I(f"s_sub_u32 s{S_NB}, s{S_NB}, 1")
    I("s_barrier")
    I(f"s_branch {pfx}_BF")
    L(f"{pfx}_BS")
    I(f"s_cmp_eq_u32 s{S_NB}, 0")
    I(f"s_cbranch_scc1 {pfx}_BR")
    I(f"s_sub_u32 s{S_NB}, s{S_NB}, 1")
    I("s_barrier")
    if opt.rst:
        I("s_memrealtime s[98:99]")
        I("s_waitcnt lgkmcnt(0)")
        for k in range(7, 0, -1): I(f"s_mov_b32 s{60+k}, s{59+k}")
        I("s_mov_b32 s60, s98")
    I(f"s_sub_u32 s{S_PACE}, s{S_PACE}, s{S_T}")
    I(f"s_cmp_ge_i32 s{S_PACE}, s{S_T}")
    I(f"s_cbranch_scc1 {pfx}_BS")
    L(f"{pfx}_BR")
    I(f"s_setpc_b64 s[{S_RET}:{S_RET+1}]")

def hop_wave(pfx, tbl, sW, gate=None):
    D = opt.D
    I(f"s_min_u32 s{S_T}, s{S_T}, 0x100")
    I(f"s_mov_b32 s{S_DR}, s{S_T}")
    if opt.skipb: I(f"s_mul_i32 s{S_PACE}, s{S_T}, {-opt.skipb}")
    else: I(f"s_mov_b32 s{S_PACE}, 0")
    I(f"s_mov_b32 s{S_R}, {opt.R}")
    I(f"s_mov_b32 s{S_NB}, {min(opt.nbar, opt.R - 1) - opt.skipb}")
    if opt.skew:
        I(f"s_cmp_lt_u32 s{sW}, 8")
        I(f"s_cselect_b32 s{S_R}, {opt.R - opt.skew}, s{S_R}")
        I(f"s_cmp_lt_u32 s{sW}, 4")
        I(f"s_cselect_b32 s{S_R}, {opt.R - 2*opt.skew}, s{S_R}")
    for r in range(D):
        rd2(V_DATA + 8 * r, V_PTRC, r)
    rd2(V_RC, V_PTRC, 0)
    I(f"v_add_u32 v{V_PTRI}, {D*64}, v{V_PTRC}")
    I("s_waitcnt lgkmcnt(0)")
    rd2(V_RI, V_PTRI, 0)
    if gate: gate("h")
    I(f"s_cmp_eq_u32 s{S_T}, 0")
    I(f"s_cbranch_scc1 {pfx}_FIN")
    for r in range(D):
        d = V_DATA + 8 * r
        if r > 0:
            I(f"s_cmp_le_u32 s{S_T}, {r}")
            I(f"s_cbranch_scc1 {pfx}_DR0")
            pace_check(pfx)
        I(f"v_mad_u32_u16 v{V_A0}, v{d}, s{S_128}, v{V_F16}")
        I(f"v_mad_u32_u16 v{V_A1}, v{d+1}, s{S_128}, v{V_F16}")
        I(f"buffer_load_dwordx4 v[{d}:{d+3}], v{V_A0}, s[{tbl}:{tbl+3}], 0 offen" + FL[opt.ldg])
        I(f"buffer_load_dwordx4 v[{d+4}:{d+7}], v{V_A1}, s[{tbl}:{tbl+3}], 0 offen" + FL[opt.ldg])
    I(f"s_sub_u32 s{S_REM}, s{S_T}, {D}")
    I(f"s_mov_b32 s{S_DR}, {D}")
    I(f"s_cmp_eq_u32 s{S_REM}, 0")
    I(f"s_cbranch_scc1 {pfx}_DR0")
    L(f"{pfx}_MAIN")
    for r in range(D):
        p = r & 1
        d = V_DATA + 8 * r
        I("s_waitcnt lgkmcnt(0)")
        rd2(V_RC + 2 * (p ^ 1), V_PTRC, r + 1)
        rd2(V_RI + 2 * (p ^ 1), V_PTRI, r + 1)
        perms(p)
        ri = V_RI + 2 * p
        I(f"v_mad_u32_u16 v{V_A0}, v{ri}, s{S_128}, v{V_F16}")
        I(f"v_mad_u32_u16 v{V_A1}, v{ri+1}, s{S_128}, v{V_F16}")
        I(f"s_waitcnt vmcnt({2*(D-1)})")
        mfmas(r)
        pace_check(pfx)
        I(f"buffer_load_dwordx4 v[{d}:{d+3}], v{V_A0}, s[{tbl}:{tbl+3}], 0 offen" + FL[opt.ldg])
        I(f"buffer_load_dwordx4 v[{d+4}:{d+7}], v{V_A1}, s[{tbl}:{tbl+3}], 0 offen" + FL[opt.ldg])
        if r == D - 1:
            I(f"v_add_u32 v{V_PTRC}, {D*64}, v{V_PTRC}")
            I(f"v_add_u32 v{V_PTRI}, {D*64}, v{V_PTRI}")
        I(f"s_sub_u32 s{S_REM}, s{S_REM}, 1")
        I(f"s_cmp_eq_u32 s{S_REM}, 0")
        if r == D - 1:
            I(f"s_cbranch_scc0 {pfx}_MAIN")
        else:
            I(f"s_cbranch_scc1 {pfx}_DR{r+1}")
    for q in range(2 * D - 1):
        r = q % D
        p = q & 1
        if q < D:
            L(f"{pfx}_DR{q}")
            if opt.R > 1:
                lab = uid(pfx + "_DX")
                I(f"s_cmp_eq_u32 s{S_NB}, 0")
                I(f"s_cbranch_scc1 {lab}")
                I(f"s_call_b64 s[{S_RET}:{S_RET+1}], {pfx}_BF")
                L(lab)
        I("s_waitcnt lgkmcnt(0)")
        if q + 1 <= 2 * D - 2:
            rd2(V_RC + 2 * (p ^ 1), V_PTRC, q + 1)
        perms(p)
        I("s_waitcnt vmcnt(0)")
        I(f"s_sub_u32 s{S_DR}, s{S_DR}, 1")
        mfmas(r)
        if q < 2 * D - 2:
            I(f"s_cmp_eq_u32 s{S_DR}, 0")
            I(f"s_cbranch_scc1 {pfx}_FIN")
    L(f"{pfx}_FIN")
    if opt.R > 1:
        lab = uid(pfx + "_DY")
        I(f"s_cmp_eq_u32 s{S_NB}, 0")
        I(f"s_cbranch_scc1 {lab}")
        I(f"s_call_b64 s[{S_RET}:{S_RET+1}], {pfx}_BF")
        L(lab)
    if opt.rst and opt.stamps:
        for k in range(7):
            I(f"s_mov_b32 s86, s{66-k}")
            I(f"s_mov_b32 s87, s99")
            stamp(9 + k, 124, 86)
    I("s_nop 4")

def node_pos(sW, heavy):
    I(f"v_lshrrev_b32 v{V_NB}, 2, v{V_G4}")
    I(f"s_lshl_b32 s45, s{sW}, 4")
    if not heavy:
        I(f"s_lshl_b32 s46, s{sW}, 3")
        I(f"s_add_u32 s46, s46, 96")
        I(f"s_cmp_lt_u32 s{sW}, 12")
        I(f"s_cselect_b32 s45, s45, s46")
    I(f"v_add_u32 v{V_NA}, s45, v{V_NB}")
    I(f"v_add_u32 v{V_NB}, 8, v{V_NA}")

def hop_header(sW, vflag):
    I(f"s_lshl_b32 s45, s{sW}, 2")
    I(f"v_mov_b32 v{V_A0}, s45")
    I(f"v_mov_b32 v{vflag}, {L_HEAVY}")
    I(f"ds_read_b32 v{vflag}, v{vflag}")
    I(f"ds_read_b32 v{V_A1}, v{V_A0} offset:{L_SU}")
    I(f"ds_read_b32 v{V_PTRC}, v{V_A0} offset:{L_WB}")
    node_pos(sW, False)
    I(f"ds_read_u8 v{V_NA}, v{V_NA} offset:{L_ORD}")
    I(f"ds_read_u8 v{V_NB}, v{V_NB} offset:{L_ORD}")
    I("s_waitcnt lgkmcnt(0)")
    I(f"v_readfirstlane_b32 s77, v{vflag}")
    I(f"v_readfirstlane_b32 s{S_T}, v{V_A1}")
    I(f"v_add_u32 v{V_PTRC}, v{V_PTRC}, v{V_G4}")
    lab = uid("HH")
    I(f"s_cmp_lt_u32 s{sW}, 12")
    I(f"s_cbranch_scc1 {lab}")
    I(f"v_mov_b32 v{V_NB}, 0xff")
    L(lab)

def split_fix(pfx, sW):
    lab = uid(pfx + "_SF")
    I(f"s_cmp_lt_u32 s{sW}, 12")
    I(f"s_cbranch_scc1 {lab}")
    for i in range(8):
        I(f"v_add_f32 v{V_ACC+i}, v{V_ACC+i}, v{V_ACC2+i}")
    L(lab)

def heavy_path(pfx, tbl, seg_lo_hi, rec_srd, rech_srd, sB, sW, acc_base, nwaves):
    I("v_mov_b32 v40, 0")
    I("v_mov_b32 v41, 0")
    I("v_mov_b32 v42, 0")
    I("v_mov_b32 v43, 0")
    I("v_lshlrev_b32 v44, 4, v0")
    I(f"v_add_u32 v44, {acc_base}, v44")
    n16 = ACC_BYTES // 16
    for i in range(3):
        I(f"ds_write_b128 v44, v[40:43] offset:{i*16384}")
    I(f"v_cmp_gt_u32 vcc, {n16 - 3072}, v0")
    I("s_and_saveexec_b64 s[60:61], vcc")
    I(f"ds_write_b128 v44, v[40:43] offset:{3*16384}")
    I("s_mov_b64 exec, s[60:61]")
    I("s_waitcnt lgkmcnt(0)")
    I("s_barrier")
    I(f"s_mov_b32 s62, s{sW}")
    I(f"v_lshrrev_b32 v45, 3, v{V_LANE}")
    I(f"s_lshl_b32 s63, s{sB}, 2")
    L(f"{pfx}_HC")
    I("s_lshl_b32 s64, s62, 10")
    I("s_add_u32 s64, s64, s63")
    I(f"s_add_u32 s66, s{seg_lo_hi}, s64")
    I(f"s_addc_u32 s67, s{seg_lo_hi+1}, 0")
    I("s_load_dword s68, s[66:67], 0")
    I(f"s_mul_i32 s69, s62, {RECP}")
    I(f"s_mul_i32 s65, s62, {RECH}")
    I("s_waitcnt lgkmcnt(0)")
    I("s_and_b32 s70, s68, 0xffff")
    I("s_lshr_b32 s71, s68, 16")
    L(f"{pfx}_HI")
    I("s_cmp_ge_u32 s70, s71")
    I(f"s_cbranch_scc1 {pfx}_HN")
    I("v_add_u32 v46, s70, v45")
    I("v_cmp_gt_u32 vcc, s71, v46")
    I("s_and_saveexec_b64 s[60:61], vcc")
    I("v_lshlrev_b32 v47, 2, v46")
    I(f"buffer_load_dword v48, v47, s[{rec_srd}:{rec_srd+3}], s69 offen")
    I("v_lshlrev_b32 v47, 1, v46")
    I(f"buffer_load_ushort v49, v47, s[{rech_srd}:{rech_srd+3}], s65 offen")
    I("s_waitcnt vmcnt(0)")
    I("v_and_b32 v50, 0xffff, v48")
    I("v_lshlrev_b32 v50, 7, v50")
    I(f"v_add_u32 v50, v50, v{V_F16}")
    I(f"buffer_load_dwordx4 v[52:55], v50, s[{tbl}:{tbl+3}], 0 offen" + FL[opt.ldg])
    I("v_and_b32 v51, 0xffff0000, v48")
    I("v_lshrrev_b32 v56, 4, v49")
    I("v_lshlrev_b32 v56, 8, v56")
    I(f"v_lshlrev_b32 v57, 1, v{V_F16}")
    I("v_add_u32 v56, v56, v57")
    I(f"v_add_u32 v56, {acc_base}, v56")
    I("s_waitcnt vmcnt(0)")
    for i in range(4):
        I(f"v_lshlrev_b32 v58, 16, v{52+i}")
        I(f"v_and_b32 v59, 0xffff0000, v{52+i}")
        I("v_mul_f32 v58, v58, v51")
        I("v_mul_f32 v59, v59, v51")
        I(f"ds_add_f32 v56, v58 offset:{8*i}")
        I(f"ds_add_f32 v56, v59 offset:{8*i + 4}")
    I("s_mov_b64 exec, s[60:61]")
    I("s_add_u32 s70, s70, 8")
    I(f"s_branch {pfx}_HI")
    L(f"{pfx}_HN")
    I(f"s_add_u32 s62, s62, {nwaves}")
    I("s_cmp_lt_u32 s62, 256")
    I(f"s_cbranch_scc1 {pfx}_HC")
    I("s_waitcnt lgkmcnt(0)")
    I("s_barrier")

def heavy_read_acc(acc_base, sW):
    node_pos(sW, True)
    for vn, va in ((V_NA, V_ACC), (V_NB, V_ACC2)):
        I(f"v_lshlrev_b32 v{V_A0}, 8, v{vn}")
        I(f"v_lshlrev_b32 v{V_A1}, 1, v{V_F16}")
        I(f"v_add_u32 v{V_A0}, v{V_A0}, v{V_A1}")
        I(f"v_add_u32 v{V_A0}, {acc_base}, v{V_A0}")
        I(f"ds_read_b128 v[{va}:{va+3}], v{V_A0}")
        I(f"ds_read_b128 v[{va+4}:{va+7}], v{V_A0} offset:16")
    I("s_waitcnt lgkmcnt(0)")


def grid_arrive():
    R, SH = opt.brep, opt.bsh
    assert R * SH <= 64
    lsh = SH.bit_length() - 1
    I(f"s_and_b32 s45, s2, {SH-1}")
    I("s_lshl_b32 s45, s45, 7")
    I(f"s_add_u32 s45, s45, {WS_SYNC}")
    I(f"v_lshlrev_b32 v116, {7+lsh}, v{V_LANE}")
    I("v_add_u32 v116, s45, v116")
    I("v_mov_b32 v117, 1")
    I("s_mov_b64 s[72:73], exec")
    I(f"s_mov_b64 exec, {hex((1 << R) - 1)}")
    I("global_atomic_add v116, v117, s[6:7] sc1")
    I("s_mov_b64 exec, s[72:73]")

def grid_poll(pfx):
    R, SH = opt.brep, opt.bsh
    lsh = SH.bit_length() - 1
    NR = 2 if opt.poll2 else 1
    I("s_mov_b64 s[72:73], exec")
    I(f"s_mov_b64 exec, {(1 << (SH * NR)) - 1}")
    I(f"s_lshr_b32 s45, s2, {lsh}")
    I(f"s_and_b32 s45, s45, {R-1}")
    I(f"v_lshrrev_b32 v116, {lsh}, v{V_LANE}")
    I(f"v_mul_u32_u24 v116, {R//2}, v116")
    I(f"v_add_u32 v116, s45, v116")
    I(f"v_and_b32 v116, {R-1}, v116")
    I(f"v_lshlrev_b32 v116, {lsh}, v116")
    I(f"v_and_b32 v117, {SH-1}, v{V_LANE}")
    I(f"v_add_u32 v116, v116, v117")
    I(f"v_lshlrev_b32 v116, 7, v116")
    I(f"v_add_u32 v116, {WS_SYNC}, v116")
    I(f"s_mov_b32 s46, {opt.spin}")
    L(f"{pfx}_POLL")
    I("global_load_dword v118, v116, s[6:7]" + ["", " sc1", " sc0 sc1", " sc1 nt", " sc0 sc1 nt"][opt.pollf])
    I("s_waitcnt vmcnt(0)")
    for k in range(NR):
        for l in range(SH):
            I(f"v_readlane_b32 s{12+(l&3)}, v118, {k*SH+l}")
            if l == 1: I("s_add_u32 s11, s12, s13")
            elif l > 1: I(f"s_add_u32 s11, s11, s{12+(l&3)}")
        if SH == 1: I("s_mov_b32 s11, s12")
        I("s_cmp_ge_u32 s11, 256")
        I(f"s_cbranch_scc1 {pfx}_POLLED")
    if opt.slp: I(f"s_sleep {opt.slp}")
    I("s_sub_u32 s46, s46, 1")
    I("s_cmp_eq_u32 s46, 0")
    I(f"s_cbranch_scc0 {pfx}_POLL")
    L(f"{pfx}_POLLED")
    I("s_mov_b64 exec, s[72:73]")

def release_gate(tag):
    lab, lab2 = uid("RG"), uid("RH")
    I(f"s_cmp_eq_u32 s47, 0")
    I(f"s_cbranch_scc1 {lab}")
    I("s_cmp_lg_u32 s10, 0")
    I(f"s_cbranch_scc1 {lab2}")
    I(f"s_call_b64 s[{S_RET}:{S_RET+1}], GPOLL")
    L(lab2)
    I("s_barrier")
    stamp(8, 124)
    L(lab)

def gen_k2():
    name = "sgc_prop_kernel"
    kernel_begin(name)
    I("s_cmp_ge_u32 s2, 256")
    I("s_cbranch_scc1 K2_END")
    if opt.stamps: I("s_memrealtime s[86:87]")
    I("s_load_dwordx2 s[6:7], s[0:1], 56")
    I("s_load_dwordx2 s[4:5], s[0:1], 0")
    I("s_load_dwordx4 s[32:35], s[0:1], 32")
    I("s_and_b32 s8, s2, 7")
    I("s_lshl_b32 s8, s8, 5")
    I("s_lshr_b32 s9, s2, 3")
    I("s_add_u32 s8, s8, s9")
    I("v_readfirstlane_b32 s10, v0")
    I(f"v_and_b32 v{V_LANE}, 63, v0")
    I(f"v_lshrrev_b32 v52, 4, v{V_LANE}")
    I("s_lshr_b32 s10, s10, 6")
    I("s_lshl_b32 s11, s10, 2")
    I("v_add_u32 v52, s11, v52")
    I("s_lshl_b32 s11, s8, 2")
    I("v_lshl_add_u32 v53, v52, 10, s11")
    for r in range(4):
        I(f"s_mov_b32 s{36+r}, {r*65536}")
    I("s_waitcnt lgkmcnt(0)")
    if opt.dbg:
        _cur[0] = 2
        I("v_mov_b32 v127, 0")
        dstamp(0)
    stamp_init(1, 6, 124); stamp(0, 124, 86)
    srd(16, 6, 7, NCH * 1024, WS_SEG)
    SG = lambda r: 56 + r
    for r in range(4):
        I(f"buffer_load_dword v{SG(r)}, v53, s[16:19], s{36+r} offen")
    ntouch = 0
    if opt.tlb:
        srd(20, 6, 7, NCH * RECP, WS_RECP)
        I(f"v_lshlrev_b32 v44, 20, v{V_LANE}")
        I(f"buffer_load_dword v{V_PFD}, v44, s[20:23], 0 offen sc1")
        srd(96, 6, 7, NCH * RECH, WS_RECH)
        I(f"buffer_load_dword v{V_PFD}, v44, s[96:99], 0 offen sc1")
        ntouch = 2
        if opt.tlb >= 2:
            srd(24, 4, 5, TBL_BYTES)
            I(f"buffer_load_dword v{V_PFD}, v44, s[24:27], 0 offen")
            ntouch = 3
    I(f"s_mov_b32 s14, {RECH}")
    I("v_mul_u32_u24 v54, s14, v52")
    I(f"v_and_b32 v55, 15, v{V_LANE}")
    srd(20, 6, 7, NCH * RECP, WS_RECP)
    srd(96, 6, 7, NCH * RECH, WS_RECH)
    for r in range(4):
        I(f"s_mov_b32 s{40+r}, {r*64*RECP}")
    nb, nc = opt.pf2b, opt.pf2c
    def init_block():
        I("v_lshlrev_b32 v108, 4, v0")
        I(f"v_mov_b32 v112, {SAFE}")
        I("v_mov_b32 v113, v112")
        I("v_mov_b32 v114, v112")
        I("v_mov_b32 v115, v112")
        I(f"v_add_u32 v109, {L_LN}, v108")
        I("ds_write_b128 v109, v[112:115]")
        I("v_mov_b32 v116, 0")
        I("v_mov_b32 v117, 0")
        I("v_mov_b32 v118, 0")
        I("v_mov_b32 v119, 0")
        I(f"v_cmp_gt_u32 vcc, {LS_CAP//16}, v0")
        I("s_and_saveexec_b64 s[12:13], vcc")
        I(f"v_add_u32 v109, {L_LS}, v108")
        I("ds_write_b128 v109, v[112:115]")
        I("s_mov_b64 exec, s[12:13]")
        I("v_cmp_gt_u32 vcc, 32, v0")
        I("s_and_saveexec_b64 s[12:13], vcc")
        I("ds_write_b128 v108, v[116:119]")
        I("s_mov_b64 exec, s[12:13]")
        I(f"v_cmp_gt_u32 vcc, {(K2_ZERO_END-L_CNT)//16}, v0")
        I("s_and_saveexec_b64 s[12:13], vcc")
        I(f"ds_write_b128 v108, v[116:119] offset:{L_CNT}")
        I("s_mov_b64 exec, s[12:13]")
        srd(24, 4, 5, TBL_BYTES)
        srd(28, 6, 7, TBL_BYTES, WS_H1)
        if nb: pf_setup(48, nb, opt.pf1 * 32 * PFU)
        if nc: pf_setup(7, nc, (opt.pf1 + nb) * 32 * PFU)
        hop_consts()
    if not opt.lateinit: init_block()
    SM = lambda t, r: 46 + (t * 4 + r) * 2
    VOFF = lambda r: 60 + r
    VR = lambda t, r: 64 + (t * 4 + r) * 2
    VK = lambda t, r: 88 + t * 4 + r
    VP = lambda t, r: 100 + (t * 4 + r) * 2
    ONE = 40
    VOFP = lambda r: 44 + r
    for r in range(4):
        I(f"s_mov_b32 s{36+r}, {r*64*RECH}")
    I(f"s_waitcnt vmcnt({ntouch})")
    stamp(1, 124)
    I("s_mov_b64 s[70:71], 0")
    I("s_mov_b64 s[72:73], exec")
    for r in range(4):
        I(f"s_mov_b32 s{36+r}, {r*64*RECH}")
    IX = lambda r: 100 + r
    EN = lambda r: 104 + r
    for r in range(4):
        I(f"v_and_b32 v{IX(r)}, 0xffff, v{SG(r)}")
        I(f"v_lshrrev_b32 v{EN(r)}, 16, v{SG(r)}")
        I(f"v_add_u32 v{IX(r)}, v{IX(r)}, v55")
        I(f"v_lshl_add_u32 v{VOFF(r)}, v{IX(r)}, 1, v54")
        I(f"v_cmp_lt_u32 s[{SM(0,r)}:{SM(0,r)+1}], v{IX(r)}, v{EN(r)}")
        I(f"v_add_u32 v41, 16, v{IX(r)}")
        I(f"s_mov_b64 exec, s[{SM(0,r)}:{SM(0,r)+1}]")
        lab = uid("K2_SK")
        I(f"s_cbranch_execz {lab}")
        I(f"buffer_load_ushort v{VR(0,r)+1}, v{VOFF(r)}, s[96:99], s{36+r} offen" + FL[opt.ld2])
        L(lab)
        I("s_mov_b64 exec, s[72:73]")
        I(f"v_cmp_lt_u32 s[{SM(1,r)}:{SM(1,r)+1}], v41, v{EN(r)}")
    for r in range(4):
        lab = uid("K2_SK")
        I(f"s_mov_b64 exec, s[{SM(1,r)}:{SM(1,r)+1}]")
        I(f"s_cbranch_execz {lab}")
        I(f"buffer_load_ushort v{VR(1,r)+1}, v{VOFF(r)}, s[96:99], s{36+r} offen offset:32" + FL[opt.ld2])
        L(lab)
    I("s_mov_b64 exec, s[72:73]")
    for r in range(4):
        I(f"v_add_u32 v42, 32, v{IX(r)}")
        I(f"v_cmp_lt_u32 s[{SM(2,r)}:{SM(2,r)+1}], v42, v{EN(r)}")
        I(f"v_add_u32 v43, 48, v{IX(r)}")
        I(f"v_cmp_lt_u32 vcc, v43, v{EN(r)}")
        I(f"v_lshlrev_b32 v{VOFP(r)}, 1, v{VOFF(r)}")
        I("s_or_b64 s[70:71], s[70:71], vcc")
    I(f"s_or_b64 s[74:75], s[{SM(2,0)}:{SM(2,0)+1}], s[{SM(2,1)}:{SM(2,1)+1}]")
    I(f"s_or_b64 s[74:75], s[74:75], s[{SM(2,2)}:{SM(2,2)+1}]")
    I(f"s_or_b64 s[74:75], s[74:75], s[{SM(2,3)}:{SM(2,3)+1}]")
    I("s_cselect_b32 s83, 1, 0")
    I("s_cbranch_scc0 K2_NT3A")
    for r in range(4):
        lab = uid("K2_SK")
        I(f"s_mov_b64 exec, s[{SM(2,r)}:{SM(2,r)+1}]")
        I(f"s_cbranch_execz {lab}")
        I(f"buffer_load_ushort v{VR(2,r)+1}, v{VOFF(r)}, s[96:99], s{36+r} offen offset:64" + FL[opt.ld2])
        I(f"buffer_load_dword v{VR(2,r)}, v{VOFP(r)}, s[20:23], s{40+r} offen offset:128" + FL[opt.ld2])
        L(lab)
    I("s_mov_b64 exec, s[72:73]")
    L("K2_NT3A")
    I("s_mov_b64 exec, s[72:73]")
    if opt.lateinit: init_block()
    I(f"v_mov_b32 v{ONE}, 1")
    I(f"v_mov_b32 v11, 32")
    I("s_waitcnt lgkmcnt(0)")
    if opt.payafter:
        I("s_barrier")
    for t in range(2):
        for r in range(4):
            I(f"buffer_load_dword v{VR(t,r)}, v{VOFP(r)}, s[20:23], s{40+r} offen" + (f" offset:{64*t}" if t else "") + FL[opt.ld2])
    if not opt.payafter:
        I("s_barrier")
    I("s_waitcnt vmcnt(8)")
    stamp(2, 124)
    for t in range(3):
        if t == 2:
            I("s_cmp_eq_u32 s83, 0")
            I("s_cbranch_scc1 K2_NT3B")
        for r in range(4):
            lab = uid("K2_SC")
            I(f"s_mov_b64 exec, s[{SM(t,r)}:{SM(t,r)+1}]")
            I(f"s_cbranch_execz {lab}")
            I(f"ds_add_rtn_u32 v{VK(t,r)}, v{VR(t,r)+1}, v11 offset:{L_CNT}")
            L(lab)
    L("K2_NT3B")
    I("s_mov_b64 exec, s[72:73]")
    I("s_cmp_eq_u64 s[70:71], 0")
    I("s_cbranch_scc1 K2_NOH")
    I(f"v_mov_b32 v41, {L_HEAVY}")
    I(f"ds_write_b32 v41, v{ONE}")
    L("K2_NOH")
    I("s_waitcnt lgkmcnt(0)")
    I("s_barrier")
    stamp(3, 124)
    I("s_cmp_ge_u32 s10, 4")
    I("s_cbranch_scc1 K2_NOSORT0")
    C = lambda q: 100 + q
    KY, R2, SL, TT, ST, NI = 44, 45, 46, 47, 48, 49
    A, B, Cc, Dd = 116, 117, 118, 119
    I("s_lshl_b32 s12, s10, 6")
    I(f"v_add_u32 v{NI}, s12, v{V_LANE}")
    I(f"v_lshlrev_b32 v{A}, 4, v{NI}")
    I(f"ds_read_b128 v[{C(0)}:{C(3)}], v{A} offset:{L_CNT}")
    I("s_movk_i32 s12, 208")
    I(f"v_cmp_gt_u32 s[74:75], s12, v{NI}")
    I(f"v_lshlrev_b32 v{B}, 2, v{V_LANE}")
    I("s_movk_i32 s76, 0xc0")
    I("s_waitcnt lgkmcnt(0)")
    I(f"v_add_u32 v{TT}, v{C(0)}, v{C(1)}")
    I(f"v_add3_u32 v{TT}, v{TT}, v{C(2)}, v{C(3)}")
    I(f"v_lshrrev_b32 v{TT}, 5, v{TT}")
    I(f"v_min_u32 v{KY}, 63, v{TT}")
    I(f"v_lshlrev_b32 v{KY}, 2, v{KY}")
    I("s_mov_b64 exec, s[74:75]")
    I(f"ds_add_rtn_u32 v{R2}, v{KY}, v{ONE} offset:{L_H2}")
    I("s_mov_b64 exec, s[72:73]")
    I("s_waitcnt lgkmcnt(0)")
    I("s_barrier")
    I(f"ds_read_b32 v{Cc}, v{B} offset:{L_H2}")
    I("s_waitcnt lgkmcnt(0)")
    I(f"v_mov_b32 v{Dd}, v{Cc}")
    wave_scan(Dd)
    I(f"v_sub_u32 v{Dd}, v{Dd}, v{Cc}")
    I("s_nop 0")
    I(f"ds_bpermute_b32 v{SL}, v{KY}, v{Dd}")
    I("s_waitcnt lgkmcnt(0)")
    I(f"v_add_u32 v{R2}, v{R2}, v{SL}")
    I(f"v_cmp_le_u32 s[12:13], s76, v{R2}")
    I(f"v_lshrrev_b32 v{SL}, 4, v{R2}")
    I(f"v_lshrrev_b32 v{Cc}, 3, v{R2}")
    I(f"v_subrev_u32 v{Cc}, 12, v{Cc}")
    I(f"v_mov_b32 v{ST}, 2")
    I(f"v_cndmask_b32_e64 v{SL}, v{SL}, v{Cc}, s[12:13]")
    I(f"v_cndmask_b32_e64 v{ST}, v{ST}, 1, s[12:13]")
    I(f"v_lshlrev_b32 v{SL}, 2, v{SL}")
    I("s_mov_b64 exec, s[74:75]")
    I(f"ds_max_u32 v{SL}, v{TT} offset:{L_WM}")
    I(f"ds_write_b8 v{R2}, v{NI} offset:{L_ORD}")
    I("s_mov_b64 exec, s[72:73]")
    I(f"v_lshlrev_b32 v{KY}, 3, v{ST}")
    I(f"v_subrev_u32 v{KY}, 1, v{KY}")
    I(f"v_and_b32 v{KY}, v{KY}, v{R2}")
    I(f"v_add_u32 v{TT}, v{C(0)}, v{C(1)}")
    I(f"v_add_u32 v{R2}, v{TT}, v{C(2)}")
    I("s_waitcnt lgkmcnt(0)")
    I("s_barrier")
    I(f"ds_read_b32 v{Cc}, v{B} offset:{L_WM}")
    I(f"v_cmp_gt_u32 vcc, 12, v{V_LANE}")
    I("s_waitcnt lgkmcnt(0)")
    I(f"v_add_u32 v{Dd}, 1, v{Cc}")
    I(f"v_lshrrev_b32 v{Dd}, 1, v{Dd}")
    I(f"v_cndmask_b32 v{Cc}, v{Dd}, v{Cc}, vcc")
    I(f"v_lshlrev_b32 v{Dd}, 6, v{Cc}")
    I(f"v_mov_b32 v120, v{Dd}")
    wave_scan(120, 16)
    I("s_nop 1")
    I("v_readlane_b32 s76, v120, 11")
    I("v_readlane_b32 s15, v120, 15")
    I(f"v_sub_u32 v120, v120, v{Dd}")
    I(f"v_add_u32 v121, {L_LN}, v120")
    I(f"s_sub_u32 s14, {L_LS}, s76")
    I("v_add_u32 v120, s14, v120")
    I("v_cndmask_b32 v120, v120, v121, vcc")
    I("s_nop 0")
    I(f"ds_bpermute_b32 v{SL}, v{SL}, v120")
    I("s_cmp_lg_u32 s10, 0")
    I("s_cbranch_scc1 K2_NOHDR")
    I(f"v_cmp_gt_u32 vcc, 16, v{V_LANE}")
    I("s_and_saveexec_b64 s[12:13], vcc")
    I(f"ds_write_b32 v{B}, v120 offset:{L_WB}")
    I(f"ds_write_b32 v{B}, v{Cc} offset:{L_SU}")
    I("s_mov_b64 exec, s[12:13]")
    I("s_sub_u32 s15, s15, s76")
    I(f"s_cmp_gt_u32 s76, {LN_CAP}")
    I("s_cbranch_scc1 K2_CAPBAD")
    I(f"s_cmp_le_u32 s15, {LS_CAP}")
    I("s_cbranch_scc1 K2_NOHDR")
    L("K2_CAPBAD")
    I(f"v_mov_b32 v41, {L_HEAVY}")
    I(f"ds_write_b32 v41, v{ONE}")
    L("K2_NOHDR")
    I("s_waitcnt lgkmcnt(0)")
    I(f"v_lshl_add_u32 v{C(3)}, v{KY}, 2, v{SL}")
    I(f"v_mad_u32_u24 v{C(1)}, v{C(0)}, v{ST}, v{C(3)}")
    I(f"v_mov_b32 v{C(0)}, v{C(3)}")
    I(f"v_mad_u32_u24 v{C(2)}, v{TT}, v{ST}, v{C(0)}")
    I(f"v_mad_u32_u24 v{C(3)}, v{R2}, v{ST}, v{C(0)}")
    I("s_mov_b64 exec, s[74:75]")
    I(f"ds_write_b128 v{A}, v[{C(0)}:{C(3)}] offset:{L_NBQ}")
    I("s_mov_b64 exec, s[72:73]")
    I("s_waitcnt vmcnt(0) lgkmcnt(0)")
    I("s_branch K2_NOSORT")
    L("K2_NOSORT0")
    I("s_waitcnt vmcnt(0)")
    if nb:
        lab = uid("PFX")
        I(f"s_cmp_lt_u32 s10, {16 - nb}")
        I(f"s_cbranch_scc1 {lab}")
        I(f"s_mov_b32 s15, {(16 - nb) * PFU}")
        I(f"v_subrev_u32 v48, s15, v48")
        I(f"buffer_load_dword v{V_PFD}, v48, s[24:27], 0 offen")
        L(lab)
    if opt.tlb2:
        lab = uid("TLB")
        I("s_cmp_lg_u32 s10, 11")
        I(f"s_cbranch_scc1 {lab}")
        I(f"v_lshlrev_b32 v44, 21, v{V_LANE}")
        I(f"v_add_u32 v44, {opt.tlb2off}, v44")
        I(f"buffer_load_dword v{V_PFD}, v44, s[24:27], 0 offen")
        if opt.tlb2 >= 3:
            I(f"v_lshlrev_b32 v45, 21, v{V_LANE}")
            I("s_lshl_b32 s15, s8, 7")
            I("v_add_u32 v45, s15, v45")
            I(f"buffer_load_dword v{V_PFD}, v45, s[28:31], 0 offen sc1")
        if opt.tlb2 >= 2:
            srd(88, 34, 35, TBL_BYTES)
            I(f"buffer_load_dword v{V_PFD}, v44, s[88:91], 0 offen")
        L(lab)
    I("s_barrier")
    I("s_barrier")
    L("K2_NOSORT")
    I("s_barrier")
    stamp(4, 124)
    I(f"v_mov_b32 v41, {L_HEAVY}")
    I("ds_read_b32 v41, v41")
    VP1 = lambda t, r: 100 + t * 4 + r
    for t in range(3):
        if t == 2:
            I("s_cmp_eq_u32 s83, 0")
            I("s_cbranch_scc1 K2_NT3C")
        for r in range(4):
            lab = uid("K2_SP")
            I(f"s_mov_b64 exec, s[{SM(t,r)}:{SM(t,r)+1}]")
            I(f"s_cbranch_execz {lab}")
            I(f"ds_read_b32 v{VP1(t,r)}, v{VR(t,r)+1} offset:{L_NBQ}")
            L(lab)
    L("K2_NT3C")
    I("s_mov_b64 exec, s[72:73]")
    I(f"s_lshl_b32 s45, s10, 2")
    I(f"v_mov_b32 v{V_A0}, s45")
    I(f"ds_read_b32 v{V_PTRI}, v{V_A0} offset:{L_SU}")
    I(f"ds_read_b32 v{V_PTRC}, v{V_A0} offset:{L_WB}")
    I(f"v_lshrrev_b32 v{V_NB}, 2, v{V_G4}")
    I(f"s_lshl_b32 s45, s10, 4")
    I(f"s_lshl_b32 s14, s10, 3")
    I(f"s_add_u32 s14, s14, 96")
    I(f"s_cmp_lt_u32 s10, 12")
    I(f"s_cselect_b32 s45, s45, s14")
    I(f"v_add_u32 v{V_NA}, s45, v{V_NB}")
    I(f"v_add_u32 v{V_NB}, 8, v{V_NA}")
    I(f"ds_read_u8 v{V_NA}, v{V_NA} offset:{L_ORD}")
    I(f"ds_read_u8 v{V_NB}, v{V_NB} offset:{L_ORD}")
    I("s_waitcnt lgkmcnt(0)")
    I("v_readfirstlane_b32 s77, v41")
    I(f"v_readfirstlane_b32 s{S_T}, v{V_PTRI}")
    I(f"v_add_u32 v{V_PTRC}, v{V_PTRC}, v{V_G4}")
    if opt.stamps: stamp(12, 124)
    I("s_cmp_lg_u32 s77, 0")
    I("s_cbranch_scc1 K2_NOPLACE")
    for t in range(3):
        if t == 2:
            I("s_cmp_eq_u32 s83, 0")
            I("s_cbranch_scc1 K2_NT3D")
        for r in range(4):
            lab = uid("K2_SW")
            I(f"s_mov_b64 exec, s[{SM(t,r)}:{SM(t,r)+1}]")
            I(f"s_cbranch_execz {lab}")
            I(f"v_mad_u32_u16 v{VP1(t,r)}, v{VK(t,r)}, v{VP1(t,r)}, v{VP1(t,r)} op_sel:[0,1,0,0]")
            I(f"ds_write_b32 v{VP1(t,r)}, v{VR(t,r)}")
            L(lab)
    L("K2_NT3D")
    I("s_mov_b64 exec, s[72:73]")
    L("K2_NOPLACE")
    I("s_waitcnt lgkmcnt(0)")
    if opt.stamps: stamp(13, 124)
    I("s_barrier")
    stamp(5, 124)
    if nc: pf_issue(7, V_PFD, 24, nc, 10)
    S_PH, S_SCR = 47, 83
    I(f"s_mov_b32 s{S_PH}, 0")
    I(f"s_cmp_lt_u32 s10, {NWORK}")
    I("s_cbranch_scc1 K2_KEEP")
    I("s_cmp_eq_u32 s77, 0")
    I("s_cbranch_scc1 K2_END")
    L("K2_KEEP")
    srd(16, 32, 33, 8192)
    I("v_lshlrev_b32 v110, 4, v0")
    I("buffer_load_dwordx4 v[112:115], v110, s[16:19], 0 offen")
    L("K2_PHASE")
    I("s_cmp_eq_u32 s77, 0")
    I("s_cbranch_scc1 K2_FAST")
    release_gate("v")
    heavy_path("K2H", 24, 6, 20, 96, 8, 10, K2_ACC, 16)
    heavy_read_acc(K2_ACC, 10)
    I("s_cmp_lt_u32 s10, 13")
    I("s_cbranch_scc1 K2_DONE")
    I(f"s_cmp_lg_u32 s{S_PH}, 0")
    I("s_cbranch_scc1 K2_END")
    I(f"v_mov_b32 v{V_NA}, 0xff")
    I(f"v_mov_b32 v{V_NB}, 0xff")
    I("s_branch K2_DONE")
    L("K2_FAST")
    I(f"s_cmp_eq_u32 s{S_PH}, 0")
    I("s_cbranch_scc1 K2_HOPIN0")
    hop_header(10, 41)
    I("s_branch K2_HOPIN")
    L("K2_HOPIN0")
    I("s_cmp_lt_u32 s10, 12")
    I("s_cbranch_scc1 K2_HOPIN")
    I(f"v_mov_b32 v{V_NB}, 0xff")
    L("K2_HOPIN")
    hop_wave("K2S", 24, 10, release_gate)
    split_fix("K2S", 10)
    L("K2_DONE")
    I(f"s_cmp_lg_u32 s{S_PH}, 0")
    I("s_cbranch_scc1 K2_GEMM")
    stamp(6, 124)
    I("s_lshl_b32 s45, s8, 7")
    for vn, va, t0, ad in ((V_NA, V_ACC, V_T, V_A0), (V_NB, V_ACC2, V_RC, V_A1)):
        for i in range(4):
            I(f"v_cvt_pk_bf16_f32 v{t0+i}, v{va+2*i}, v{va+2*i+1}")
        I(f"v_lshlrev_b32 v{ad}, 15, v{vn}")
        I(f"v_add3_u32 v{ad}, v{ad}, s45, v{V_F16}")
        I(f"buffer_store_dwordx4 v[{t0}:{t0+3}], v{ad}, s[28:31], 0 offen" + FL[opt.st2])
    E_SW, E_AB0, E_AB1, E_AW, E_BP, E_KB = 104, 105, 106, 107, 108, 109
    WF = 72
    I("v_cmp_gt_u32 vcc, 0x200, v0")
    I("s_and_saveexec_b64 s[72:73], vcc")
    I(f"ds_write_b128 v110, v[112:115] offset:{L_WL}")
    I("s_mov_b64 exec, s[72:73]")
    I(f"s_lshl_b32 s{S_SCR}, s10, 11")
    I(f"s_add_u32 s{S_SCR}, s{S_SCR}, {L_SCR}")
    I(f"v_lshlrev_b32 v60, 2, v{V_G4}")
    I(f"v_xor_b32 v61, v60, v{V_F16}")
    I(f"v_lshlrev_b32 v60, 3, v60")
    I(f"v_add3_u32 v{E_SW}, v60, v61, s{S_SCR}")
    I(f"v_and_b32 v60, 15, v{V_LANE}")
    I(f"v_lshrrev_b32 v{E_KB}, 4, v{V_LANE}")
    I(f"v_and_b32 v61, 7, v60")
    I(f"v_lshlrev_b32 v{E_BP}, 5, v61")
    I(f"v_xor_b32 v62, v{E_KB}, v61")
    I(f"v_lshlrev_b32 v62, 4, v62")
    I(f"v_lshlrev_b32 v63, 7, v60")
    I(f"v_add3_u32 v{E_AB0}, v63, s{S_SCR}, v62")
    I(f"v_xor_b32 v62, 64, v62")
    I(f"v_add3_u32 v{E_AB1}, v63, s{S_SCR}, v62")
    I(f"v_lshrrev_b32 v62, 2, v60")
    I(f"v_lshl_add_u32 v62, v{E_KB}, 3, v62")
    I(f"v_lshlrev_b32 v62, 7, v62")
    I(f"v_and_b32 v63, 3, v{V_LANE}")
    I(f"v_lshl_add_u32 v{E_AW}, v63, 4, v62")
    I(f"v_cmp_gt_u32 s[74:75], 8, v60")
    I(f"v_lshlrev_b32 v{E_KB}, 4, v{E_KB}")
    for i in range(8):
        I(f"v_mov_b32 v{V_ACC+i}, 0")
        I(f"v_mov_b32 v{V_ACC2+i}, 0")
    srd(24, 6, 7, TBL_BYTES, WS_H1)
    I("s_waitcnt vmcnt(0) lgkmcnt(0)")
    srd(28, 34, 35, TBL_BYTES)
    stamp(7, 124)
    if opt.own == 2:
        I(f"buffer_load_dword v{V_PFD}, v{V_A0}, s[24:27], 0 offen")
        I(f"buffer_load_dword v{V_PFD}, v{V_A1}, s[24:27], 0 offen")
    I("s_barrier")
    I("s_cmp_lg_u32 s10, 0")
    I("s_cbranch_scc1 K2_NOPOLL")
    grid_arrive()
    L("K2_NOPOLL")
    if opt.own == 1:
        I(f"buffer_load_dword v{V_PFD}, v{V_A0}, s[24:27], 0 offen")
        I(f"buffer_load_dword v{V_PFD}, v{V_A1}, s[24:27], 0 offen")
    for t in range(4):
        for s in range(2):
            for hh in range(2):
                off = L_WL + s * 4096 + hh * 512 + (t >> 1) * 64 + (t & 1) * 8
                d = WF + (t * 2 + s) * 4 + 2 * hh
                I(f"ds_read_b64_tr_b16 v[{d}:{d+1}], v{E_AW} offset:{off}")
    I(f"s_mov_b32 s{S_PH}, 1")
    I("s_branch K2_PHASE")
    L("K2_GEMM")
    stamp(9, 124)
    E_OUT = E_AW
    I(f"ds_bpermute_b32 v110, v{E_BP}, v{V_NA}")
    I(f"ds_bpermute_b32 v111, v{E_BP}, v{V_NB}")
    for va, t0, off in ((V_ACC, V_T, 0), (V_ACC2, V_RC, 1024)):
        for i in range(4):
            I(f"v_cvt_pk_bf16_f32 v{t0+i}, v{va+2*i}, v{va+2*i+1}")
        I(f"ds_write_b128 v{E_SW}, v[{t0}:{t0+3}] offset:{off}")
    B0, B1 = 40, 44
    I(f"ds_read_b128 v[{B0}:{B0+3}], v{E_AB0}")
    I(f"ds_read_b128 v[{B1}:{B1+3}], v{E_AB1}")
    DD = 56
    I("s_lshl_b32 s45, s8, 7")
    I("s_waitcnt lgkmcnt(1)")
    I(f"v_cndmask_b32_e64 v110, v111, v110, s[74:75]")
    for t in range(4):
        a = WF + (t * 2) * 4
        I(f"v_mfma_f32_16x16x32_bf16 v[{DD+4*t}:{DD+4*t+3}], v[{a}:{a+3}], v[{B0}:{B0+3}], 0")
    I(f"v_lshlrev_b32 v110, 15, v110")
    I("s_waitcnt lgkmcnt(0)")
    for t in range(4):
        a = WF + (t * 2 + 1) * 4
        I(f"v_mfma_f32_16x16x32_bf16 v[{DD+4*t}:{DD+4*t+3}], v[{a}:{a+3}], v[{B1}:{B1+3}], v[{DD+4*t}:{DD+4*t+3}]")
    I(f"v_add3_u32 v{E_OUT}, v110, s45, v{E_KB}")
    O = 48
    I("s_nop 4")
    for half in range(2):
        for k in range(2):
            t = half * 2 + k
            if t == 3: I("s_nop 1")
            I(f"v_cvt_pk_bf16_f32 v{O+half*4+2*k}, v{DD+4*t}, v{DD+4*t+1}")
            I(f"v_cvt_pk_bf16_f32 v{O+half*4+2*k+1}, v{DD+4*t+2}, v{DD+4*t+3}")
        I(f"buffer_store_dwordx4 v[{O+half*4}:{O+half*4+3}], v{E_OUT}, s[28:31], 0 offen" + (" offset:64" if half else "") + FL[opt.st3])
    stamp(10, 124)
    if opt.stamps:
        I("s_waitcnt vmcnt(0)")
        stamp(11, 124)
    if opt.dbg:
        I("s_waitcnt vmcnt(0)")
        dstamp(11)
        lab = uid("DBG")
        I("s_or_b32 s14, s2, s10")
        I("s_cmp_lg_u32 s14, 0")
        I(f"s_cbranch_scc1 {lab}")
        I("s_load_dwordx2 s[92:93], s[0:1], 48")
        I(f"v_lshlrev_b32 v126, 2, v{V_LANE}")
        I("v_add_u32 v125, 0x3000000, v126")
        I("global_load_dword v124, v125, s[6:7] sc1")
        I("s_waitcnt vmcnt(0) lgkmcnt(0)")
        I(f"v_cmp_le_u32 vcc, 12, v{V_LANE}")
        I("s_nop 1")
        I("v_cndmask_b32 v127, v127, v124, vcc")
        I("s_mov_b64 exec, 0xffff")
        I("global_store_dword v126, v127, s[92:93]")
        L(lab)
    L("K2_END")
    I("s_endpgm")
    hop_subs("K2S")
    L("GPOLL")
    grid_poll("G2")
    I(f"s_setpc_b64 s[{S_RET}:{S_RET+1}]")
    I("s_endpgm")
    L("K2_CODE_END")
    return name, 128, 102

HEADER = f"""; Kernarg layout for this problem (64 bytes, ptrs only, base s[0:1]):
; @launch kernel=sgc_part_kernel grid=(256,1,1) block=(K1BLK,1,1) lds={K1_LDS}
; @launch kernel=sgc_prop_kernel grid=(256,1,1) block=(1024,1,1) lds=K2LDS
.amdgcn_target "amdgcn-amd-amdhsa--gfx950"
.text"""

def main():
    for a in sys.argv[2:]:
        k, v = a.split("=")
        assert hasattr(opt, k), k
        setattr(opt, k, int(v))
    h = HEADER.replace("K2LDS", str(K2_LDS)).replace("K1BLK", ("896" if (opt.cpf or opt.k1h) else "832") if opt.k1v == 1 else "448")
    emit(h)
    ks = [gen_k1(), gen_k2()]
    emit('.section .rodata,"a"')
    emit(".p2align 6")
    for (n, v, s) in ks:
        kernel_desc(n, v, s)
        emit(".p2align 6")
    open(sys.argv[1], "w").write("\n".join(out) + "\n")

main()
```

```python
import sys

N = 50000
E = 850000
CH = 3328
NCH = 256
RECP = CH * 4
RECH = CH * 2
WS_SEG = 0
WS_RECH = 0x40000
WS_RECP = 0x200400
WS_IMG = 0x6C0000
WS_H1 = 0xC00000
WS_SYNC = 0x1E0000
TBL_BYTES = N * 128
SAFE = 0x0000FFFF

class Opt:
    D = 4
    R = 8
    skew = 0
    pf1 = 0
    pf2b = 4
    pf2c = 0
    pf3 = 2
    pf3c = 0
    stamps = 0
    st1 = 1
    st2 = 1
    st2i = 1
    st3 = 1
    dbg = 0
    rst = 0
    nbar = 6
    pfs = 0
    pfsr = 2
    pfs3 = 0
    ld1 = 3
    ld2 = 0
    ld3 = 0
    skip3 = 0
    k1v = 1
    ldg = 1
    spin = 16000000
    brep = 16
    pfpos = 1
    poll2 = 0
    own = 0
    cpf = 0
    tlb2 = 0
    tlb1 = 0
    k1h = 0
    k1d = 0
    pf1h = 0
    pf1w = 0
    skipb = 0
    pollf = 1
    dbgx = 0
    t1 = 0
    tlb2off = 1048576
    cpfall = 0
    cpfn = 2
    lateinit = 0
    payafter = 1
    tlb = 0
    bsh = 4
    slp = 6
    smalllds = 0
    k3w = 16

opt = Opt()
out = []
def emit(s=""): out.append(s)
def I(s): out.append("    " + s)
def L(s): out.append(s + ":")
_uid = [0]
def uid(p):
    _uid[0] += 1
    return f"{p}_{_uid[0]}"

FL = ['', ' sc1', ' sc0 sc1', ' nt', ' sc0']
def srd(s, lo, hi, size, add=0):
    if add:
        I(f"s_add_u32 s{s}, s{lo}, {add}")
        I(f"s_addc_u32 s{s+1}, s{hi}, 0")
        I(f"s_and_b32 s{s+1}, s{s+1}, 0xffff")
    else:
        I(f"s_mov_b32 s{s}, s{lo}")
        I(f"s_and_b32 s{s+1}, s{hi}, 0xffff")
    I(f"s_mov_b32 s{s+2}, {size}")
    I(f"s_mov_b32 s{s+3}, 0x20000")

def wave_scan(v, n=64):
    for sh in (1, 2, 4, 8):
        I("s_nop 1")
        I(f"v_add_u32_dpp v{v}, v{v}, v{v} row_shr:{sh} row_mask:0xf bank_mask:0xf")
    if n > 16:
        I("s_nop 1")
        I(f"v_add_u32_dpp v{v}, v{v}, v{v} row_bcast:15 row_mask:0xa bank_mask:0xf")
        I("s_nop 1")
        I(f"v_add_u32_dpp v{v}, v{v}, v{v} row_bcast:31 row_mask:0xc bank_mask:0xf")

STAMP_OFF = 0x2000000
def stamp_init(kidx, ws_lo, vbase):
    if not opt.stamps: return
    I(f"v_lshrrev_b32 v{vbase}, 6, v0")
    I(f"s_lshl_b32 s92, s2, 4")
    I(f"s_add_u32 s92, s92, {kidx*256*16}")
    I(f"v_add_u32 v{vbase}, s92, v{vbase}")
    I(f"v_lshlrev_b32 v{vbase}, 7, v{vbase}")
    I(f"v_add_u32 v{vbase}, {STAMP_OFF}, v{vbase}")
    I(f"s_mov_b32 s94, s{ws_lo}")
    I(f"s_mov_b32 s95, s{ws_lo+1}")
_cur = [1]
def dstamp(j):
    I("s_memrealtime s[90:91]")
    I("s_waitcnt lgkmcnt(0)")
    I(f"v_writelane_b32 v127, s90, {j}")
def stamp(j, vbase, pre=None):
    if opt.dbg:
        if j <= 11 and pre is None: dstamp(j + (0 if _cur[0] == 2 else 12))
        return
    if not opt.stamps: return
    if pre is None:
        I("s_memrealtime s[90:91]")
        I("s_waitcnt lgkmcnt(0)")
    else:
        I(f"s_mov_b32 s90, s{pre}")
        I(f"s_mov_b32 s91, s{pre+1}")
    I("s_mov_b64 s[88:89], exec")
    I("s_mov_b64 exec, 1")
    I(f"v_mov_b32 v{vbase+2}, s90")
    I(f"v_mov_b32 v{vbase+3}, s91")
    I(f"global_store_dwordx2 v{vbase}, v[{vbase+2}:{vbase+3}], s[94:95] offset:{8*j}")
    I("s_mov_b64 exec, s[88:89]")

def kernel_begin(name):
    emit(f".globl {name}")
    emit(".p2align 8")
    emit(f".type {name},@function")
    L(name)

def kernel_desc(name, vgpr, sgpr):
    acc = (vgpr + 3) // 4 * 4
    emit(f".amdhsa_kernel {name}")
    emit(f"  .amdhsa_next_free_vgpr {vgpr}")
    emit(f"  .amdhsa_next_free_sgpr {sgpr}")
    emit(f"  .amdhsa_accum_offset {acc}")
    emit("  .amdhsa_group_segment_fixed_size 0")
    emit("  .amdhsa_kernarg_size 64")
    emit("  .amdhsa_user_sgpr_count 2")
    emit("  .amdhsa_user_sgpr_kernarg_segment_ptr 1")
    emit("  .amdhsa_system_sgpr_workgroup_id_x 1")
    emit(".end_amdhsa_kernel")

PFU = 8192
def pf_setup(vaddr, n, base_bytes):
    I("s_lshr_b32 s15, s2, 3")
    I(f"s_mul_i32 s15, s15, {n*PFU}")
    if base_bytes: I(f"s_add_u32 s15, s15, {base_bytes}")
    I(f"v_lshlrev_b32 v{vaddr}, 7, v0")
    I(f"v_add_u32 v{vaddr}, s15, v{vaddr}")
def pf_issue(vaddr, vdst, tbl, n, sW, nw=16):
    rounds = (n + nw - 1) // nw
    for i in range(rounds):
        cnt = min(nw, n - nw * i)
        lab = uid("PF")
        if cnt < nw:
            I(f"s_cmp_ge_u32 s{sW}, {cnt}")
            I(f"s_cbranch_scc1 {lab}")
        I(f"s_mov_b32 s15, {i*nw*PFU}")
        I(f"buffer_load_dword v{vdst}, v{vaddr}, s[{tbl}:{tbl+3}], s15 offen")
        L(lab)

def pf_stream(tbl, sW, nunits, base_bytes, per_round, vaddr, nrounds_max):
    I("s_lshr_b32 s15, s2, 3")
    I(f"s_mul_i32 s15, s15, {nunits*PFU}")
    I(f"s_add_u32 s15, s15, {base_bytes}")
    I(f"s_sub_u32 s14, s{sW}, {NWORK}")
    I(f"s_mul_i32 s14, s14, {PFU}")
    I("s_add_u32 s15, s15, s14")
    I(f"v_lshlrev_b32 v{vaddr}, 7, v{V_LANE}")
    I(f"v_add_u32 v{vaddr}, s15, v{vaddr}")
    k = 0
    nsteps = (nunits + 1) // 2
    rnd = 0
    while k < nsteps:
        for _ in range(per_round):
            if k >= nsteps: break
            I(f"s_mov_b32 s15, {k*2*PFU}")
            I(f"buffer_load_dword v{V_PFD}, v{vaddr}, s[{tbl}:{tbl+3}], s15 offen")
            k += 1
        rnd += 1
        if k < nsteps and rnd <= nrounds_max:
            I("s_barrier")

K1_HIST = 0
K1_PRE = 1024
K1_STP = 2048
K1_STH = K1_STP + RECP
K1_LDS = K1_STH + RECH

def gen_k1():
    if not opt.k1h: return gen_k1_old()
    name = "sgc_part_kernel"
    NT = 832
    kernel_begin(name)
    I("s_cmp_ge_u32 s2, 256")
    I("s_cbranch_scc1 K1_END")
    I("s_load_dwordx2 s[10:11], s[0:1], 56")
    I("v_readfirstlane_b32 s15, v0")
    I("s_lshr_b32 s46, s15, 6")
    I("s_cmp_lt_u32 s46, 13")
    I("s_cbranch_scc1 K1_MAIN")
    I("v_and_b32 v1, 63, v0")
    I("v_mov_b32 v4, 0")
    I("s_getpc_b64 s[48:49]")
    L("CPF_PC")
    I("s_add_u32 s48, s48, sgc_prop_kernel - CPF_PC")
    I("s_addc_u32 s49, s49, 0")
    I("v_lshlrev_b32 v7, 7, v1")
    I("s_mov_b64 s[12:13], exec")
    I(f"s_cmp_ge_u32 s2, {opt.cpf}")
    I("s_cbranch_scc1 K1_NOCPF")
    I("v_cmp_gt_u32 vcc, K2_CODE_END - sgc_prop_kernel, v7")
    I("s_and_b64 exec, exec, vcc")
    I("s_cbranch_execz K1_NOCPF0")
    I("global_load_dword v8, v7, s[48:49]")
    L("K1_NOCPF0")
    I("s_mov_b64 exec, s[12:13]")
    L("K1_NOCPF")
    I("s_waitcnt lgkmcnt(0)")
    I("s_cmp_lg_u32 s2, 0")
    I("s_cbranch_scc1 K1_NOZ")
    I(f"v_add_u32 v7, {WS_SYNC}, v7")
    I("global_store_dword v7, v4, s[10:11] sc1")
    L("K1_NOZ")
    if opt.tlb1:
        I("v_lshlrev_b32 v11, 21, v1")
        I("v_add_u32 v11, 0x1f0000, v11")
        I("v_cmp_eq_u32 vcc, 1, v1")
        I("v_mov_b32 v12, 0x200000")
        I("s_nop 0")
        I("v_cndmask_b32 v11, v11, v12, vcc")
        I("s_mov_b64 exec, 7")
        I("global_load_dword v13, v11, s[10:11]")
        I("s_mov_b64 exec, s[12:13]")
    srd(28, 10, 11, NCH * 1024, WS_SEG)
    I("v_lshlrev_b32 v5, 4, v1")
    I("s_lshl_b32 s37, s2, 10")
    if opt.pf1h:
        I("s_load_dwordx2 s[50:51], s[0:1], 0")
        I("s_lshr_b32 s15, s2, 3")
        I(f"s_mul_i32 s15, s15, {opt.pf1h*PFU}")
        I("v_lshlrev_b32 v9, 7, v1")
        I("v_add_u32 v9, s15, v9")
        I("s_waitcnt lgkmcnt(0)")
        srd(56, 50, 51, TBL_BYTES)
    if opt.pf1h and opt.pf1w == 0:
        for q in range(opt.pf1h):
            I(f"s_mov_b32 s15, {q*PFU}")
            I("buffer_load_dword v10, v9, s[56:59], s15 offen")
    I("s_barrier")
    I("s_barrier")
    if opt.pf1h and opt.pf1w == 1:
        for q in range(opt.pf1h):
            I(f"s_mov_b32 s15, {q*PFU}")
            I("buffer_load_dword v10, v9, s[56:59], s15 offen")
    I(f"ds_read_b128 v[72:75], v5 offset:{K1_HIST}")
    I("s_waitcnt lgkmcnt(0)")
    I("v_add_u32 v76, v72, v73")
    I("v_add_u32 v77, v76, v74")
    I("v_add_u32 v78, v77, v75")
    I("v_mov_b32 v79, v78")
    wave_scan(79)
    I("v_sub_u32 v80, v79, v78")
    I("v_add_u32 v81, v80, v72")
    I("v_add_u32 v82, v80, v76")
    I("v_add_u32 v83, v80, v77")
    I(f"ds_write_b128 v5, v[80:83] offset:{K1_PRE}")
    I("v_lshl_or_b32 v72, v81, 16, v80")
    I("v_lshl_or_b32 v73, v82, 16, v81")
    I("v_lshl_or_b32 v74, v83, 16, v82")
    I("v_lshl_or_b32 v75, v79, 16, v83")
    I("s_waitcnt lgkmcnt(0)")
    I("s_barrier")
    I("buffer_store_dwordx4 v[72:75], v5, s[28:31], s37 offen" + FL[opt.st1])
    I("s_endpgm")
    L("K1_MAIN")
    if opt.stamps: I("s_memrealtime s[86:87]")
    I("s_load_dwordx4 s[4:7], s[0:1], 8")
    I("s_load_dwordx2 s[8:9], s[0:1], 24")
    I(f"s_mul_i32 s3, s2, {CH}")
    I("v_lshl_add_u32 v1, v0, 2, s3")
    I("v_lshlrev_b32 v2, 2, v1")
    I("v_lshlrev_b32 v3, 1, v1")
    I("v_mov_b32 v4, 0")
    I("v_lshlrev_b32 v5, 2, v0")
    I("v_cmp_gt_u32 vcc, 0x100, v0")
    I("s_and_saveexec_b64 s[12:13], vcc")
    I(f"ds_write_b32 v5, v4 offset:{K1_HIST}")
    I("s_mov_b64 exec, s[12:13]")
    I("s_waitcnt lgkmcnt(0)")
    stamp_init(0, 10, 124); stamp(0, 124, 86)
    srd(16, 6, 7, E * 4)
    D = lambda i: 8 + i
    S = lambda i: 12 + i
    NR = lambda i: 16 + i
    HA = lambda i: 40 + i
    RK = lambda i: 48 + i
    PL = lambda i: 56 + i
    HI = lambda i: 64 + i
    I(f"buffer_load_dwordx4 v[{D(0)}:{D(3)}], v2, s[16:19], 0 offen" + FL[opt.ld1])
    srd(20, 4, 5, E * 4)
    srd(24, 8, 9, E * 2)
    if not opt.k1d:
        I(f"buffer_load_dwordx4 v[{S(0)}:{S(3)}], v2, s[20:23], 0 offen" + FL[opt.ld1])
        I(f"buffer_load_dwordx2 v[{NR(0)}:{NR(1)}], v3, s[24:27], 0 offen" + FL[opt.ld1])
    srd(32, 10, 11, NCH * RECP, WS_RECP)
    srd(52, 10, 11, NCH * RECH, WS_RECH)
    I("s_mov_b32 s36, 0xffff0000")
    I("s_mov_b32 s37, 21474")
    I("s_mov_b64 s[12:13], exec")
    I(f"s_mov_b32 s14, {E}")
    I("v_cmp_gt_u32 s[58:59], s14, v1")
    I("v_mov_b32 v6, 1")
    I("s_barrier")
    if opt.k1d:
        I(f"buffer_load_dwordx4 v[{S(0)}:{S(3)}], v2, s[20:23], 0 offen" + FL[opt.ld1])
        I(f"buffer_load_dwordx2 v[{NR(0)}:{NR(1)}], v3, s[24:27], 0 offen" + FL[opt.ld1])
    I("s_waitcnt vmcnt(2)")
    stamp(1, 124)
    I("s_mov_b64 exec, s[58:59]")
    for i in range(4):
        I(f"v_and_b32 v{HA(i)}, 0xff, v{D(i)}")
        I(f"v_lshlrev_b32 v{HA(i)}, 2, v{HA(i)}")
        I(f"ds_add_rtn_u32 v{RK(i)}, v{HA(i)}, v6 offset:{K1_HIST}")
    I("s_mov_b64 exec, s[12:13]")
    I("s_waitcnt lgkmcnt(0)")
    I("s_barrier")
    I("s_waitcnt vmcnt(0)")
    I(f"v_lshl_or_b32 v{PL(0)}, v{NR(0)}, 16, v{S(0)}")
    I(f"v_and_or_b32 v{PL(1)}, v{NR(0)}, s36, v{S(1)}")
    I(f"v_lshl_or_b32 v{PL(2)}, v{NR(1)}, 16, v{S(2)}")
    I(f"v_and_or_b32 v{PL(3)}, v{NR(1)}, s36, v{S(3)}")
    for i in range(4):
        I(f"v_mul_u32_u24 v7, s37, v{S(i)}")
        I("v_lshrrev_b32 v7, 26, v7")
        I("v_and_b32 v7, 12, v7")
        I(f"v_lshrrev_b32 v{HI(i)}, 8, v{D(i)}")
        I(f"v_lshl_or_b32 v{HI(i)}, v{HI(i)}, 4, v7")
    I("s_barrier")
    I("s_mov_b64 exec, s[58:59]")
    for i in range(4):
        I(f"ds_read_b32 v{HA(i)}, v{HA(i)} offset:{K1_PRE}")
    I("s_waitcnt lgkmcnt(0)")
    for i in range(4):
        I(f"v_add_u32 v{HA(i)}, v{HA(i)}, v{RK(i)}")
        I(f"v_lshlrev_b32 v{RK(i)}, 2, v{HA(i)}")
        I(f"v_lshlrev_b32 v{HA(i)}, 1, v{HA(i)}")
        I(f"ds_write_b32 v{RK(i)}, v{PL(i)} offset:{K1_STP}")
        I(f"ds_write_b16 v{HA(i)}, v{HI(i)} offset:{K1_STH}")
    I("s_mov_b64 exec, s[12:13]")
    I("v_lshlrev_b32 v5, 4, v0")
    I(f"s_mul_i32 s37, s2, {RECP}")
    I(f"s_mul_i32 s42, s2, {RECH}")
    I(f"s_mov_b32 s14, {RECH//16}")
    I("v_cmp_gt_u32 vcc, s14, v0")
    I("s_waitcnt lgkmcnt(0)")
    I("s_barrier")
    I(f"ds_read_b128 v[8:11], v5 offset:{K1_STP}")
    I("s_mov_b64 exec, vcc")
    I(f"ds_read_b128 v[16:19], v5 offset:{K1_STH}")
    I("s_mov_b64 exec, s[12:13]")
    I("s_waitcnt lgkmcnt(1)")
    I("buffer_store_dwordx4 v[8:11], v5, s[32:35], s37 offen" + FL[opt.st1])
    I("s_waitcnt lgkmcnt(0)")
    I("s_mov_b64 exec, vcc")
    I("s_cbranch_execz K1_FIN")
    I("buffer_store_dwordx4 v[16:19], v5, s[52:55], s42 offen" + FL[opt.st1])
    L("K1_FIN")
    I("s_mov_b64 exec, s[12:13]")
    stamp(2, 124)
    if opt.stamps:
        I("s_waitcnt vmcnt(0)")
        stamp(3, 124)
    L("K1_END")
    I("s_endpgm")
    return name, (128 if opt.stamps else 88), (102 if opt.stamps else 64)

def gen_k1_old():
    name = "sgc_part_kernel"
    V = opt.k1v
    NT = 832 // V
    kernel_begin(name)
    I("s_cmp_ge_u32 s2, 256")
    I("s_cbranch_scc1 K1_END")
    if opt.cpf:
        I("v_readfirstlane_b32 s15, v0")
        I("s_lshr_b32 s15, s15, 6")
        I("s_cmp_lt_u32 s15, 13")
        I("s_cbranch_scc1 K1_MAIN")
        if opt.tlb1:
            I("s_load_dwordx2 s[10:11], s[0:1], 56")
            I("v_and_b32 v92, 63, v0")
            I("v_lshlrev_b32 v92, 21, v92")
            I("v_add_u32 v92, 0x1f0000, v92")
            I("v_and_b32 v93, 63, v0")
            I("v_cmp_eq_u32 vcc, 1, v93")
            I("v_mov_b32 v93, 0x200000")
            I("s_nop 0")
            I("v_cndmask_b32 v92, v92, v93, vcc")
            I("s_mov_b64 s[12:13], exec")
            I("s_mov_b64 exec, 7")
            I("s_waitcnt lgkmcnt(0)")
            I("global_load_dword v93, v92, s[10:11]")
            I("s_mov_b64 exec, s[12:13]")
        I(f"s_cmp_ge_u32 s2, {opt.cpf}")
        I("s_cbranch_scc1 K1_END")
        I("s_getpc_b64 s[48:49]")
        L("CPF_PC")
        if opt.cpfall:
            I("s_sub_u32 s48, s48, CPF_PC - sgc_part_kernel")
            I("s_subb_u32 s49, s49, 0")
            I("v_and_b32 v90, 63, v0")
            I("v_lshlrev_b32 v90, 7, v90")
            I("v_cmp_gt_u32 vcc, K2_CODE_END - sgc_part_kernel, v90")
            I("s_and_saveexec_b64 s[12:13], vcc")
            I("global_load_dword v91, v90, s[48:49]")
            I("v_add_u32 v90, 8192, v90")
            I("v_cmp_gt_u32 vcc, K2_CODE_END - sgc_part_kernel, v90")
        else:
            I("s_add_u32 s48, s48, sgc_prop_kernel - CPF_PC")
            I("s_addc_u32 s49, s49, 0")
            I("v_and_b32 v90, 63, v0")
            I("v_lshlrev_b32 v90, 7, v90")
            I("v_cmp_gt_u32 vcc, K2_CODE_END - sgc_prop_kernel, v90")
        I("s_and_saveexec_b64 s[12:13], vcc")
        I("s_cbranch_execz K1_END")
        I("global_load_dword v91, v90, s[48:49]")
        I("s_endpgm")
        L("K1_MAIN")
    if opt.stamps: I("s_memrealtime s[86:87]")
    I("s_load_dwordx4 s[4:7], s[0:1], 8")
    I("s_load_dwordx2 s[8:9], s[0:1], 24")
    I("s_load_dwordx2 s[10:11], s[0:1], 56")
    I(f"s_mul_i32 s3, s2, {CH}")
    I("v_lshl_add_u32 v1, v0, 2, s3")
    I("v_lshlrev_b32 v2, 2, v1")
    I("v_lshlrev_b32 v3, 1, v1")
    I("v_mov_b32 v4, 0")
    I("v_lshlrev_b32 v5, 2, v0")
    I("v_cmp_gt_u32 vcc, 0x100, v0")
    I("s_and_saveexec_b64 s[12:13], vcc")
    I(f"ds_write_b32 v5, v4 offset:{K1_HIST}")
    I("s_mov_b64 exec, s[12:13]")
    I("v_readfirstlane_b32 s15, v0")
    I("s_waitcnt lgkmcnt(0)")
    if opt.dbg:
        I("v_mov_b32 v127, 0")
        dstamp(12)
    stamp_init(0, 10, 124); stamp(0, 124, 86)
    if opt.t1:
        I("v_and_b32 v92, 63, v0")
        I("v_mov_b32 v94, s6")
        I("v_mov_b32 v95, s7")
        for ln, lo, hi in ((1, 4, 5), (2, 8, 9), (3, 10, 11), (4, 10, 11), (5, 10, 11)):
            I(f"v_cmp_eq_u32 vcc, {ln}, v92")
            I(f"v_mov_b32 v96, s{lo}")
            I(f"v_mov_b32 v97, s{hi}")
            I(f"v_cndmask_b32 v94, v94, v96, vcc")
            I(f"v_cndmask_b32 v95, v95, v97, vcc")
        I(f"s_lshl_b32 s14, s3, 2")
        I("v_mov_b32 v96, s14")
        I(f"s_lshl_b32 s14, s3, 1")
        for ln, val in ((2, "s14"), (3, "0x1f0000"), (4, "0x200000"), (5, "0x5f0000")):
            I(f"v_cmp_eq_u32 vcc, {ln}, v92")
            I(f"v_mov_b32 v97x, {val}".replace("v97x", "v93"))
            I("s_nop 0")
            I(f"v_cndmask_b32 v96, v96, v93, vcc")
        I("v_add_co_u32 v94, vcc, v94, v96")
        I("v_addc_co_u32 v95, vcc, 0, v95, vcc")
        I("s_mov_b64 s[12:13], exec")
        I("s_mov_b64 exec, 63")
        I("global_load_dword v93, v[94:95], off")
        I("s_mov_b64 exec, s[12:13]")
    srd(16, 6, 7, E * 4)
    D = lambda g, i: 8 + 16 * g + i
    S = lambda g, i: 12 + 16 * g + i
    NR = lambda g, i: 16 + 16 * g + i
    HA = lambda g, i: 40 + 4 * g + i
    RK = lambda g, i: 48 + 4 * g + i
    PL = lambda g, i: 56 + 4 * g + i
    HI = lambda g, i: 64 + 4 * g + i
    for g in range(V):
        I(f"s_mov_b32 s{40+g}, {g*NT*16}")
        I(f"buffer_load_dwordx4 v[{D(g,0)}:{D(g,3)}], v2, s[16:19], s{40+g} offen" + FL[opt.ld1])
    srd(20, 4, 5, E * 4)
    srd(24, 8, 9, E * 2)
    for g in range(V):
        I(f"s_mov_b32 s{42+g}, {g*NT*8}")
        I(f"buffer_load_dwordx4 v[{S(g,0)}:{S(g,3)}], v2, s[20:23], s{40+g} offen" + FL[opt.ld1])
        I(f"buffer_load_dwordx2 v[{NR(g,0)}:{NR(g,1)}], v3, s[24:27], s{42+g} offen" + FL[opt.ld1])
    I("s_lshr_b32 s46, s15, 6")
    I("s_or_b32 s14, s2, s46")
    I("s_cmp_lg_u32 s14, 0")
    I("s_cbranch_scc1 K1_NOZ")
    I("v_lshlrev_b32 v7, 7, v0")
    I(f"v_add_u32 v7, {WS_SYNC}, v7")
    I("global_store_dword v7, v4, s[10:11] sc1")
    I("s_waitcnt vmcnt(0)")
    L("K1_NOZ")
    npf = 0
    if opt.pf1:
        I("s_load_dwordx2 s[48:49], s[0:1], 0")
        I("s_lshr_b32 s15, s2, 3")
        I(f"s_mul_i32 s15, s15, {opt.pf1*PFU}")
        I(f"s_cmp_lt_u32 s46, {opt.pf1}")
        I("s_cselect_b32 s15, s15, 0x40000000")
        I("v_lshlrev_b32 v90, 7, v0")
        I("v_add_u32 v90, s15, v90")
        I("s_waitcnt lgkmcnt(0)")
        srd(64, 48, 49, TBL_BYTES)
        I("buffer_load_dword v91, v90, s[64:67], 0 offen")
        npf = 1
    srd(28, 10, 11, NCH * 1024, WS_SEG)
    srd(32, 10, 11, NCH * RECP, WS_RECP)
    srd(52, 10, 11, NCH * RECH, WS_RECH)
    I("s_mov_b32 s36, 0xffff0000")
    I("s_mov_b32 s37, 21474")
    I("s_mov_b64 s[12:13], exec")
    I(f"v_cmp_gt_u32 s[56:57], {NT if NT <= 64 else 's14'}, v0") if False else None
    I(f"s_mov_b32 s14, {NT}")
    I("v_cmp_gt_u32 s[56:57], s14, v0")
    for g in range(V):
        I(f"s_mov_b32 s14, {E - g*NT*4}")
        I(f"v_cmp_gt_u32 s[{58+2*g}:{59+2*g}], s14, v1")
        I(f"s_and_b64 s[{58+2*g}:{59+2*g}], s[{58+2*g}:{59+2*g}], s[56:57]")
    I("v_mov_b32 v6, 1")
    I("s_barrier")
    for g in range(V):
        I(f"s_waitcnt vmcnt({(V - 1 - g) + 2*V + npf})")
        if g == 0: stamp(1, 124)
        I(f"s_mov_b64 exec, s[{58+2*g}:{59+2*g}]")
        for i in range(4):
            I(f"v_and_b32 v{HA(g,i)}, 0xff, v{D(g,i)}")
            I(f"v_lshlrev_b32 v{HA(g,i)}, 2, v{HA(g,i)}")
        for i in range(4):
            I(f"ds_add_rtn_u32 v{RK(g,i)}, v{HA(g,i)}, v6 offset:{K1_HIST}")
    I("s_mov_b64 exec, s[12:13]")
    for g in range(V):
        I(f"s_waitcnt vmcnt({2*(V-1-g) + npf})")
        I(f"v_lshl_or_b32 v{PL(g,0)}, v{NR(g,0)}, 16, v{S(g,0)}")
        I(f"v_and_or_b32 v{PL(g,1)}, v{NR(g,0)}, s36, v{S(g,1)}")
        I(f"v_lshl_or_b32 v{PL(g,2)}, v{NR(g,1)}, 16, v{S(g,2)}")
        I(f"v_and_or_b32 v{PL(g,3)}, v{NR(g,1)}, s36, v{S(g,3)}")
        for i in range(4):
            I(f"v_mul_u32_u24 v7, s37, v{S(g,i)}")
            I("v_lshrrev_b32 v7, 26, v7")
            I("v_and_b32 v7, 12, v7")
            I(f"v_lshrrev_b32 v{HI(g,i)}, 8, v{D(g,i)}")
            I(f"v_lshl_or_b32 v{HI(g,i)}, v{HI(g,i)}, 4, v7")
    I("s_waitcnt lgkmcnt(0)")
    I("s_barrier")
    I("s_cmp_lg_u32 s46, 0")
    I("s_cbranch_scc1 K1_NOSCAN")
    I("v_lshlrev_b32 v5, 4, v0")
    I(f"ds_read_b128 v[72:75], v5 offset:{K1_HIST}")
    I("s_waitcnt lgkmcnt(0)")
    I("v_add_u32 v76, v72, v73")
    I("v_add_u32 v77, v76, v74")
    I("v_add_u32 v78, v77, v75")
    I("v_mov_b32 v79, v78")
    wave_scan(79)
    I("v_sub_u32 v80, v79, v78")
    I("v_add_u32 v81, v80, v72")
    I("v_add_u32 v82, v80, v76")
    I("v_add_u32 v83, v80, v77")
    I(f"ds_write_b128 v5, v[80:83] offset:{K1_PRE}")
    I("v_lshl_or_b32 v72, v81, 16, v80")
    I("v_lshl_or_b32 v73, v82, 16, v81")
    I("v_lshl_or_b32 v74, v83, 16, v82")
    I("v_lshl_or_b32 v75, v79, 16, v83")
    I("s_lshl_b32 s37, s2, 10")
    I("buffer_store_dwordx4 v[72:75], v5, s[28:31], s37 offen" + FL[opt.st1])
    I("s_waitcnt lgkmcnt(0)")
    L("K1_NOSCAN")
    I("s_barrier")
    for g in range(V):
        I(f"s_mov_b64 exec, s[{58+2*g}:{59+2*g}]")
        for i in range(4):
            I(f"ds_read_b32 v{HA(g,i)}, v{HA(g,i)} offset:{K1_PRE}")
    for g in range(V):
        I(f"s_mov_b64 exec, s[{58+2*g}:{59+2*g}]")
        I(f"s_waitcnt lgkmcnt({4*(V-1-g) if g < V-1 else 0})" if False else "s_waitcnt lgkmcnt(0)")
        for i in range(4):
            I(f"v_add_u32 v{HA(g,i)}, v{HA(g,i)}, v{RK(g,i)}")
            I(f"v_lshlrev_b32 v{RK(g,i)}, 2, v{HA(g,i)}")
            I(f"v_lshlrev_b32 v{HA(g,i)}, 1, v{HA(g,i)}")
            I(f"ds_write_b32 v{RK(g,i)}, v{PL(g,i)} offset:{K1_STP}")
            I(f"ds_write_b16 v{HA(g,i)}, v{HI(g,i)} offset:{K1_STH}")
    I("s_mov_b64 exec, s[12:13]")
    I("s_waitcnt lgkmcnt(0)")
    I("s_barrier")
    I("v_lshlrev_b32 v5, 4, v0")
    I(f"s_mul_i32 s37, s2, {RECP}")
    I(f"s_mul_i32 s42, s2, {RECH}")
    I("s_mov_b64 exec, s[56:57]")
    for g in range(V):
        I(f"ds_read_b128 v[{8+4*g}:{11+4*g}], v5 offset:{K1_STP + g*NT*16}")
    if V == 2:
        I(f"ds_read_b128 v[16:19], v5 offset:{K1_STH}")
    else:
        I(f"s_mov_b32 s14, {RECH//16}")
        I("v_cmp_gt_u32 vcc, s14, v0")
        I("s_mov_b64 exec, vcc")
        I(f"ds_read_b128 v[16:19], v5 offset:{K1_STH}")
        I("s_mov_b64 exec, s[56:57]")
    I("s_cbranch_execz K1_FIN")
    for g in range(V):
        I(f"s_waitcnt lgkmcnt({V - g})")
        if g: I(f"s_add_u32 s37, s37, {NT*16}")
        I(f"buffer_store_dwordx4 v[{8+4*g}:{11+4*g}], v5, s[32:35], s37 offen" + FL[opt.st1])
    I("s_waitcnt lgkmcnt(0)")
    if V == 1:
        I("s_mov_b64 exec, vcc")
        I("s_cbranch_execz K1_FIN")
    I("buffer_store_dwordx4 v[16:19], v5, s[52:55], s42 offen" + FL[opt.st1])
    L("K1_FIN")
    I("s_mov_b64 exec, s[12:13]")
    stamp(2, 124)
    if opt.stamps:
        I("s_waitcnt vmcnt(0)")
        stamp(3, 124)
    if opt.dbg:
        I("s_waitcnt vmcnt(0)")
        dstamp(15)
        lab = uid("DBG")
        I("s_or_b32 s14, s2, s46")
        I("s_cmp_lg_u32 s14, 0")
        I(f"s_cbranch_scc1 {lab}")
        I("v_lshlrev_b32 v126, 2, v0")
        I("v_add_u32 v126, 0x3000000, v126")
        I("global_store_dword v126, v127, s[10:11] sc1")
        L(lab)
    L("K1_END")
    I("s_endpgm")
    return name, (128 if (opt.stamps or opt.dbg) else 104), (102 if (opt.stamps or opt.dbg) else 72)

L_SU = 0x000
L_WB = 0x040
L_ORD = 0x120
L_HEAVY = 0x1F0
L_LN = 0x20000
LN_CAP = 0x4000
L_LS = 0x10000
LS_CAP = 0x1000
L_CNT = 0x4000
L_H2 = 0x5000
L_WM = 0x5200
K2_ZERO_END = 0x5400
L_NBQ = 0x5400
L_WL = 0x6400
L_SCR = 0x8400
K2_ACC = 0xF400
ACC_BYTES = 208 * 256
K2_LDS = L_LN + LN_CAP
assert K2_ACC + ACC_BYTES <= L_LN
NWORK = 14

V_LANE = 1
V_G4 = 2
V_F16 = 3
V_SELA = 4
V_SELB = 5
V_PTRC = 6
V_PTRI = 7
V_NA = 8
V_NB = 9
V_A0 = 10
V_A1 = 11
V_ACC = 12
V_ACC2 = 20
V_T = 28
V_RC = 32
V_RI = 36
V_DATA = 40
S_T, S_R, S_PACE, S_DR, S_REM = 78, 79, 80, 81, 82
S_NB = 76
S_RET = 84
S_128 = 44
V_PFD = 125

def hop_consts():
    I(f"v_lshrrev_b32 v{V_G4}, 3, v{V_LANE}")
    I(f"v_lshlrev_b32 v{V_G4}, 2, v{V_G4}")
    I(f"v_and_b32 v{V_F16}, 7, v{V_LANE}")
    I(f"v_lshlrev_b32 v{V_F16}, 4, v{V_F16}")
    I(f"v_and_b32 v{V_PTRC}, 3, v{V_LANE}")
    I(f"v_mov_b32 v{V_SELA}, 0x0c0c0c0c")
    I(f"v_mov_b32 v{V_SELB}, 0x0c0c0c0c")
    I(f"v_mov_b32 v{V_A0}, 0x0c0c0302")
    I(f"v_mov_b32 v{V_A1}, 0x03020c0c")
    for val, sel, lit in ((0, V_SELA, V_A0), (1, V_SELA, V_A1), (2, V_SELB, V_A0), (3, V_SELB, V_A1)):
        I(f"v_cmp_eq_u32 vcc, {val}, v{V_PTRC}")
        I("s_nop 1")
        I(f"v_cndmask_b32 v{sel}, v{sel}, v{lit}, vcc")
    I(f"s_mov_b32 s{S_128}, 128")
    for i in range(8):
        I(f"v_mov_b32 v{V_ACC+i}, 0")
        I(f"v_mov_b32 v{V_ACC2+i}, 0")

def rd2(dst, ptr, unit):
    o = unit * 16
    assert o + 8 <= 255
    I(f"ds_read2_b32 v[{dst}:{dst+1}], v{ptr} offset0:{o} offset1:{o+8}")

def perms(p):
    rc = V_RC + 2 * p
    I(f"v_perm_b32 v{V_T+0}, v{rc}, v{rc}, v{V_SELA}")
    I(f"v_perm_b32 v{V_T+1}, v{rc}, v{rc}, v{V_SELB}")
    I(f"v_perm_b32 v{V_T+2}, v{rc+1}, v{rc+1}, v{V_SELA}")
    I(f"v_perm_b32 v{V_T+3}, v{rc+1}, v{rc+1}, v{V_SELB}")

def mfmas(r):
    d = V_DATA + 8 * r
    a, b = V_ACC, V_ACC2
    I(f"v_mfma_f32_4x4x4_16b_bf16 v[{a}:{a+3}], v[{V_T}:{V_T+1}], v[{d}:{d+1}], v[{a}:{a+3}]")
    I(f"v_mfma_f32_4x4x4_16b_bf16 v[{a+4}:{a+7}], v[{V_T}:{V_T+1}], v[{d+2}:{d+3}], v[{a+4}:{a+7}]")
    I(f"v_mfma_f32_4x4x4_16b_bf16 v[{b}:{b+3}], v[{V_T+2}:{V_T+3}], v[{d+4}:{d+5}], v[{b}:{b+3}]")
    I(f"v_mfma_f32_4x4x4_16b_bf16 v[{b+4}:{b+7}], v[{V_T+2}:{V_T+3}], v[{d+6}:{d+7}], v[{b+4}:{b+7}]")

def pace_check(pfx):
    if opt.R <= 1: return
    lab = uid(pfx + "_PC")
    I(f"s_add_u32 s{S_PACE}, s{S_PACE}, s{S_R}")
    I(f"s_cmp_lt_i32 s{S_PACE}, s{S_T}")
    I(f"s_cbranch_scc1 {lab}")
    I(f"s_call_b64 s[{S_RET}:{S_RET+1}], {pfx}_BS")
    L(lab)

def hop_subs(pfx):
    if opt.R <= 1: return
    L(f"{pfx}_BF")
    I(f"s_cmp_eq_u32 s{S_NB}, 0")
    I(f"s_cbranch_scc1 {pfx}_BR")
    I(f"s_sub_u32 s{S_NB}, s{S_NB}, 1")
    I("s_barrier")
    I(f"s_branch {pfx}_BF")
    L(f"{pfx}_BS")
    I(f"s_cmp_eq_u32 s{S_NB}, 0")
    I(f"s_cbranch_scc1 {pfx}_BR")
    I(f"s_sub_u32 s{S_NB}, s{S_NB}, 1")
    I("s_barrier")
    if opt.rst:
        I("s_memrealtime s[98:99]")
        I("s_waitcnt lgkmcnt(0)")
        for k in range(7, 0, -1): I(f"s_mov_b32 s{60+k}, s{59+k}")
        I("s_mov_b32 s60, s98")
    I(f"s_sub_u32 s{S_PACE}, s{S_PACE}, s{S_T}")
    I(f"s_cmp_ge_i32 s{S_PACE}, s{S_T}")
    I(f"s_cbranch_scc1 {pfx}_BS")
    L(f"{pfx}_BR")
    I(f"s_setpc_b64 s[{S_RET}:{S_RET+1}]")

def hop_wave(pfx, tbl, sW, gate=None):
    D = opt.D
    I(f"s_min_u32 s{S_T}, s{S_T}, 0x100")
    I(f"s_mov_b32 s{S_DR}, s{S_T}")
    if opt.skipb: I(f"s_mul_i32 s{S_PACE}, s{S_T}, {-opt.skipb}")
    else: I(f"s_mov_b32 s{S_PACE}, 0")
    I(f"s_mov_b32 s{S_R}, {opt.R}")
    I(f"s_mov_b32 s{S_NB}, {min(opt.nbar, opt.R - 1) - opt.skipb}")
    if opt.skew:
        I(f"s_cmp_lt_u32 s{sW}, 8")
        I(f"s_cselect_b32 s{S_R}, {opt.R - opt.skew}, s{S_R}")
        I(f"s_cmp_lt_u32 s{sW}, 4")
        I(f"s_cselect_b32 s{S_R}, {opt.R - 2*opt.skew}, s{S_R}")
    for r in range(D):
        rd2(V_DATA + 8 * r, V_PTRC, r)
    rd2(V_RC, V_PTRC, 0)
    I(f"v_add_u32 v{V_PTRI}, {D*64}, v{V_PTRC}")
    I("s_waitcnt lgkmcnt(0)")
    rd2(V_RI, V_PTRI, 0)
    if gate: gate("h")
    I(f"s_cmp_eq_u32 s{S_T}, 0")
    I(f"s_cbranch_scc1 {pfx}_FIN")
    for r in range(D):
        d = V_DATA + 8 * r
        if r > 0:
            I(f"s_cmp_le_u32 s{S_T}, {r}")
            I(f"s_cbranch_scc1 {pfx}_DR0")
            pace_check(pfx)
        I(f"v_mad_u32_u16 v{V_A0}, v{d}, s{S_128}, v{V_F16}")
        I(f"v_mad_u32_u16 v{V_A1}, v{d+1}, s{S_128}, v{V_F16}")
        I(f"buffer_load_dwordx4 v[{d}:{d+3}], v{V_A0}, s[{tbl}:{tbl+3}], 0 offen" + FL[opt.ldg])
        I(f"buffer_load_dwordx4 v[{d+4}:{d+7}], v{V_A1}, s[{tbl}:{tbl+3}], 0 offen" + FL[opt.ldg])
    I(f"s_sub_u32 s{S_REM}, s{S_T}, {D}")
    I(f"s_mov_b32 s{S_DR}, {D}")
    I(f"s_cmp_eq_u32 s{S_REM}, 0")
    I(f"s_cbranch_scc1 {pfx}_DR0")
    L(f"{pfx}_MAIN")
    for r in range(D):
        p = r & 1
        d = V_DATA + 8 * r
        I("s_waitcnt lgkmcnt(0)")
        rd2(V_RC + 2 * (p ^ 1), V_PTRC, r + 1)
        rd2(V_RI + 2 * (p ^ 1), V_PTRI, r + 1)
        perms(p)
        ri = V_RI + 2 * p
        I(f"v_mad_u32_u16 v{V_A0}, v{ri}, s{S_128}, v{V_F16}")
        I(f"v_mad_u32_u16 v{V_A1}, v{ri+1}, s{S_128}, v{V_F16}")
        I(f"s_waitcnt vmcnt({2*(D-1)})")
        mfmas(r)
        pace_check(pfx)
        I(f"buffer_load_dwordx4 v[{d}:{d+3}], v{V_A0}, s[{tbl}:{tbl+3}], 0 offen" + FL[opt.ldg])
        I(f"buffer_load_dwordx4 v[{d+4}:{d+7}], v{V_A1}, s[{tbl}:{tbl+3}], 0 offen" + FL[opt.ldg])
        if r == D - 1:
            I(f"v_add_u32 v{V_PTRC}, {D*64}, v{V_PTRC}")
            I(f"v_add_u32 v{V_PTRI}, {D*64}, v{V_PTRI}")
        I(f"s_sub_u32 s{S_REM}, s{S_REM}, 1")
        I(f"s_cmp_eq_u32 s{S_REM}, 0")
        if r == D - 1:
            I(f"s_cbranch_scc0 {pfx}_MAIN")
        else:
            I(f"s_cbranch_scc1 {pfx}_DR{r+1}")
    for q in range(2 * D - 1):
        r = q % D
        p = q & 1
        if q < D:
            L(f"{pfx}_DR{q}")
            if opt.R > 1:
                lab = uid(pfx + "_DX")
                I(f"s_cmp_eq_u32 s{S_NB}, 0")
                I(f"s_cbranch_scc1 {lab}")
                I(f"s_call_b64 s[{S_RET}:{S_RET+1}], {pfx}_BF")
                L(lab)
        I("s_waitcnt lgkmcnt(0)")
        if q + 1 <= 2 * D - 2:
            rd2(V_RC + 2 * (p ^ 1), V_PTRC, q + 1)
        perms(p)
        I("s_waitcnt vmcnt(0)")
        I(f"s_sub_u32 s{S_DR}, s{S_DR}, 1")
        mfmas(r)
        if q < 2 * D - 2:
            I(f"s_cmp_eq_u32 s{S_DR}, 0")
            I(f"s_cbranch_scc1 {pfx}_FIN")
    L(f"{pfx}_FIN")
    if opt.R > 1:
        lab = uid(pfx + "_DY")
        I(f"s_cmp_eq_u32 s{S_NB}, 0")
        I(f"s_cbranch_scc1 {lab}")
        I(f"s_call_b64 s[{S_RET}:{S_RET+1}], {pfx}_BF")
        L(lab)
    if opt.rst and opt.stamps:
        for k in range(7):
            I(f"s_mov_b32 s86, s{66-k}")
            I(f"s_mov_b32 s87, s99")
            stamp(9 + k, 124, 86)
    I("s_nop 4")

def node_pos(sW, heavy):
    I(f"v_lshrrev_b32 v{V_NB}, 2, v{V_G4}")
    I(f"s_lshl_b32 s45, s{sW}, 4")
    if not heavy:
        I(f"s_lshl_b32 s46, s{sW}, 3")
        I(f"s_add_u32 s46, s46, 96")
        I(f"s_cmp_lt_u32 s{sW}, 12")
        I(f"s_cselect_b32 s45, s45, s46")
    I(f"v_add_u32 v{V_NA}, s45, v{V_NB}")
    I(f"v_add_u32 v{V_NB}, 8, v{V_NA}")

def hop_header(sW, vflag):
    I(f"s_lshl_b32 s45, s{sW}, 2")
    I(f"v_mov_b32 v{V_A0}, s45")
    I(f"v_mov_b32 v{vflag}, {L_HEAVY}")
    I(f"ds_read_b32 v{vflag}, v{vflag}")
    I(f"ds_read_b32 v{V_A1}, v{V_A0} offset:{L_SU}")
    I(f"ds_read_b32 v{V_PTRC}, v{V_A0} offset:{L_WB}")
    node_pos(sW, False)
    I(f"ds_read_u8 v{V_NA}, v{V_NA} offset:{L_ORD}")
    I(f"ds_read_u8 v{V_NB}, v{V_NB} offset:{L_ORD}")
    I("s_waitcnt lgkmcnt(0)")
    I(f"v_readfirstlane_b32 s77, v{vflag}")
    I(f"v_readfirstlane_b32 s{S_T}, v{V_A1}")
    I(f"v_add_u32 v{V_PTRC}, v{V_PTRC}, v{V_G4}")
    lab = uid("HH")
    I(f"s_cmp_lt_u32 s{sW}, 12")
    I(f"s_cbranch_scc1 {lab}")
    I(f"v_mov_b32 v{V_NB}, 0xff")
    L(lab)

def split_fix(pfx, sW):
    lab = uid(pfx + "_SF")
    I(f"s_cmp_lt_u32 s{sW}, 12")
    I(f"s_cbranch_scc1 {lab}")
    for i in range(8):
        I(f"v_add_f32 v{V_ACC+i}, v{V_ACC+i}, v{V_ACC2+i}")
    L(lab)

def heavy_path(pfx, tbl, seg_lo_hi, rec_srd, rech_srd, sB, sW, acc_base, nwaves):
    I("v_mov_b32 v40, 0")
    I("v_mov_b32 v41, 0")
    I("v_mov_b32 v42, 0")
    I("v_mov_b32 v43, 0")
    I("v_lshlrev_b32 v44, 4, v0")
    I(f"v_add_u32 v44, {acc_base}, v44")
    n16 = ACC_BYTES // 16
    for i in range(3):
        I(f"ds_write_b128 v44, v[40:43] offset:{i*16384}")
    I(f"v_cmp_gt_u32 vcc, {n16 - 3072}, v0")
    I("s_and_saveexec_b64 s[60:61], vcc")
    I(f"ds_write_b128 v44, v[40:43] offset:{3*16384}")
    I("s_mov_b64 exec, s[60:61]")
    I("s_waitcnt lgkmcnt(0)")
    I("s_barrier")
    I(f"s_mov_b32 s62, s{sW}")
    I(f"v_lshrrev_b32 v45, 3, v{V_LANE}")
    I(f"s_lshl_b32 s63, s{sB}, 2")
    L(f"{pfx}_HC")
    I("s_lshl_b32 s64, s62, 10")
    I("s_add_u32 s64, s64, s63")
    I(f"s_add_u32 s66, s{seg_lo_hi}, s64")
    I(f"s_addc_u32 s67, s{seg_lo_hi+1}, 0")
    I("s_load_dword s68, s[66:67], 0")
    I(f"s_mul_i32 s69, s62, {RECP}")
    I(f"s_mul_i32 s65, s62, {RECH}")
    I("s_waitcnt lgkmcnt(0)")
    I("s_and_b32 s70, s68, 0xffff")
    I("s_lshr_b32 s71, s68, 16")
    L(f"{pfx}_HI")
    I("s_cmp_ge_u32 s70, s71")
    I(f"s_cbranch_scc1 {pfx}_HN")
    I("v_add_u32 v46, s70, v45")
    I("v_cmp_gt_u32 vcc, s71, v46")
    I("s_and_saveexec_b64 s[60:61], vcc")
    I("v_lshlrev_b32 v47, 2, v46")
    I(f"buffer_load_dword v48, v47, s[{rec_srd}:{rec_srd+3}], s69 offen")
    I("v_lshlrev_b32 v47, 1, v46")
    I(f"buffer_load_ushort v49, v47, s[{rech_srd}:{rech_srd+3}], s65 offen")
    I("s_waitcnt vmcnt(0)")
    I("v_and_b32 v50, 0xffff, v48")
    I("v_lshlrev_b32 v50, 7, v50")
    I(f"v_add_u32 v50, v50, v{V_F16}")
    I(f"buffer_load_dwordx4 v[52:55], v50, s[{tbl}:{tbl+3}], 0 offen" + FL[opt.ldg])
    I("v_and_b32 v51, 0xffff0000, v48")
    I("v_lshrrev_b32 v56, 4, v49")
    I("v_lshlrev_b32 v56, 8, v56")
    I(f"v_lshlrev_b32 v57, 1, v{V_F16}")
    I("v_add_u32 v56, v56, v57")
    I(f"v_add_u32 v56, {acc_base}, v56")
    I("s_waitcnt vmcnt(0)")
    for i in range(4):
        I(f"v_lshlrev_b32 v58, 16, v{52+i}")
        I(f"v_and_b32 v59, 0xffff0000, v{52+i}")
        I("v_mul_f32 v58, v58, v51")
        I("v_mul_f32 v59, v59, v51")
        I(f"ds_add_f32 v56, v58 offset:{8*i}")
        I(f"ds_add_f32 v56, v59 offset:{8*i + 4}")
    I("s_mov_b64 exec, s[60:61]")
    I("s_add_u32 s70, s70, 8")
    I(f"s_branch {pfx}_HI")
    L(f"{pfx}_HN")
    I(f"s_add_u32 s62, s62, {nwaves}")
    I("s_cmp_lt_u32 s62, 256")
    I(f"s_cbranch_scc1 {pfx}_HC")
    I("s_waitcnt lgkmcnt(0)")
    I("s_barrier")

def heavy_read_acc(acc_base, sW):
    node_pos(sW, True)
    for vn, va in ((V_NA, V_ACC), (V_NB, V_ACC2)):
        I(f"v_lshlrev_b32 v{V_A0}, 8, v{vn}")
        I(f"v_lshlrev_b32 v{V_A1}, 1, v{V_F16}")
        I(f"v_add_u32 v{V_A0}, v{V_A0}, v{V_A1}")
        I(f"v_add_u32 v{V_A0}, {acc_base}, v{V_A0}")
        I(f"ds_read_b128 v[{va}:{va+3}], v{V_A0}")
        I(f"ds_read_b128 v[{va+4}:{va+7}], v{V_A0} offset:16")
    I("s_waitcnt lgkmcnt(0)")


def grid_arrive():
    R, SH = opt.brep, opt.bsh
    assert R * SH <= 64
    lsh = SH.bit_length() - 1
    I(f"s_and_b32 s45, s2, {SH-1}")
    I("s_lshl_b32 s45, s45, 7")
    I(f"s_add_u32 s45, s45, {WS_SYNC}")
    I(f"v_lshlrev_b32 v116, {7+lsh}, v{V_LANE}")
    I("v_add_u32 v116, s45, v116")
    I("v_mov_b32 v117, 1")
    I("s_mov_b64 s[72:73], exec")
    I(f"s_mov_b64 exec, {hex((1 << R) - 1)}")
    I("global_atomic_add v116, v117, s[6:7] sc1")
    I("s_mov_b64 exec, s[72:73]")

def grid_poll(pfx):
    R, SH = opt.brep, opt.bsh
    lsh = SH.bit_length() - 1
    NR = 2 if opt.poll2 else 1
    I("s_mov_b64 s[72:73], exec")
    I(f"s_mov_b64 exec, {(1 << (SH * NR)) - 1}")
    I(f"s_lshr_b32 s45, s2, {lsh}")
    I(f"s_and_b32 s45, s45, {R-1}")
    I(f"v_lshrrev_b32 v116, {lsh}, v{V_LANE}")
    I(f"v_mul_u32_u24 v116, {R//2}, v116")
    I(f"v_add_u32 v116, s45, v116")
    I(f"v_and_b32 v116, {R-1}, v116")
    I(f"v_lshlrev_b32 v116, {lsh}, v116")
    I(f"v_and_b32 v117, {SH-1}, v{V_LANE}")
    I(f"v_add_u32 v116, v116, v117")
    I(f"v_lshlrev_b32 v116, 7, v116")
    I(f"v_add_u32 v116, {WS_SYNC}, v116")
    I(f"s_mov_b32 s46, {opt.spin}")
    L(f"{pfx}_POLL")
    I("global_load_dword v118, v116, s[6:7]" + ["", " sc1", " sc0 sc1", " sc1 nt", " sc0 sc1 nt"][opt.pollf])
    I("s_waitcnt vmcnt(0)")
    for k in range(NR):
        for l in range(SH):
            I(f"v_readlane_b32 s{12+(l&3)}, v118, {k*SH+l}")
            if l == 1: I("s_add_u32 s11, s12, s13")
            elif l > 1: I(f"s_add_u32 s11, s11, s{12+(l&3)}")
        if SH == 1: I("s_mov_b32 s11, s12")
        I("s_cmp_ge_u32 s11, 256")
        I(f"s_cbranch_scc1 {pfx}_POLLED")
    if opt.slp: I(f"s_sleep {opt.slp}")
    I("s_sub_u32 s46, s46, 1")
    I("s_cmp_eq_u32 s46, 0")
    I(f"s_cbranch_scc0 {pfx}_POLL")
    L(f"{pfx}_POLLED")
    I("s_mov_b64 exec, s[72:73]")

def release_gate(tag):
    lab, lab2 = uid("RG"), uid("RH")
    I(f"s_cmp_eq_u32 s47, 0")
    I(f"s_cbranch_scc1 {lab}")
    I("s_cmp_lg_u32 s10, 0")
    I(f"s_cbranch_scc1 {lab2}")
    I(f"s_call_b64 s[{S_RET}:{S_RET+1}], GPOLL")
    L(lab2)
    I("s_barrier")
    stamp(8, 124)
    L(lab)

def gen_k2():
    name = "sgc_prop_kernel"
    kernel_begin(name)
    I("s_cmp_ge_u32 s2, 256")
    I("s_cbranch_scc1 K2_END")
    if opt.stamps: I("s_memrealtime s[86:87]")
    I("s_load_dwordx2 s[6:7], s[0:1], 56")
    I("s_load_dwordx2 s[4:5], s[0:1], 0")
    I("s_load_dwordx4 s[32:35], s[0:1], 32")
    I("s_and_b32 s8, s2, 7")
    I("s_lshl_b32 s8, s8, 5")
    I("s_lshr_b32 s9, s2, 3")
    I("s_add_u32 s8, s8, s9")
    I("v_readfirstlane_b32 s10, v0")
    I(f"v_and_b32 v{V_LANE}, 63, v0")
    I(f"v_lshrrev_b32 v52, 4, v{V_LANE}")
    I("s_lshr_b32 s10, s10, 6")
    I("s_lshl_b32 s11, s10, 2")
    I("v_add_u32 v52, s11, v52")
    I("s_lshl_b32 s11, s8, 2")
    I("v_lshl_add_u32 v53, v52, 10, s11")
    for r in range(4):
        I(f"s_mov_b32 s{36+r}, {r*65536}")
    I("s_waitcnt lgkmcnt(0)")
    if opt.dbg:
        _cur[0] = 2
        I("v_mov_b32 v127, 0")
        dstamp(0)
    stamp_init(1, 6, 124); stamp(0, 124, 86)
    srd(16, 6, 7, NCH * 1024, WS_SEG)
    SG = lambda r: 56 + r
    for r in range(4):
        I(f"buffer_load_dword v{SG(r)}, v53, s[16:19], s{36+r} offen")
    ntouch = 0
    if opt.tlb:
        srd(20, 6, 7, NCH * RECP, WS_RECP)
        I(f"v_lshlrev_b32 v44, 20, v{V_LANE}")
        I(f"buffer_load_dword v{V_PFD}, v44, s[20:23], 0 offen sc1")
        srd(96, 6, 7, NCH * RECH, WS_RECH)
        I(f"buffer_load_dword v{V_PFD}, v44, s[96:99], 0 offen sc1")
        ntouch = 2
        if opt.tlb >= 2:
            srd(24, 4, 5, TBL_BYTES)
            I(f"buffer_load_dword v{V_PFD}, v44, s[24:27], 0 offen")
            ntouch = 3
    I(f"s_mov_b32 s14, {RECH}")
    I("v_mul_u32_u24 v54, s14, v52")
    I(f"v_and_b32 v55, 15, v{V_LANE}")
    srd(20, 6, 7, NCH * RECP, WS_RECP)
    srd(96, 6, 7, NCH * RECH, WS_RECH)
    for r in range(4):
        I(f"s_mov_b32 s{40+r}, {r*64*RECP}")
    nb, nc = opt.pf2b, opt.pf2c
    def init_block():
        I("v_lshlrev_b32 v108, 4, v0")
        I(f"v_mov_b32 v112, {SAFE}")
        I("v_mov_b32 v113, v112")
        I("v_mov_b32 v114, v112")
        I("v_mov_b32 v115, v112")
        I(f"v_add_u32 v109, {L_LN}, v108")
        I("ds_write_b128 v109, v[112:115]")
        I("v_mov_b32 v116, 0")
        I("v_mov_b32 v117, 0")
        I("v_mov_b32 v118, 0")
        I("v_mov_b32 v119, 0")
        I(f"v_cmp_gt_u32 vcc, {LS_CAP//16}, v0")
        I("s_and_saveexec_b64 s[12:13], vcc")
        I(f"v_add_u32 v109, {L_LS}, v108")
        I("ds_write_b128 v109, v[112:115]")
        I("s_mov_b64 exec, s[12:13]")
        I("v_cmp_gt_u32 vcc, 32, v0")
        I("s_and_saveexec_b64 s[12:13], vcc")
        I("ds_write_b128 v108, v[116:119]")
        I("s_mov_b64 exec, s[12:13]")
        I(f"v_cmp_gt_u32 vcc, {(K2_ZERO_END-L_CNT)//16}, v0")
        I("s_and_saveexec_b64 s[12:13], vcc")
        I(f"ds_write_b128 v108, v[116:119] offset:{L_CNT}")
        I("s_mov_b64 exec, s[12:13]")
        srd(24, 4, 5, TBL_BYTES)
        srd(28, 6, 7, TBL_BYTES, WS_H1)
        if nb: pf_setup(48, nb, (opt.pf1 + opt.pf1h) * 32 * PFU)
        if nc: pf_setup(7, nc, (opt.pf1 + nb) * 32 * PFU)
        hop_consts()
    if not opt.lateinit: init_block()
    SM = lambda t, r: 46 + (t * 4 + r) * 2
    VOFF = lambda r: 60 + r
    VR = lambda t, r: 64 + (t * 4 + r) * 2
    VK = lambda t, r: 88 + t * 4 + r
    VP = lambda t, r: 100 + (t * 4 + r) * 2
    ONE = 40
    VOFP = lambda r: 44 + r
    for r in range(4):
        I(f"s_mov_b32 s{36+r}, {r*64*RECH}")
    I(f"s_waitcnt vmcnt({ntouch})")
    stamp(1, 124)
    I("s_mov_b64 s[70:71], 0")
    I("s_mov_b64 s[72:73], exec")
    for r in range(4):
        I(f"s_mov_b32 s{36+r}, {r*64*RECH}")
    IX = lambda r: 100 + r
    EN = lambda r: 104 + r
    for r in range(4):
        I(f"v_and_b32 v{IX(r)}, 0xffff, v{SG(r)}")
        I(f"v_lshrrev_b32 v{EN(r)}, 16, v{SG(r)}")
        I(f"v_add_u32 v{IX(r)}, v{IX(r)}, v55")
        I(f"v_lshl_add_u32 v{VOFF(r)}, v{IX(r)}, 1, v54")
        I(f"v_cmp_lt_u32 s[{SM(0,r)}:{SM(0,r)+1}], v{IX(r)}, v{EN(r)}")
        I(f"v_add_u32 v41, 16, v{IX(r)}")
        I(f"s_mov_b64 exec, s[{SM(0,r)}:{SM(0,r)+1}]")
        lab = uid("K2_SK")
        I(f"s_cbranch_execz {lab}")
        I(f"buffer_load_ushort v{VR(0,r)+1}, v{VOFF(r)}, s[96:99], s{36+r} offen" + FL[opt.ld2])
        L(lab)
        I("s_mov_b64 exec, s[72:73]")
        I(f"v_cmp_lt_u32 s[{SM(1,r)}:{SM(1,r)+1}], v41, v{EN(r)}")
    for r in range(4):
        lab = uid("K2_SK")
        I(f"s_mov_b64 exec, s[{SM(1,r)}:{SM(1,r)+1}]")
        I(f"s_cbranch_execz {lab}")
        I(f"buffer_load_ushort v{VR(1,r)+1}, v{VOFF(r)}, s[96:99], s{36+r} offen offset:32" + FL[opt.ld2])
        L(lab)
    I("s_mov_b64 exec, s[72:73]")
    for r in range(4):
        I(f"v_add_u32 v42, 32, v{IX(r)}")
        I(f"v_cmp_lt_u32 s[{SM(2,r)}:{SM(2,r)+1}], v42, v{EN(r)}")
        I(f"v_add_u32 v43, 48, v{IX(r)}")
        I(f"v_cmp_lt_u32 vcc, v43, v{EN(r)}")
        I(f"v_lshlrev_b32 v{VOFP(r)}, 1, v{VOFF(r)}")
        I("s_or_b64 s[70:71], s[70:71], vcc")
    I(f"s_or_b64 s[74:75], s[{SM(2,0)}:{SM(2,0)+1}], s[{SM(2,1)}:{SM(2,1)+1}]")
    I(f"s_or_b64 s[74:75], s[74:75], s[{SM(2,2)}:{SM(2,2)+1}]")
    I(f"s_or_b64 s[74:75], s[74:75], s[{SM(2,3)}:{SM(2,3)+1}]")
    I("s_cselect_b32 s83, 1, 0")
    I("s_cbranch_scc0 K2_NT3A")
    for r in range(4):
        lab = uid("K2_SK")
        I(f"s_mov_b64 exec, s[{SM(2,r)}:{SM(2,r)+1}]")
        I(f"s_cbranch_execz {lab}")
        I(f"buffer_load_ushort v{VR(2,r)+1}, v{VOFF(r)}, s[96:99], s{36+r} offen offset:64" + FL[opt.ld2])
        I(f"buffer_load_dword v{VR(2,r)}, v{VOFP(r)}, s[20:23], s{40+r} offen offset:128" + FL[opt.ld2])
        L(lab)
    I("s_mov_b64 exec, s[72:73]")
    L("K2_NT3A")
    I("s_mov_b64 exec, s[72:73]")
    if opt.lateinit: init_block()
    I(f"v_mov_b32 v{ONE}, 1")
    I(f"v_mov_b32 v11, 32")
    I("s_waitcnt lgkmcnt(0)")
    if opt.payafter:
        I("s_barrier")
    for t in range(2):
        for r in range(4):
            I(f"buffer_load_dword v{VR(t,r)}, v{VOFP(r)}, s[20:23], s{40+r} offen" + (f" offset:{64*t}" if t else "") + FL[opt.ld2])
    if not opt.payafter:
        I("s_barrier")
    I("s_waitcnt vmcnt(8)")
    stamp(2, 124)
    for t in range(3):
        if t == 2:
            I("s_cmp_eq_u32 s83, 0")
            I("s_cbranch_scc1 K2_NT3B")
        for r in range(4):
            lab = uid("K2_SC")
            I(f"s_mov_b64 exec, s[{SM(t,r)}:{SM(t,r)+1}]")
            I(f"s_cbranch_execz {lab}")
            I(f"ds_add_rtn_u32 v{VK(t,r)}, v{VR(t,r)+1}, v11 offset:{L_CNT}")
            L(lab)
    L("K2_NT3B")
    I("s_mov_b64 exec, s[72:73]")
    I("s_cmp_eq_u64 s[70:71], 0")
    I("s_cbranch_scc1 K2_NOH")
    I(f"v_mov_b32 v41, {L_HEAVY}")
    I(f"ds_write_b32 v41, v{ONE}")
    L("K2_NOH")
    I("s_waitcnt lgkmcnt(0)")
    I("s_barrier")
    stamp(3, 124)
    I("s_cmp_ge_u32 s10, 4")
    I("s_cbranch_scc1 K2_NOSORT0")
    C = lambda q: 100 + q
    KY, R2, SL, TT, ST, NI = 44, 45, 46, 47, 48, 49
    A, B, Cc, Dd = 116, 117, 118, 119
    I("s_lshl_b32 s12, s10, 6")
    I(f"v_add_u32 v{NI}, s12, v{V_LANE}")
    I(f"v_lshlrev_b32 v{A}, 4, v{NI}")
    I(f"ds_read_b128 v[{C(0)}:{C(3)}], v{A} offset:{L_CNT}")
    I("s_movk_i32 s12, 208")
    I(f"v_cmp_gt_u32 s[74:75], s12, v{NI}")
    I(f"v_lshlrev_b32 v{B}, 2, v{V_LANE}")
    I("s_movk_i32 s76, 0xc0")
    I("s_waitcnt lgkmcnt(0)")
    I(f"v_add_u32 v{TT}, v{C(0)}, v{C(1)}")
    I(f"v_add3_u32 v{TT}, v{TT}, v{C(2)}, v{C(3)}")
    I(f"v_lshrrev_b32 v{TT}, 5, v{TT}")
    I(f"v_min_u32 v{KY}, 63, v{TT}")
    I(f"v_lshlrev_b32 v{KY}, 2, v{KY}")
    I("s_mov_b64 exec, s[74:75]")
    I(f"ds_add_rtn_u32 v{R2}, v{KY}, v{ONE} offset:{L_H2}")
    I("s_mov_b64 exec, s[72:73]")
    I("s_waitcnt lgkmcnt(0)")
    I("s_barrier")
    I(f"ds_read_b32 v{Cc}, v{B} offset:{L_H2}")
    I("s_waitcnt lgkmcnt(0)")
    I(f"v_mov_b32 v{Dd}, v{Cc}")
    wave_scan(Dd)
    I(f"v_sub_u32 v{Dd}, v{Dd}, v{Cc}")
    I("s_nop 0")
    I(f"ds_bpermute_b32 v{SL}, v{KY}, v{Dd}")
    I("s_waitcnt lgkmcnt(0)")
    I(f"v_add_u32 v{R2}, v{R2}, v{SL}")
    I(f"v_cmp_le_u32 s[12:13], s76, v{R2}")
    I(f"v_lshrrev_b32 v{SL}, 4, v{R2}")
    I(f"v_lshrrev_b32 v{Cc}, 3, v{R2}")
    I(f"v_subrev_u32 v{Cc}, 12, v{Cc}")
    I(f"v_mov_b32 v{ST}, 2")
    I(f"v_cndmask_b32_e64 v{SL}, v{SL}, v{Cc}, s[12:13]")
    I(f"v_cndmask_b32_e64 v{ST}, v{ST}, 1, s[12:13]")
    I(f"v_lshlrev_b32 v{SL}, 2, v{SL}")
    I("s_mov_b64 exec, s[74:75]")
    I(f"ds_max_u32 v{SL}, v{TT} offset:{L_WM}")
    I(f"ds_write_b8 v{R2}, v{NI} offset:{L_ORD}")
    I("s_mov_b64 exec, s[72:73]")
    I(f"v_lshlrev_b32 v{KY}, 3, v{ST}")
    I(f"v_subrev_u32 v{KY}, 1, v{KY}")
    I(f"v_and_b32 v{KY}, v{KY}, v{R2}")
    I(f"v_add_u32 v{TT}, v{C(0)}, v{C(1)}")
    I(f"v_add_u32 v{R2}, v{TT}, v{C(2)}")
    I("s_waitcnt lgkmcnt(0)")
    I("s_barrier")
    I(f"ds_read_b32 v{Cc}, v{B} offset:{L_WM}")
    I(f"v_cmp_gt_u32 vcc, 12, v{V_LANE}")
    I("s_waitcnt lgkmcnt(0)")
    I(f"v_add_u32 v{Dd}, 1, v{Cc}")
    I(f"v_lshrrev_b32 v{Dd}, 1, v{Dd}")
    I(f"v_cndmask_b32 v{Cc}, v{Dd}, v{Cc}, vcc")
    I(f"v_lshlrev_b32 v{Dd}, 6, v{Cc}")
    I(f"v_mov_b32 v120, v{Dd}")
    wave_scan(120, 16)
    I("s_nop 1")
    I("v_readlane_b32 s76, v120, 11")
    I("v_readlane_b32 s15, v120, 15")
    I(f"v_sub_u32 v120, v120, v{Dd}")
    I(f"v_add_u32 v121, {L_LN}, v120")
    I(f"s_sub_u32 s14, {L_LS}, s76")
    I("v_add_u32 v120, s14, v120")
    I("v_cndmask_b32 v120, v120, v121, vcc")
    I("s_nop 0")
    I(f"ds_bpermute_b32 v{SL}, v{SL}, v120")
    I("s_cmp_lg_u32 s10, 0")
    I("s_cbranch_scc1 K2_NOHDR")
    I(f"v_cmp_gt_u32 vcc, 16, v{V_LANE}")
    I("s_and_saveexec_b64 s[12:13], vcc")
    I(f"ds_write_b32 v{B}, v120 offset:{L_WB}")
    I(f"ds_write_b32 v{B}, v{Cc} offset:{L_SU}")
    I("s_mov_b64 exec, s[12:13]")
    I("s_sub_u32 s15, s15, s76")
    I(f"s_cmp_gt_u32 s76, {LN_CAP}")
    I("s_cbranch_scc1 K2_CAPBAD")
    I(f"s_cmp_le_u32 s15, {LS_CAP}")
    I("s_cbranch_scc1 K2_NOHDR")
    L("K2_CAPBAD")
    I(f"v_mov_b32 v41, {L_HEAVY}")
    I(f"ds_write_b32 v41, v{ONE}")
    L("K2_NOHDR")
    I("s_waitcnt lgkmcnt(0)")
    I(f"v_lshl_add_u32 v{C(3)}, v{KY}, 2, v{SL}")
    I(f"v_mad_u32_u24 v{C(1)}, v{C(0)}, v{ST}, v{C(3)}")
    I(f"v_mov_b32 v{C(0)}, v{C(3)}")
    I(f"v_mad_u32_u24 v{C(2)}, v{TT}, v{ST}, v{C(0)}")
    I(f"v_mad_u32_u24 v{C(3)}, v{R2}, v{ST}, v{C(0)}")
    I("s_mov_b64 exec, s[74:75]")
    I(f"ds_write_b128 v{A}, v[{C(0)}:{C(3)}] offset:{L_NBQ}")
    I("s_mov_b64 exec, s[72:73]")
    I("s_waitcnt vmcnt(0) lgkmcnt(0)")
    I("s_branch K2_NOSORT")
    L("K2_NOSORT0")
    I("s_waitcnt vmcnt(0)")
    if nb:
        lab = uid("PFX")
        I(f"s_cmp_lt_u32 s10, {16 - nb}")
        I(f"s_cbranch_scc1 {lab}")
        I(f"s_mov_b32 s15, {(16 - nb) * PFU}")
        I(f"v_subrev_u32 v48, s15, v48")
        I(f"buffer_load_dword v{V_PFD}, v48, s[24:27], 0 offen")
        L(lab)
    if opt.tlb2:
        lab = uid("TLB")
        I("s_cmp_lg_u32 s10, 11")
        I(f"s_cbranch_scc1 {lab}")
        I(f"v_lshlrev_b32 v44, 21, v{V_LANE}")
        I(f"v_add_u32 v44, {opt.tlb2off}, v44")
        I(f"buffer_load_dword v{V_PFD}, v44, s[24:27], 0 offen")
        if opt.tlb2 >= 3:
            I(f"v_lshlrev_b32 v45, 21, v{V_LANE}")
            I("s_lshl_b32 s15, s8, 7")
            I("v_add_u32 v45, s15, v45")
            I(f"buffer_load_dword v{V_PFD}, v45, s[28:31], 0 offen sc1")
        if opt.tlb2 >= 2:
            srd(88, 34, 35, TBL_BYTES)
            I(f"buffer_load_dword v{V_PFD}, v44, s[88:91], 0 offen")
        L(lab)
    I("s_barrier")
    I("s_barrier")
    L("K2_NOSORT")
    I("s_barrier")
    stamp(4, 124)
    I(f"v_mov_b32 v41, {L_HEAVY}")
    I("ds_read_b32 v41, v41")
    VP1 = lambda t, r: 100 + t * 4 + r
    for t in range(3):
        if t == 2:
            I("s_cmp_eq_u32 s83, 0")
            I("s_cbranch_scc1 K2_NT3C")
        for r in range(4):
            lab = uid("K2_SP")
            I(f"s_mov_b64 exec, s[{SM(t,r)}:{SM(t,r)+1}]")
            I(f"s_cbranch_execz {lab}")
            I(f"ds_read_b32 v{VP1(t,r)}, v{VR(t,r)+1} offset:{L_NBQ}")
            L(lab)
    L("K2_NT3C")
    I("s_mov_b64 exec, s[72:73]")
    I(f"s_lshl_b32 s45, s10, 2")
    I(f"v_mov_b32 v{V_A0}, s45")
    I(f"ds_read_b32 v{V_PTRI}, v{V_A0} offset:{L_SU}")
    I(f"ds_read_b32 v{V_PTRC}, v{V_A0} offset:{L_WB}")
    I(f"v_lshrrev_b32 v{V_NB}, 2, v{V_G4}")
    I(f"s_lshl_b32 s45, s10, 4")
    I(f"s_lshl_b32 s14, s10, 3")
    I(f"s_add_u32 s14, s14, 96")
    I(f"s_cmp_lt_u32 s10, 12")
    I(f"s_cselect_b32 s45, s45, s14")
    I(f"v_add_u32 v{V_NA}, s45, v{V_NB}")
    I(f"v_add_u32 v{V_NB}, 8, v{V_NA}")
    I(f"ds_read_u8 v{V_NA}, v{V_NA} offset:{L_ORD}")
    I(f"ds_read_u8 v{V_NB}, v{V_NB} offset:{L_ORD}")
    I("s_waitcnt lgkmcnt(0)")
    I("v_readfirstlane_b32 s77, v41")
    I(f"v_readfirstlane_b32 s{S_T}, v{V_PTRI}")
    I(f"v_add_u32 v{V_PTRC}, v{V_PTRC}, v{V_G4}")
    if opt.stamps: stamp(12, 124)
    I("s_cmp_lg_u32 s77, 0")
    I("s_cbranch_scc1 K2_NOPLACE")
    for t in range(3):
        if t == 2:
            I("s_cmp_eq_u32 s83, 0")
            I("s_cbranch_scc1 K2_NT3D")
        for r in range(4):
            lab = uid("K2_SW")
            I(f"s_mov_b64 exec, s[{SM(t,r)}:{SM(t,r)+1}]")
            I(f"s_cbranch_execz {lab}")
            I(f"v_mad_u32_u16 v{VP1(t,r)}, v{VK(t,r)}, v{VP1(t,r)}, v{VP1(t,r)} op_sel:[0,1,0,0]")
            I(f"ds_write_b32 v{VP1(t,r)}, v{VR(t,r)}")
            L(lab)
    L("K2_NT3D")
    I("s_mov_b64 exec, s[72:73]")
    L("K2_NOPLACE")
    I("s_waitcnt lgkmcnt(0)")
    if opt.stamps: stamp(13, 124)
    I("s_barrier")
    stamp(5, 124)
    if nc: pf_issue(7, V_PFD, 24, nc, 10)
    S_PH, S_SCR = 47, 83
    I(f"s_mov_b32 s{S_PH}, 0")
    I(f"s_cmp_lt_u32 s10, {NWORK}")
    I("s_cbranch_scc1 K2_KEEP")
    I("s_cmp_eq_u32 s77, 0")
    I("s_cbranch_scc1 K2_END")
    L("K2_KEEP")
    srd(16, 32, 33, 8192)
    I("v_lshlrev_b32 v110, 4, v0")
    I("buffer_load_dwordx4 v[112:115], v110, s[16:19], 0 offen")
    L("K2_PHASE")
    I("s_cmp_eq_u32 s77, 0")
    I("s_cbranch_scc1 K2_FAST")
    release_gate("v")
    heavy_path("K2H", 24, 6, 20, 96, 8, 10, K2_ACC, 16)
    heavy_read_acc(K2_ACC, 10)
    I("s_cmp_lt_u32 s10, 13")
    I("s_cbranch_scc1 K2_DONE")
    I(f"s_cmp_lg_u32 s{S_PH}, 0")
    I("s_cbranch_scc1 K2_END")
    I(f"v_mov_b32 v{V_NA}, 0xff")
    I(f"v_mov_b32 v{V_NB}, 0xff")
    I("s_branch K2_DONE")
    L("K2_FAST")
    I(f"s_cmp_eq_u32 s{S_PH}, 0")
    I("s_cbranch_scc1 K2_HOPIN0")
    hop_header(10, 41)
    I("s_branch K2_HOPIN")
    L("K2_HOPIN0")
    I("s_cmp_lt_u32 s10, 12")
    I("s_cbranch_scc1 K2_HOPIN")
    I(f"v_mov_b32 v{V_NB}, 0xff")
    L("K2_HOPIN")
    hop_wave("K2S", 24, 10, release_gate)
    split_fix("K2S", 10)
    L("K2_DONE")
    I(f"s_cmp_lg_u32 s{S_PH}, 0")
    I("s_cbranch_scc1 K2_GEMM")
    stamp(6, 124)
    I("s_lshl_b32 s45, s8, 7")
    for vn, va, t0, ad in ((V_NA, V_ACC, V_T, V_A0), (V_NB, V_ACC2, V_RC, V_A1)):
        for i in range(4):
            I(f"v_cvt_pk_bf16_f32 v{t0+i}, v{va+2*i}, v{va+2*i+1}")
        I(f"v_lshlrev_b32 v{ad}, 15, v{vn}")
        I(f"v_add3_u32 v{ad}, v{ad}, s45, v{V_F16}")
        I(f"buffer_store_dwordx4 v[{t0}:{t0+3}], v{ad}, s[28:31], 0 offen" + FL[opt.st2])
    E_SW, E_AB0, E_AB1, E_AW, E_BP, E_KB = 104, 105, 106, 107, 108, 109
    WF = 72
    I("v_cmp_gt_u32 vcc, 0x200, v0")
    I("s_and_saveexec_b64 s[72:73], vcc")
    I(f"ds_write_b128 v110, v[112:115] offset:{L_WL}")
    I("s_mov_b64 exec, s[72:73]")
    I(f"s_lshl_b32 s{S_SCR}, s10, 11")
    I(f"s_add_u32 s{S_SCR}, s{S_SCR}, {L_SCR}")
    I(f"v_lshlrev_b32 v60, 2, v{V_G4}")
    I(f"v_xor_b32 v61, v60, v{V_F16}")
    I(f"v_lshlrev_b32 v60, 3, v60")
    I(f"v_add3_u32 v{E_SW}, v60, v61, s{S_SCR}")
    I(f"v_and_b32 v60, 15, v{V_LANE}")
    I(f"v_lshrrev_b32 v{E_KB}, 4, v{V_LANE}")
    I(f"v_and_b32 v61, 7, v60")
    I(f"v_lshlrev_b32 v{E_BP}, 5, v61")
    I(f"v_xor_b32 v62, v{E_KB}, v61")
    I(f"v_lshlrev_b32 v62, 4, v62")
    I(f"v_lshlrev_b32 v63, 7, v60")
    I(f"v_add3_u32 v{E_AB0}, v63, s{S_SCR}, v62")
    I(f"v_xor_b32 v62, 64, v62")
    I(f"v_add3_u32 v{E_AB1}, v63, s{S_SCR}, v62")
    I(f"v_lshrrev_b32 v62, 2, v60")
    I(f"v_lshl_add_u32 v62, v{E_KB}, 3, v62")
    I(f"v_lshlrev_b32 v62, 7, v62")
    I(f"v_and_b32 v63, 3, v{V_LANE}")
    I(f"v_lshl_add_u32 v{E_AW}, v63, 4, v62")
    I(f"v_cmp_gt_u32 s[74:75], 8, v60")
    I(f"v_lshlrev_b32 v{E_KB}, 4, v{E_KB}")
    for i in range(8):
        I(f"v_mov_b32 v{V_ACC+i}, 0")
        I(f"v_mov_b32 v{V_ACC2+i}, 0")
    srd(24, 6, 7, TBL_BYTES, WS_H1)
    I("s_waitcnt vmcnt(0) lgkmcnt(0)")
    srd(28, 34, 35, TBL_BYTES)
    stamp(7, 124)
    if opt.own == 2:
        I(f"buffer_load_dword v{V_PFD}, v{V_A0}, s[24:27], 0 offen")
        I(f"buffer_load_dword v{V_PFD}, v{V_A1}, s[24:27], 0 offen")
    I("s_barrier")
    I("s_cmp_lg_u32 s10, 0")
    I("s_cbranch_scc1 K2_NOPOLL")
    grid_arrive()
    L("K2_NOPOLL")
    if opt.own == 1:
        I(f"buffer_load_dword v{V_PFD}, v{V_A0}, s[24:27], 0 offen")
        I(f"buffer_load_dword v{V_PFD}, v{V_A1}, s[24:27], 0 offen")
    for t in range(4):
        for s in range(2):
            for hh in range(2):
                off = L_WL + s * 4096 + hh * 512 + (t >> 1) * 64 + (t & 1) * 8
                d = WF + (t * 2 + s) * 4 + 2 * hh
                I(f"ds_read_b64_tr_b16 v[{d}:{d+1}], v{E_AW} offset:{off}")
    I(f"s_mov_b32 s{S_PH}, 1")
    I("s_branch K2_PHASE")
    L("K2_GEMM")
    stamp(9, 124)
    E_OUT = E_AW
    I(f"ds_bpermute_b32 v110, v{E_BP}, v{V_NA}")
    I(f"ds_bpermute_b32 v111, v{E_BP}, v{V_NB}")
    for va, t0, off in ((V_ACC, V_T, 0), (V_ACC2, V_RC, 1024)):
        for i in range(4):
            I(f"v_cvt_pk_bf16_f32 v{t0+i}, v{va+2*i}, v{va+2*i+1}")
        I(f"ds_write_b128 v{E_SW}, v[{t0}:{t0+3}] offset:{off}")
    B0, B1 = 40, 44
    I(f"ds_read_b128 v[{B0}:{B0+3}], v{E_AB0}")
    I(f"ds_read_b128 v[{B1}:{B1+3}], v{E_AB1}")
    DD = 56
    I("s_lshl_b32 s45, s8, 7")
    I("s_waitcnt lgkmcnt(1)")
    I(f"v_cndmask_b32_e64 v110, v111, v110, s[74:75]")
    for t in range(4):
        a = WF + (t * 2) * 4
        I(f"v_mfma_f32_16x16x32_bf16 v[{DD+4*t}:{DD+4*t+3}], v[{a}:{a+3}], v[{B0}:{B0+3}], 0")
    I(f"v_lshlrev_b32 v110, 15, v110")
    I("s_waitcnt lgkmcnt(0)")
    for t in range(4):
        a = WF + (t * 2 + 1) * 4
        I(f"v_mfma_f32_16x16x32_bf16 v[{DD+4*t}:{DD+4*t+3}], v[{a}:{a+3}], v[{B1}:{B1+3}], v[{DD+4*t}:{DD+4*t+3}]")
    I(f"v_add3_u32 v{E_OUT}, v110, s45, v{E_KB}")
    O = 48
    I("s_nop 4")
    for half in range(2):
        for k in range(2):
            t = half * 2 + k
            if t == 3: I("s_nop 1")
            I(f"v_cvt_pk_bf16_f32 v{O+half*4+2*k}, v{DD+4*t}, v{DD+4*t+1}")
            I(f"v_cvt_pk_bf16_f32 v{O+half*4+2*k+1}, v{DD+4*t+2}, v{DD+4*t+3}")
        I(f"buffer_store_dwordx4 v[{O+half*4}:{O+half*4+3}], v{E_OUT}, s[28:31], 0 offen" + (" offset:64" if half else "") + FL[opt.st3])
    stamp(10, 124)
    if opt.stamps:
        I("s_waitcnt vmcnt(0)")
        stamp(11, 124)
    if opt.dbg:
        I("s_waitcnt vmcnt(0)")
        dstamp(11)
        lab = uid("DBG")
        I("s_or_b32 s14, s2, s10")
        I("s_cmp_lg_u32 s14, 0")
        I(f"s_cbranch_scc1 {lab}")
        I("s_load_dwordx2 s[92:93], s[0:1], 48")
        I(f"v_lshlrev_b32 v126, 2, v{V_LANE}")
        I("v_add_u32 v125, 0x3000000, v126")
        I("global_load_dword v124, v125, s[6:7] sc1")
        I("s_waitcnt vmcnt(0) lgkmcnt(0)")
        I(f"v_cmp_le_u32 vcc, 12, v{V_LANE}")
        I("s_nop 1")
        I("v_cndmask_b32 v127, v127, v124, vcc")
        I("s_mov_b64 exec, 0xffff")
        I("global_store_dword v126, v127, s[92:93]")
        L(lab)
    L("K2_END")
    I("s_endpgm")
    hop_subs("K2S")
    L("GPOLL")
    grid_poll("G2")
    I(f"s_setpc_b64 s[{S_RET}:{S_RET+1}]")
    I("s_endpgm")
    L("K2_CODE_END")
    return name, 128, 102

HEADER = f"""; Kernarg layout for this problem (64 bytes, ptrs only, base s[0:1]):
; @launch kernel=sgc_part_kernel grid=(256,1,1) block=(K1BLK,1,1) lds={K1_LDS}
; @launch kernel=sgc_prop_kernel grid=(256,1,1) block=(1024,1,1) lds=K2LDS
.amdgcn_target "amdgcn-amd-amdhsa--gfx950"
.text"""

def main():
    for a in sys.argv[2:]:
        k, v = a.split("=")
        assert hasattr(opt, k), k
        setattr(opt, k, int(v))
    h = HEADER.replace("K2LDS", str(K2_LDS)).replace("K1BLK", ("896" if (opt.cpf or opt.k1h) else "832") if opt.k1v == 1 else "448")
    emit(h)
    ks = [gen_k1(), gen_k2()]
    emit('.section .rodata,"a"')
    emit(".p2align 6")
    for (n, v, s) in ks:
        kernel_desc(n, v, s)
        emit(".p2align 6")
    open(sys.argv[1], "w").write("\n".join(out) + "\n")

main()
```

```python
import sys

N = 50000
E = 850000
CH = 3328
NCH = 256
RECP = CH * 4
RECH = CH * 2
WS_SEG = 0
WS_RECH = 0x40000
WS_RECP = 0x200400
WS_IMG = 0x6C0000
WS_H1 = 0xC00000
WS_SYNC = 0x1E0000
TBL_BYTES = N * 128
SAFE = 0x0000FFFF

class Opt:
    D = 4
    R = 8
    skew = 0
    pf1 = 0
    pf2b = 4
    pf2c = 0
    pf3 = 2
    pf3c = 0
    stamps = 0
    st1 = 1
    st2 = 1
    st2i = 1
    st3 = 1
    dbg = 0
    rst = 0
    nbar = 6
    pfs = 0
    pfsr = 2
    pfs3 = 0
    ld1 = 3
    ld2 = 0
    ld3 = 0
    skip3 = 0
    k1v = 1
    ldg = 1
    spin = 16000000
    brep = 16
    pfpos = 1
    poll2 = 0
    own = 0
    cpf = 0
    tlb2 = 0
    tlb1 = 0
    k1h = 0
    k1d = 0
    wh = 0
    adapt = 0
    skewl = 0
    skeww = 8
    skews = 0
    pf1h = 0
    pf1w = 0
    skipb = 0
    pollf = 1
    dbgx = 0
    t1 = 0
    tlb2off = 1048576
    cpfall = 0
    cpfn = 2
    lateinit = 0
    payafter = 1
    tlb = 0
    bsh = 4
    slp = 6
    smalllds = 0
    k3w = 16

opt = Opt()
out = []
def emit(s=""): out.append(s)
def I(s): out.append("    " + s)
def L(s): out.append(s + ":")
_uid = [0]
def uid(p):
    _uid[0] += 1
    return f"{p}_{_uid[0]}"

FL = ['', ' sc1', ' sc0 sc1', ' nt', ' sc0']
def srd(s, lo, hi, size, add=0):
    if add:
        I(f"s_add_u32 s{s}, s{lo}, {add}")
        I(f"s_addc_u32 s{s+1}, s{hi}, 0")
        I(f"s_and_b32 s{s+1}, s{s+1}, 0xffff")
    else:
        I(f"s_mov_b32 s{s}, s{lo}")
        I(f"s_and_b32 s{s+1}, s{hi}, 0xffff")
    I(f"s_mov_b32 s{s+2}, {size}")
    I(f"s_mov_b32 s{s+3}, 0x20000")

def wave_scan(v, n=64):
    for sh in (1, 2, 4, 8):
        I("s_nop 1")
        I(f"v_add_u32_dpp v{v}, v{v}, v{v} row_shr:{sh} row_mask:0xf bank_mask:0xf")
    if n > 16:
        I("s_nop 1")
        I(f"v_add_u32_dpp v{v}, v{v}, v{v} row_bcast:15 row_mask:0xa bank_mask:0xf")
        I("s_nop 1")
        I(f"v_add_u32_dpp v{v}, v{v}, v{v} row_bcast:31 row_mask:0xc bank_mask:0xf")

STAMP_OFF = 0x2000000
def stamp_init(kidx, ws_lo, vbase):
    if not opt.stamps: return
    I(f"v_lshrrev_b32 v{vbase}, 6, v0")
    I(f"s_lshl_b32 s92, s2, 4")
    I(f"s_add_u32 s92, s92, {kidx*256*16}")
    I(f"v_add_u32 v{vbase}, s92, v{vbase}")
    I(f"v_lshlrev_b32 v{vbase}, 7, v{vbase}")
    I(f"v_add_u32 v{vbase}, {STAMP_OFF}, v{vbase}")
    I(f"s_mov_b32 s94, s{ws_lo}")
    I(f"s_mov_b32 s95, s{ws_lo+1}")
_cur = [1]
def dstamp(j):
    I("s_memrealtime s[90:91]")
    I("s_waitcnt lgkmcnt(0)")
    I(f"v_writelane_b32 v127, s90, {j}")
def stamp(j, vbase, pre=None):
    if opt.dbg:
        if j <= 11 and pre is None: dstamp(j + (0 if _cur[0] == 2 else 12))
        return
    if not opt.stamps: return
    if pre is None:
        I("s_memrealtime s[90:91]")
        I("s_waitcnt lgkmcnt(0)")
    else:
        I(f"s_mov_b32 s90, s{pre}")
        I(f"s_mov_b32 s91, s{pre+1}")
    I("s_mov_b64 s[88:89], exec")
    I("s_mov_b64 exec, 1")
    I(f"v_mov_b32 v{vbase+2}, s90")
    I(f"v_mov_b32 v{vbase+3}, s91")
    I(f"global_store_dwordx2 v{vbase}, v[{vbase+2}:{vbase+3}], s[94:95] offset:{8*j}")
    I("s_mov_b64 exec, s[88:89]")

def kernel_begin(name):
    emit(f".globl {name}")
    emit(".p2align 8")
    emit(f".type {name},@function")
    L(name)

def kernel_desc(name, vgpr, sgpr):
    acc = (vgpr + 3) // 4 * 4
    emit(f".amdhsa_kernel {name}")
    emit(f"  .amdhsa_next_free_vgpr {vgpr}")
    emit(f"  .amdhsa_next_free_sgpr {sgpr}")
    emit(f"  .amdhsa_accum_offset {acc}")
    emit("  .amdhsa_group_segment_fixed_size 0")
    emit("  .amdhsa_kernarg_size 64")
    emit("  .amdhsa_user_sgpr_count 2")
    emit("  .amdhsa_user_sgpr_kernarg_segment_ptr 1")
    emit("  .amdhsa_system_sgpr_workgroup_id_x 1")
    emit(".end_amdhsa_kernel")

PFU = 8192
def pf_setup(vaddr, n, base_bytes):
    I("s_lshr_b32 s15, s2, 3")
    I(f"s_mul_i32 s15, s15, {n*PFU}")
    if base_bytes: I(f"s_add_u32 s15, s15, {base_bytes}")
    I(f"v_lshlrev_b32 v{vaddr}, 7, v0")
    I(f"v_add_u32 v{vaddr}, s15, v{vaddr}")
def pf_issue(vaddr, vdst, tbl, n, sW, nw=16):
    rounds = (n + nw - 1) // nw
    for i in range(rounds):
        cnt = min(nw, n - nw * i)
        lab = uid("PF")
        if cnt < nw:
            I(f"s_cmp_ge_u32 s{sW}, {cnt}")
            I(f"s_cbranch_scc1 {lab}")
        I(f"s_mov_b32 s15, {i*nw*PFU}")
        I(f"buffer_load_dword v{vdst}, v{vaddr}, s[{tbl}:{tbl+3}], s15 offen")
        L(lab)

def pf_stream(tbl, sW, nunits, base_bytes, per_round, vaddr, nrounds_max):
    I("s_lshr_b32 s15, s2, 3")
    I(f"s_mul_i32 s15, s15, {nunits*PFU}")
    I(f"s_add_u32 s15, s15, {base_bytes}")
    I(f"s_sub_u32 s14, s{sW}, {NWORK}")
    I(f"s_mul_i32 s14, s14, {PFU}")
    I("s_add_u32 s15, s15, s14")
    I(f"v_lshlrev_b32 v{vaddr}, 7, v{V_LANE}")
    I(f"v_add_u32 v{vaddr}, s15, v{vaddr}")
    k = 0
    nsteps = (nunits + 1) // 2
    rnd = 0
    while k < nsteps:
        for _ in range(per_round):
            if k >= nsteps: break
            I(f"s_mov_b32 s15, {k*2*PFU}")
            I(f"buffer_load_dword v{V_PFD}, v{vaddr}, s[{tbl}:{tbl+3}], s15 offen")
            k += 1
        rnd += 1
        if k < nsteps and rnd <= nrounds_max:
            I("s_barrier")

K1_HIST = 0
K1_PRE = 1024
K1_STP = 2048
K1_STH = K1_STP + RECP
K1_LDS = K1_STH + RECH

def gen_k1():
    if not opt.k1h: return gen_k1_old()
    name = "sgc_part_kernel"
    NT = 832
    kernel_begin(name)
    I("s_cmp_ge_u32 s2, 256")
    I("s_cbranch_scc1 K1_END")
    I("s_load_dwordx2 s[10:11], s[0:1], 56")
    I("v_readfirstlane_b32 s15, v0")
    I("s_lshr_b32 s46, s15, 6")
    I("s_cmp_lt_u32 s46, 13")
    I("s_cbranch_scc1 K1_MAIN")
    I("v_and_b32 v1, 63, v0")
    I("v_mov_b32 v4, 0")
    I("s_getpc_b64 s[48:49]")
    L("CPF_PC")
    I("s_add_u32 s48, s48, sgc_prop_kernel - CPF_PC")
    I("s_addc_u32 s49, s49, 0")
    I("v_lshlrev_b32 v7, 7, v1")
    I("s_mov_b64 s[12:13], exec")
    I(f"s_cmp_ge_u32 s2, {opt.cpf}")
    I("s_cbranch_scc1 K1_NOCPF")
    I("v_cmp_gt_u32 vcc, K2_CODE_END - sgc_prop_kernel, v7")
    I("s_and_b64 exec, exec, vcc")
    I("s_cbranch_execz K1_NOCPF0")
    I("global_load_dword v8, v7, s[48:49]")
    L("K1_NOCPF0")
    I("s_mov_b64 exec, s[12:13]")
    L("K1_NOCPF")
    I("s_waitcnt lgkmcnt(0)")
    I("s_cmp_lg_u32 s2, 0")
    I("s_cbranch_scc1 K1_NOZ")
    I(f"v_add_u32 v7, {WS_SYNC}, v7")
    I("global_store_dword v7, v4, s[10:11] sc1")
    L("K1_NOZ")
    if opt.tlb1:
        I("v_lshlrev_b32 v11, 21, v1")
        I("v_add_u32 v11, 0x1f0000, v11")
        I("v_cmp_eq_u32 vcc, 1, v1")
        I("v_mov_b32 v12, 0x200000")
        I("s_nop 0")
        I("v_cndmask_b32 v11, v11, v12, vcc")
        I("s_mov_b64 exec, 7")
        I("global_load_dword v13, v11, s[10:11]")
        I("s_mov_b64 exec, s[12:13]")
    srd(28, 10, 11, NCH * 1024, WS_SEG)
    I("v_lshlrev_b32 v5, 4, v1")
    I("s_lshl_b32 s37, s2, 10")
    if opt.pf1h:
        I("s_load_dwordx2 s[50:51], s[0:1], 0")
        I("s_lshr_b32 s15, s2, 3")
        I(f"s_mul_i32 s15, s15, {opt.pf1h*PFU}")
        I("v_lshlrev_b32 v9, 7, v1")
        I("v_add_u32 v9, s15, v9")
        I("s_waitcnt lgkmcnt(0)")
        srd(56, 50, 51, TBL_BYTES)
    if opt.pf1h and opt.pf1w == 0:
        for q in range(opt.pf1h):
            I(f"s_mov_b32 s15, {q*PFU}")
            I("buffer_load_dword v10, v9, s[56:59], s15 offen")
    I("s_barrier")
    I("s_barrier")
    if opt.pf1h and opt.pf1w == 1:
        for q in range(opt.pf1h):
            I(f"s_mov_b32 s15, {q*PFU}")
            I("buffer_load_dword v10, v9, s[56:59], s15 offen")
    I(f"ds_read_b128 v[72:75], v5 offset:{K1_HIST}")
    I("s_waitcnt lgkmcnt(0)")
    I("v_add_u32 v76, v72, v73")
    I("v_add_u32 v77, v76, v74")
    I("v_add_u32 v78, v77, v75")
    I("v_mov_b32 v79, v78")
    wave_scan(79)
    I("v_sub_u32 v80, v79, v78")
    I("v_add_u32 v81, v80, v72")
    I("v_add_u32 v82, v80, v76")
    I("v_add_u32 v83, v80, v77")
    I(f"ds_write_b128 v5, v[80:83] offset:{K1_PRE}")
    I("v_lshl_or_b32 v72, v81, 16, v80")
    I("v_lshl_or_b32 v73, v82, 16, v81")
    I("v_lshl_or_b32 v74, v83, 16, v82")
    I("v_lshl_or_b32 v75, v79, 16, v83")
    I("s_waitcnt lgkmcnt(0)")
    I("s_barrier")
    I("buffer_store_dwordx4 v[72:75], v5, s[28:31], s37 offen" + FL[opt.st1])
    I("s_endpgm")
    L("K1_MAIN")
    if opt.stamps: I("s_memrealtime s[86:87]")
    I("s_load_dwordx4 s[4:7], s[0:1], 8")
    I("s_load_dwordx2 s[8:9], s[0:1], 24")
    I(f"s_mul_i32 s3, s2, {CH}")
    I("v_lshl_add_u32 v1, v0, 2, s3")
    I("v_lshlrev_b32 v2, 2, v1")
    I("v_lshlrev_b32 v3, 1, v1")
    I("v_mov_b32 v4, 0")
    I("v_lshlrev_b32 v5, 2, v0")
    I("v_cmp_gt_u32 vcc, 0x100, v0")
    I("s_and_saveexec_b64 s[12:13], vcc")
    I(f"ds_write_b32 v5, v4 offset:{K1_HIST}")
    I("s_mov_b64 exec, s[12:13]")
    I("s_waitcnt lgkmcnt(0)")
    stamp_init(0, 10, 124); stamp(0, 124, 86)
    srd(16, 6, 7, E * 4)
    D = lambda i: 8 + i
    S = lambda i: 12 + i
    NR = lambda i: 16 + i
    HA = lambda i: 40 + i
    RK = lambda i: 48 + i
    PL = lambda i: 56 + i
    HI = lambda i: 64 + i
    I(f"buffer_load_dwordx4 v[{D(0)}:{D(3)}], v2, s[16:19], 0 offen" + FL[opt.ld1])
    srd(20, 4, 5, E * 4)
    srd(24, 8, 9, E * 2)
    if not opt.k1d:
        I(f"buffer_load_dwordx4 v[{S(0)}:{S(3)}], v2, s[20:23], 0 offen" + FL[opt.ld1])
        I(f"buffer_load_dwordx2 v[{NR(0)}:{NR(1)}], v3, s[24:27], 0 offen" + FL[opt.ld1])
    srd(32, 10, 11, NCH * RECP, WS_RECP)
    srd(52, 10, 11, NCH * RECH, WS_RECH)
    I("s_mov_b32 s36, 0xffff0000")
    I("s_mov_b32 s37, 21474")
    I("s_mov_b64 s[12:13], exec")
    I(f"s_mov_b32 s14, {E}")
    I("v_cmp_gt_u32 s[58:59], s14, v1")
    I("v_mov_b32 v6, 1")
    I("s_barrier")
    if opt.k1d:
        I(f"buffer_load_dwordx4 v[{S(0)}:{S(3)}], v2, s[20:23], 0 offen" + FL[opt.ld1])
        I(f"buffer_load_dwordx2 v[{NR(0)}:{NR(1)}], v3, s[24:27], 0 offen" + FL[opt.ld1])
    I("s_waitcnt vmcnt(2)")
    stamp(1, 124)
    I("s_mov_b64 exec, s[58:59]")
    for i in range(4):
        I(f"v_and_b32 v{HA(i)}, 0xff, v{D(i)}")
        I(f"v_lshlrev_b32 v{HA(i)}, 2, v{HA(i)}")
        I(f"ds_add_rtn_u32 v{RK(i)}, v{HA(i)}, v6 offset:{K1_HIST}")
    I("s_mov_b64 exec, s[12:13]")
    I("s_waitcnt lgkmcnt(0)")
    I("s_barrier")
    I("s_waitcnt vmcnt(0)")
    I(f"v_lshl_or_b32 v{PL(0)}, v{NR(0)}, 16, v{S(0)}")
    I(f"v_and_or_b32 v{PL(1)}, v{NR(0)}, s36, v{S(1)}")
    I(f"v_lshl_or_b32 v{PL(2)}, v{NR(1)}, 16, v{S(2)}")
    I(f"v_and_or_b32 v{PL(3)}, v{NR(1)}, s36, v{S(3)}")
    for i in range(4):
        I(f"v_mul_u32_u24 v7, s37, v{S(i)}")
        I("v_lshrrev_b32 v7, 26, v7")
        I("v_and_b32 v7, 12, v7")
        I(f"v_lshrrev_b32 v{HI(i)}, 8, v{D(i)}")
        I(f"v_lshl_or_b32 v{HI(i)}, v{HI(i)}, 4, v7")
    I("s_barrier")
    I("s_mov_b64 exec, s[58:59]")
    for i in range(4):
        I(f"ds_read_b32 v{HA(i)}, v{HA(i)} offset:{K1_PRE}")
    I("s_waitcnt lgkmcnt(0)")
    for i in range(4):
        I(f"v_add_u32 v{HA(i)}, v{HA(i)}, v{RK(i)}")
        I(f"v_lshlrev_b32 v{RK(i)}, 2, v{HA(i)}")
        I(f"v_lshlrev_b32 v{HA(i)}, 1, v{HA(i)}")
        I(f"ds_write_b32 v{RK(i)}, v{PL(i)} offset:{K1_STP}")
        I(f"ds_write_b16 v{HA(i)}, v{HI(i)} offset:{K1_STH}")
    I("s_mov_b64 exec, s[12:13]")
    I("v_lshlrev_b32 v5, 4, v0")
    I(f"s_mul_i32 s37, s2, {RECP}")
    I(f"s_mul_i32 s42, s2, {RECH}")
    I(f"s_mov_b32 s14, {RECH//16}")
    I("v_cmp_gt_u32 vcc, s14, v0")
    I("s_waitcnt lgkmcnt(0)")
    I("s_barrier")
    I(f"ds_read_b128 v[8:11], v5 offset:{K1_STP}")
    I("s_mov_b64 exec, vcc")
    I(f"ds_read_b128 v[16:19], v5 offset:{K1_STH}")
    I("s_mov_b64 exec, s[12:13]")
    I("s_waitcnt lgkmcnt(1)")
    I("buffer_store_dwordx4 v[8:11], v5, s[32:35], s37 offen" + FL[opt.st1])
    I("s_waitcnt lgkmcnt(0)")
    I("s_mov_b64 exec, vcc")
    I("s_cbranch_execz K1_FIN")
    I("buffer_store_dwordx4 v[16:19], v5, s[52:55], s42 offen" + FL[opt.st1])
    L("K1_FIN")
    I("s_mov_b64 exec, s[12:13]")
    stamp(2, 124)
    if opt.stamps:
        I("s_waitcnt vmcnt(0)")
        stamp(3, 124)
    L("K1_END")
    I("s_endpgm")
    return name, (128 if opt.stamps else 88), (102 if opt.stamps else 64)

def gen_k1_old():
    name = "sgc_part_kernel"
    V = opt.k1v
    NT = 832 // V
    kernel_begin(name)
    I("s_cmp_ge_u32 s2, 256")
    I("s_cbranch_scc1 K1_END")
    if opt.cpf:
        I("v_readfirstlane_b32 s15, v0")
        I("s_lshr_b32 s15, s15, 6")
        I("s_cmp_lt_u32 s15, 13")
        I("s_cbranch_scc1 K1_MAIN")
        if opt.tlb1:
            I("s_load_dwordx2 s[10:11], s[0:1], 56")
            I("v_and_b32 v92, 63, v0")
            I("v_lshlrev_b32 v92, 21, v92")
            I("v_add_u32 v92, 0x1f0000, v92")
            I("v_and_b32 v93, 63, v0")
            I("v_cmp_eq_u32 vcc, 1, v93")
            I("v_mov_b32 v93, 0x200000")
            I("s_nop 0")
            I("v_cndmask_b32 v92, v92, v93, vcc")
            I("s_mov_b64 s[12:13], exec")
            I("s_mov_b64 exec, 7")
            I("s_waitcnt lgkmcnt(0)")
            I("global_load_dword v93, v92, s[10:11]")
            I("s_mov_b64 exec, s[12:13]")
        I(f"s_cmp_ge_u32 s2, {opt.cpf}")
        I("s_cbranch_scc1 K1_END")
        I("s_getpc_b64 s[48:49]")
        L("CPF_PC")
        if opt.cpfall:
            I("s_sub_u32 s48, s48, CPF_PC - sgc_part_kernel")
            I("s_subb_u32 s49, s49, 0")
            I("v_and_b32 v90, 63, v0")
            I("v_lshlrev_b32 v90, 7, v90")
            I("v_cmp_gt_u32 vcc, K2_CODE_END - sgc_part_kernel, v90")
            I("s_and_saveexec_b64 s[12:13], vcc")
            I("global_load_dword v91, v90, s[48:49]")
            I("v_add_u32 v90, 8192, v90")
            I("v_cmp_gt_u32 vcc, K2_CODE_END - sgc_part_kernel, v90")
        else:
            I("s_add_u32 s48, s48, sgc_prop_kernel - CPF_PC")
            I("s_addc_u32 s49, s49, 0")
            I("v_and_b32 v90, 63, v0")
            I("v_lshlrev_b32 v90, 7, v90")
            I("v_cmp_gt_u32 vcc, K2_CODE_END - sgc_prop_kernel, v90")
        I("s_and_saveexec_b64 s[12:13], vcc")
        I("s_cbranch_execz K1_END")
        I("global_load_dword v91, v90, s[48:49]")
        I("s_endpgm")
        L("K1_MAIN")
    if opt.stamps: I("s_memrealtime s[86:87]")
    I("s_load_dwordx4 s[4:7], s[0:1], 8")
    I("s_load_dwordx2 s[8:9], s[0:1], 24")
    I("s_load_dwordx2 s[10:11], s[0:1], 56")
    I(f"s_mul_i32 s3, s2, {CH}")
    I("v_lshl_add_u32 v1, v0, 2, s3")
    I("v_lshlrev_b32 v2, 2, v1")
    I("v_lshlrev_b32 v3, 1, v1")
    I("v_mov_b32 v4, 0")
    I("v_lshlrev_b32 v5, 2, v0")
    I("v_cmp_gt_u32 vcc, 0x100, v0")
    I("s_and_saveexec_b64 s[12:13], vcc")
    I(f"ds_write_b32 v5, v4 offset:{K1_HIST}")
    I("s_mov_b64 exec, s[12:13]")
    I("v_readfirstlane_b32 s15, v0")
    I("s_waitcnt lgkmcnt(0)")
    if opt.dbg:
        I("v_mov_b32 v127, 0")
        dstamp(12)
    stamp_init(0, 10, 124); stamp(0, 124, 86)
    if opt.t1:
        I("v_and_b32 v92, 63, v0")
        I("v_mov_b32 v94, s6")
        I("v_mov_b32 v95, s7")
        for ln, lo, hi in ((1, 4, 5), (2, 8, 9), (3, 10, 11), (4, 10, 11), (5, 10, 11)):
            I(f"v_cmp_eq_u32 vcc, {ln}, v92")
            I(f"v_mov_b32 v96, s{lo}")
            I(f"v_mov_b32 v97, s{hi}")
            I(f"v_cndmask_b32 v94, v94, v96, vcc")
            I(f"v_cndmask_b32 v95, v95, v97, vcc")
        I(f"s_lshl_b32 s14, s3, 2")
        I("v_mov_b32 v96, s14")
        I(f"s_lshl_b32 s14, s3, 1")
        for ln, val in ((2, "s14"), (3, "0x1f0000"), (4, "0x200000"), (5, "0x5f0000")):
            I(f"v_cmp_eq_u32 vcc, {ln}, v92")
            I(f"v_mov_b32 v97x, {val}".replace("v97x", "v93"))
            I("s_nop 0")
            I(f"v_cndmask_b32 v96, v96, v93, vcc")
        I("v_add_co_u32 v94, vcc, v94, v96")
        I("v_addc_co_u32 v95, vcc, 0, v95, vcc")
        I("s_mov_b64 s[12:13], exec")
        I("s_mov_b64 exec, 63")
        I("global_load_dword v93, v[94:95], off")
        I("s_mov_b64 exec, s[12:13]")
    srd(16, 6, 7, E * 4)
    D = lambda g, i: 8 + 16 * g + i
    S = lambda g, i: 12 + 16 * g + i
    NR = lambda g, i: 16 + 16 * g + i
    HA = lambda g, i: 40 + 4 * g + i
    RK = lambda g, i: 48 + 4 * g + i
    PL = lambda g, i: 56 + 4 * g + i
    HI = lambda g, i: 64 + 4 * g + i
    for g in range(V):
        I(f"s_mov_b32 s{40+g}, {g*NT*16}")
        I(f"buffer_load_dwordx4 v[{D(g,0)}:{D(g,3)}], v2, s[16:19], s{40+g} offen" + FL[opt.ld1])
    srd(20, 4, 5, E * 4)
    srd(24, 8, 9, E * 2)
    for g in range(V):
        I(f"s_mov_b32 s{42+g}, {g*NT*8}")
        I(f"buffer_load_dwordx4 v[{S(g,0)}:{S(g,3)}], v2, s[20:23], s{40+g} offen" + FL[opt.ld1])
        I(f"buffer_load_dwordx2 v[{NR(g,0)}:{NR(g,1)}], v3, s[24:27], s{42+g} offen" + FL[opt.ld1])
    I("s_lshr_b32 s46, s15, 6")
    I("s_or_b32 s14, s2, s46")
    I("s_cmp_lg_u32 s14, 0")
    I("s_cbranch_scc1 K1_NOZ")
    I("v_lshlrev_b32 v7, 7, v0")
    I(f"v_add_u32 v7, {WS_SYNC}, v7")
    I("global_store_dword v7, v4, s[10:11] sc1")
    I("s_waitcnt vmcnt(0)")
    L("K1_NOZ")
    npf = 0
    if opt.pf1:
        I("s_load_dwordx2 s[48:49], s[0:1], 0")
        I("s_lshr_b32 s15, s2, 3")
        I(f"s_mul_i32 s15, s15, {opt.pf1*PFU}")
        I(f"s_cmp_lt_u32 s46, {opt.pf1}")
        I("s_cselect_b32 s15, s15, 0x40000000")
        I("v_lshlrev_b32 v90, 7, v0")
        I("v_add_u32 v90, s15, v90")
        I("s_waitcnt lgkmcnt(0)")
        srd(64, 48, 49, TBL_BYTES)
        I("buffer_load_dword v91, v90, s[64:67], 0 offen")
        npf = 1
    srd(28, 10, 11, NCH * 1024, WS_SEG)
    srd(32, 10, 11, NCH * RECP, WS_RECP)
    srd(52, 10, 11, NCH * RECH, WS_RECH)
    I("s_mov_b32 s36, 0xffff0000")
    I("s_mov_b32 s37, 21474")
    I("s_mov_b64 s[12:13], exec")
    I(f"v_cmp_gt_u32 s[56:57], {NT if NT <= 64 else 's14'}, v0") if False else None
    I(f"s_mov_b32 s14, {NT}")
    I("v_cmp_gt_u32 s[56:57], s14, v0")
    for g in range(V):
        I(f"s_mov_b32 s14, {E - g*NT*4}")
        I(f"v_cmp_gt_u32 s[{58+2*g}:{59+2*g}], s14, v1")
        I(f"s_and_b64 s[{58+2*g}:{59+2*g}], s[{58+2*g}:{59+2*g}], s[56:57]")
    I("v_mov_b32 v6, 1")
    I("s_barrier")
    for g in range(V):
        I(f"s_waitcnt vmcnt({(V - 1 - g) + 2*V + npf})")
        if g == 0: stamp(1, 124)
        I(f"s_mov_b64 exec, s[{58+2*g}:{59+2*g}]")
        for i in range(4):
            I(f"v_and_b32 v{HA(g,i)}, 0xff, v{D(g,i)}")
            I(f"v_lshlrev_b32 v{HA(g,i)}, 2, v{HA(g,i)}")
        for i in range(4):
            I(f"ds_add_rtn_u32 v{RK(g,i)}, v{HA(g,i)}, v6 offset:{K1_HIST}")
    I("s_mov_b64 exec, s[12:13]")
    for g in range(V):
        I(f"s_waitcnt vmcnt({2*(V-1-g) + npf})")
        I(f"v_lshl_or_b32 v{PL(g,0)}, v{NR(g,0)}, 16, v{S(g,0)}")
        I(f"v_and_or_b32 v{PL(g,1)}, v{NR(g,0)}, s36, v{S(g,1)}")
        I(f"v_lshl_or_b32 v{PL(g,2)}, v{NR(g,1)}, 16, v{S(g,2)}")
        I(f"v_and_or_b32 v{PL(g,3)}, v{NR(g,1)}, s36, v{S(g,3)}")
        for i in range(4):
            I(f"v_mul_u32_u24 v7, s37, v{S(g,i)}")
            I("v_lshrrev_b32 v7, 26, v7")
            I("v_and_b32 v7, 12, v7")
            I(f"v_lshrrev_b32 v{HI(g,i)}, 8, v{D(g,i)}")
            I(f"v_lshl_or_b32 v{HI(g,i)}, v{HI(g,i)}, 4, v7")
    I("s_waitcnt lgkmcnt(0)")
    I("s_barrier")
    I("s_cmp_lg_u32 s46, 0")
    I("s_cbranch_scc1 K1_NOSCAN")
    I("v_lshlrev_b32 v5, 4, v0")
    I(f"ds_read_b128 v[72:75], v5 offset:{K1_HIST}")
    I("s_waitcnt lgkmcnt(0)")
    I("v_add_u32 v76, v72, v73")
    I("v_add_u32 v77, v76, v74")
    I("v_add_u32 v78, v77, v75")
    I("v_mov_b32 v79, v78")
    wave_scan(79)
    I("v_sub_u32 v80, v79, v78")
    I("v_add_u32 v81, v80, v72")
    I("v_add_u32 v82, v80, v76")
    I("v_add_u32 v83, v80, v77")
    I(f"ds_write_b128 v5, v[80:83] offset:{K1_PRE}")
    I("v_lshl_or_b32 v72, v81, 16, v80")
    I("v_lshl_or_b32 v73, v82, 16, v81")
    I("v_lshl_or_b32 v74, v83, 16, v82")
    I("v_lshl_or_b32 v75, v79, 16, v83")
    I("s_lshl_b32 s37, s2, 10")
    I("buffer_store_dwordx4 v[72:75], v5, s[28:31], s37 offen" + FL[opt.st1])
    I("s_waitcnt lgkmcnt(0)")
    L("K1_NOSCAN")
    I("s_barrier")
    for g in range(V):
        I(f"s_mov_b64 exec, s[{58+2*g}:{59+2*g}]")
        for i in range(4):
            I(f"ds_read_b32 v{HA(g,i)}, v{HA(g,i)} offset:{K1_PRE}")
    for g in range(V):
        I(f"s_mov_b64 exec, s[{58+2*g}:{59+2*g}]")
        I(f"s_waitcnt lgkmcnt({4*(V-1-g) if g < V-1 else 0})" if False else "s_waitcnt lgkmcnt(0)")
        for i in range(4):
            I(f"v_add_u32 v{HA(g,i)}, v{HA(g,i)}, v{RK(g,i)}")
            I(f"v_lshlrev_b32 v{RK(g,i)}, 2, v{HA(g,i)}")
            I(f"v_lshlrev_b32 v{HA(g,i)}, 1, v{HA(g,i)}")
            I(f"ds_write_b32 v{RK(g,i)}, v{PL(g,i)} offset:{K1_STP}")
            I(f"ds_write_b16 v{HA(g,i)}, v{HI(g,i)} offset:{K1_STH}")
    I("s_mov_b64 exec, s[12:13]")
    I("s_waitcnt lgkmcnt(0)")
    I("s_barrier")
    I("v_lshlrev_b32 v5, 4, v0")
    I(f"s_mul_i32 s37, s2, {RECP}")
    I(f"s_mul_i32 s42, s2, {RECH}")
    I("s_mov_b64 exec, s[56:57]")
    for g in range(V):
        I(f"ds_read_b128 v[{8+4*g}:{11+4*g}], v5 offset:{K1_STP + g*NT*16}")
    if V == 2:
        I(f"ds_read_b128 v[16:19], v5 offset:{K1_STH}")
    else:
        I(f"s_mov_b32 s14, {RECH//16}")
        I("v_cmp_gt_u32 vcc, s14, v0")
        I("s_mov_b64 exec, vcc")
        I(f"ds_read_b128 v[16:19], v5 offset:{K1_STH}")
        I("s_mov_b64 exec, s[56:57]")
    I("s_cbranch_execz K1_FIN")
    for g in range(V):
        I(f"s_waitcnt lgkmcnt({V - g})")
        if g: I(f"s_add_u32 s37, s37, {NT*16}")
        I(f"buffer_store_dwordx4 v[{8+4*g}:{11+4*g}], v5, s[32:35], s37 offen" + FL[opt.st1])
    I("s_waitcnt lgkmcnt(0)")
    if V == 1:
        I("s_mov_b64 exec, vcc")
        I("s_cbranch_execz K1_FIN")
    I("buffer_store_dwordx4 v[16:19], v5, s[52:55], s42 offen" + FL[opt.st1])
    L("K1_FIN")
    I("s_mov_b64 exec, s[12:13]")
    stamp(2, 124)
    if opt.stamps:
        I("s_waitcnt vmcnt(0)")
        stamp(3, 124)
    if opt.dbg:
        I("s_waitcnt vmcnt(0)")
        dstamp(15)
        lab = uid("DBG")
        I("s_or_b32 s14, s2, s46")
        I("s_cmp_lg_u32 s14, 0")
        I(f"s_cbranch_scc1 {lab}")
        I("v_lshlrev_b32 v126, 2, v0")
        I("v_add_u32 v126, 0x3000000, v126")
        I("global_store_dword v126, v127, s[10:11] sc1")
        L(lab)
    L("K1_END")
    I("s_endpgm")
    return name, (128 if (opt.stamps or opt.dbg) else 104), (102 if (opt.stamps or opt.dbg) else 72)

L_SU = 0x000
L_WB = 0x040
L_ORD = 0x120
L_HEAVY = 0x1F0
L_LN = 0x20000
LN_CAP = 0x4000
L_LS = 0x10000
LS_CAP = 0x1000
L_CNT = 0x4000
L_H2 = 0x5000
L_WM = 0x5200
K2_ZERO_END = 0x5400
L_NBQ = 0x5400
L_WL = 0x6400
L_SCR = 0x8400
K2_ACC = 0xF400
ACC_BYTES = 208 * 256
K2_LDS = L_LN + LN_CAP
assert K2_ACC + ACC_BYTES <= L_LN
NWORK = 14

V_LANE = 1
V_G4 = 2
V_F16 = 3
V_SELA = 4
V_SELB = 5
V_PTRC = 6
V_PTRI = 7
V_NA = 8
V_NB = 9
V_A0 = 10
V_A1 = 11
V_ACC = 12
V_ACC2 = 20
V_T = 28
V_RC = 32
V_RI = 36
V_DATA = 40
S_T, S_R, S_PACE, S_DR, S_REM = 78, 79, 80, 81, 82
S_NB = 76
S_RET = 84
S_128 = 44
V_PFD = 125

def hop_consts():
    I(f"v_lshrrev_b32 v{V_G4}, 3, v{V_LANE}")
    I(f"v_lshlrev_b32 v{V_G4}, 2, v{V_G4}")
    I(f"v_and_b32 v{V_F16}, 7, v{V_LANE}")
    I(f"v_lshlrev_b32 v{V_F16}, 4, v{V_F16}")
    I(f"v_and_b32 v{V_PTRC}, 3, v{V_LANE}")
    I(f"v_mov_b32 v{V_SELA}, 0x0c0c0c0c")
    I(f"v_mov_b32 v{V_SELB}, 0x0c0c0c0c")
    I(f"v_mov_b32 v{V_A0}, 0x0c0c0302")
    I(f"v_mov_b32 v{V_A1}, 0x03020c0c")
    for val, sel, lit in ((0, V_SELA, V_A0), (1, V_SELA, V_A1), (2, V_SELB, V_A0), (3, V_SELB, V_A1)):
        I(f"v_cmp_eq_u32 vcc, {val}, v{V_PTRC}")
        I("s_nop 1")
        I(f"v_cndmask_b32 v{sel}, v{sel}, v{lit}, vcc")
    I(f"s_mov_b32 s{S_128}, 128")
    for i in range(8):
        I(f"v_mov_b32 v{V_ACC+i}, 0")
        I(f"v_mov_b32 v{V_ACC2+i}, 0")

def rd2(dst, ptr, unit):
    o = unit * 16
    assert o + 8 <= 255
    I(f"ds_read2_b32 v[{dst}:{dst+1}], v{ptr} offset0:{o} offset1:{o+8}")

def perms(p):
    rc = V_RC + 2 * p
    I(f"v_perm_b32 v{V_T+0}, v{rc}, v{rc}, v{V_SELA}")
    I(f"v_perm_b32 v{V_T+1}, v{rc}, v{rc}, v{V_SELB}")
    I(f"v_perm_b32 v{V_T+2}, v{rc+1}, v{rc+1}, v{V_SELA}")
    I(f"v_perm_b32 v{V_T+3}, v{rc+1}, v{rc+1}, v{V_SELB}")

def mfmas(r):
    d = V_DATA + 8 * r
    a, b = V_ACC, V_ACC2
    I(f"v_mfma_f32_4x4x4_16b_bf16 v[{a}:{a+3}], v[{V_T}:{V_T+1}], v[{d}:{d+1}], v[{a}:{a+3}]")
    I(f"v_mfma_f32_4x4x4_16b_bf16 v[{a+4}:{a+7}], v[{V_T}:{V_T+1}], v[{d+2}:{d+3}], v[{a+4}:{a+7}]")
    I(f"v_mfma_f32_4x4x4_16b_bf16 v[{b}:{b+3}], v[{V_T+2}:{V_T+3}], v[{d+4}:{d+5}], v[{b}:{b+3}]")
    I(f"v_mfma_f32_4x4x4_16b_bf16 v[{b+4}:{b+7}], v[{V_T+2}:{V_T+3}], v[{d+6}:{d+7}], v[{b+4}:{b+7}]")

def pace_check(pfx):
    if opt.R <= 1: return
    lab = uid(pfx + "_PC")
    I(f"s_add_u32 s{S_PACE}, s{S_PACE}, s{S_R}")
    I(f"s_cmp_lt_i32 s{S_PACE}, s{S_T}")
    I(f"s_cbranch_scc1 {lab}")
    I(f"s_call_b64 s[{S_RET}:{S_RET+1}], {pfx}_BS")
    L(lab)

def hop_subs(pfx):
    if opt.R <= 1: return
    L(f"{pfx}_BF")
    I(f"s_cmp_eq_u32 s{S_NB}, 0")
    I(f"s_cbranch_scc1 {pfx}_BR")
    I(f"s_sub_u32 s{S_NB}, s{S_NB}, 1")
    I("s_barrier")
    I(f"s_branch {pfx}_BF")
    L(f"{pfx}_BS")
    I(f"s_cmp_eq_u32 s{S_NB}, 0")
    I(f"s_cbranch_scc1 {pfx}_BR")
    I(f"s_sub_u32 s{S_NB}, s{S_NB}, 1")
    I("s_barrier")
    if opt.rst:
        I("s_memrealtime s[98:99]")
        I("s_waitcnt lgkmcnt(0)")
        for k in range(7, 0, -1): I(f"s_mov_b32 s{60+k}, s{59+k}")
        I("s_mov_b32 s60, s98")
    I(f"s_sub_u32 s{S_PACE}, s{S_PACE}, s{S_T}")
    I(f"s_cmp_ge_i32 s{S_PACE}, s{S_T}")
    I(f"s_cbranch_scc1 {pfx}_BS")
    L(f"{pfx}_BR")
    I(f"s_setpc_b64 s[{S_RET}:{S_RET+1}]")

def hop_wave(pfx, tbl, sW, gate=None):
    D = opt.D
    I(f"s_min_u32 s{S_T}, s{S_T}, 0x100")
    I(f"s_mov_b32 s{S_DR}, s{S_T}")
    if opt.skipb: I(f"s_mul_i32 s{S_PACE}, s{S_T}, {-opt.skipb}")
    else: I(f"s_mov_b32 s{S_PACE}, 0")
    I(f"s_mov_b32 s{S_R}, {opt.R}")
    I(f"s_mov_b32 s{S_NB}, {min(opt.nbar, opt.R - 1) - opt.skipb}")
    if opt.skewl:
        I(f"s_cmp_ge_u32 s{sW}, {opt.skeww}")
        I(f"s_cselect_b32 s{S_R}, {opt.R - opt.skewl}, s{S_R}")
        if opt.skews:
            I(f"s_cmp_lt_u32 s{sW}, {opt.skews}")
            I(f"s_cselect_b32 s{S_R}, {opt.R + opt.skewl}, s{S_R}")
    if opt.skew:
        I(f"s_cmp_lt_u32 s{sW}, 8")
        I(f"s_cselect_b32 s{S_R}, {opt.R - opt.skew}, s{S_R}")
        I(f"s_cmp_lt_u32 s{sW}, 4")
        I(f"s_cselect_b32 s{S_R}, {opt.R - 2*opt.skew}, s{S_R}")
    for r in range(D):
        rd2(V_DATA + 8 * r, V_PTRC, r)
    rd2(V_RC, V_PTRC, 0)
    I(f"v_add_u32 v{V_PTRI}, {D*64}, v{V_PTRC}")
    I("s_waitcnt lgkmcnt(0)")
    rd2(V_RI, V_PTRI, 0)
    if gate: gate("h")
    I(f"s_cmp_eq_u32 s{S_T}, 0")
    I(f"s_cbranch_scc1 {pfx}_FIN")
    for r in range(D):
        d = V_DATA + 8 * r
        if r > 0:
            I(f"s_cmp_le_u32 s{S_T}, {r}")
            I(f"s_cbranch_scc1 {pfx}_DR0")
            pace_check(pfx)
        I(f"v_mad_u32_u16 v{V_A0}, v{d}, s{S_128}, v{V_F16}")
        I(f"v_mad_u32_u16 v{V_A1}, v{d+1}, s{S_128}, v{V_F16}")
        I(f"buffer_load_dwordx4 v[{d}:{d+3}], v{V_A0}, s[{tbl}:{tbl+3}], 0 offen" + FL[opt.ldg])
        I(f"buffer_load_dwordx4 v[{d+4}:{d+7}], v{V_A1}, s[{tbl}:{tbl+3}], 0 offen" + FL[opt.ldg])
    I(f"s_sub_u32 s{S_REM}, s{S_T}, {D}")
    I(f"s_mov_b32 s{S_DR}, {D}")
    I(f"s_cmp_eq_u32 s{S_REM}, 0")
    I(f"s_cbranch_scc1 {pfx}_DR0")
    L(f"{pfx}_MAIN")
    for r in range(D):
        p = r & 1
        d = V_DATA + 8 * r
        I("s_waitcnt lgkmcnt(0)")
        rd2(V_RC + 2 * (p ^ 1), V_PTRC, r + 1)
        rd2(V_RI + 2 * (p ^ 1), V_PTRI, r + 1)
        perms(p)
        ri = V_RI + 2 * p
        I(f"v_mad_u32_u16 v{V_A0}, v{ri}, s{S_128}, v{V_F16}")
        I(f"v_mad_u32_u16 v{V_A1}, v{ri+1}, s{S_128}, v{V_F16}")
        I(f"s_waitcnt vmcnt({2*(D-1)})")
        mfmas(r)
        pace_check(pfx)
        I(f"buffer_load_dwordx4 v[{d}:{d+3}], v{V_A0}, s[{tbl}:{tbl+3}], 0 offen" + FL[opt.ldg])
        I(f"buffer_load_dwordx4 v[{d+4}:{d+7}], v{V_A1}, s[{tbl}:{tbl+3}], 0 offen" + FL[opt.ldg])
        if r == D - 1:
            I(f"v_add_u32 v{V_PTRC}, {D*64}, v{V_PTRC}")
            I(f"v_add_u32 v{V_PTRI}, {D*64}, v{V_PTRI}")
        I(f"s_sub_u32 s{S_REM}, s{S_REM}, 1")
        I(f"s_cmp_eq_u32 s{S_REM}, 0")
        if r == D - 1:
            I(f"s_cbranch_scc0 {pfx}_MAIN")
        else:
            I(f"s_cbranch_scc1 {pfx}_DR{r+1}")
    for q in range(2 * D - 1):
        r = q % D
        p = q & 1
        if q < D:
            L(f"{pfx}_DR{q}")
            if opt.R > 1:
                lab = uid(pfx + "_DX")
                I(f"s_cmp_eq_u32 s{S_NB}, 0")
                I(f"s_cbranch_scc1 {lab}")
                I(f"s_call_b64 s[{S_RET}:{S_RET+1}], {pfx}_BF")
                L(lab)
        I("s_waitcnt lgkmcnt(0)")
        if q + 1 <= 2 * D - 2:
            rd2(V_RC + 2 * (p ^ 1), V_PTRC, q + 1)
        perms(p)
        I("s_waitcnt vmcnt(0)")
        I(f"s_sub_u32 s{S_DR}, s{S_DR}, 1")
        mfmas(r)
        if q < 2 * D - 2:
            I(f"s_cmp_eq_u32 s{S_DR}, 0")
            I(f"s_cbranch_scc1 {pfx}_FIN")
    L(f"{pfx}_FIN")
    if opt.R > 1:
        lab = uid(pfx + "_DY")
        I(f"s_cmp_eq_u32 s{S_NB}, 0")
        I(f"s_cbranch_scc1 {lab}")
        I(f"s_call_b64 s[{S_RET}:{S_RET+1}], {pfx}_BF")
        L(lab)
    if opt.rst and opt.stamps:
        for k in range(7):
            I(f"s_mov_b32 s86, s{66-k}")
            I(f"s_mov_b32 s87, s99")
            stamp(9 + k, 124, 86)
    I("s_nop 4")

def node_pos(sW, heavy):
    I(f"v_lshrrev_b32 v{V_NB}, 2, v{V_G4}")
    I(f"s_lshl_b32 s45, s{sW}, 4")
    if not heavy:
        I(f"s_lshl_b32 s46, s{sW}, 3")
        I(f"s_add_u32 s46, s46, 96")
        I(f"s_cmp_lt_u32 s{sW}, 12")
        I(f"s_cselect_b32 s45, s45, s46")
    I(f"v_add_u32 v{V_NA}, s45, v{V_NB}")
    I(f"v_add_u32 v{V_NB}, 8, v{V_NA}")

def hop_header(sW, vflag):
    I(f"s_lshl_b32 s45, s{sW}, 2")
    I(f"v_mov_b32 v{V_A0}, s45")
    I(f"v_mov_b32 v{vflag}, {L_HEAVY}")
    I(f"ds_read_b32 v{vflag}, v{vflag}")
    I(f"ds_read_b32 v{V_A1}, v{V_A0} offset:{L_SU}")
    I(f"ds_read_b32 v{V_PTRC}, v{V_A0} offset:{L_WB}")
    node_pos(sW, False)
    I(f"ds_read_u8 v{V_NA}, v{V_NA} offset:{L_ORD}")
    I(f"ds_read_u8 v{V_NB}, v{V_NB} offset:{L_ORD}")
    I("s_waitcnt lgkmcnt(0)")
    I(f"v_readfirstlane_b32 s77, v{vflag}")
    I(f"v_readfirstlane_b32 s{S_T}, v{V_A1}")
    I(f"v_add_u32 v{V_PTRC}, v{V_PTRC}, v{V_G4}")
    lab = uid("HH")
    I(f"s_cmp_lt_u32 s{sW}, 12")
    I(f"s_cbranch_scc1 {lab}")
    I(f"v_mov_b32 v{V_NB}, 0xff")
    L(lab)

def split_fix(pfx, sW):
    lab = uid(pfx + "_SF")
    I(f"s_cmp_lt_u32 s{sW}, 12")
    I(f"s_cbranch_scc1 {lab}")
    for i in range(8):
        I(f"v_add_f32 v{V_ACC+i}, v{V_ACC+i}, v{V_ACC2+i}")
    L(lab)

def heavy_path(pfx, tbl, seg_lo_hi, rec_srd, rech_srd, sB, sW, acc_base, nwaves):
    I("v_mov_b32 v40, 0")
    I("v_mov_b32 v41, 0")
    I("v_mov_b32 v42, 0")
    I("v_mov_b32 v43, 0")
    I("v_lshlrev_b32 v44, 4, v0")
    I(f"v_add_u32 v44, {acc_base}, v44")
    n16 = ACC_BYTES // 16
    for i in range(3):
        I(f"ds_write_b128 v44, v[40:43] offset:{i*16384}")
    I(f"v_cmp_gt_u32 vcc, {n16 - 3072}, v0")
    I("s_and_saveexec_b64 s[60:61], vcc")
    I(f"ds_write_b128 v44, v[40:43] offset:{3*16384}")
    I("s_mov_b64 exec, s[60:61]")
    I("s_waitcnt lgkmcnt(0)")
    I("s_barrier")
    I(f"s_mov_b32 s62, s{sW}")
    I(f"v_lshrrev_b32 v45, 3, v{V_LANE}")
    I(f"s_lshl_b32 s63, s{sB}, 2")
    L(f"{pfx}_HC")
    I("s_lshl_b32 s64, s62, 10")
    I("s_add_u32 s64, s64, s63")
    I(f"s_add_u32 s66, s{seg_lo_hi}, s64")
    I(f"s_addc_u32 s67, s{seg_lo_hi+1}, 0")
    I("s_load_dword s68, s[66:67], 0")
    I(f"s_mul_i32 s69, s62, {RECP}")
    I(f"s_mul_i32 s65, s62, {RECH}")
    I("s_waitcnt lgkmcnt(0)")
    I("s_and_b32 s70, s68, 0xffff")
    I("s_lshr_b32 s71, s68, 16")
    L(f"{pfx}_HI")
    I("s_cmp_ge_u32 s70, s71")
    I(f"s_cbranch_scc1 {pfx}_HN")
    I("v_add_u32 v46, s70, v45")
    I("v_cmp_gt_u32 vcc, s71, v46")
    I("s_and_saveexec_b64 s[60:61], vcc")
    I("v_lshlrev_b32 v47, 2, v46")
    I(f"buffer_load_dword v48, v47, s[{rec_srd}:{rec_srd+3}], s69 offen")
    I("v_lshlrev_b32 v47, 1, v46")
    I(f"buffer_load_ushort v49, v47, s[{rech_srd}:{rech_srd+3}], s65 offen")
    I("s_waitcnt vmcnt(0)")
    I("v_and_b32 v50, 0xffff, v48")
    I("v_lshlrev_b32 v50, 7, v50")
    I(f"v_add_u32 v50, v50, v{V_F16}")
    I(f"buffer_load_dwordx4 v[52:55], v50, s[{tbl}:{tbl+3}], 0 offen" + FL[opt.ldg])
    I("v_and_b32 v51, 0xffff0000, v48")
    I("v_lshrrev_b32 v56, 4, v49")
    I("v_lshlrev_b32 v56, 8, v56")
    I(f"v_lshlrev_b32 v57, 1, v{V_F16}")
    I("v_add_u32 v56, v56, v57")
    I(f"v_add_u32 v56, {acc_base}, v56")
    I("s_waitcnt vmcnt(0)")
    for i in range(4):
        I(f"v_lshlrev_b32 v58, 16, v{52+i}")
        I(f"v_and_b32 v59, 0xffff0000, v{52+i}")
        I("v_mul_f32 v58, v58, v51")
        I("v_mul_f32 v59, v59, v51")
        I(f"ds_add_f32 v56, v58 offset:{8*i}")
        I(f"ds_add_f32 v56, v59 offset:{8*i + 4}")
    I("s_mov_b64 exec, s[60:61]")
    I("s_add_u32 s70, s70, 8")
    I(f"s_branch {pfx}_HI")
    L(f"{pfx}_HN")
    I(f"s_add_u32 s62, s62, {nwaves}")
    I("s_cmp_lt_u32 s62, 256")
    I(f"s_cbranch_scc1 {pfx}_HC")
    I("s_waitcnt lgkmcnt(0)")
    I("s_barrier")

def heavy_read_acc(acc_base, sW):
    node_pos(sW, True)
    for vn, va in ((V_NA, V_ACC), (V_NB, V_ACC2)):
        I(f"v_lshlrev_b32 v{V_A0}, 8, v{vn}")
        I(f"v_lshlrev_b32 v{V_A1}, 1, v{V_F16}")
        I(f"v_add_u32 v{V_A0}, v{V_A0}, v{V_A1}")
        I(f"v_add_u32 v{V_A0}, {acc_base}, v{V_A0}")
        I(f"ds_read_b128 v[{va}:{va+3}], v{V_A0}")
        I(f"ds_read_b128 v[{va+4}:{va+7}], v{V_A0} offset:16")
    I("s_waitcnt lgkmcnt(0)")


def grid_arrive():
    R, SH = opt.brep, opt.bsh
    assert R * SH <= 64
    lsh = SH.bit_length() - 1
    I(f"s_and_b32 s45, s2, {SH-1}")
    I("s_lshl_b32 s45, s45, 7")
    I(f"s_add_u32 s45, s45, {WS_SYNC}")
    I(f"v_lshlrev_b32 v116, {7+lsh}, v{V_LANE}")
    I("v_add_u32 v116, s45, v116")
    I("v_mov_b32 v117, 1")
    I("s_mov_b64 s[72:73], exec")
    I(f"s_mov_b64 exec, {hex((1 << R) - 1)}")
    I("global_atomic_add v116, v117, s[6:7] sc1")
    I("s_mov_b64 exec, s[72:73]")

def grid_poll(pfx):
    R, SH = opt.brep, opt.bsh
    lsh = SH.bit_length() - 1
    NR = 2 if opt.poll2 else 1
    I("s_mov_b64 s[72:73], exec")
    I(f"s_mov_b64 exec, {(1 << (SH * NR)) - 1}")
    I(f"s_lshr_b32 s45, s2, {lsh}")
    I(f"s_and_b32 s45, s45, {R-1}")
    I(f"v_lshrrev_b32 v116, {lsh}, v{V_LANE}")
    I(f"v_mul_u32_u24 v116, {R//2}, v116")
    I(f"v_add_u32 v116, s45, v116")
    I(f"v_and_b32 v116, {R-1}, v116")
    I(f"v_lshlrev_b32 v116, {lsh}, v116")
    I(f"v_and_b32 v117, {SH-1}, v{V_LANE}")
    I(f"v_add_u32 v116, v116, v117")
    I(f"v_lshlrev_b32 v116, 7, v116")
    I(f"v_add_u32 v116, {WS_SYNC}, v116")
    I(f"s_mov_b32 s46, {opt.spin}")
    L(f"{pfx}_POLL")
    I("global_load_dword v118, v116, s[6:7]" + ["", " sc1", " sc0 sc1", " sc1 nt", " sc0 sc1 nt"][opt.pollf])
    I("s_waitcnt vmcnt(0)")
    for k in range(NR):
        for l in range(SH):
            I(f"v_readlane_b32 s{12+(l&3)}, v118, {k*SH+l}")
            if l == 1: I("s_add_u32 s11, s12, s13")
            elif l > 1: I(f"s_add_u32 s11, s11, s{12+(l&3)}")
        if SH == 1: I("s_mov_b32 s11, s12")
        I("s_cmp_ge_u32 s11, 256")
        I(f"s_cbranch_scc1 {pfx}_POLLED")
    if opt.slp:
        if opt.adapt:
            I(f"s_cmp_ge_u32 s11, {opt.adapt}")
            I(f"s_cbranch_scc1 {pfx}_NOSL")
        I(f"s_sleep {opt.slp}")
        if opt.adapt: L(f"{pfx}_NOSL")
    I("s_sub_u32 s46, s46, 1")
    I("s_cmp_eq_u32 s46, 0")
    I(f"s_cbranch_scc0 {pfx}_POLL")
    L(f"{pfx}_POLLED")
    I("s_mov_b64 exec, s[72:73]")

def release_gate(tag):
    lab, lab2 = uid("RG"), uid("RH")
    I(f"s_cmp_eq_u32 s47, 0")
    I(f"s_cbranch_scc1 {lab}")
    I("s_cmp_lg_u32 s10, 0")
    I(f"s_cbranch_scc1 {lab2}")
    I(f"s_call_b64 s[{S_RET}:{S_RET+1}], GPOLL")
    L(lab2)
    I("s_barrier")
    stamp(8, 124)
    L(lab)

def gen_k2():
    name = "sgc_prop_kernel"
    kernel_begin(name)
    I("s_cmp_ge_u32 s2, 256")
    I("s_cbranch_scc1 K2_END")
    if opt.stamps: I("s_memrealtime s[86:87]")
    I("s_load_dwordx2 s[6:7], s[0:1], 56")
    I("s_load_dwordx2 s[4:5], s[0:1], 0")
    I("s_load_dwordx4 s[32:35], s[0:1], 32")
    I("s_and_b32 s8, s2, 7")
    I("s_lshl_b32 s8, s8, 5")
    I("s_lshr_b32 s9, s2, 3")
    I("s_add_u32 s8, s8, s9")
    I("v_readfirstlane_b32 s10, v0")
    I(f"v_and_b32 v{V_LANE}, 63, v0")
    I(f"v_lshrrev_b32 v52, 4, v{V_LANE}")
    I("s_lshr_b32 s10, s10, 6")
    I("s_lshl_b32 s11, s10, 2")
    I("v_add_u32 v52, s11, v52")
    I("s_lshl_b32 s11, s8, 2")
    I("v_lshl_add_u32 v53, v52, 10, s11")
    for r in range(4):
        I(f"s_mov_b32 s{36+r}, {r*65536}")
    I("s_waitcnt lgkmcnt(0)")
    if opt.dbg:
        _cur[0] = 2
        I("v_mov_b32 v127, 0")
        dstamp(0)
    stamp_init(1, 6, 124); stamp(0, 124, 86)
    srd(16, 6, 7, NCH * 1024, WS_SEG)
    SG = lambda r: 56 + r
    for r in range(4):
        I(f"buffer_load_dword v{SG(r)}, v53, s[16:19], s{36+r} offen")
    ntouch = 0
    if opt.tlb:
        srd(20, 6, 7, NCH * RECP, WS_RECP)
        I(f"v_lshlrev_b32 v44, 20, v{V_LANE}")
        I(f"buffer_load_dword v{V_PFD}, v44, s[20:23], 0 offen sc1")
        srd(96, 6, 7, NCH * RECH, WS_RECH)
        I(f"buffer_load_dword v{V_PFD}, v44, s[96:99], 0 offen sc1")
        ntouch = 2
        if opt.tlb >= 2:
            srd(24, 4, 5, TBL_BYTES)
            I(f"buffer_load_dword v{V_PFD}, v44, s[24:27], 0 offen")
            ntouch = 3
    I(f"s_mov_b32 s14, {RECH}")
    I("v_mul_u32_u24 v54, s14, v52")
    I(f"v_and_b32 v55, 15, v{V_LANE}")
    srd(20, 6, 7, NCH * RECP, WS_RECP)
    srd(96, 6, 7, NCH * RECH, WS_RECH)
    for r in range(4):
        I(f"s_mov_b32 s{40+r}, {r*64*RECP}")
    nb, nc = opt.pf2b, opt.pf2c
    def init_block():
        I("v_lshlrev_b32 v108, 4, v0")
        I(f"v_mov_b32 v112, {SAFE}")
        I("v_mov_b32 v113, v112")
        I("v_mov_b32 v114, v112")
        I("v_mov_b32 v115, v112")
        I(f"v_add_u32 v109, {L_LN}, v108")
        I("ds_write_b128 v109, v[112:115]")
        I("v_mov_b32 v116, 0")
        I("v_mov_b32 v117, 0")
        I("v_mov_b32 v118, 0")
        I("v_mov_b32 v119, 0")
        I(f"v_cmp_gt_u32 vcc, {LS_CAP//16}, v0")
        I("s_and_saveexec_b64 s[12:13], vcc")
        I(f"v_add_u32 v109, {L_LS}, v108")
        I("ds_write_b128 v109, v[112:115]")
        I("s_mov_b64 exec, s[12:13]")
        I("v_cmp_gt_u32 vcc, 32, v0")
        I("s_and_saveexec_b64 s[12:13], vcc")
        I("ds_write_b128 v108, v[116:119]")
        I("s_mov_b64 exec, s[12:13]")
        I(f"v_cmp_gt_u32 vcc, {(K2_ZERO_END-L_CNT)//16}, v0")
        I("s_and_saveexec_b64 s[12:13], vcc")
        I(f"ds_write_b128 v108, v[116:119] offset:{L_CNT}")
        I("s_mov_b64 exec, s[12:13]")
        srd(24, 4, 5, TBL_BYTES)
        srd(28, 6, 7, TBL_BYTES, WS_H1)
        if nb: pf_setup(48, nb, (opt.pf1 + opt.pf1h) * 32 * PFU)
        if nc: pf_setup(7, nc, (opt.pf1 + nb) * 32 * PFU)
        hop_consts()
    if not opt.lateinit: init_block()
    SM = lambda t, r: 46 + (t * 4 + r) * 2
    VOFF = lambda r: 60 + r
    VR = lambda t, r: 64 + (t * 4 + r) * 2
    VK = lambda t, r: 88 + t * 4 + r
    VP = lambda t, r: 100 + (t * 4 + r) * 2
    ONE = 40
    VOFP = lambda r: 44 + r
    for r in range(4):
        I(f"s_mov_b32 s{36+r}, {r*64*RECH}")
    I(f"s_waitcnt vmcnt({ntouch})")
    stamp(1, 124)
    I("s_mov_b64 s[70:71], 0")
    I("s_mov_b64 s[72:73], exec")
    for r in range(4):
        I(f"s_mov_b32 s{36+r}, {r*64*RECH}")
    IX = lambda r: 100 + r
    EN = lambda r: 104 + r
    for r in range(4):
        I(f"v_and_b32 v{IX(r)}, 0xffff, v{SG(r)}")
        I(f"v_lshrrev_b32 v{EN(r)}, 16, v{SG(r)}")
        I(f"v_add_u32 v{IX(r)}, v{IX(r)}, v55")
        I(f"v_lshl_add_u32 v{VOFF(r)}, v{IX(r)}, 1, v54")
        I(f"v_cmp_lt_u32 s[{SM(0,r)}:{SM(0,r)+1}], v{IX(r)}, v{EN(r)}")
        I(f"v_add_u32 v41, 16, v{IX(r)}")
        I(f"s_mov_b64 exec, s[{SM(0,r)}:{SM(0,r)+1}]")
        lab = uid("K2_SK")
        I(f"s_cbranch_execz {lab}")
        I(f"buffer_load_ushort v{VR(0,r)+1}, v{VOFF(r)}, s[96:99], s{36+r} offen" + FL[opt.ld2])
        L(lab)
        I("s_mov_b64 exec, s[72:73]")
        I(f"v_cmp_lt_u32 s[{SM(1,r)}:{SM(1,r)+1}], v41, v{EN(r)}")
    for r in range(4):
        lab = uid("K2_SK")
        I(f"s_mov_b64 exec, s[{SM(1,r)}:{SM(1,r)+1}]")
        I(f"s_cbranch_execz {lab}")
        I(f"buffer_load_ushort v{VR(1,r)+1}, v{VOFF(r)}, s[96:99], s{36+r} offen offset:32" + FL[opt.ld2])
        L(lab)
    I("s_mov_b64 exec, s[72:73]")
    for r in range(4):
        I(f"v_add_u32 v42, 32, v{IX(r)}")
        I(f"v_cmp_lt_u32 s[{SM(2,r)}:{SM(2,r)+1}], v42, v{EN(r)}")
        I(f"v_add_u32 v43, 48, v{IX(r)}")
        I(f"v_cmp_lt_u32 vcc, v43, v{EN(r)}")
        I(f"v_lshlrev_b32 v{VOFP(r)}, 1, v{VOFF(r)}")
        I("s_or_b64 s[70:71], s[70:71], vcc")
    I(f"s_or_b64 s[74:75], s[{SM(2,0)}:{SM(2,0)+1}], s[{SM(2,1)}:{SM(2,1)+1}]")
    I(f"s_or_b64 s[74:75], s[74:75], s[{SM(2,2)}:{SM(2,2)+1}]")
    I(f"s_or_b64 s[74:75], s[74:75], s[{SM(2,3)}:{SM(2,3)+1}]")
    I("s_cselect_b32 s83, 1, 0")
    I("s_cbranch_scc0 K2_NT3A")
    for r in range(4):
        lab = uid("K2_SK")
        I(f"s_mov_b64 exec, s[{SM(2,r)}:{SM(2,r)+1}]")
        I(f"s_cbranch_execz {lab}")
        I(f"buffer_load_ushort v{VR(2,r)+1}, v{VOFF(r)}, s[96:99], s{36+r} offen offset:64" + FL[opt.ld2])
        I(f"buffer_load_dword v{VR(2,r)}, v{VOFP(r)}, s[20:23], s{40+r} offen offset:128" + FL[opt.ld2])
        L(lab)
    I("s_mov_b64 exec, s[72:73]")
    L("K2_NT3A")
    I("s_mov_b64 exec, s[72:73]")
    if opt.lateinit: init_block()
    I(f"v_mov_b32 v{ONE}, 1")
    I(f"v_mov_b32 v11, 32")
    I("s_waitcnt lgkmcnt(0)")
    if opt.payafter:
        I("s_barrier")
    for t in range(2):
        for r in range(4):
            I(f"buffer_load_dword v{VR(t,r)}, v{VOFP(r)}, s[20:23], s{40+r} offen" + (f" offset:{64*t}" if t else "") + FL[opt.ld2])
    if not opt.payafter:
        I("s_barrier")
    I("s_waitcnt vmcnt(8)")
    stamp(2, 124)
    for t in range(3):
        if t == 2:
            I("s_cmp_eq_u32 s83, 0")
            I("s_cbranch_scc1 K2_NT3B")
        for r in range(4):
            lab = uid("K2_SC")
            I(f"s_mov_b64 exec, s[{SM(t,r)}:{SM(t,r)+1}]")
            I(f"s_cbranch_execz {lab}")
            I(f"ds_add_rtn_u32 v{VK(t,r)}, v{VR(t,r)+1}, v11 offset:{L_CNT}")
            L(lab)
    L("K2_NT3B")
    I("s_mov_b64 exec, s[72:73]")
    I("s_cmp_eq_u64 s[70:71], 0")
    I("s_cbranch_scc1 K2_NOH")
    I(f"v_mov_b32 v41, {L_HEAVY}")
    I(f"ds_write_b32 v41, v{ONE}")
    L("K2_NOH")
    I("s_waitcnt lgkmcnt(0)")
    I("s_barrier")
    stamp(3, 124)
    I("s_cmp_ge_u32 s10, 4")
    I("s_cbranch_scc1 K2_NOSORT0")
    C = lambda q: 100 + q
    KY, R2, SL, TT, ST, NI = 44, 45, 46, 47, 48, 49
    A, B, Cc, Dd = 116, 117, 118, 119
    I("s_lshl_b32 s12, s10, 6")
    I(f"v_add_u32 v{NI}, s12, v{V_LANE}")
    I(f"v_lshlrev_b32 v{A}, 4, v{NI}")
    I(f"ds_read_b128 v[{C(0)}:{C(3)}], v{A} offset:{L_CNT}")
    I("s_movk_i32 s12, 208")
    I(f"v_cmp_gt_u32 s[74:75], s12, v{NI}")
    I(f"v_lshlrev_b32 v{B}, 2, v{V_LANE}")
    I("s_movk_i32 s76, 0xc0")
    I("s_waitcnt lgkmcnt(0)")
    I(f"v_add_u32 v{TT}, v{C(0)}, v{C(1)}")
    I(f"v_add3_u32 v{TT}, v{TT}, v{C(2)}, v{C(3)}")
    I(f"v_lshrrev_b32 v{TT}, 5, v{TT}")
    I(f"v_min_u32 v{KY}, 63, v{TT}")
    I(f"v_lshlrev_b32 v{KY}, 2, v{KY}")
    I("s_mov_b64 exec, s[74:75]")
    I(f"ds_add_rtn_u32 v{R2}, v{KY}, v{ONE} offset:{L_H2}")
    I("s_mov_b64 exec, s[72:73]")
    I("s_waitcnt lgkmcnt(0)")
    I("s_barrier")
    I(f"ds_read_b32 v{Cc}, v{B} offset:{L_H2}")
    I("s_waitcnt lgkmcnt(0)")
    I(f"v_mov_b32 v{Dd}, v{Cc}")
    wave_scan(Dd)
    I(f"v_sub_u32 v{Dd}, v{Dd}, v{Cc}")
    I("s_nop 0")
    I(f"ds_bpermute_b32 v{SL}, v{KY}, v{Dd}")
    I("s_waitcnt lgkmcnt(0)")
    I(f"v_add_u32 v{R2}, v{R2}, v{SL}")
    I(f"v_cmp_le_u32 s[12:13], s76, v{R2}")
    I(f"v_lshrrev_b32 v{SL}, 4, v{R2}")
    I(f"v_lshrrev_b32 v{Cc}, 3, v{R2}")
    I(f"v_subrev_u32 v{Cc}, 12, v{Cc}")
    I(f"v_mov_b32 v{ST}, 2")
    I(f"v_cndmask_b32_e64 v{SL}, v{SL}, v{Cc}, s[12:13]")
    I(f"v_cndmask_b32_e64 v{ST}, v{ST}, 1, s[12:13]")
    I(f"v_lshlrev_b32 v{SL}, 2, v{SL}")
    I("s_mov_b64 exec, s[74:75]")
    I(f"ds_max_u32 v{SL}, v{TT} offset:{L_WM}")
    I(f"ds_write_b8 v{R2}, v{NI} offset:{L_ORD}")
    I("s_mov_b64 exec, s[72:73]")
    I(f"v_lshlrev_b32 v{KY}, 3, v{ST}")
    I(f"v_subrev_u32 v{KY}, 1, v{KY}")
    I(f"v_and_b32 v{KY}, v{KY}, v{R2}")
    I(f"v_add_u32 v{TT}, v{C(0)}, v{C(1)}")
    I(f"v_add_u32 v{R2}, v{TT}, v{C(2)}")
    I("s_waitcnt lgkmcnt(0)")
    I("s_barrier")
    I(f"ds_read_b32 v{Cc}, v{B} offset:{L_WM}")
    I(f"v_cmp_gt_u32 vcc, 12, v{V_LANE}")
    I("s_waitcnt lgkmcnt(0)")
    I(f"v_add_u32 v{Dd}, 1, v{Cc}")
    I(f"v_lshrrev_b32 v{Dd}, 1, v{Dd}")
    I(f"v_cndmask_b32 v{Cc}, v{Dd}, v{Cc}, vcc")
    I(f"v_lshlrev_b32 v{Dd}, 6, v{Cc}")
    I(f"v_mov_b32 v120, v{Dd}")
    wave_scan(120, 16)
    I("s_nop 1")
    I("v_readlane_b32 s76, v120, 11")
    I("v_readlane_b32 s15, v120, 15")
    I(f"v_sub_u32 v120, v120, v{Dd}")
    I(f"v_add_u32 v121, {L_LN}, v120")
    I(f"s_sub_u32 s14, {L_LS}, s76")
    I("v_add_u32 v120, s14, v120")
    I("v_cndmask_b32 v120, v120, v121, vcc")
    I("s_nop 0")
    I(f"ds_bpermute_b32 v{SL}, v{SL}, v120")
    I("s_cmp_lg_u32 s10, 0")
    I("s_cbranch_scc1 K2_NOHDR")
    I(f"v_cmp_gt_u32 vcc, 16, v{V_LANE}")
    I("s_and_saveexec_b64 s[12:13], vcc")
    I(f"ds_write_b32 v{B}, v120 offset:{L_WB}")
    I(f"ds_write_b32 v{B}, v{Cc} offset:{L_SU}")
    I("s_mov_b64 exec, s[12:13]")
    I("s_sub_u32 s15, s15, s76")
    I(f"s_cmp_gt_u32 s76, {LN_CAP}")
    I("s_cbranch_scc1 K2_CAPBAD")
    I(f"s_cmp_le_u32 s15, {LS_CAP}")
    I("s_cbranch_scc1 K2_NOHDR")
    L("K2_CAPBAD")
    I(f"v_mov_b32 v41, {L_HEAVY}")
    I(f"ds_write_b32 v41, v{ONE}")
    L("K2_NOHDR")
    I("s_waitcnt lgkmcnt(0)")
    I(f"v_lshl_add_u32 v{C(3)}, v{KY}, 2, v{SL}")
    I(f"v_mad_u32_u24 v{C(1)}, v{C(0)}, v{ST}, v{C(3)}")
    I(f"v_mov_b32 v{C(0)}, v{C(3)}")
    I(f"v_mad_u32_u24 v{C(2)}, v{TT}, v{ST}, v{C(0)}")
    I(f"v_mad_u32_u24 v{C(3)}, v{R2}, v{ST}, v{C(0)}")
    I("s_mov_b64 exec, s[74:75]")
    I(f"ds_write_b128 v{A}, v[{C(0)}:{C(3)}] offset:{L_NBQ}")
    I("s_mov_b64 exec, s[72:73]")
    I("s_waitcnt vmcnt(0) lgkmcnt(0)")
    I("s_branch K2_NOSORT")
    L("K2_NOSORT0")
    I("s_waitcnt vmcnt(0)")
    if nb:
        lab = uid("PFX")
        I(f"s_cmp_lt_u32 s10, {16 - nb}")
        I(f"s_cbranch_scc1 {lab}")
        I(f"s_mov_b32 s15, {(16 - nb) * PFU}")
        I(f"v_subrev_u32 v48, s15, v48")
        I(f"buffer_load_dword v{V_PFD}, v48, s[24:27], 0 offen")
        L(lab)
    WR = (112, 116, 120, 28)
    if opt.wh:
        lab = uid("WH")
        I("s_cmp_lt_u32 s10, 14")
        I(f"s_cbranch_scc1 {lab}")
        srd(88, 32, 33, 8192)
        I("s_sub_u32 s15, s10, 14")
        I("s_lshl_b32 s15, s15, 10")
        I(f"v_lshlrev_b32 v49, 4, v{V_LANE}")
        I("v_add_u32 v49, s15, v49")
        I("v_add_u32 v50, 4096, v49")
        for k in range(4):
            I(f"buffer_load_dwordx4 v[{WR[k]}:{WR[k]+3}], v{49 + (k >> 1)}, s[88:91], 0 offen offset:{2048*(k & 1)}")
        L(lab)
    if opt.tlb2:
        lab = uid("TLB")
        I("s_cmp_lg_u32 s10, 11")
        I(f"s_cbranch_scc1 {lab}")
        I(f"v_lshlrev_b32 v44, 21, v{V_LANE}")
        I(f"v_add_u32 v44, {opt.tlb2off}, v44")
        I(f"buffer_load_dword v{V_PFD}, v44, s[24:27], 0 offen")
        if opt.tlb2 >= 3:
            I(f"v_lshlrev_b32 v45, 21, v{V_LANE}")
            I("s_lshl_b32 s15, s8, 7")
            I("v_add_u32 v45, s15, v45")
            I(f"buffer_load_dword v{V_PFD}, v45, s[28:31], 0 offen sc1")
        if opt.tlb2 >= 2:
            srd(88, 34, 35, TBL_BYTES)
            I(f"buffer_load_dword v{V_PFD}, v44, s[88:91], 0 offen")
        L(lab)
    I("s_barrier")
    I("s_barrier")
    L("K2_NOSORT")
    I("s_barrier")
    stamp(4, 124)
    I(f"v_mov_b32 v41, {L_HEAVY}")
    I("ds_read_b32 v41, v41")
    VP1 = lambda t, r: 100 + t * 4 + r
    for t in range(3):
        if t == 2:
            I("s_cmp_eq_u32 s83, 0")
            I("s_cbranch_scc1 K2_NT3C")
        for r in range(4):
            lab = uid("K2_SP")
            I(f"s_mov_b64 exec, s[{SM(t,r)}:{SM(t,r)+1}]")
            I(f"s_cbranch_execz {lab}")
            I(f"ds_read_b32 v{VP1(t,r)}, v{VR(t,r)+1} offset:{L_NBQ}")
            L(lab)
    L("K2_NT3C")
    I("s_mov_b64 exec, s[72:73]")
    I(f"s_lshl_b32 s45, s10, 2")
    I(f"v_mov_b32 v{V_A0}, s45")
    I(f"ds_read_b32 v{V_PTRI}, v{V_A0} offset:{L_SU}")
    I(f"ds_read_b32 v{V_PTRC}, v{V_A0} offset:{L_WB}")
    I(f"v_lshrrev_b32 v{V_NB}, 2, v{V_G4}")
    I(f"s_lshl_b32 s45, s10, 4")
    I(f"s_lshl_b32 s14, s10, 3")
    I(f"s_add_u32 s14, s14, 96")
    I(f"s_cmp_lt_u32 s10, 12")
    I(f"s_cselect_b32 s45, s45, s14")
    I(f"v_add_u32 v{V_NA}, s45, v{V_NB}")
    I(f"v_add_u32 v{V_NB}, 8, v{V_NA}")
    I(f"ds_read_u8 v{V_NA}, v{V_NA} offset:{L_ORD}")
    I(f"ds_read_u8 v{V_NB}, v{V_NB} offset:{L_ORD}")
    I("s_waitcnt lgkmcnt(0)")
    I("v_readfirstlane_b32 s77, v41")
    I(f"v_readfirstlane_b32 s{S_T}, v{V_PTRI}")
    I(f"v_add_u32 v{V_PTRC}, v{V_PTRC}, v{V_G4}")
    if opt.stamps: stamp(12, 124)
    I("s_cmp_lg_u32 s77, 0")
    I("s_cbranch_scc1 K2_NOPLACE")
    for t in range(3):
        if t == 2:
            I("s_cmp_eq_u32 s83, 0")
            I("s_cbranch_scc1 K2_NT3D")
        for r in range(4):
            lab = uid("K2_SW")
            I(f"s_mov_b64 exec, s[{SM(t,r)}:{SM(t,r)+1}]")
            I(f"s_cbranch_execz {lab}")
            I(f"v_mad_u32_u16 v{VP1(t,r)}, v{VK(t,r)}, v{VP1(t,r)}, v{VP1(t,r)} op_sel:[0,1,0,0]")
            I(f"ds_write_b32 v{VP1(t,r)}, v{VR(t,r)}")
            L(lab)
    L("K2_NT3D")
    I("s_mov_b64 exec, s[72:73]")
    L("K2_NOPLACE")
    I("s_waitcnt lgkmcnt(0)")
    if opt.stamps: stamp(13, 124)
    I("s_barrier")
    stamp(5, 124)
    if nc: pf_issue(7, V_PFD, 24, nc, 10)
    S_PH, S_SCR = 47, 83
    I(f"s_mov_b32 s{S_PH}, 0")
    I(f"s_cmp_lt_u32 s10, {NWORK}")
    I("s_cbranch_scc1 K2_KEEP")
    if opt.wh:
        I("s_waitcnt vmcnt(0)")
        for k in range(4):
            I(f"ds_write_b128 v49, v[{(112, 116, 120, 28)[k]}:{(112, 116, 120, 28)[k]+3}] offset:{L_WL + 2048*k}")
        I("s_waitcnt lgkmcnt(0)")
    I("s_cmp_eq_u32 s77, 0")
    I("s_cbranch_scc1 K2_END")
    L("K2_KEEP")
    if not opt.wh:
        srd(16, 32, 33, 8192)
        I("v_lshlrev_b32 v110, 4, v0")
        I("buffer_load_dwordx4 v[112:115], v110, s[16:19], 0 offen")
    L("K2_PHASE")
    I("s_cmp_eq_u32 s77, 0")
    I("s_cbranch_scc1 K2_FAST")
    release_gate("v")
    heavy_path("K2H", 24, 6, 20, 96, 8, 10, K2_ACC, 16)
    heavy_read_acc(K2_ACC, 10)
    I("s_cmp_lt_u32 s10, 13")
    I("s_cbranch_scc1 K2_DONE")
    I(f"s_cmp_lg_u32 s{S_PH}, 0")
    I("s_cbranch_scc1 K2_END")
    I(f"v_mov_b32 v{V_NA}, 0xff")
    I(f"v_mov_b32 v{V_NB}, 0xff")
    I("s_branch K2_DONE")
    L("K2_FAST")
    I(f"s_cmp_eq_u32 s{S_PH}, 0")
    I("s_cbranch_scc1 K2_HOPIN0")
    hop_header(10, 41)
    I("s_branch K2_HOPIN")
    L("K2_HOPIN0")
    I("s_cmp_lt_u32 s10, 12")
    I("s_cbranch_scc1 K2_HOPIN")
    I(f"v_mov_b32 v{V_NB}, 0xff")
    L("K2_HOPIN")
    hop_wave("K2S", 24, 10, release_gate)
    split_fix("K2S", 10)
    L("K2_DONE")
    I(f"s_cmp_lg_u32 s{S_PH}, 0")
    I("s_cbranch_scc1 K2_GEMM")
    stamp(6, 124)
    I("s_lshl_b32 s45, s8, 7")
    for vn, va, t0, ad in ((V_NA, V_ACC, V_T, V_A0), (V_NB, V_ACC2, V_RC, V_A1)):
        for i in range(4):
            I(f"v_cvt_pk_bf16_f32 v{t0+i}, v{va+2*i}, v{va+2*i+1}")
        I(f"v_lshlrev_b32 v{ad}, 15, v{vn}")
        I(f"v_add3_u32 v{ad}, v{ad}, s45, v{V_F16}")
        I(f"buffer_store_dwordx4 v[{t0}:{t0+3}], v{ad}, s[28:31], 0 offen" + FL[opt.st2])
    E_SW, E_AB0, E_AB1, E_AW, E_BP, E_KB = 104, 105, 106, 107, 108, 109
    WF = 72
    if not opt.wh:
        I("v_cmp_gt_u32 vcc, 0x200, v0")
        I("s_and_saveexec_b64 s[72:73], vcc")
        I(f"ds_write_b128 v110, v[112:115] offset:{L_WL}")
        I("s_mov_b64 exec, s[72:73]")
    I(f"s_lshl_b32 s{S_SCR}, s10, 11")
    I(f"s_add_u32 s{S_SCR}, s{S_SCR}, {L_SCR}")
    I(f"v_lshlrev_b32 v60, 2, v{V_G4}")
    I(f"v_xor_b32 v61, v60, v{V_F16}")
    I(f"v_lshlrev_b32 v60, 3, v60")
    I(f"v_add3_u32 v{E_SW}, v60, v61, s{S_SCR}")
    I(f"v_and_b32 v60, 15, v{V_LANE}")
    I(f"v_lshrrev_b32 v{E_KB}, 4, v{V_LANE}")
    I(f"v_and_b32 v61, 7, v60")
    I(f"v_lshlrev_b32 v{E_BP}, 5, v61")
    I(f"v_xor_b32 v62, v{E_KB}, v61")
    I(f"v_lshlrev_b32 v62, 4, v62")
    I(f"v_lshlrev_b32 v63, 7, v60")
    I(f"v_add3_u32 v{E_AB0}, v63, s{S_SCR}, v62")
    I(f"v_xor_b32 v62, 64, v62")
    I(f"v_add3_u32 v{E_AB1}, v63, s{S_SCR}, v62")
    I(f"v_lshrrev_b32 v62, 2, v60")
    I(f"v_lshl_add_u32 v62, v{E_KB}, 3, v62")
    I(f"v_lshlrev_b32 v62, 7, v62")
    I(f"v_and_b32 v63, 3, v{V_LANE}")
    I(f"v_lshl_add_u32 v{E_AW}, v63, 4, v62")
    I(f"v_cmp_gt_u32 s[74:75], 8, v60")
    I(f"v_lshlrev_b32 v{E_KB}, 4, v{E_KB}")
    for i in range(8):
        I(f"v_mov_b32 v{V_ACC+i}, 0")
        I(f"v_mov_b32 v{V_ACC2+i}, 0")
    srd(24, 6, 7, TBL_BYTES, WS_H1)
    I("s_waitcnt vmcnt(0) lgkmcnt(0)")
    srd(28, 34, 35, TBL_BYTES)
    stamp(7, 124)
    if opt.own == 2:
        I(f"buffer_load_dword v{V_PFD}, v{V_A0}, s[24:27], 0 offen")
        I(f"buffer_load_dword v{V_PFD}, v{V_A1}, s[24:27], 0 offen")
    I("s_barrier")
    I("s_cmp_lg_u32 s10, 0")
    I("s_cbranch_scc1 K2_NOPOLL")
    grid_arrive()
    L("K2_NOPOLL")
    if opt.own == 1:
        I(f"buffer_load_dword v{V_PFD}, v{V_A0}, s[24:27], 0 offen")
        I(f"buffer_load_dword v{V_PFD}, v{V_A1}, s[24:27], 0 offen")
    for t in range(4):
        for s in range(2):
            for hh in range(2):
                off = L_WL + s * 4096 + hh * 512 + (t >> 1) * 64 + (t & 1) * 8
                d = WF + (t * 2 + s) * 4 + 2 * hh
                I(f"ds_read_b64_tr_b16 v[{d}:{d+1}], v{E_AW} offset:{off}")
    I(f"s_mov_b32 s{S_PH}, 1")
    I("s_branch K2_PHASE")
    L("K2_GEMM")
    stamp(9, 124)
    E_OUT = E_AW
    I(f"ds_bpermute_b32 v110, v{E_BP}, v{V_NA}")
    I(f"ds_bpermute_b32 v111, v{E_BP}, v{V_NB}")
    for va, t0, off in ((V_ACC, V_T, 0), (V_ACC2, V_RC, 1024)):
        for i in range(4):
            I(f"v_cvt_pk_bf16_f32 v{t0+i}, v{va+2*i}, v{va+2*i+1}")
        I(f"ds_write_b128 v{E_SW}, v[{t0}:{t0+3}] offset:{off}")
    B0, B1 = 40, 44
    I(f"ds_read_b128 v[{B0}:{B0+3}], v{E_AB0}")
    I(f"ds_read_b128 v[{B1}:{B1+3}], v{E_AB1}")
    DD = 56
    I("s_lshl_b32 s45, s8, 7")
    I("s_waitcnt lgkmcnt(1)")
    I(f"v_cndmask_b32_e64 v110, v111, v110, s[74:75]")
    for t in range(4):
        a = WF + (t * 2) * 4
        I(f"v_mfma_f32_16x16x32_bf16 v[{DD+4*t}:{DD+4*t+3}], v[{a}:{a+3}], v[{B0}:{B0+3}], 0")
    I(f"v_lshlrev_b32 v110, 15, v110")
    I("s_waitcnt lgkmcnt(0)")
    for t in range(4):
        a = WF + (t * 2 + 1) * 4
        I(f"v_mfma_f32_16x16x32_bf16 v[{DD+4*t}:{DD+4*t+3}], v[{a}:{a+3}], v[{B1}:{B1+3}], v[{DD+4*t}:{DD+4*t+3}]")
    I(f"v_add3_u32 v{E_OUT}, v110, s45, v{E_KB}")
    O = 48
    I("s_nop 4")
    for half in range(2):
        for k in range(2):
            t = half * 2 + k
            if t == 3: I("s_nop 1")
            I(f"v_cvt_pk_bf16_f32 v{O+half*4+2*k}, v{DD+4*t}, v{DD+4*t+1}")
            I(f"v_cvt_pk_bf16_f32 v{O+half*4+2*k+1}, v{DD+4*t+2}, v{DD+4*t+3}")
        I(f"buffer_store_dwordx4 v[{O+half*4}:{O+half*4+3}], v{E_OUT}, s[28:31], 0 offen" + (" offset:64" if half else "") + FL[opt.st3])
    stamp(10, 124)
    if opt.stamps:
        I("s_waitcnt vmcnt(0)")
        stamp(11, 124)
    if opt.dbg:
        I("s_waitcnt vmcnt(0)")
        dstamp(11)
        lab = uid("DBG")
        I("s_or_b32 s14, s2, s10")
        I("s_cmp_lg_u32 s14, 0")
        I(f"s_cbranch_scc1 {lab}")
        I("s_load_dwordx2 s[92:93], s[0:1], 48")
        I(f"v_lshlrev_b32 v126, 2, v{V_LANE}")
        I("v_add_u32 v125, 0x3000000, v126")
        I("global_load_dword v124, v125, s[6:7] sc1")
        I("s_waitcnt vmcnt(0) lgkmcnt(0)")
        I(f"v_cmp_le_u32 vcc, 12, v{V_LANE}")
        I("s_nop 1")
        I("v_cndmask_b32 v127, v127, v124, vcc")
        I("s_mov_b64 exec, 0xffff")
        I("global_store_dword v126, v127, s[92:93]")
        L(lab)
    L("K2_END")
    I("s_endpgm")
    hop_subs("K2S")
    L("GPOLL")
    grid_poll("G2")
    I(f"s_setpc_b64 s[{S_RET}:{S_RET+1}]")
    I("s_endpgm")
    L("K2_CODE_END")
    return name, 128, 102

HEADER = f"""; Kernarg layout for this problem (64 bytes, ptrs only, base s[0:1]):
; @launch kernel=sgc_part_kernel grid=(256,1,1) block=(K1BLK,1,1) lds={K1_LDS}
; @launch kernel=sgc_prop_kernel grid=(256,1,1) block=(1024,1,1) lds=K2LDS
.amdgcn_target "amdgcn-amd-amdhsa--gfx950"
.text"""

def main():
    for a in sys.argv[2:]:
        k, v = a.split("=")
        assert hasattr(opt, k), k
        setattr(opt, k, int(v))
    h = HEADER.replace("K2LDS", str(K2_LDS)).replace("K1BLK", ("896" if (opt.cpf or opt.k1h) else "832") if opt.k1v == 1 else "448")
    emit(h)
    ks = [gen_k1(), gen_k2()]
    emit('.section .rodata,"a"')
    emit(".p2align 6")
    for (n, v, s) in ks:
        kernel_desc(n, v, s)
        emit(".p2align 6")
    open(sys.argv[1], "w").write("\n".join(out) + "\n")

main()
```
